```python
import torch

def _softmax(x, axis=-1):
    return torch.softmax(x, dim=axis)
def _gelu(x):
    return torch.nn.functional.gelu(x, approximate="tanh")
def _silu(x):
    return torch.nn.functional.silu(x)
def _sigmoid(x):
    return torch.sigmoid(x)
def _layernorm(x, axis=-1, eps=1e-5):
    m = x.mean(dim=axis, keepdim=True)
    v = x.var(dim=axis, keepdim=True, unbiased=False)
    return (x - m) / torch.sqrt(v + eps)
def _scatter_add(tgt, idx, src, axis=0):
    return tgt.clone().index_add_(axis, idx, src)
def _segment_sum(src, seg, n):
    out = torch.zeros((n,) + src.shape[1:], dtype=src.dtype)
    return out.index_add_(0, seg, src)
def _pad(x, pw):
    flat = tuple(v for pair in reversed(pw) for v in pair)
    return torch.nn.functional.pad(x, flat)

kernel_name = 'interleave_layers__grouped_kv_mqa__ssm_conv_h3__prompt'

def setup_inputs():

    _w = (lambda a: (lambda t: t.to(torch.bfloat16) if t.is_floating_point() else t)(torch.as_tensor(a)))
    def _A_setup():
        B, S, D, H = 1, 2048, 576, 32
        Dh = D // H
        return {
            "x": _w((lambda *s: torch.randn(*s, dtype=torch.bfloat16) * 0.05)(B, S, D)),
            "wq": _w((lambda *s: torch.randn(*s, dtype=torch.bfloat16) * 0.05)(D, H * Dh)),
            "wk": _w((lambda *s: torch.randn(*s, dtype=torch.bfloat16) * 0.05)(D, Dh)),
            "wv": _w((lambda *s: torch.randn(*s, dtype=torch.bfloat16) * 0.05)(D, Dh)),
            "wo": _w((lambda *s: torch.randn(*s, dtype=torch.bfloat16) * 0.05)(H * Dh, D)),
        }
    _A_in = _A_setup()

    def _B_setup():
        B, S, D = 1, 2048, 576
        ks = 4
        return {
            "q": _w((lambda *s: torch.randn(*s, dtype=torch.bfloat16) * 0.05)(B, S, D)),
            "k": _w((lambda *s: torch.randn(*s, dtype=torch.bfloat16) * 0.4)(B, S, D)),
            "v": _w((lambda *s: torch.randn(*s, dtype=torch.bfloat16) * 0.4)(B, S, D)),
            "shift_k": _w((lambda *s: torch.randn(*s, dtype=torch.bfloat16) * 0.4)(D, ks) * 0.5),
            "ssm_k": _w((lambda *s: torch.randn(*s, dtype=torch.bfloat16) * 0.8)(D, S) * (1.0 / S ** 0.5)),
            "ssm_D": _w((lambda *s: torch.randn(*s, dtype=torch.bfloat16) * 0.4)(D)),
        }
    _B_in = _B_setup()

    return {
        "A_x": _A_in["x"],
        "A_wq": _A_in["wq"],
        "A_wk": _A_in["wk"],
        "A_wv": _A_in["wv"],
        "A_wo": _A_in["wo"],
        "B_q": _B_in["q"],
        "B_k": _B_in["k"],
        "B_v": _B_in["v"],
        "B_shift_k": _B_in["shift_k"],
        "B_ssm_k": _B_in["ssm_k"],
        "B_ssm_D": _B_in["ssm_D"],
    }

def reference(A_x, A_wq, A_wk, A_wv, A_wo, B_q, B_k, B_v, B_shift_k, B_ssm_k, B_ssm_D):
    def _A_ref(x, wq, wk, wv, wo):
        B, S, D = x.shape
        H = 32
        Dh = D // H
        q = (lambda x, *d: x.permute(*d))((x @ wq).reshape(B, S, H, Dh), 0, 2, 1, 3)
        k = x @ wk
        v = x @ wv
        scores = torch.einsum("bhqd,bkd->bhqk", q, k) * (Dh ** -0.5)
        p = _softmax(scores, axis=-1)
        o = torch.einsum("bhqk,bkd->bhqd", p, v)
        return (lambda x, *d: x.permute(*d))(o, 0, 2, 1, 3).reshape(B, S, H * Dh) @ wo

    def _B_ref(q, k, v, shift_k, ssm_k, ssm_D):
        B, S, D = q.shape
        ks = shift_k.shape[-1]
        k_pad = _pad(k, ((0, 0), (ks - 1, 0), (0, 0)))
        k_shift = torch.zeros_like(k)
        for t in range(ks):
            k_shift = k_shift + k_pad[:, t:t + S, :] * shift_k[:, ks - 1 - t][None, None, :]
        kv = k_shift * v
        L = 2 * S
        kv_pad = _pad(kv, ((0, 0), (0, S), (0, 0)))
        kf_pad = _pad(ssm_k, ((0, 0), (0, S)))
        kv_f = (lambda x, axes=(-2,-1): torch.fft.rfft2(x.float(), dim=axes))(kv_pad[:, None, :, :], axes=(1, 2))
        kf_f = (lambda x, axes=(-2,-1): torch.fft.rfft2(x.float(), dim=axes))(kf_pad[:, None, :], axes=(1, 2))
        kf_f = (lambda x, *d: x.permute(*d))(kf_f, 1, 2, 0)
        y_f = kv_f * kf_f[None, :, :, :]
        y = (lambda x, s, axes=(-2,-1): torch.fft.irfft2(x, s=s, dim=axes).to(torch.bfloat16))(y_f, (1, L), axes=(1, 2))[:, 0, :S, :]
        y = y + kv * ssm_D[None, None, :]
        return q * y

    x = A_x
    x = x + _A_ref(_layernorm(x, axis=-1), A_wq, A_wk, A_wv, A_wo)
    x = x + _B_ref(_layernorm(x, axis=-1), B_k, B_v, B_shift_k, B_ssm_k, B_ssm_D)
    x = x + _A_ref(_layernorm(x, axis=-1), A_wq, A_wk, A_wv, A_wo)
    x = x + _B_ref(_layernorm(x, axis=-1), B_k, B_v, B_shift_k, B_ssm_k, B_ssm_D)
    return x
```

```python
import re

REG_RE = re.compile(r'(?<![\w.])([vas])\[(\d+):(\d+)\]|(?<![\w.\[:])([vas])(\d+)(?![\w:])|(?<!\w)(vcc|exec_lo|exec_hi|exec|m0)(?!\w)')

TRANS = ("v_exp_", "v_log_", "v_rcp_", "v_rsq_", "v_sqrt_", "v_sin_", "v_cos_")
MFMA_PASSES = {
    "v_mfma_f32_32x32x16_bf16": 8, "v_mfma_f32_16x16x32_bf16": 4,
    "v_mfma_f32_32x32x4_2b_bf16": 16, "v_mfma_f32_32x32x8_bf16": 8,
    "v_mfma_f32_16x16x16_bf16": 4,
}
P2I = {2: 0, 4: 1, 8: 2, 16: 3}


def split_ops(s):
    out, depth, cur = [], 0, ""
    for ch in s:
        if ch in "[(":
            depth += 1
        elif ch in "])":
            depth -= 1
        if ch == "," and depth == 0:
            out.append(cur.strip())
            cur = ""
        else:
            cur += ch
    if cur.strip():
        out.append(cur.strip())
    return out


def regs_of(tok):
    res = []
    for m in REG_RE.finditer(tok):
        if m.group(1):
            res += [(m.group(1), i) for i in range(int(m.group(2)), int(m.group(3)) + 1)]
        elif m.group(4):
            res.append((m.group(4), int(m.group(5))))
        else:
            nm = m.group(6)
            if nm == "vcc":
                res += [("vcc", 0)]
            elif nm.startswith("exec"):
                res += [("exec", 0)]
            else:
                res += [("m0", 0)]
    return res


class Ins:
    __slots__ = ("text", "mn", "cls", "rd", "wr", "ops", "passes", "srcc", "srcab", "wide_store_data", "note", "tag")

    def __init__(self, text, tag=None):
        self.text = text
        self.tag = tag
        t = text.split(";")[0].strip()
        parts = t.split(None, 1)
        self.mn = mn = parts[0]
        rest = parts[1] if len(parts) > 1 else ""
        ops = split_ops(rest)
        self.ops = ops
        self.passes = 0
        self.srcc = []
        self.srcab = []
        self.wide_store_data = []
        R = [regs_of(o) for o in ops]
        allr = [r for x in R for r in x]
        rd, wr = [], []
        if mn.endswith(":") or mn.startswith("."):
            self.cls = "label"
        elif mn.startswith("v_mfma"):
            self.cls = "mfma"
            self.passes = MFMA_PASSES[mn]
            wr = R[0]
            self.srcab = R[1] + R[2]
            self.srcc = R[3]
            rd = R[1] + R[2] + R[3]
        elif mn.startswith("v_"):
            base = mn
            self.cls = "trans" if base.startswith(TRANS) else "valu"
            if mn.startswith("v_cmp"):
                wr = R[0]
                rd = [r for x in R[1:] for r in x]
            elif mn.startswith(("v_permlane32_swap", "v_permlane16_swap", "v_swap")):
                wr = R[0] + R[1]
                rd = R[0] + R[1]
            elif mn.startswith(("v_add_co", "v_sub_co", "v_addc_co", "v_subb_co")):
                wr = R[0] + R[1]
                rd = [r for x in R[2:] for r in x]
            else:
                wr = R[0]
                rd = [r for x in R[1:] for r in x]
                if mn.startswith(("v_fmac", "v_dot2c", "v_pk_fmac", "v_writelane")) or "UNUSED_PRESERVE" in t:
                    rd = rd + R[0]
                if "_dpp" in mn or "row_" in t or "quad_perm" in t:
                    rd = rd + R[0]
                if mn.startswith("v_cndmask") and len(ops) == 3:
                    rd = rd + [("vcc", 0)]
            rd = rd + [("exec", 0)]
        elif mn in ("s_waitcnt", "s_nop", "s_barrier", "s_endpgm", "s_sleep", "s_setprio", "s_branch") or mn.startswith("s_cbranch"):
            self.cls = {"s_waitcnt": "wait", "s_nop": "nop", "s_barrier": "barrier"}.get(mn, "ctl")
            if mn in ("s_cbranch_vccz", "s_cbranch_vccnz"):
                rd = [("vcc", 0)]
            if mn in ("s_cbranch_execz", "s_cbranch_execnz"):
                rd = [("exec", 0)]
        elif mn.startswith(("s_load", "s_memtime", "s_memrealtime", "s_buffer_load")):
            self.cls = "smem"
            wr = R[0]
            rd = [r for x in R[1:] for r in x]
        elif mn.startswith("s_"):
            self.cls = "salu"
            if mn.startswith(("s_cmp", "s_bitcmp")):
                rd = allr
            elif "saveexec" in mn:
                wr = R[0] + [("exec", 0)]
                rd = R[1] + [("exec", 0)]
            else:
                wr = R[0]
                rd = [r for x in R[1:] for r in x]
                if mn.startswith(("s_addk", "s_mulk", "s_cmov")):
                    rd += R[0]
        elif mn.startswith(("global_load", "buffer_load")):
            lds = bool(re.search(r'(?<!\w)lds(?!\w)', t))
            if lds:
                self.cls = "vdma"
                rd = allr + [("m0", 0)]
            else:
                self.cls = "vload"
                wr = R[0]
                rd = [r for x in R[1:] for r in x]
                if "d16" in mn:
                    rd += R[0]
        elif mn.startswith(("global_store", "buffer_store", "global_atomic", "buffer_atomic", "buffer_wbl2", "buffer_inv")):
            self.cls = "vstore"
            rd = allr
            if "x4" in mn or "x3" in mn:
                self.wide_store_data = R[0] if mn.startswith("buffer") else R[1]
        elif mn.startswith(("ds_read", "ds_bpermute", "ds_swizzle", "ds_permute")):
            self.cls = "dsread"
            wr = R[0]
            rd = [r for x in R[1:] for r in x]
        elif mn.startswith("ds_"):
            self.cls = "dswrite"
            rd = allr
        else:
            raise ValueError("unknown instruction: " + text)
        self.rd = rd
        self.wr = wr


class State:
    def __init__(self):
        self.vm = {}
        self.lg = {}
        self.sm = set()
        self.haz = {}
        self.nvm = 0

    def copy(self):
        s = State()
        s.vm = dict(self.vm)
        s.lg = dict(self.lg)
        s.sm = set(self.sm)
        s.haz = dict(self.haz)
        return s

    def merge(self, o):
        for k, v in o.vm.items():
            self.vm[k] = min(v, self.vm.get(k, 10 ** 9))
        for k, v in o.lg.items():
            self.lg[k] = min(v, self.lg.get(k, 10 ** 9))
        self.sm |= o.sm
        for k, v in o.haz.items():
            self.haz[k] = min(v, self.haz.get(k, 10 ** 9))

    def same(self, o):
        return self.vm == o.vm and self.lg == o.lg and self.sm == o.sm and self.haz == o.haz


MFMA_VALU = [5, 8, 12, 20]
MFMA_AB = [5, 8, 12, 20]
MFMA_C_OVL = [4, 6, 10, 18]
MFMA_C_SAME = [2, 0, 0, 0]
MFMA_WAR_C = [1, 3, 7, 15]
HORIZON = 24


class Prog:
    def __init__(self):
        self.items = []
        self.subst = {"KVSC": "", "WSC": "", "YSC": "", "PSC": "", "PLD": ""}
        self.stats = {}

    def e(self, text, tag=None, wtok=None):
        if wtok is not None:
            ins = Ins(text.strip())
            for k, v in self.subst.items():
                if k in ins.text:
                    ins = Ins(text.replace(k, v).strip())
            ins.tag = ("tok", wtok)
            self.items.append(ins)
            return
        for line in text.split("\n"):
            line = line.strip()
            if not line or line.startswith(";"):
                continue
            for k, v in self.subst.items():
                line = line.replace(k, v)
            self.items.append(Ins(line.strip(), tag))

    def wait_tok(self, *names):
        self.items.append(("wait_tok", names))

    def raw(self, text):
        self.items.append(("raw", text))

    def label(self, name):
        self.items.append(("raw", name + ":"))

    def comment(self, c):
        self.items.append(("raw", "    ; " + c))

    def fence(self):
        self.items.append(("fence",))

    def join(self, name):
        self.items.append(("raw", name + ":"))
        self.items.append(("fence",))

    def drain(self):
        self.e("s_waitcnt vmcnt(0) lgkmcnt(0)")
        self.e("s_nop 15")
        self.e("s_nop 7")

    def if_begin(self):
        self.items.append(("if_begin",))

    def if_end(self):
        self.items.append(("if_end",))

    def loop_begin(self, name):
        self.items.append(("loop_begin", name))

    def loop_end(self):
        self.items.append(("loop_end",))

    def _step(self, ins, st, out):
        cls = ins.cls
        touched = ins.rd + ins.wr
        need_vm = None
        need_lg = None
        for r in touched:
            if r in st.vm:
                a = st.vm[r]
                need_vm = a if need_vm is None else min(need_vm, a)
            if r in st.lg:
                a = st.lg[r]
                need_lg = a if need_lg is None else min(need_lg, a)
            if r in st.sm:
                need_lg = 0
        if need_vm is not None or need_lg is not None:
            w = "s_waitcnt"
            if need_vm is not None:
                need_vm = min(need_vm, 63)
                w += f" vmcnt({need_vm})"
            if need_lg is not None:
                if st.sm:
                    need_lg = 0
                need_lg = min(need_lg, 15)
                w += f" lgkmcnt({need_lg})"
            self._apply(Ins(w), st, out, auto=True)
        need = 0

        def chk(kind, regs, table=None, const=None):
            nonlocal need
            for r in regs:
                for key, dist in list(st.haz.items()):
                    pass

        H = st.haz

        def req(kind, r, n):
            nonlocal need
            d = H.get((kind, r))
            if d is not None and d < n:
                need = max(need, n - d)

        isv = cls in ("valu", "trans")
        if cls == "mfma":
            for r in ins.rd:
                req("valuw", r, 2)
            pi = P2I[ins.passes]
            for r in ins.srcab:
                for p in (2, 4, 8, 16):
                    req(("mfmaw", p), r, MFMA_AB[P2I[p]])
            cset = tuple(ins.srcc)
            for r in ins.srcc:
                for p in (2, 4, 8, 16):
                    key = (("mfmaw", p), r)
                    if key in H:
                        same = H.get((("mfmad", p), r))
                        exact = (st_exact(st, r) == cset) and p == ins.passes
                        n = MFMA_C_SAME[P2I[p]] if exact else MFMA_C_OVL[P2I[p]]
                        req(("mfmaw", p), r, n)
            for r in ins.wr:
                if r not in ins.srcc:
                    for p in (2, 4, 8, 16):
                        req(("mfmaw", p), r, MFMA_C_OVL[P2I[p]])
            req("execw", ("exec", 0), 4)
        if isv:
            for r in ins.rd + ins.wr:
                for p in (2, 4, 8, 16):
                    req(("mfmaw", p), r, MFMA_VALU[P2I[p]])
            for r in ins.wr:
                for p in (2, 4, 8, 16):
                    req(("mfmac", p), r, MFMA_WAR_C[P2I[p]])
                req("widest", r, 2)
            if cls == "valu" or True:
                for r in ins.rd:
                    if cls == "valu":
                        req("transw", r, 1)
                    if r[0] in ("s", "vcc"):
                        req("valusw", r, 2)
            if ins.mn.startswith("v_permlane"):
                for r in ins.rd:
                    req("valuw", r, 2)
            if ins.mn.startswith(("v_readlane", "v_readfirstlane")):
                for r in ins.rd:
                    req("valuw", r, 1)
            if "_dpp" in ins.mn or "row_" in ins.text or "quad_perm" in ins.text:
                for r in ins.rd:
                    req("valuw", r, 2)
                req("execw", ("exec", 0), 5)
        if cls in ("vload", "vstore", "vdma", "dsread", "dswrite"):
            for r in ins.rd + ins.wr:
                for p in (2, 4, 8, 16):
                    req(("mfmaw", p), r, MFMA_VALU[P2I[p]])
                if r[0] == "s":
                    req("valusw", r, 5)
            if cls == "vdma":
                req("saluw", ("m0", 0), 1)
            for r in ins.wr:
                req("widest", r, 1)
        if cls == "salu" or cls == "ctl" or cls == "smem":
            for r in ins.rd:
                if r[0] in ("s", "vcc"):
                    req("valusw", r, 4 if cls != "ctl" else 1)
        if need > 0:
            while need > 0:
                k = min(need, 16)
                self._apply(Ins(f"s_nop {k - 1}"), st, out, auto=True)
                need -= k
        self._apply(ins, st, out)

    def _apply(self, ins, st, out, auto=False):
        cls = ins.cls
        n = 1
        if cls == "nop":
            n = int(ins.ops[0]) + 1
        H = st.haz
        for k in list(H.keys()):
            v = H[k] + n
            if v >= HORIZON:
                del H[k]
            else:
                H[k] = v
        if cls == "wait":
            t = ins.text
            m = re.search(r"vmcnt\((\d+)\)", t)
            if m:
                c = int(m.group(1))
                st.vm = {r: a for r, a in st.vm.items() if a < c}
            m = re.search(r"lgkmcnt\((\d+)\)", t)
            if m:
                c = int(m.group(1))
                st.lg = {r: a for r, a in st.lg.items() if a < c}
                if c == 0:
                    st.sm = set()
        if cls in ("vload", "vstore", "vdma"):
            for r in st.vm:
                st.vm[r] += 1
            if cls == "vload":
                for r in ins.wr:
                    st.vm[r] = 0
            if isinstance(ins.tag, tuple) and ins.tag[0] == "tok":
                st.vm[ins.tag] = 0
            if ins.wide_store_data:
                for r in ins.wide_store_data:
                    H[("widest", r)] = 0
        if cls in ("dsread", "dswrite"):
            for r in st.lg:
                st.lg[r] += 1
            if cls == "dsread":
                for r in ins.wr:
                    st.lg[r] = 0
            if isinstance(ins.tag, tuple) and ins.tag[0] == "tok":
                st.lg[ins.tag] = 0
            if cls == "dswrite" and ("b128" in ins.mn or "b96" in ins.mn):
                for r in ins.rd[1:]:
                    H[("widest", r)] = 0
        if cls == "smem":
            for r in ins.wr:
                st.sm.add(r)
        if cls in ("valu", "trans"):
            for r in ins.wr:
                if r[0] in ("v", "a"):
                    H[("valuw", r)] = 0
                    if cls == "trans":
                        H[("transw", r)] = 0
                    else:
                        H.pop(("transw", r), None)
                elif r[0] in ("s", "vcc"):
                    H[("valusw", r)] = 0
                elif r[0] == "exec":
                    H[("execw", r)] = 0
        if cls == "salu":
            for r in ins.wr:
                H[("saluw", r)] = 0
                H.pop(("valusw", r), None)
        if cls == "mfma":
            for r in ins.wr:
                for p in (2, 4, 8, 16):
                    H.pop((("mfmaw", p), r), None)
                H[(("mfmaw", ins.passes), r)] = 0
                st_set_exact(st, r, tuple(ins.wr))
            for r in ins.srcc:
                H[(("mfmac", ins.passes), r)] = 0
        out.append((ins, auto))

    def finalize(self):
        out_lines = []
        self.nauto_nop = 0
        st = State()
        st.exact = {}
        items = self.items
        i = 0

        def run(seq, st):
            out = []
            ifstack = []
            j = 0
            while j < len(seq):
                it = seq[j]
                if isinstance(it, Ins):
                    self._step(it, st, out)
                elif it[0] == "raw":
                    out.append((it[1], False))
                elif it[0] == "fence":
                    ex = getattr(st, "exact", {})
                    st.vm, st.lg, st.sm, st.haz = {}, {}, set(), {}
                elif it[0] == "wait_tok":
                    nv = [st.vm[("tok", n)] for n in it[1] if ("tok", n) in st.vm]
                    nl = [st.lg[("tok", n)] for n in it[1] if ("tok", n) in st.lg]
                    if nv or nl:
                        w = "s_waitcnt"
                        if nv:
                            w += f" vmcnt({min(min(nv), 63)})"
                        if nl:
                            w += f" lgkmcnt({0 if st.sm else min(min(nl), 15)})"
                        self._apply(Ins(w), st, out, auto=True)
                elif it[0] == "if_begin":
                    c = st.copy()
                    c.exact = dict(st.exact)
                    ifstack.append(c)
                elif it[0] == "if_end":
                    c = ifstack.pop()
                    st.merge(c)
                    for r in list(st.exact.keys()):
                        if c.exact.get(r) != st.exact[r]:
                            st.exact[r] = None
                elif it[0] == "loop_begin":
                    depth = 1
                    k = j + 1
                    while depth:
                        if not isinstance(seq[k], Ins):
                            if seq[k][0] == "loop_begin":
                                depth += 1
                            elif seq[k][0] == "loop_end":
                                depth -= 1
                        k += 1
                    body = seq[j + 1:k - 1]
                    entry = st.copy()
                    entry.exact = dict(st.exact)
                    for _ in range(12):
                        s2 = entry.copy()
                        s2.exact = dict(entry.exact)
                        o = run(body, s2)
                        e2 = entry.copy()
                        e2.merge(s2)
                        e2.exact = dict(s2.exact)
                        if e2.same(entry):
                            break
                        entry = e2
                    else:
                        raise RuntimeError("loop analysis did not converge")
                    out.append((it[1] + ":", False))
                    out += o
                    st.vm, st.lg, st.sm, st.haz = s2.vm, s2.lg, s2.sm, s2.haz
                    st.exact = s2.exact
                    j = k - 1
                j += 1
            return out

        res = run(items, st)
        lines = []
        self.count = {}
        for x, auto in res:
            if isinstance(x, Ins):
                lines.append("    " + x.text + ("    ; auto" if auto else ""))
                self.count[x.cls] = self.count.get(x.cls, 0) + 1
                if auto and x.cls == "nop":
                    self.nauto_nop += 1
            else:
                lines.append(x)
        self.final = res
        return "\n".join(lines) + "\n"


def st_exact(st, r):
    return getattr(st, "exact", {}).get(r)


def st_set_exact(st, r, t):
    if not hasattr(st, "exact"):
        st.exact = {}
    st.exact[r] = t


def vr(a, n=1):
    return f"v{a}" if n == 1 else f"v[{a}:{a + n - 1}]"


def ar(a, n=1):
    return f"a{a}" if n == 1 else f"a[{a}:{a + n - 1}]"


def sr(a, n=1):
    return f"s{a}" if n == 1 else f"s[{a}:{a + n - 1}]"
```

```python
from common import *
from parts import LDS_XB, LDS_XB_END

A_QF = LDS_XB_END
A_QL = A_QF + 2048
A_OP = A_QL + 1024
A_OB = A_OP + 24576
A_OL = A_OB + 2048 + 256
A_FL = A_OL + 1024
A_END = A_FL + 256

A_K0 = 0
A_KL = 64
A_VT = 80
A_O = 208

SB = [16, 48]
QC = 80
QLR = 88
XA = 96
WR = 132
NR = 9
XR = 168
QA = 180
QT = 184
OF = 188
OFL = 196
RT = 200
V_WQ, V_WO = 232, 233
V_OPW, V_R1, V_R2, V_OBW, V_OLW, V_QFW, V_QL = 234, 235, 236, 237, 238, 239, 240
V_RC = 242
S_PH = 82
S_FAIL = 84
L_LO = 0x1f800000
L_RANGE = 0x5f800000 - L_LO


def cost(text):
    mn = text.split()[0]
    if mn.startswith("v_exp") or mn.startswith("v_rcp"):
        return 8
    if mn.startswith("v_mfma"):
        return 4 if "x4_2b" in mn else 8
    return 4


def pipe(text):
    mn = text.split()[0]
    if "32x32x16" in mn:
        return 32
    if "16x16x32" in mn:
        return 16
    if "x4_2b" in mn:
        return 64
    return 0


def addr_setup(p):
    t = S_T0
    p.e(f"s_mul_i32 s{t}, s{S_W}, 6144")
    p.e(f"s_add_u32 s{t}, s{t}, {A_OP}")
    p.e(f"v_add_u32 v{V_OPW}, s{t}, v{V_L16}")
    p.e(f"s_lshr_b32 s{t + 1}, s{S_W}, 1")
    p.e(f"s_and_b32 s{t + 2}, s{S_W}, 1")
    p.e(f"s_mul_i32 s{t + 3}, s{t + 1}, 3072")
    p.e(f"s_add_u32 s{t + 3}, s{t + 3}, {A_OP}")
    p.e(f"s_lshl_b32 s{t + 4}, s{t + 2}, 10")
    p.e(f"s_add_u32 s{t + 4}, s{t + 4}, s{t + 3}")
    p.e(f"v_add_u32 v{V_R1}, s{t + 4}, v{V_L16}")
    p.e(f"v_and_b32 v{V_T0}, 31, v{V_LANE}")
    p.e(f"v_lshlrev_b32 v{V_T0 + 1}, 4, v{V_T0}")
    p.e(f"s_add_u32 s{t + 3}, s{t + 3}, 2048")
    p.e(f"v_add_u32 v{V_R2}, s{t + 3}, v{V_T0 + 1}")
    p.e(f"s_lshl_b32 s{t + 3}, s{t + 1}, 10")
    p.e(f"s_lshl_b32 s{t + 4}, s{t + 2}, 3")
    p.e(f"s_add_u32 s{t + 3}, s{t + 3}, s{t + 4}")
    p.e(f"s_add_u32 s{t + 4}, s{t + 3}, {A_OB}")
    p.e(f"v_add_u32 v{V_OBW}, s{t + 4}, v{V_L16}")
    p.e(f"s_add_u32 s{t + 4}, s{t + 3}, {A_QF}")
    p.e(f"v_add_u32 v{V_QFW}, s{t + 4}, v{V_L16}")
    p.e(f"v_lshlrev_b32 v{V_OLW}, 4, v{V_N}")
    p.e(f"v_lshrrev_b32 v{V_T0}, 4, v{V_T0}")
    p.e(f"v_lshl_add_u32 v{V_OLW}, v{V_T0}, 2, v{V_OLW}")
    p.e(f"s_lshl_b32 s{t + 3}, s{t + 1}, 3")
    p.e(f"s_add_u32 s{t + 3}, s{t + 3}, {A_OL - 256}")
    p.e(f"v_add_u32 v{V_OLW}, s{t + 3}, v{V_OLW}")
    p.e(f"v_lshlrev_b32 v{V_QL}, 2, v{V_LANE}")
    p.e(f"v_add_u32 v{V_QL}, {A_QL}, v{V_QL}")


def load_kv(p, s_kv):
    a = V_T0
    p.e(f"s_lshl_b32 s{S_T0}, s{S_W}, 14")
    p.e(f"v_add_u32 v{a}, s{S_T0}, v{V_L16}")
    p.e(f"v_add_u32 v{a}, 4096, v{a}")
    for i in range(16):
        if i == 8:
            p.e(f"v_add_u32 v{a}, 8192, v{a}")
        p.e(f"global_load_dwordx4 {ar(A_K0 + 4 * i, 4)}, v{a}, {sr(s_kv, 2)} offset:{(i % 8) * 1024 - 4096} PLD")
    p.e(f"s_lshl_b32 s{S_T0}, s{S_W}, 12")
    p.e(f"s_add_u32 s{S_T0}, s{S_T0}, {hx(L.KV_KL)}")
    p.e(f"v_lshlrev_b32 v{a + 1}, 3, v{V_LANE}")
    p.e(f"v_add_u32 v{a + 1}, s{S_T0}, v{a + 1}")
    for i in range(8):
        p.e(f"global_load_dwordx2 {ar(A_KL + 2 * i, 2)}, v{a + 1}, {sr(s_kv, 2)} offset:{512 * i} PLD")
    p.e(f"s_lshl_b32 s{S_T0}, s{S_W}, 15")
    p.e(f"s_add_u32 s{S_T0}, s{S_T0}, {hx(L.KV_VF + 4096)}")
    p.e(f"v_add_u32 v{a + 2}, s{S_T0}, v{V_L16}")
    for i in range(32):
        if i and i % 8 == 0:
            p.e(f"v_add_u32 v{a + 2}, 8192, v{a + 2}")
        p.e(f"global_load_dwordx4 {ar(A_VT + 4 * i, 4)}, v{a + 2}, {sr(s_kv, 2)} offset:{(i % 8) * 1024 - 4096} PLD")


def qk_mfmas(kt, Y):
    k0 = ar(A_K0 + 4 * kt, 4)
    kl = ar(A_KL + 2 * (kt // 2), 2)
    m2 = f"v_mfma_f32_32x32x16_bf16 {vr(Y, 16)}, {k0}, {vr(QC, 4)}, 0"
    m3 = f"v_mfma_f32_32x32x16_bf16 {vr(Y + 16, 16)}, {k0}, {vr(QC + 4, 4)}, 0"
    m1 = f"v_mfma_f32_32x32x4_2b_bf16 {vr(Y, 32)}, {kl}, {vr(QLR, 2)}, {vr(Y, 32)} cbsz:1 abid:{kt % 2}"
    return m2, m3, m1


def pv_mfma(kt, X, T, t):
    c = "0" if (kt == 0 and t == 0) else ar(A_O + 16 * T, 16)
    return f"v_mfma_f32_32x32x16_bf16 {ar(A_O + 16 * T, 16)}, {ar(A_VT + 8 * kt + 4 * t, 4)}, {vr(X + 16 * T + 8 * t, 4)}, {c}"


def wload(i):
    r = WR + 4 * (i % NR)
    j = i % 36
    out = []
    if j < 18:
        if j in (8, 16):
            out.append(f"v_add_u32 v{V_WQ}, 8192, v{V_WQ}")
        out.append(f"global_load_dwordx4 {vr(r, 4)}, v{V_WQ}, s[{S_WS}:{S_WS + 1}] offset:{(j % 8) * 1024 - 4096} PLD")
        if j == 17:
            out.append(f"v_add_u32 v{V_WQ}, {4 * 18432 - 16384}, v{V_WQ}")
    else:
        j -= 18
        T, t = j // 9, j % 9
        off = (T * 36 + t) * 1024
        out.append(("WO", r, off))
    return out


def phase_body(p, name):
    main = []
    for kt in range(16):
        X = SB[kt % 2]
        idx = 0
        for blk in range(4):
            b = X + 8 * blk
            for i in range(8):
                main.append((kt, idx, f"v_exp_f32 v{b + i}, v{b + i}"))
                idx += 1
            for i in range(4):
                main.append((kt, idx, f"v_cvt_pk_bf16_f32 v{b + i}, v{b + 2 * i}, v{b + 2 * i + 1}"))
                idx += 1
    mm = []
    for kt in range(16):
        X = SB[kt % 2]
        Y = SB[(kt + 1) % 2]
        nk = (kt + 1) % 16
        m2, m3, m1 = qk_mfmas(nk, Y)
        pk = (kt - 1) % 16
        mm.append(dict(n=f"pv11_{pk}", t=pv_mfma(pk, Y, 1, 1), kt=kt, pos=1, gap=0, req=[], pr=3))
        req2 = ["qread"] if kt == 15 else []
        mm.append(dict(n=f"m2_{kt}", t=m2, kt=kt, pos=-1, gap=0, req=req2, pr=0))
        mm.append(dict(n=f"m3_{kt}", t=m3, kt=kt, pos=-1, gap=0, req=[f"pv11_{pk}", f"m2_{kt}"], pr=1))
        mm.append(dict(n=f"m1_{kt}", t=m1, kt=kt, pos=-1, gap=0, req=[], reqi=[(f"m3_{kt}", 10)], pr=2))
        mm.append(dict(n=f"pv00_{kt}", t=pv_mfma(kt, X, 0, 0), kt=kt, pos=13, gap=0, req=(["wT0"] if kt == 0 else []), pr=4))
        mm.append(dict(n=f"pv01_{kt}", t=pv_mfma(kt, X, 0, 1), kt=kt, pos=25, gap=0, req=[f"pv00_{kt}"], pr=5))
        mm.append(dict(n=f"pv10_{kt}", t=pv_mfma(kt, X, 1, 0), kt=kt, pos=37, gap=0, req=(["wT1"] if kt == 0 else []), pr=6))
    side = []

    def S(t, **kw):
        side.append(dict(t=t, **kw))

    TILE = 425
    for g in range(3):
        S(f"ds_write_b128 v{V_OPW}, {ar(A_O + 4 * g, 4)} offset:{g * 1024}", wtok="OP", ev=("wT0" if g == 2 else None))
    for k in range(3):
        S(f"ds_read_b128 {vr(XR + 4 * k, 4)}, v{V_L16} offset:{LDS_XB + 1024 * k}")
    for g in range(3):
        S(f"ds_write_b128 v{V_OPW}, {ar(A_O + 16 + 4 * g, 4)} offset:{3072 + g * 1024}", wtok="OP",
          reqi=[("pv11_15", 13)] if g == 0 else [], ev=("wT1" if g == 2 else None))

    def qstep(i, nb):
        c = "0" if i == 0 else vr(QA, 4)
        S(f"v_mfma_f32_16x16x32_bf16 {vr(QA, 4)}, {vr(WR + 4 * (i % NR), 4)}, {vr(XR + 4 * (i % 3), 4)}, {c}", nb=nb, ev=f"q{i}")
        for t in wl(i + NR):
            S(t)
        if i + 3 < 18:
            S(f"ds_read_b128 {vr(XR + 4 * (i % 3), 4)}, v{V_L16} offset:{LDS_XB + 1024 * (i + 3)}")

    def wl(i):
        out = []
        for t in wload(i):
            if isinstance(t, tuple):
                _, r, off = t
                out += wo_load(r, off)
            else:
                out.append(t)
        return out

    wo_state = {"base": 0}

    def wo_load(r, off):
        o = []
        if not (0 <= off - wo_state["base"] <= 7168):
            o.append(f"v_add_u32 v{V_WO}, {off - wo_state['base']}, v{V_WO}")
            wo_state["base"] = off
        o.append(f"global_load_dwordx4 {vr(r, 4)}, v{V_WO}, s[{S_WS}:{S_WS + 1}] offset:{off - wo_state['base'] - 4096} PLD")
        if off == (36 + 8) * 1024:
            o.append(f"v_add_u32 v{V_WO}, {72 * 1024 - wo_state['base']}, v{V_WO}")
            wo_state["base"] = 0
        return o

    q_t0 = TILE * 1.1
    q_dt = 175
    for i in range(0, 3):
        qstep(i, q_t0 + q_dt * i)
    S("WAIT OP")
    S("s_barrier", ev="B1")
    for w in range(4):
        S(f"ds_read_b128 {vr(RT + 16 + 4 * w, 4)}, v{V_R2} offset:{w * 6144}")
    for w in range(4):
        S(f"ds_read_b128 {vr(RT + 4 * w, 4)}, v{V_R1} offset:{w * 6144}", ev=("rread" if w == 3 else None))
    for i in range(3, 5):
        qstep(i, q_t0 + q_dt * i)
    red = []
    L2 = RT + 16
    red.append(f"v_pk_add_f32 {vr(L2, 2)}, {vr(L2, 2)}, {vr(L2 + 4, 2)}")
    red.append(f"v_pk_add_f32 {vr(L2 + 8, 2)}, {vr(L2 + 8, 2)}, {vr(L2 + 12, 2)}")
    red.append(f"v_add_f32 v{L2 + 2}, v{L2 + 2}, v{L2 + 6}")
    red.append(f"v_add_f32 v{L2 + 10}, v{L2 + 10}, v{L2 + 14}")
    red.append(f"v_pk_add_f32 {vr(L2, 2)}, {vr(L2, 2)}, {vr(L2 + 8, 2)}")
    red.append(f"v_add_f32 v{L2 + 2}, v{L2 + 2}, v{L2 + 10}")
    red.append(f"v_rcp_f32 v{V_RC}, v{L2 + 2}")
    red.append(f"v_subrev_u32 v{V_RC + 1}, {hx(L_LO)}, v{L2 + 2}")
    red.append(f"v_cmp_le_u32 vcc, {hx(L_RANGE)}, v{V_RC + 1}")
    for h in range(2):
        red.append(f"v_pk_add_f32 {vr(RT + 2 * h, 2)}, {vr(RT + 2 * h, 2)}, {vr(RT + 4 + 2 * h, 2)}")
        red.append(f"v_pk_add_f32 {vr(RT + 8 + 2 * h, 2)}, {vr(RT + 8 + 2 * h, 2)}, {vr(RT + 12 + 2 * h, 2)}")
    red.append(f"s_or_b64 s[{S_FAIL}:{S_FAIL + 1}], s[{S_FAIL}:{S_FAIL + 1}], vcc")
    for h in range(2):
        red.append(f"v_pk_add_f32 {vr(RT + 2 * h, 2)}, {vr(RT + 2 * h, 2)}, {vr(RT + 8 + 2 * h, 2)}")
    red.append(f"v_pk_mul_f32 {vr(L2, 2)}, {vr(L2, 2)}, {vr(V_RC, 2)} op_sel_hi:[1,0]")
    for h in range(2):
        red.append(f"v_pk_mul_f32 {vr(RT + 2 * h, 2)}, {vr(RT + 2 * h, 2)}, {vr(V_RC, 2)} op_sel_hi:[1,0]")
    red.append(f"v_cvt_pk_bf16_f32 v{L2 + 4}, v{L2}, v{L2 + 1}")
    red.append(f"v_cvt_pk_bf16_f32 v{RT + 4}, v{RT}, v{RT + 1}")
    red.append(f"v_cvt_pk_bf16_f32 v{RT + 5}, v{RT + 2}, v{RT + 3}")
    first = True
    for t in red:
        S(t, reqc=[("rread", 220)] if first else [])
        first = False
    S(f"ds_write_b32 v{V_OLW}, v{L2 + 4}", wtok="OB")
    S(f"ds_write_b64 v{V_OBW}, {vr(RT + 4, 2)}", wtok="OB")
    S(f"v_add_u32 v{V_OLW}, 256, v{V_OLW}")
    for i in range(5, 18):
        qstep(i, q_t0 + q_dt * i)
    S(f"v_cvt_pk_bf16_f32 v{QT}, v{QA}, v{QA + 1}", reqi=[("q17", 9)])
    S(f"v_cvt_pk_bf16_f32 v{QT + 1}, v{QA + 2}, v{QA + 3}")
    S(f"ds_write_b64 v{V_QFW}, {vr(QT, 2)}", wtok="OB", ev="qfw")
    S("WAIT OB", reqc=[("qfw", 120)])
    S("s_barrier", ev="B2")
    for T in range(2):
        S(f"ds_read_b128 {vr(OF + 4 * T, 4)}, v{V_L16} offset:{A_OB + 1024 * T}", ev=("ofr" if T == 1 else None))
    o_t0 = q_t0 + q_dt * 18 + 350
    o_dt = (16 * TILE - 250 - o_t0) / 18
    for j in range(18):
        i = 18 + j
        T, t = j // 9, j % 9
        S(f"v_mfma_f32_16x16x32_bf16 {vr(XA + 4 * t, 4)}, {vr(WR + 4 * (i % NR), 4)}, {vr(OF + 4 * T, 4)}, {vr(XA + 4 * t, 4)}",
          nb=o_t0 + o_dt * j, reqc=[("ofr", 140)] if j == 0 else [])
        for tt in wl(i + NR):
            S(tt)
    import os
    X = os.environ.get("EXP", "")
    if X:
        keep = []
        for d in side:
            t = d["t"]
            isw = t.startswith("global_load")
            if "noside" in X:
                if d.get("ev") in ("wT0", "wT1", "B2") or t.startswith("s_barrier"):
                    keep.append(d)
                continue
            if "nowload" in X and isw:
                continue
            if "nobar" in X and t.startswith("s_barrier"):
                d = dict(d); d["t"] = "s_nop 0"
            if "nsm" in X and "16x16x32" in t:
                d = dict(d); d["t"] = "s_nop 0"
            if "nods" in X and t.startswith("ds_") :
                d = dict(d); d["t"] = "s_nop 0"; d["wtok"] = None
            keep.append(d)
        side = keep
        for d in side:
            for key in ("reqi", "reqc"):
                if d.get(key):
                    evs = {x.get("ev") for x in side} | {m["n"] for m in mm}
                    d[key] = [r for r in d[key] if r[0] in evs]
    qread = [f"ds_read_b128 {vr(QC, 4)}, v{V_L16} offset:{A_QF}",
             f"ds_read_b128 {vr(QC + 4, 4)}, v{V_L16} offset:{A_QF + 1024}",
             f"v_add_u32 v{V_QL}, 256, v{V_QL}",
             f"ds_read_b32 v{QLR}, v{V_QL}"]

    now = 0
    pipe_free = 0
    nins = 0
    ev_i, ev_t = {}, {}
    mi = 0
    si = 0
    qi = 0
    done = set()
    out = []
    cur_pos = {kt: -1 for kt in range(17)}
    cur_kt = 0

    def emit(t, wtok=None, ev=None):
        nonlocal now, pipe_free, nins
        if t.startswith("WAIT"):
            out.append(("wait", t.split()[1]))
            return
        pd = pipe(t)
        if pd:
            if pipe_free > now:
                now = pipe_free
            pipe_free = now + pd
        now += cost(t)
        nins += 1
        out.append(("e", t, wtok))
        if ev:
            ev_i[ev] = nins
            ev_t[ev] = now
            done.add(ev)

    def ready(d):
        for r in d.get("req", []):
            if r not in done:
                return False
        for r, n in d.get("reqi", []) or []:
            if r not in done or nins - ev_i[r] < n:
                return False
        for r, c in d.get("reqc", []) or []:
            if r not in done or now - ev_t[r] < c:
                return False
        if d.get("nb") is not None and now < d["nb"]:
            return False
        return True

    pend = list(mm)
    side_since = 0
    while mi < len(main) or pend or si < len(side) or qi < len(qread):
        kt = main[mi][0] if mi < len(main) else 16
        pos = main[mi][1] - 1 if mi < len(main) else 99
        cand = [d for d in pend if (d["kt"] < kt or (d["kt"] == kt and pos >= d["pos"])) and ready(d)]
        cand.sort(key=lambda d: (d["kt"], d["pr"]))
        if cand and (pipe_free <= now or mi >= len(main)):
            d = cand[0]
            emit(d["t"], ev=d["n"])
            pend.remove(d)
            continue
        if qi < len(qread) and "m1_14" in done and "B2" in done:
            emit(qread[qi], ev=("qread" if qi == len(qread) - 1 else None))
            qi += 1
            continue
        if si < len(side) and side_since < 2:
            d = side[si]
            ok = ready(d)
            if ok and pipe(d["t"]):
                if pipe_free > now or cand:
                    ok = False
            if ok or mi >= len(main):
                if not ok and mi >= len(main) and not ready(d):
                    now += 4
                    nins += 1
                    if not any(r not in done for r in d.get("req", [])):
                        pass
                emit(d["t"], d.get("wtok"), d.get("ev"))
                si += 1
                side_since += 1
                continue
        if mi < len(main):
            emit(main[mi][2])
            mi += 1
            side_since = 0
            continue
        if pend:
            d = sorted(pend, key=lambda d: (d["kt"], d["pr"]))[0]
            emit(d["t"], ev=d["n"])
            pend.remove(d)
            continue
        raise RuntimeError("scheduler stuck")
    for o in out:
        if o[0] == "wait":
            p.wait_tok(o[1])
        else:
            p.e(o[1], wtok=o[2])
    return now


def q_prologue(p, name):
    a = V_T0
    W = 16
    for ks in range(18):
        if ks in (8, 16):
            p.e(f"v_add_u32 v{V_WQ}, 8192, v{V_WQ}")
        p.e(f"global_load_dwordx4 {vr(W + 4 * ks, 4)}, v{V_WQ}, s[{S_WS}:{S_WS + 1}] offset:{(ks % 8) * 1024 - 4096} PLD")
    p.e(f"v_add_u32 v{V_WQ}, {4 * 18432 - 16384}, v{V_WQ}")
    W2 = 96
    p.e(f"s_cmp_ge_u32 s{S_W}, 2")
    p.e(f"s_cbranch_scc1 {name}_nol")
    p.if_begin()
    p.e(f"v_add_u32 v{a}, {12 * 18432}, v{V_WQ}")
    for ks in range(18):
        if ks in (8, 16):
            p.e(f"v_add_u32 v{a}, 8192, v{a}")
        p.e(f"global_load_dwordx4 {vr(W2 + 4 * ks, 4)}, v{a}, s[{S_WS}:{S_WS + 1}] offset:{(ks % 8) * 1024 - 4096} PLD")
    p.label(f"{name}_nol")
    p.if_end()
    for ks in range(18):
        if ks == 0:
            for k in range(2):
                p.e(f"ds_read_b128 {vr(XR + 4 * (k % 3), 4)}, v{V_L16} offset:{LDS_XB + 1024 * k}")
        if ks + 2 < 18:
            p.e(f"ds_read_b128 {vr(XR + 4 * ((ks + 2) % 3), 4)}, v{V_L16} offset:{LDS_XB + 1024 * (ks + 2)}")
        c = "0" if ks == 0 else vr(QA, 4)
        p.e(f"v_mfma_f32_16x16x32_bf16 {vr(QA, 4)}, {vr(W + 4 * ks, 4)}, {vr(XR + 4 * (ks % 3), 4)}, {c}")
    p.e(f"v_cvt_pk_bf16_f32 v{QT}, v{QA}, v{QA + 1}")
    p.e(f"v_cvt_pk_bf16_f32 v{QT + 1}, v{QA + 2}, v{QA + 3}")
    p.e(f"ds_write_b64 v{V_QFW}, {vr(QT, 2)}")
    p.e(f"s_cmp_ge_u32 s{S_W}, 2")
    p.e(f"s_cbranch_scc1 {name}_nol2")
    p.if_begin()
    for ks in range(18):
        if ks == 0:
            for k in range(2):
                p.e(f"ds_read_b128 {vr(XR + 4 * (k % 3), 4)}, v{V_L16} offset:{LDS_XB + 1024 * k}")
        if ks + 2 < 18:
            p.e(f"ds_read_b128 {vr(XR + 4 * ((ks + 2) % 3), 4)}, v{V_L16} offset:{LDS_XB + 1024 * (ks + 2)}")
        c = "0" if ks == 0 else vr(QA, 4)
        p.e(f"v_mfma_f32_16x16x32_bf16 {vr(QA, 4)}, {vr(W2 + 4 * ks, 4)}, {vr(XR + 4 * (ks % 3), 4)}, {c}")
    p.e(f"v_cvt_pk_bf16_f32 v{QT}, v{QA}, v{QA + 1}")
    p.e(f"v_cvt_pk_bf16_f32 v{QT + 1}, v{QA + 2}, v{QA + 3}")
    p.e(f"s_lshl_b32 s{S_T0}, s{S_W}, 9")
    p.e(f"v_add_u32 v{a}, s{S_T0}, v{V_QL}")
    p.e(f"ds_write_b32 v{a}, v{QT}")
    p.e(f"ds_write_b32 v{a}, v{QT + 1} offset:256")
    p.label(f"{name}_nol2")
    p.if_end()
    p.e("s_waitcnt lgkmcnt(0)")
    p.e("s_barrier")
    p.e(f"ds_read_b128 {vr(QC, 4)}, v{V_L16} offset:{A_QF}")
    p.e(f"ds_read_b128 {vr(QC + 4, 4)}, v{V_L16} offset:{A_QF + 1024}")
    p.e(f"ds_read_b32 v{QLR}, v{V_QL}")
    p.e(f"v_mov_b32 v{QLR + 1}, 0")


def weight_ptr_setup(p):
    t = S_T0
    p.e(f"s_mul_i32 s{t}, s{S_HH}, {L.WQF_HH}")
    p.e(f"s_mul_i32 s{t + 1}, s{S_W}, 18432")
    p.e(f"s_add_u32 s{t}, s{t}, s{t + 1}")
    p.e(f"s_add_u32 s{t}, s{t}, {hx(L.WQF + 4096)}")
    p.e(f"v_add_u32 v{V_WQ}, s{t}, v{V_L16}")
    p.e(f"s_mul_i32 s{t}, s{S_HH}, {L.WOF_HH}")
    p.e(f"s_mul_i32 s{t + 1}, s{S_W}, 9216")
    p.e(f"s_add_u32 s{t}, s{t}, s{t + 1}")
    p.e(f"s_add_u32 s{t}, s{t}, {hx(L.WOF + 4096 - 72 * 1024)}")
    p.e(f"v_add_u32 v{V_WO}, s{t}, v{V_L16}")


def reduce_plain(p):
    L2 = RT + 16
    for w in range(4):
        p.e(f"ds_read_b128 {vr(RT + 16 + 4 * w, 4)}, v{V_R2} offset:{w * 6144}")
    for w in range(4):
        p.e(f"ds_read_b128 {vr(RT + 4 * w, 4)}, v{V_R1} offset:{w * 6144}")
    p.e(f"v_pk_add_f32 {vr(L2, 2)}, {vr(L2, 2)}, {vr(L2 + 4, 2)}")
    p.e(f"v_pk_add_f32 {vr(L2 + 8, 2)}, {vr(L2 + 8, 2)}, {vr(L2 + 12, 2)}")
    p.e(f"v_add_f32 v{L2 + 2}, v{L2 + 2}, v{L2 + 6}")
    p.e(f"v_add_f32 v{L2 + 10}, v{L2 + 10}, v{L2 + 14}")
    p.e(f"v_pk_add_f32 {vr(L2, 2)}, {vr(L2, 2)}, {vr(L2 + 8, 2)}")
    p.e(f"v_add_f32 v{L2 + 2}, v{L2 + 2}, v{L2 + 10}")
    p.e(f"v_rcp_f32 v{V_RC}, v{L2 + 2}")
    p.e(f"v_subrev_u32 v{V_RC + 1}, {hx(L_LO)}, v{L2 + 2}")
    p.e(f"v_cmp_le_u32 vcc, {hx(L_RANGE)}, v{V_RC + 1}")
    for h in range(2):
        p.e(f"v_pk_add_f32 {vr(RT + 2 * h, 2)}, {vr(RT + 2 * h, 2)}, {vr(RT + 4 + 2 * h, 2)}")
        p.e(f"v_pk_add_f32 {vr(RT + 8 + 2 * h, 2)}, {vr(RT + 8 + 2 * h, 2)}, {vr(RT + 12 + 2 * h, 2)}")
    p.e(f"s_or_b64 s[{S_FAIL}:{S_FAIL + 1}], s[{S_FAIL}:{S_FAIL + 1}], vcc")
    for h in range(2):
        p.e(f"v_pk_add_f32 {vr(RT + 2 * h, 2)}, {vr(RT + 2 * h, 2)}, {vr(RT + 8 + 2 * h, 2)}")
    p.e(f"v_pk_mul_f32 {vr(L2, 2)}, {vr(L2, 2)}, {vr(V_RC, 2)} op_sel_hi:[1,0]")
    for h in range(2):
        p.e(f"v_pk_mul_f32 {vr(RT + 2 * h, 2)}, {vr(RT + 2 * h, 2)}, {vr(V_RC, 2)} op_sel_hi:[1,0]")
    p.e(f"v_cvt_pk_bf16_f32 v{L2 + 4}, v{L2}, v{L2 + 1}")
    p.e(f"v_cvt_pk_bf16_f32 v{RT + 4}, v{RT}, v{RT + 1}")
    p.e(f"v_cvt_pk_bf16_f32 v{RT + 5}, v{RT + 2}, v{RT + 3}")
    p.e(f"ds_write_b32 v{V_OLW}, v{L2 + 4}")
    p.e(f"ds_write_b64 v{V_OBW}, {vr(RT + 4, 2)}")


def attention_layer(p, name, stamp=lambda *a, **k: None):
    q_prologue(p, name + "_qp")
    stamp(p, 4)
    for i in range(NR):
        for t in wload(i):
            p.e(t)
    m2, m3, m1 = qk_mfmas(0, SB[0])
    p.e(m2)
    p.e(m3)
    p.e(m1)
    p.e("s_nop 15")
    p.e("s_nop 4")
    p.e(f"s_mov_b32 s{S_PH}, 0")
    p.e(f"s_mov_b64 s[{S_FAIL}:{S_FAIL + 1}], 0")
    p.loop_begin(name + "_ph")
    est = phase_body(p, name)
    p.e(f"s_cmp_lg_u32 s{S_PH}, 0")
    p.e(f"s_cbranch_scc1 {name}_nz")
    p.if_begin()
    for i in range(36):
        p.e(f"v_mov_b32 v{XA + i}, 0")
    p.e(f"s_mov_b64 s[{S_FAIL}:{S_FAIL + 1}], 0")
    p.label(f"{name}_nz")
    p.if_end()
    stamp(p, 5, S_PH)
    p.e(f"s_add_u32 s{S_PH}, s{S_PH}, 1")
    p.e(f"s_cmp_lt_u32 s{S_PH}, 4")
    p.e(f"s_cbranch_scc1 {name}_ph")
    p.loop_end()
    p.e(pv_mfma(15, SB[1], 1, 1))
    W = 16
    for j in range(18):
        T, t = j // 9, j % 9
        off = (T * 36 + t) * 1024
        p.e(f"v_add_u32 v{V_T0}, {off}, v{V_WO}")
        p.e(f"global_load_dwordx4 {vr(W + 4 * j, 4)}, v{V_T0}, s[{S_WS}:{S_WS + 1}] offset:-4096 PLD")
    for t in range(9):
        off = (72 + t) * 1024
        reg = WR + 4 * t
        p.e(f"v_add_u32 v{V_T0}, {off}, v{V_WO}")
        p.e(f"global_load_dwordx4 {vr(reg, 4)}, v{V_T0}, s[{S_WS}:{S_WS + 1}] offset:-4096 PLD")
    for T in range(2):
        for g in range(3):
            p.e(f"ds_write_b128 v{V_OPW}, {ar(A_O + 16 * T + 4 * g, 4)} offset:{3072 * T + g * 1024}")
    p.e("s_waitcnt lgkmcnt(0)")
    p.e("s_barrier")
    reduce_plain(p)
    p.e("s_waitcnt lgkmcnt(0)")
    p.e("s_barrier")
    for T in range(2):
        p.e(f"ds_read_b128 {vr(OF + 4 * T, 4)}, v{V_L16} offset:{A_OB + 1024 * T}")
    p.e(f"ds_read_b128 {vr(OFL, 4)}, v{V_L16} offset:{A_OL}")
    for j in range(18):
        T, t = j // 9, j % 9
        p.e(f"v_mfma_f32_16x16x32_bf16 {vr(XA + 4 * t, 4)}, {vr(W + 4 * j, 4)}, {vr(OF + 4 * T, 4)}, {vr(XA + 4 * t, 4)}")
    for t in range(9):
        reg = WR + 4 * t
        p.e(f"v_mfma_f32_16x16x32_bf16 {vr(XA + 4 * t, 4)}, {vr(reg, 4)}, {vr(OFL, 4)}, {vr(XA + 4 * t, 4)}")
    return est
```

```python
from asmgen import Prog, vr, ar, sr
import layout as L
import struct


def f2u(x):
    return struct.unpack("<I", struct.pack("<f", x))[0]


def hx(x):
    return hex(x & 0xffffffff)


S_W = 4
S_PAIR = 5
S_HH = 6
S_ROWOFF = 7
S_WS = 8
S_SLOT = 10
S_XCD = 11
SRD_A = 12
SRD_B = 16
SRD_C = 20
SRD_D = 24
S_T0 = 28
S_P0 = 40

V_TID = 0
V_LANE = 1
V_N = 2
V_G = 3
V_L16 = 4
V_T0 = 5


def load_ptr(p, sd, name):
    p.e(f"s_load_dwordx2 {sr(sd, 2)}, s[0:1], {L.KA[name]}")


def make_srd(p, sd, sp, nbytes):
    p.e(f"s_mov_b32 s{sd}, s{sp}")
    p.e(f"s_and_b32 s{sd + 1}, s{sp + 1}, 0xffff")
    p.e(f"s_mov_b32 s{sd + 2}, {hx(nbytes)}")
    p.e(f"s_mov_b32 s{sd + 3}, 0x00020000")


def ws_base(p, sd, off_const, soff=None):
    if soff is None:
        p.e(f"s_add_u32 s{sd}, s{S_WS}, {hx(off_const)}")
        p.e(f"s_addc_u32 s{sd + 1}, s{S_WS + 1}, 0")
    else:
        p.e(f"s_add_u32 s{sd}, s{soff}, {hx(off_const)}")
        p.e(f"s_add_u32 s{sd}, s{S_WS}, s{sd}")
        p.e(f"s_addc_u32 s{sd + 1}, s{S_WS + 1}, 0")


def prologue(p, nwg=256, done="L_done"):
    p.e(f"s_cmp_ge_u32 s2, {nwg}")
    p.e(f"s_cbranch_scc1 {done}")
    load_ptr(p, S_WS, "ws")
    p.e(f"v_and_b32 v{V_LANE}, 63, v{V_TID}")
    p.e(f"v_lshrrev_b32 v{V_T0}, 6, v{V_TID}")
    p.e(f"v_and_b32 v{V_N}, 15, v{V_TID}")
    p.e(f"v_readfirstlane_b32 s{S_W}, v{V_T0}")
    p.e(f"v_bfe_u32 v{V_G}, v{V_TID}, 4, 2")
    p.e(f"v_lshlrev_b32 v{V_L16}, 4, v{V_LANE}")
    p.e(f"s_and_b32 s{S_XCD}, s2, 7")
    p.e(f"s_lshr_b32 s{S_SLOT}, s2, 3")
    p.e(f"s_lshr_b32 s{S_PAIR}, s{S_SLOT}, 1")
    p.e(f"s_lshl_b32 s3, s{S_XCD}, 4")
    p.e(f"s_add_u32 s{S_PAIR}, s{S_PAIR}, s3")
    p.e(f"s_and_b32 s{S_HH}, s{S_SLOT}, 1")
    p.e(f"s_mul_i32 s{S_ROWOFF}, s{S_PAIR}, {16 * 1152}")


def unpack_bf16x4(p, dst, src):
    p.e(f"v_lshlrev_b32 v{dst}, 16, v{src}")
    p.e(f"v_and_b32 v{dst + 1}, 0xffff0000, v{src}")
    p.e(f"v_lshlrev_b32 v{dst + 2}, 16, v{src + 1}")
    p.e(f"v_and_b32 v{dst + 3}, 0xffff0000, v{src + 1}")


def row_stats(p, X, T, st_lds, v_st_w, v_st_r, mu, rs):
    s1, s2 = T, T + 2
    p.e(f"v_pk_add_f32 {vr(s1, 2)}, {vr(X, 2)}, {vr(X + 2, 2)}")
    p.e(f"v_pk_mul_f32 {vr(s2, 2)}, {vr(X, 2)}, {vr(X, 2)}")
    p.e(f"v_pk_fma_f32 {vr(s2, 2)}, {vr(X + 2, 2)}, {vr(X + 2, 2)}, {vr(s2, 2)}")
    for i in range(2, 18):
        p.e(f"v_pk_add_f32 {vr(s1, 2)}, {vr(s1, 2)}, {vr(X + 2 * i, 2)}")
        p.e(f"v_pk_fma_f32 {vr(s2, 2)}, {vr(X + 2 * i, 2)}, {vr(X + 2 * i, 2)}, {vr(s2, 2)}")
    a, b, c, d = T + 4, T + 5, T + 6, T + 7
    p.e(f"v_add_f32 v{a}, v{s1}, v{s1 + 1}")
    p.e(f"v_add_f32 v{b}, v{s2}, v{s2 + 1}")
    p.e(f"v_mov_b32 v{c}, v{a}")
    p.e(f"v_mov_b32 v{d}, v{b}")
    p.e(f"v_permlane32_swap_b32 v{a}, v{c}")
    p.e(f"v_permlane32_swap_b32 v{b}, v{d}")
    p.e(f"v_add_f32 v{a}, v{a}, v{c}")
    p.e(f"v_add_f32 v{b}, v{b}, v{d}")
    p.e(f"v_mov_b32 v{c}, v{a}")
    p.e(f"v_mov_b32 v{d}, v{b}")
    p.e(f"v_permlane16_swap_b32 v{a}, v{c}")
    p.e(f"v_permlane16_swap_b32 v{b}, v{d}")
    p.e(f"v_add_f32 v{a}, v{a}, v{c}")
    p.e(f"v_add_f32 v{b}, v{b}, v{d}")
    assert a % 2 == 0
    p.e(f"ds_write_b64 v{v_st_w}, {vr(a, 2)} offset:{st_lds}")
    p.e("s_waitcnt lgkmcnt(0)")
    p.e("s_barrier")
    p.e(f"ds_read_b128 {vr(T, 4)}, v{v_st_r} offset:{st_lds}")
    p.e(f"ds_read_b128 {vr(T + 4, 4)}, v{v_st_r} offset:{st_lds + 16}")
    p.e(f"v_pk_add_f32 {vr(T, 2)}, {vr(T, 2)}, {vr(T + 2, 2)}")
    p.e(f"v_pk_add_f32 {vr(T + 4, 2)}, {vr(T + 4, 2)}, {vr(T + 6, 2)}")
    p.e(f"v_pk_add_f32 {vr(T, 2)}, {vr(T, 2)}, {vr(T + 4, 2)}")
    p.e(f"v_mul_f32 v{mu}, {hx(f2u(1.0 / 576))}, v{T}")
    p.e(f"v_mul_f32 v{T + 1}, {hx(f2u(1.0 / 576))}, v{T + 1}")
    p.e(f"v_fma_f32 v{T + 1}, -v{mu}, v{mu}, v{T + 1}")
    p.e(f"v_max_f32 v{T + 1}, 0, v{T + 1}")
    p.e(f"v_add_f32 v{T + 1}, {hx(f2u(1e-5))}, v{T + 1}")
    p.e(f"v_rsq_f32 v{rs}, v{T + 1}")


def xb_write_bases(p, vE, vO, xb_lds):
    p.e(f"s_mul_i32 s{S_T0}, s{S_W}, {9 * 512}")
    p.e(f"s_add_u32 s{S_T0}, s{S_T0}, {xb_lds}")
    p.e(f"s_and_b32 s{S_T0 + 1}, s{S_W}, 1")
    p.e(f"s_mul_i32 s{S_T0 + 1}, s{S_T0 + 1}, 504")
    p.e(f"s_sub_u32 s{S_T0 + 2}, s{S_T0}, s{S_T0 + 1}")
    p.e(f"s_sub_u32 s{S_T0}, s{S_T0}, 504")
    p.e(f"s_add_u32 s{S_T0}, s{S_T0}, s{S_T0 + 1}")
    p.e(f"v_add_u32 v{vE}, s{S_T0 + 2}, v{V_L16}")
    p.e(f"v_add_u32 v{vO}, s{S_T0}, v{V_L16}")


def normalize_to_xb(p, X, T, mu, rs, vE, vO):
    p.e(f"v_mov_b32 v{T}, v{rs}")
    p.e(f"v_mul_f32 v{T + 2}, v{mu}, v{rs}")
    p.e(f"v_sub_f32 v{T + 2}, 0, v{T + 2}")
    for t in range(9):
        a = T + 4
        p.e(f"v_pk_fma_f32 {vr(a, 2)}, {vr(X + 4 * t, 2)}, {vr(T, 2)}, {vr(T + 2, 2)} op_sel_hi:[1,0,0]")
        p.e(f"v_pk_fma_f32 {vr(a + 2, 2)}, {vr(X + 4 * t + 2, 2)}, {vr(T, 2)}, {vr(T + 2, 2)} op_sel_hi:[1,0,0]")
        o = a + 4 + 2 * (t % 2)
        p.e(f"v_cvt_pk_bf16_f32 v{o}, v{a}, v{a + 1}")
        p.e(f"v_cvt_pk_bf16_f32 v{o + 1}, v{a + 2}, v{a + 3}")
        p.e(f"ds_write_b64 v{vE if t % 2 == 0 else vO}, {vr(o, 2)} offset:{512 * t}")


def gather_wkv_frags(p, srd, dst, tmp, v_off, nks=18, ks0=0):
    for ks in range(ks0, ks0 + nks):
        i = ks - ks0
        if (ks % 3) == 0 or ks == ks0:
            p.e(f"s_mov_b32 s{S_T0 + 3}, {(ks // 3) * 3 * 1152}")
        base = (ks % 3) * 1152
        for j in range(8):
            off = base + (16 * (j // 4) + j % 4) * 36
            if j % 2 == 0:
                p.e(f"buffer_load_ushort v{dst + 4 * i + j // 2}, v{v_off}, {sr(srd, 4)}, s{S_T0 + 3} offen offset:{off}")
            else:
                p.e(f"buffer_load_short_d16_hi v{tmp + 4 * i + j // 2}, v{v_off}, {sr(srd, 4)}, s{S_T0 + 3} offen offset:{off}")


def combine_frags(p, dst, tmp, n):
    for i in range(n):
        p.e(f"v_or_b32 v{dst + i}, v{dst + i}, v{tmp + i}")
```

```python
from common import *

CV_BASE = 19456
CV_CH = 272 * 8 * 16
CV_BANK = [1, 6, 2, 11, 12, 9, 14, 6]
CV_BANKC = sum(b << (4 * i) for i, b in enumerate(CV_BANK))
CV_UB = CV_BASE + 3 * CV_CH
UBSTR = 96
UB_CH = 7680
CV_SC = CV_UB + 3 * UB_CH
CV_END = CV_SC + 128


def conv_issue_loads(p, s_ch0):
    st = S_T0
    sK = 56
    load_ptr(p, st, "ssmk")
    load_ptr(p, st + 2, "bk")
    load_ptr(p, st + 4, "bv")
    load_ptr(p, st + 6, "shk")
    load_ptr(p, st + 8, "ssmd")
    p.e("s_waitcnt lgkmcnt(0)")
    make_srd(p, SRD_B, st, 576 * 4096)
    make_srd(p, SRD_C, st + 2, L.S * L.D * 2)
    make_srd(p, SRD_D, st + 4, L.S * L.D * 2)
    p.e(f"s_lshl_b32 s{st + 10}, s{s_ch0}, 3")
    p.e(f"s_add_u32 s{st + 6}, s{st + 6}, s{st + 10}")
    p.e(f"s_addc_u32 s{st + 7}, s{st + 7}, 0")
    p.e(f"s_load_dwordx2 s[{sK}:{sK + 1}], s[{st + 6}:{st + 7}], 0")
    p.e(f"s_load_dwordx2 s[{sK + 2}:{sK + 3}], s[{st + 6}:{st + 7}], 8")
    p.e(f"s_load_dwordx2 s[{sK + 4}:{sK + 5}], s[{st + 6}:{st + 7}], 16")
    p.e(f"s_lshl_b32 s{st + 10}, s{s_ch0}, 1")
    p.e(f"s_and_b32 s{st + 11}, s{st + 10}, 0xfffffffc")
    p.e(f"s_add_u32 s{st + 8}, s{st + 8}, s{st + 11}")
    p.e(f"s_addc_u32 s{st + 9}, s{st + 9}, 0")
    p.e(f"s_load_dwordx2 s[{sK + 6}:{sK + 7}], s[{st + 8}:{st + 9}], 0")
    for dphi in range(2):
        p.e(f"s_lshl_b32 s{st}, s{S_W}, 1")
        if dphi:
            p.e(f"s_add_u32 s{st}, s{st}, 1")
        p.e(f"s_lshl_b32 s{st + 1}, s{st}, 2")
        p.e(f"s_lshr_b32 s{st + 1}, {hx(CV_BANKC)}, s{st + 1}")
        p.e(f"s_and_b32 s{st + 1}, s{st + 1}, 15")
        p.e(f"s_mul_i32 s{st + 2}, s{st}, 272")
        p.e(f"s_add_u32 s{st + 1}, s{st + 1}, s{st + 2}")
        p.e(f"s_lshl_b32 s{st + 1}, s{st + 1}, 4")
        p.e(f"s_add_u32 s{st + 1}, s{st + 1}, {CV_BASE + 64}")
        p.e(f"s_lshl_b32 s{st + 2}, s{s_ch0}, 12")
        p.e(f"s_lshl_b32 s{st + 3}, s{st}, 1")
        p.e(f"s_add_u32 s{st + 2}, s{st + 2}, s{st + 3}")
        for ch in range(3):
            p.e(f"s_add_u32 m0, s{st + 1}, {ch * CV_CH}")
            if ch:
                p.e(f"s_add_u32 s{st + 2}, s{st + 2}, 4096")
            for c in range(4):
                p.e(f"buffer_load_dwordx4 v{V_L16}, {sr(SRD_B, 4)}, s{st + 2} offen offset:{1024 * c} lds")
    p.e(f"s_min_u32 s{st}, s{S_W}, 2")
    p.e(f"s_add_u32 s{st}, s{st}, s{s_ch0}")
    p.e(f"s_lshl_b32 s{st}, s{st}, 12")
    p.e(f"v_mov_b32 v{V_T0}, 0")
    p.e(f"buffer_load_dwordx4 v[12:15], v{V_T0}, {sr(SRD_B, 4)}, s{st} offen")
    vk, vh = V_T0 + 1, V_T0 + 2
    p.e(f"v_mul_u32_u24 v{vk}, {8 * 1152}, v{V_TID}")
    p.e(f"v_add_u32 v{vk}, s{st + 11}, v{vk}")
    p.e(f"v_subrev_u32 v{vh}, {3 * 1152}, v{vk}")
    p.e(f"v_cmp_eq_u32 vcc, 0, v{V_TID}")
    p.e(f"v_mov_b32 v{V_T0 + 3}, 0x40000000")
    p.e(f"v_cndmask_b32 v{vh}, v{vh}, v{V_T0 + 3}, vcc")
    p.e(f"s_mov_b32 s{st + 3}, {4 * 1152}")
    KR, VR = 16, 38
    for i in range(3):
        p.e(f"buffer_load_dwordx2 {vr(KR + 2 * i, 2)}, v{vh}, {sr(SRD_C, 4)}, 0 offen offset:{1152 * i}")
    for i in range(8):
        so = "0" if i < 4 else f"s{st + 3}"
        p.e(f"buffer_load_dwordx2 {vr(KR + 6 + 2 * i, 2)}, v{vk}, {sr(SRD_C, 4)}, {so} offen offset:{1152 * (i % 4)}")
    for i in range(8):
        so = "0" if i < 4 else f"s{st + 3}"
        p.e(f"buffer_load_dwordx2 {vr(VR + 2 * i, 2)}, v{vk}, {sr(SRD_D, 4)}, {so} offen offset:{1152 * (i % 4)}")


def conv_compute(p, s_ch0, name, s_yt):
    st = S_T0
    sK = 56
    KR, VR = 16, 38
    z = 56
    for i in range(4):
        p.e(f"v_mov_b32 v{z + i}, 0")
    a = V_T0
    p.e(f"s_min_u32 s{st}, s{S_W}, 2")
    p.e(f"s_mul_i32 s{st + 1}, s{st}, {CV_CH}")
    p.e(f"s_add_u32 s{st + 1}, s{st + 1}, {CV_BASE}")
    p.e(f"v_and_b32 v{a}, 31, v{V_LANE}")
    p.e(f"v_lshrrev_b32 v{a + 1}, 2, v{a}")
    p.e(f"v_lshlrev_b32 v{a + 2}, 2, v{a + 1}")
    p.e(f"v_mov_b32 v{a + 3}, {hx(CV_BANKC)}")
    p.e(f"v_lshrrev_b32 v{a + 2}, v{a + 2}, v{a + 3}")
    p.e(f"v_and_b32 v{a + 2}, 15, v{a + 2}")
    p.e(f"v_mul_u32_u24 v{a + 1}, 272, v{a + 1}")
    p.e(f"v_add_u32 v{a + 1}, v{a + 1}, v{a + 2}")
    p.e(f"v_and_b32 v{a + 2}, 3, v{a}")
    p.e(f"v_add_lshl_u32 v{a + 1}, v{a + 1}, v{a + 2}, 4")
    p.e(f"v_add_u32 v{a + 1}, s{st + 1}, v{a + 1}")
    p.e(f"ds_write_b128 v{a + 1}, {vr(z, 4)}")
    p.e(f"s_mul_i32 s{st + 2}, s{st}, {UB_CH}")
    p.e(f"s_add_u32 s{st + 2}, s{st + 2}, {CV_UB}")
    p.e(f"v_add_u32 v{a + 2}, s{st + 2}, v{V_L16}")
    p.e(f"ds_write_b128 v{a + 2}, {vr(z, 4)}")
    p.e(f"ds_write_b128 v{a + 2}, {vr(z, 4)} offset:{1440 - 1024}")
    p.e(f"s_lshl_b32 s{st + 3}, s{st}, 5")
    p.e(f"s_add_u32 s{st + 3}, s{st + 3}, {CV_SC}")
    p.e(f"v_mov_b32 v{a + 3}, s{st + 3}")
    p.e(f"ds_write_b128 v{a + 3}, {vr(z, 4)}")
    p.e(f"ds_write_b128 v{a + 3}, v[12:15] offset:16")
    p.e(f"v_and_b32 v{a}, 7, v{V_LANE}")
    p.e(f"v_lshl_add_u32 v{a + 3}, v{a}, 1, v{a + 3}")
    p.e("s_waitcnt lgkmcnt(0)")
    p.e(f"ds_read_b128 {vr(z + 4, 4)}, v{a + 3}")
    p.e(f"v_lshlrev_b32 v{a + 2}, 2, v{a}")
    p.e(f"v_mov_b32 v{a + 1}, {hx(CV_BANKC)}")
    p.e(f"v_lshrrev_b32 v{a + 2}, v{a + 2}, v{a + 1}")
    p.e(f"v_and_b32 v{a + 2}, 15, v{a + 2}")
    p.e(f"v_mul_u32_u24 v{a + 1}, 272, v{a}")
    p.e(f"v_add_lshl_u32 v{a + 1}, v{a + 1}, v{a + 2}, 4")
    p.e(f"v_add_u32 v{a + 1}, s{st + 1}, v{a + 1}")
    p.e(f"ds_write_b128 v{a + 1}, {vr(z + 4, 4)} offset:48")
    p.e("s_waitcnt lgkmcnt(0)")
    for c in range(3):
        p.e(f"s_lshl_b32 s{64 + 4 * c}, s{sK + 2 * c}, 16")
        p.e(f"s_and_b32 s{65 + 4 * c}, s{sK + 2 * c}, 0xffff0000")
        p.e(f"s_lshl_b32 s{66 + 4 * c}, s{sK + 2 * c + 1}, 16")
        p.e(f"s_and_b32 s{67 + 4 * c}, s{sK + 2 * c + 1}, 0xffff0000")
    p.e(f"s_and_b32 s{st + 4}, s{s_ch0}, 1")
    p.e(f"s_lshl_b32 s{st + 4}, s{st + 4}, 4")
    p.e(f"s_lshr_b64 s[{sK + 6}:{sK + 7}], s[{sK + 6}:{sK + 7}], s{st + 4}")
    p.e(f"s_lshl_b32 s76, s{sK + 6}, 16")
    p.e(f"s_and_b32 s77, s{sK + 6}, 0xffff0000")
    p.e(f"s_lshl_b32 s78, s{sK + 7}, 16")
    for i in range(19):
        r = KR + 2 * i
        p.e(f"v_lshrrev_b64 {vr(r, 2)}, s{st + 4}, {vr(r, 2)}")
    ua = V_T0
    p.e(f"v_lshrrev_b32 v{ua}, 2, v{V_TID}")
    p.e(f"v_mul_u32_u24 v{ua}, {UBSTR}, v{ua}")
    p.e(f"v_and_b32 v{ua + 1}, 3, v{V_TID}")
    p.e(f"v_lshl_add_u32 v{ua}, v{ua + 1}, 4, v{ua}")
    p.e(f"v_add_u32 v{ua}, {CV_UB + 15 * UBSTR}, v{ua}")
    kk, vv, uu = 64, 76, 84
    for c in range(3):
        def ext(dst, src):
            if c == 0:
                p.e(f"v_lshlrev_b32 v{dst}, 16, v{src}")
            elif c == 1:
                p.e(f"v_and_b32 v{dst}, 0xffff0000, v{src}")
            else:
                p.e(f"v_lshlrev_b32 v{dst}, 16, v{src + 1}")
        for i in range(11):
            ext(kk + i, KR + 2 * i)
        for i in range(8):
            ext(vv + i, VR + 2 * i)
        for t in range(8):
            p.e(f"v_mul_f32 v{uu + t}, s{64 + 4 * c + 3}, v{kk + t}")
        for j in (2, 1, 0):
            for t in range(8):
                p.e(f"v_fmac_f32 v{uu + t}, s{64 + 4 * c + j}, v{kk + t + 3 - j}")
        for t in range(8):
            p.e(f"v_mul_f32 v{uu + t}, v{uu + t}, v{vv + t}")
        o = 92 + 4 * (c % 2)
        for d in range(4):
            p.e(f"v_cvt_pk_bf16_f32 v{o + d}, v{uu + 7 - 2 * d}, v{uu + 6 - 2 * d}")
        p.e(f"ds_write_b128 v{ua}, {vr(o, 4)} offset:{c * UB_CH}")
    p.e("s_waitcnt vmcnt(0) lgkmcnt(0)")
    p.e("s_barrier")
    p.e(f"s_cmp_ge_u32 s{S_W}, 3")
    p.e(f"s_cbranch_scc1 {name}_end")
    p.if_begin()
    vA, vB = V_T0, V_T0 + 1
    p.e(f"v_add_u32 v{a + 2}, 1, v{V_N}")
    p.e(f"v_and_b32 v{a + 3}, 7, v{a + 2}")
    p.e(f"v_lshrrev_b32 v{a + 2}, 3, v{a + 2}")
    p.e(f"v_sub_u32 v{a + 2}, v{a + 2}, v{V_G}")
    p.e(f"v_add_u32 v{a + 2}, 3, v{a + 2}")
    p.e(f"v_lshlrev_b32 v{a + 4}, 2, v{a + 3}")
    p.e(f"v_mov_b32 v{a + 5}, {hx(CV_BANKC)}")
    p.e(f"v_lshrrev_b32 v{a + 4}, v{a + 4}, v{a + 5}")
    p.e(f"v_and_b32 v{a + 4}, 15, v{a + 4}")
    p.e(f"v_mul_u32_u24 v{a + 3}, 272, v{a + 3}")
    p.e(f"v_add3_u32 v{a + 2}, v{a + 2}, v{a + 3}, v{a + 4}")
    p.e(f"v_lshlrev_b32 v{a + 2}, 4, v{a + 2}")
    p.e(f"s_mul_i32 s{st + 1}, s{S_W}, {CV_CH}")
    p.e(f"s_add_u32 s{st + 1}, s{st + 1}, {CV_BASE}")
    p.e(f"v_add_u32 v{vA}, s{st + 1}, v{a + 2}")
    p.e(f"v_mul_u32_u24 v{a + 2}, {UBSTR}, v{V_N}")
    p.e(f"v_lshl_add_u32 v{a + 2}, v{V_G}, 4, v{a + 2}")
    p.e(f"s_mul_i32 s{st + 2}, s{S_W}, {UB_CH}")
    p.e(f"s_add_u32 s{st + 2}, s{st + 2}, {CV_UB}")
    p.e(f"v_add_u32 v{vB}, s{st + 2}, v{a + 2}")
    p.e(f"v_mov_b32 v{a + 7}, v{vB}")
    ACC = 64
    for i in range(32):
        p.e(f"v_mov_b32 v{ACC + i}, 0")
    FA = [16, 24]
    FB = [32, 48]

    def loads(buf, seg, noff):
        for ih in range(2):
            p.e(f"ds_read_b128 {vr(FA[buf] + 4 * ih, 4)}, v{vA} offset:{64 * noff + 32 * ih}")
        for q in range(seg, 4):
            p.e(f"ds_read_b128 {vr(FB[buf] + 4 * q, 4)}, v{vB} offset:{(16 * q + 15 - noff + 1) * UBSTR}")

    def mm(buf, seg):
        for q in range(seg, 4):
            for ih in range(2):
                d = ACC + 8 * q + 4 * ih
                p.e(f"v_mfma_f32_16x16x32_bf16 {vr(d, 4)}, {vr(FA[buf] + 4 * ih, 4)}, {vr(FB[buf] + 4 * q, 4)}, {vr(d, 4)}")

    p.e(f"v_subrev_u32 v{vB}, {UBSTR}, v{vB}")
    loads(0, 0, 0)
    for seg in range(4):
        p.e(f"s_mov_b32 s{st + 5}, 8")
        p.loop_begin(f"{name}_seg{seg}")
        loads(1, seg, 1)
        mm(0, seg)
        p.e(f"v_add_u32 v{vA}, 128, v{vA}")
        p.e(f"v_subrev_u32 v{vB}, {2 * UBSTR}, v{vB}")
        loads(0, seg, 0)
        mm(1, seg)
        p.e(f"s_sub_u32 s{st + 5}, s{st + 5}, 1")
        p.e(f"s_cmp_lg_u32 s{st + 5}, 0")
        p.e(f"s_cbranch_scc1 {name}_seg{seg}")
        p.loop_end()
    p.e(f"s_cmp_eq_u32 s{S_W}, 0")
    p.e(f"s_cselect_b32 s{st + 4}, s76, s77")
    p.e(f"s_cmp_eq_u32 s{S_W}, 2")
    p.e(f"s_cselect_b32 s{st + 4}, s78, s{st + 4}")
    ue = a + 2
    p.e(f"v_mul_u32_u24 v{ue}, {UBSTR}, v{V_N}")
    p.e(f"v_lshrrev_b32 v{ue + 1}, 1, v{V_G}")
    p.e(f"v_lshl_add_u32 v{ue}, v{ue + 1}, 4, v{ue}")
    p.e(f"v_and_b32 v{ue + 1}, 1, v{V_G}")
    p.e(f"v_xor_b32 v{ue + 1}, 1, v{ue + 1}")
    p.e(f"v_lshl_add_u32 v{ue}, v{ue + 1}, 3, v{ue}")
    p.e(f"v_add_u32 v{ue}, s{st + 2}, v{ue}")
    p.e(f"s_add_u32 s{st + 3}, s{s_ch0}, s{S_W}")
    p.e(f"s_lshl_b32 s{st + 3}, s{st + 3}, 12")
    p.e(f"v_lshlrev_b32 v{ue + 1}, 6, v{V_N}")
    p.e(f"v_lshl_add_u32 v{ue + 1}, v{V_G}, 3, v{ue + 1}")
    p.e(f"v_add_u32 v{ue + 1}, s{st + 3}, v{ue + 1}")
    for q in range(4):
        for ih in range(2):
            k = 2 * q + ih
            U = 16 + 2 * k
            p.e(f"ds_read_b64 {vr(U, 2)}, v{ue} offset:{(16 * q + 15) * UBSTR + 32 * ih}")
    for q in range(4):
        for ih in range(2):
            k = 2 * q + ih
            U = 16 + 2 * k
            d = ACC + 8 * q + 4 * ih
            T = 40 + 4 * (k % 2)
            p.e(f"v_and_b32 v{T}, 0xffff0000, v{U + 1}")
            p.e(f"v_lshlrev_b32 v{T + 1}, 16, v{U + 1}")
            p.e(f"v_and_b32 v{T + 2}, 0xffff0000, v{U}")
            p.e(f"v_lshlrev_b32 v{T + 3}, 16, v{U}")
            for r in range(4):
                p.e(f"v_fmac_f32 v{d + r}, s{st + 4}, v{T + r}")
            o = 48 + 2 * (k % 4)
            p.e(f"v_cvt_pk_bf16_f32 v{o}, v{d}, v{d + 1}")
            p.e(f"v_cvt_pk_bf16_f32 v{o + 1}, v{d + 2}, v{d + 3}")
            p.e(f"global_store_dwordx2 v{ue + 1}, {vr(o, 2)}, {sr(s_yt, 2)} offset:{1024 * q + 32 * ih} YSC")
    p.label(f"{name}_end")
    p.if_end()
```

```python
S, D, H, DH = 2048, 576, 32, 18
KA = dict(x=0, wq=8, wk=16, wv=24, wo=32, bq=40, bk=48, bv=56, shk=64, ssmk=72, ssmd=80, out=88, dbg=96, ws=104)

WQF = 0x000000
WQF_HH = 18 * 18 * 1024
WOF = 0x0A2000
WOF_HH = 9 * 36 * 1024
WKVF = 0x144000
KVB = 0x160000
KV_LAYER = 0x40000
KV_K0, KV_KL, KV_VF = 0, 0x10000, 0x18000
YT = 0x200000
PART = 0x480000
PART_LAYER = 128 * 2 * 36864
XBG = 0x1700000
X2G = 0x1A00000
UTG = 0x2000000
EPOCH = 0x27F0000
FLAGS = 0x2800000
WS_USED = 0x3000000

QSCALE = (1.0 / DH ** 0.5) * 1.4426950408889634
```

```python
from common import *

LDS_ST = 0
LDS_XB = 1024
LDS_XB_END = LDS_XB + 18 * 1024

V_X = 64
V_XR = 100
V_TMP = 16
V_MU = 32
V_RS = 33
V_STW = 34
V_STR = 35
V_XBE = 36
V_XBO = 37
V_XOFF = 38
V_WF = 120
V_WT = 192


def chain_addr_setup(p):
    p.e(f"v_lshlrev_b32 v{V_STR}, 5, v{V_N}")
    p.e(f"s_lshl_b32 s{S_T0}, s{S_W}, 3")
    p.e(f"v_add_u32 v{V_STW}, s{S_T0}, v{V_STR}")
    xb_write_bases(p, V_XBE, V_XBO, LDS_XB)
    p.e(f"v_mul_u32_u24 v{V_XOFF}, 1152, v{V_N}")
    p.e(f"s_mul_i32 s{S_T0}, s{S_W}, 288")
    p.e(f"v_lshl_add_u32 v{V_XOFF}, v{V_G}, 3, v{V_XOFF}")
    p.e(f"v_add_u32 v{V_XOFF}, s{S_T0}, v{V_XOFF}")


def load_x_rows(p, srd):
    for t in range(9):
        p.e(f"buffer_load_dwordx2 {vr(V_XR + 2 * t, 2)}, v{V_XOFF}, {sr(srd, 4)}, s{S_ROWOFF} offen offset:{32 * t}")


def unpack_x_rows(p):
    for t in range(9):
        unpack_bf16x4(p, V_X + 4 * t, V_XR + 2 * t)


def kv_weight_gather(p, srd):
    vo = V_T0
    p.e(f"s_lshl_b32 s{S_T0}, s{S_W}, 4")
    p.e(f"v_add_u32 v{vo + 1}, s{S_T0}, v{V_N}")
    p.e(f"v_mul_u32_u24 v{vo}, 144, v{V_G}")
    p.e(f"v_lshl_add_u32 v{vo}, v{vo + 1}, 1, v{vo}")
    p.e(f"v_cmp_gt_u32 vcc, 18, v{vo + 1}")
    p.e(f"v_mov_b32 v{vo + 2}, 0x40000000")
    p.e(f"v_cndmask_b32 v{vo}, v{vo + 2}, v{vo}, vcc")
    gather_wkv_frags(p, srd, V_WF, V_WT, vo, nks=16, ks0=0)
    combine_frags(p, V_WF, V_WT, 64)
    gather_wkv_frags(p, srd, V_WF + 64, V_WT, vo, nks=2, ks0=16)
    combine_frags(p, V_WF + 64, V_WT, 8)


def kv_project_store(p, s_kvbase, name):
    acc = V_TMP
    xb = V_TMP + 4
    va = V_T0
    p.e(f"; K/V projection")
    p.e(f"s_cmp_ge_u32 s{S_W}, 2")
    p.e(f"s_cbranch_scc1 {name}_end")
    p.if_begin()
    p.e(f"s_cmp_eq_u32 s{S_HH}, 0")
    p.e(f"s_cbranch_scc0 {name}_v")
    p.if_begin()
    for ks in range(18):
        if ks == 0:
            for k in range(2):
                p.e(f"ds_read_b128 {vr(xb + 4 * (k % 3), 4)}, v{V_L16} offset:{LDS_XB + 1024 * k}")
        if ks + 2 < 18:
            p.e(f"ds_read_b128 {vr(xb + 4 * ((ks + 2) % 3), 4)}, v{V_L16} offset:{LDS_XB + 1024 * (ks + 2)}")
        c = "0" if ks == 0 else vr(acc, 4)
        p.e(f"v_mfma_f32_16x16x32_bf16 {vr(acc, 4)}, {vr(V_WF + 4 * ks, 4)}, {vr(xb + 4 * (ks % 3), 4)}, {c}")
    p.e(f"s_lshr_b32 s{S_T0}, s{S_PAIR}, 1")
    p.e(f"s_and_b32 s{S_T0 + 1}, s{S_PAIR}, 1")
    p.e(f"s_lshl_b32 s{S_T0 + 1}, s{S_T0 + 1}, 4")
    p.e(f"v_add_u32 v{va}, s{S_T0 + 1}, v{V_N}")
    p.e(f"s_mov_b32 s{S_T0 + 2}, {hx(f2u(L.QSCALE))}")
    for r in range(4):
        p.e(f"v_mul_f32 v{acc + r}, s{S_T0 + 2}, v{acc + r}")
    p.e(f"v_cvt_pk_bf16_f32 v{xb}, v{acc}, v{acc + 1}")
    p.e(f"v_cvt_pk_bf16_f32 v{xb + 1}, v{acc + 2}, v{acc + 3}")
    p.e(f"s_cmp_eq_u32 s{S_W}, 0")
    p.e(f"s_cbranch_scc0 {name}_kl")
    p.if_begin()
    p.e(f"v_lshrrev_b32 v{va + 1}, 1, v{V_G}")
    p.e(f"v_lshl_add_u32 v{va + 1}, v{va + 1}, 5, v{va}")
    p.e(f"v_lshlrev_b32 v{va + 1}, 4, v{va + 1}")
    p.e(f"v_and_b32 v{va + 2}, 1, v{V_G}")
    p.e(f"v_lshl_add_u32 v{va + 1}, v{va + 2}, 3, v{va + 1}")
    p.e(f"s_lshl_b32 s{S_T0}, s{S_T0}, 10")
    p.e(f"v_add_u32 v{va + 1}, s{S_T0}, v{va + 1}")
    p.e(f"global_store_dwordx2 v{va + 1}, {vr(xb, 2)}, {sr(s_kvbase, 2)} offset:{L.KV_K0} KVSC")
    p.e(f"s_branch {name}_end")
    p.if_end()
    p.label(f"{name}_kl")
    p.e(f"v_mov_b32 v{xb + 1}, 0x3f803f80")
    p.e(f"s_lshl_b32 s{S_T0}, s{S_T0}, 5")
    p.e(f"v_add_u32 v{va + 1}, s{S_T0}, v{va}")
    p.e(f"v_lshlrev_b32 v{va + 1}, 3, v{va + 1}")
    p.e(f"v_add_u32 v{va + 1}, {hx(L.KV_KL)}, v{va + 1}")
    p.e(f"v_cmp_gt_u32 vcc, 16, v{V_LANE}")
    p.e(f"s_and_saveexec_b64 s[{S_T0 + 4}:{S_T0 + 5}], vcc")
    p.e(f"global_store_dwordx2 v{va + 1}, {vr(xb, 2)}, {sr(s_kvbase, 2)} KVSC")
    p.e(f"s_mov_b64 exec, s[{S_T0 + 4}:{S_T0 + 5}]")
    p.e(f"s_branch {name}_end")
    p.if_end()
    p.label(f"{name}_v")
    for ks in range(18):
        if ks == 0:
            for k in range(2):
                p.e(f"ds_read_b128 {vr(xb + 4 * (k % 3), 4)}, v{V_L16} offset:{LDS_XB + 1024 * k}")
        if ks + 2 < 18:
            p.e(f"ds_read_b128 {vr(xb + 4 * ((ks + 2) % 3), 4)}, v{V_L16} offset:{LDS_XB + 1024 * (ks + 2)}")
        c = "0" if ks == 0 else vr(acc, 4)
        p.e(f"v_mfma_f32_16x16x32_bf16 {vr(acc, 4)}, {vr(xb + 4 * (ks % 3), 4)}, {vr(V_WF + 4 * ks, 4)}, {c}")
    p.e(f"s_lshl_b32 s{S_T0 + 1}, s{S_W}, 4")
    p.e(f"v_add_u32 v{va}, s{S_T0 + 1}, v{V_N}")
    p.e(f"v_cmp_eq_u32 vcc, 18, v{va}")
    p.e(f"v_mov_b32 v{va + 2}, 1.0")
    for r in range(4):
        p.e(f"v_cndmask_b32 v{acc + r}, v{acc + r}, v{va + 2}, vcc")
    p.e(f"v_cvt_pk_bf16_f32 v{xb}, v{acc}, v{acc + 1}")
    p.e(f"v_cvt_pk_bf16_f32 v{xb + 1}, v{acc + 2}, v{acc + 3}")
    p.e(f"v_and_b32 v{va + 1}, 1, v{V_G}")
    p.e(f"v_lshl_add_u32 v{va + 1}, v{va + 1}, 5, v{va}")
    p.e(f"v_lshlrev_b32 v{va + 1}, 4, v{va + 1}")
    p.e(f"v_lshrrev_b32 v{va + 2}, 1, v{V_G}")
    p.e(f"v_lshl_add_u32 v{va + 1}, v{va + 2}, 3, v{va + 1}")
    p.e(f"s_lshl_b32 s{S_T0}, s{S_PAIR}, 10")
    p.e(f"s_add_u32 s{S_T0}, s{S_T0}, {hx(L.KV_VF)}")
    p.e(f"v_add_u32 v{va + 1}, s{S_T0}, v{va + 1}")
    p.e(f"global_store_dwordx2 v{va + 1}, {vr(xb, 2)}, {sr(s_kvbase, 2)} KVSC")
    p.label(f"{name}_end")
    p.if_end()


def relayout(p, s_job, name):
    vo, v2, v3 = V_T0, V_T0 + 1, V_T0 + 2
    dst, tmp = 32, 128
    sp = S_P0
    st = S_T0
    p.e(f"s_cmp_ge_u32 s{s_job}, 58")
    p.e(f"s_cbranch_scc1 {name}_end")
    p.e(f"s_cmp_ge_u32 s{s_job}, 54")
    p.e(f"s_cbranch_scc1 {name}_kv")
    p.e(f"s_cmp_ge_u32 s{s_job}, 36")
    p.e(f"s_cbranch_scc1 {name}_wo")
    load_ptr(p, st + 6, "wq")
    p.e(f"s_cmp_ge_u32 s{s_job}, 18")
    p.e(f"s_cselect_b32 s{st}, 1, 0")
    p.e(f"s_mul_i32 s{st + 1}, s{st}, 18")
    p.e(f"s_sub_u32 s{st + 1}, s{s_job}, s{st + 1}")
    p.e(f"s_lshl_b32 s{st + 2}, s{st}, 4")
    p.e(f"v_lshrrev_b32 v{v2}, 2, v{V_N}")
    p.e(f"v_and_b32 v{v3}, 3, v{V_N}")
    p.e(f"s_cmp_ge_u32 s{st + 1}, 16")
    p.e(f"s_cbranch_scc1 {name}_ql")
    p.e(f"s_and_b32 s{st + 3}, s{st + 1}, 12")
    p.e(f"s_add_u32 s{st + 2}, s{st + 2}, s{st + 3}")
    p.e(f"s_and_b32 s{st + 3}, s{st + 1}, 2")
    p.e(f"s_add_u32 s{st + 2}, s{st + 2}, s{st + 3}")
    p.e(f"s_and_b32 s{st + 3}, s{st + 1}, 1")
    p.e(f"s_lshl_b32 s{st + 3}, s{st + 3}, 2")
    p.e(f"v_and_b32 v{vo}, 1, v{v2}")
    p.e(f"v_add_u32 v{vo}, s{st + 2}, v{vo}")
    p.e(f"v_mul_u32_u24 v{vo}, 18, v{vo}")
    p.e(f"v_lshrrev_b32 v{v2}, 1, v{v2}")
    p.e(f"v_lshl_add_u32 v{vo}, v{v2}, 3, v{vo}")
    p.e(f"v_add_u32 v{vo}, v{vo}, v{v3}")
    p.e(f"v_add_u32 v{vo}, s{st + 3}, v{vo}")
    p.e(f"s_branch {name}_qc")
    p.label(f"{name}_ql")
    p.e(f"s_sub_u32 s{st + 3}, s{st + 1}, 16")
    p.e(f"s_lshl_b32 s{st + 3}, s{st + 3}, 3")
    p.e(f"s_add_u32 s{st + 2}, s{st + 2}, s{st + 3}")
    p.e(f"v_lshrrev_b32 v{vo}, 1, v{v3}")
    p.e(f"v_lshl_add_u32 v{vo}, v{vo}, 2, v{v2}")
    p.e(f"v_add_u32 v{vo}, s{st + 2}, v{vo}")
    p.e(f"v_mul_u32_u24 v{vo}, 18, v{vo}")
    p.e(f"v_and_b32 v{v3}, 1, v{v3}")
    p.e(f"v_add_u32 v{vo}, v{vo}, v{v3}")
    p.e(f"v_add_u32 v{vo}, 16, v{vo}")
    p.label(f"{name}_qc")
    p.e(f"v_lshlrev_b32 v{vo}, 1, v{vo}")
    p.e(f"v_mul_u32_u24 v{v2}, {4 * 1152}, v{V_G}")
    p.e(f"v_add_u32 v{vo}, v{vo}, v{v2}")
    p.e(f"s_mul_i32 s{st + 3}, s{S_W}, {32 * 1152}")
    p.e(f"v_add_u32 v{vo}, s{st + 3}, v{vo}")
    p.e("s_waitcnt lgkmcnt(0)")
    make_srd(p, SRD_C, st + 6, 576 * 1152)
    p.e(f"s_mul_i32 s{st}, s{s_job}, {18 * 1024}")
    p.e(f"s_lshl_b32 s{st + 1}, s{S_W}, 10")
    p.e(f"s_add_u32 s{st}, s{st}, s{st + 1}")
    ws_base(p, sp, L.WQF, st)
    for i in range(5):
        for j in range(8):
            row = 128 * i + 16 * (j // 4) + j % 4
            if j == 0 or j == 4:
                p.e(f"s_mov_b32 s{st + 4}, {(row // 4 * 4) * 1152}")
            op = "buffer_load_ushort" if j % 2 == 0 else "buffer_load_short_d16_hi"
            reg = (dst if j % 2 == 0 else tmp) + 4 * i + j // 2
            p.e(f"{op} v{reg}, v{vo}, {sr(SRD_C, 4)}, s{st + 4} offen offset:{(j % 4) * 1152}")
    combine_frags(p, dst, tmp, 20)
    for i in range(5):
        if i == 4:
            p.e(f"s_cmp_ge_u32 s{S_W}, 2")
            p.e(f"s_cbranch_scc1 {name}_end")
        p.e(f"v_add_u32 v{v2}, {4096 * i}, v{V_L16}")
        p.e(f"global_store_dwordx4 v{v2}, {vr(dst + 4 * i, 4)}, {sr(sp, 2)} WSC")
    p.e(f"s_branch {name}_end")
    p.label(f"{name}_wo")
    load_ptr(p, st + 6, "wo")
    p.e(f"s_sub_u32 s{st + 5}, s{s_job}, 36")
    p.e(f"s_cmp_ge_u32 s{st + 5}, 9")
    p.e(f"s_cselect_b32 s{st}, 1, 0")
    p.e(f"s_mul_i32 s{st + 1}, s{st}, 9")
    p.e(f"s_sub_u32 s{st + 1}, s{st + 5}, s{st + 1}")
    p.e(f"s_lshl_b32 s{st + 2}, s{st}, 4")
    p.e(f"s_cmp_eq_u32 s{st + 1}, 8")
    p.e(f"s_cbranch_scc1 {name}_ol")
    p.e(f"s_lshl_b32 s{st + 3}, s{st + 1}, 1")
    p.e(f"s_add_u32 s{st + 2}, s{st + 2}, s{st + 3}")
    p.e(f"v_and_b32 v{vo}, 1, v{V_G}")
    p.e(f"v_add_u32 v{vo}, s{st + 2}, v{vo}")
    p.e(f"v_mul_u32_u24 v{vo}, 18, v{vo}")
    p.e(f"v_lshrrev_b32 v{v2}, 1, v{V_G}")
    p.e(f"v_lshl_add_u32 v{vo}, v{v2}, 2, v{vo}")
    p.e(f"s_mov_b32 s{st + 8}, 0")
    p.e(f"s_branch {name}_oc")
    p.label(f"{name}_ol")
    p.e(f"v_lshlrev_b32 v{vo}, 2, v{V_G}")
    p.e(f"v_add_u32 v{vo}, s{st + 2}, v{vo}")
    p.e(f"v_mul_u32_u24 v{vo}, 18, v{vo}")
    p.e(f"v_add_u32 v{vo}, 16, v{vo}")
    p.e(f"s_mov_b32 s{st + 8}, 1")
    p.label(f"{name}_oc")
    p.e(f"v_mul_u32_u24 v{vo}, 1152, v{vo}")
    p.e(f"v_lshl_add_u32 v{vo}, v{V_N}, 1, v{vo}")
    p.e(f"s_mul_i32 s{st + 3}, s{S_W}, 288")
    p.e(f"v_add_u32 v{vo}, s{st + 3}, v{vo}")
    p.e("s_waitcnt lgkmcnt(0)")
    make_srd(p, SRD_C, st + 6, 576 * 1152)
    p.e(f"s_mul_i32 s{st}, s{st + 5}, {36 * 1024}")
    p.e(f"s_mul_i32 s{st + 1}, s{S_W}, {9 * 1024}")
    p.e(f"s_add_u32 s{st}, s{st}, s{st + 1}")
    ws_base(p, sp, L.WOF, st)
    R = 48
    main = [0, 1, 2, 3, 8, 9, 10, 11]
    left = [0, 1, 18, 19, 36, 37, 54, 55]
    p.e(f"s_cmp_eq_u32 s{st + 8}, 1")
    for j in range(8):
        p.e(f"s_mov_b32 s{R + j}, {left[j] * 1152}")
        p.e(f"s_cselect_b32 s{R + j}, s{R + j}, {main[j] * 1152}")
    for t in range(9):
        for j in range(8):
            op = "buffer_load_ushort" if j % 2 == 0 else "buffer_load_short_d16_hi"
            reg = (dst if j % 2 == 0 else tmp) + 4 * t + j // 2
            p.e(f"{op} v{reg}, v{vo}, {sr(SRD_C, 4)}, s{R + j} offen offset:{32 * t}")
    combine_frags(p, dst, tmp, 36)
    for t in range(9):
        p.e(f"v_add_u32 v{v2}, {1024 * t}, v{V_L16}")
        p.e(f"global_store_dwordx4 v{v2}, {vr(dst + 4 * t, 4)}, {sr(sp, 2)} WSC")
    p.e(f"s_branch {name}_end")
    p.label(f"{name}_kv")
    load_ptr(p, st + 6, "wk")
    load_ptr(p, st + 8, "wv")
    p.e(f"s_sub_u32 s{st + 5}, s{s_job}, 54")
    p.e(f"s_and_b32 s{st + 1}, s{st + 5}, 1")
    p.e(f"s_lshl_b32 s{st + 1}, s{st + 1}, 4")
    p.e(f"v_add_u32 v{v2}, s{st + 1}, v{V_N}")
    p.e(f"v_mul_u32_u24 v{vo}, 144, v{V_G}")
    p.e(f"v_lshl_add_u32 v{vo}, v{v2}, 1, v{vo}")
    p.e(f"s_mul_i32 s{st + 3}, s{S_W}, 1152")
    p.e(f"v_add_u32 v{vo}, s{st + 3}, v{vo}")
    p.e(f"v_cmp_gt_u32 vcc, 18, v{v2}")
    p.e(f"v_mov_b32 v{v3}, 0x40000000")
    p.e(f"v_cndmask_b32 v{vo}, v{v3}, v{vo}, vcc")
    p.e("s_waitcnt lgkmcnt(0)")
    p.e(f"s_cmp_ge_u32 s{st + 5}, 2")
    p.e(f"s_cselect_b32 s{st + 6}, s{st + 8}, s{st + 6}")
    p.e(f"s_cselect_b32 s{st + 7}, s{st + 9}, s{st + 7}")
    make_srd(p, SRD_C, st + 6, 576 * 36)
    p.e(f"s_mul_i32 s{st}, s{st + 5}, {18 * 1024}")
    p.e(f"s_lshl_b32 s{st + 1}, s{S_W}, 10")
    p.e(f"s_add_u32 s{st}, s{st}, s{st + 1}")
    ws_base(p, sp, L.WKVF, st)
    for i in range(5):
        p.e(f"s_mov_b32 s{st + 4}, {i * 4 * 1152}")
        for j in range(8):
            op = "buffer_load_ushort" if j % 2 == 0 else "buffer_load_short_d16_hi"
            reg = (dst if j % 2 == 0 else tmp) + 4 * i + j // 2
            p.e(f"{op} v{reg}, v{vo}, {sr(SRD_C, 4)}, s{st + 4} offen offset:{(16 * (j // 4) + j % 4) * 36}")
    combine_frags(p, dst, tmp, 20)
    for i in range(5):
        if i == 4:
            p.e(f"s_cmp_ge_u32 s{S_W}, 2")
            p.e(f"s_cbranch_scc1 {name}_end")
        p.e(f"v_add_u32 v{v2}, {4096 * i}, v{V_L16}")
        p.e(f"global_store_dwordx4 v{v2}, {vr(dst + 4 * i, 4)}, {sr(sp, 2)} WSC")
    p.label(f"{name}_end")


V_Y = 128
V_PB = 164
V_YOFF = 39
V_PA = 96 + 104


def y_loads(p, s_yt):
    p.e(f"s_mul_i32 s{S_T0}, s{S_W}, {144 * 4096}")
    p.e(f"s_lshl_b32 s{S_T0 + 1}, s{S_PAIR}, 5")
    p.e(f"s_add_u32 s{S_T0}, s{S_T0}, s{S_T0 + 1}")
    p.e(f"v_lshlrev_b32 v{V_YOFF}, 14, v{V_G}")
    p.e(f"v_lshl_add_u32 v{V_YOFF}, v{V_N}, 1, v{V_YOFF}")
    p.e(f"v_add_u32 v{V_YOFF}, s{S_T0}, v{V_YOFF}")
    for t in range(9):
        for r in range(4):
            if r == 0:
                p.e(f"v_add_u32 v{V_T0}, {16 * t * 4096}, v{V_YOFF}")
            else:
                p.e(f"v_add_u32 v{V_T0}, 4096, v{V_T0}")
            p.e(f"global_load_short_d16_hi v{V_Y + 4 * t + r}, v{V_T0}, {sr(s_yt, 2)} PLD")


def gate_chain(p, X, st_sel=0):
    row_stats(p, X, V_TMP, LDS_ST + 512 * st_sel, V_STW, V_STR, V_MU, V_RS)
    T = V_TMP
    p.e(f"v_mov_b32 v{T}, v{V_RS}")
    p.e(f"v_mul_f32 v{T + 2}, v{V_MU}, v{V_RS}")
    p.e(f"v_sub_f32 v{T + 2}, 0, v{T + 2}")
    for i in range(18):
        a = T + 4 + 2 * (i % 2)
        p.e(f"v_pk_fma_f32 {vr(a, 2)}, {vr(X + 2 * i, 2)}, {vr(T, 2)}, {vr(T + 2, 2)} op_sel_hi:[1,0,0]")
        p.e(f"v_pk_fma_f32 {vr(X + 2 * i, 2)}, {vr(a, 2)}, {vr(V_Y + 2 * i, 2)}, {vr(X + 2 * i, 2)}")


def store_out_rows(p, srd, X, half_by_hh=True):
    T = V_TMP
    for t in range(9):
        o = T + 2 * (t % 4)
        p.e(f"v_cvt_pk_bf16_f32 v{o}, v{X + 4 * t}, v{X + 4 * t + 1}")
        p.e(f"v_cvt_pk_bf16_f32 v{o + 1}, v{X + 4 * t + 2}, v{X + 4 * t + 3}")
        p.e(f"buffer_store_dwordx2 {vr(o, 2)}, v{V_XOFF}, {sr(srd, 4)}, s{S_ROWOFF} offen offset:{32 * t}")
```

```python
import sys
from common import *
import parts as P
from parts import *
import conv as CV
import attn as AT

NAME = "interleave_layers__grouped_kv_mqa__ssm_conv_h3__prompt"

HEADER = open("cdna_kernels/" + NAME + ".s.ref").read().split("; Override launch geometry")[0]


def descriptor(name, vgpr, agpr=0, sgpr=96):
    acc = (vgpr + 3) // 4 * 4
    return f""".p2align 6
.amdhsa_kernel {name}
  .amdhsa_next_free_vgpr {acc + agpr}
  .amdhsa_next_free_sgpr {sgpr}
  .amdhsa_accum_offset {acc}
  .amdhsa_group_segment_fixed_size 0
  .amdhsa_kernarg_size 112
  .amdhsa_user_sgpr_count 2
  .amdhsa_user_sgpr_kernarg_segment_ptr 1
  .amdhsa_system_sgpr_workgroup_id_x 1
  .amdhsa_float_denorm_mode_32 3
.end_amdhsa_kernel
"""


def kernel_text(name, prog):
    body = prog.finalize()
    return f""".globl {name}
.p2align 8
.type {name},@function
{name}:
{body}"""


def k_p1(name="p1_kernel"):
    p = Prog()
    done = name + "_done"
    prologue(p, done=done)
    load_ptr(p, S_T0 + 4, "x")
    load_ptr(p, S_T0 + 6, "wk")
    load_ptr(p, S_T0 + 8, "wv")
    chain_addr_setup(p)
    p.e("s_waitcnt lgkmcnt(0)")
    make_srd(p, SRD_A, S_T0 + 4, L.S * L.D * 2)
    p.e(f"s_cmp_eq_u32 s{S_HH}, 0")
    p.e(f"s_cselect_b32 s{S_T0 + 6}, s{S_T0 + 6}, s{S_T0 + 8}")
    p.e(f"s_cselect_b32 s{S_T0 + 7}, s{S_T0 + 7}, s{S_T0 + 9}")
    make_srd(p, SRD_B, S_T0 + 6, 576 * 36)
    load_x_rows(p, SRD_A)
    p.e(f"s_cmp_ge_u32 s{S_W}, 2")
    p.e(f"s_cbranch_scc1 {name}_nog")
    p.if_begin()
    kv_weight_gather(p, SRD_B)
    p.label(f"{name}_nog")
    p.if_end()
    unpack_x_rows(p)
    row_stats(p, V_X, V_TMP, LDS_ST, V_STW, V_STR, V_MU, V_RS)
    normalize_to_xb(p, V_X, V_TMP, V_MU, V_RS, V_XBE, V_XBO)
    p.e("s_waitcnt lgkmcnt(0)")
    p.e("s_barrier")
    ws_base(p, S_P0, L.KVB)
    kv_project_store(p, S_P0, name + "_kv")
    p.e(f"s_cmp_eq_u32 s{S_HH}, 0")
    p.e(f"s_cbranch_scc0 {done}")
    p.e(f"s_mul_i32 s{S_T0}, s{S_PAIR}, {18 * 1024}")
    ws_base(p, S_P0 + 2, L.XBG, S_T0)
    p.e(f"s_lshl_b32 s{S_T0}, s{S_W}, 10")
    p.e(f"v_add_u32 v{V_T0}, s{S_T0}, v{V_L16}")
    for i in range(5):
        if i == 4:
            p.e(f"s_cmp_ge_u32 s{S_W}, 2")
            p.e(f"s_cbranch_scc1 {name}_x2")
        p.e(f"ds_read_b128 {vr(V_TMP + 4 * (i % 4), 4)}, v{V_T0} offset:{LDS_XB + 4096 * i}")
        p.e(f"v_add_u32 v{V_T0 + 1}, {4096 * i}, v{V_T0}")
        p.e(f"global_store_dwordx4 v{V_T0 + 1}, {vr(V_TMP + 4 * (i % 4), 4)}, {sr(S_P0 + 2, 2)}")
    p.label(f"{name}_x2")
    p.e(f"s_mul_i32 s{S_T0}, s{S_PAIR}, 36864")
    p.e(f"s_mul_i32 s{S_T0 + 1}, s{S_W}, 9216")
    p.e(f"s_add_u32 s{S_T0}, s{S_T0}, s{S_T0 + 1}")
    ws_base(p, S_P0 + 4, L.X2G, S_T0)
    for t in range(9):
        p.e(f"v_add_u32 v{V_T0 + 1}, {1024 * t}, v{V_L16}")
        p.e(f"global_store_dwordx4 v{V_T0 + 1}, {vr(V_X + 4 * t, 4)}, {sr(S_P0 + 4, 2)}")
    p.label(done)
    p.e("s_endpgm")
    return kernel_text(name, p), descriptor(name, 256), LDS_XB_END


def k_relayout(name="rl_kernel"):
    p = Prog()
    done = name + "_done"
    prologue(p, nwg=64, done=done)
    p.e("s_waitcnt lgkmcnt(0)")
    p.e(f"s_mov_b32 s{S_T0 + 12}, s2")
    relayout(p, S_T0 + 12, name + "_rl")
    p.label(done)
    p.e("s_endpgm")
    return kernel_text(name, p), descriptor(name, 256), 0


def k_conv(name="cv_kernel"):
    p = Prog()
    done = name + "_done"
    prologue(p, nwg=256, done=done)
    p.e(f"s_cmp_ge_u32 s{S_SLOT}, 24")
    p.e(f"s_cbranch_scc1 {done}")
    p.e(f"s_mul_i32 s80, s{S_XCD}, 72")
    p.e(f"s_mul_i32 s81, s{S_SLOT}, 3")
    p.e(f"s_add_u32 s80, s80, s81")
    CV.conv_issue_loads(p, 80)
    ws_base(p, S_P0, L.YT)
    CV.conv_compute(p, 80, name + "_cv", S_P0)
    p.label(done)
    p.e("s_endpgm")
    return kernel_text(name, p), descriptor(name, 256), CV.CV_END


def stamp(p, idx, sdyn=None):
    if not STAMPS:
        return
    p.e("s_memtime s[90:91]")
    p.e("s_waitcnt lgkmcnt(0)")
    p.e("v_mov_b32 v250, s90")
    p.e(f"v_mov_b32 v251, {4 * idx}")
    if sdyn is not None:
        p.e(f"s_lshl_b32 s92, s{sdyn}, 2")
        p.e(f"v_add_u32 v251, s92, v251")
    p.e("s_or_b32 s93, s2, s4")
    p.e("s_cmp_lg_u32 s93, 0")
    lab = f"L_st{len(p.items)}"
    p.e(f"s_cbranch_scc1 {lab}")
    p.e("global_store_dword v251, v250, s[88:89]")
    p.label(lab)


STAMPS = False


def k_attn(layer, name):
    p = Prog()
    done = name + "_done"
    prologue(p, done=done)
    if STAMPS:
        load_ptr(p, 88, "dbg")
    p.e("s_waitcnt lgkmcnt(0)")
    stamp(p, 0)
    ws_base(p, S_P0, L.KVB + layer * L.KV_LAYER)
    AT.load_kv(p, S_P0)
    p.e(f"s_mul_i32 s{S_T0}, s{S_PAIR}, {18 * 1024}")
    ws_base(p, S_P0 + 2, L.XBG, S_T0)
    p.e(f"s_lshl_b32 s{S_T0}, s{S_W}, 10")
    p.e(f"v_add_u32 v{V_T0}, s{S_T0}, v{V_L16}")
    for i in range(5):
        p.e(f"v_add_u32 v{V_T0 + 1}, {4096 * i}, v{V_T0}")
        p.e(f"global_load_dwordx4 {vr(16 + 4 * i, 4)}, v{V_T0 + 1}, {sr(S_P0 + 2, 2)}")
    for i in range(5):
        if i == 4:
            p.e(f"s_cmp_ge_u32 s{S_W}, 2")
            p.e(f"s_cbranch_scc1 {name}_x4")
            p.if_begin()
        p.e(f"ds_write_b128 v{V_T0}, {vr(16 + 4 * i, 4)} offset:{LDS_XB + 4096 * i}")
    p.label(f"{name}_x4")
    p.if_end()
    AT.addr_setup(p)
    AT.weight_ptr_setup(p)
    p.e("s_waitcnt lgkmcnt(0)")
    p.e("s_barrier")
    stamp(p, 1)
    est = AT.attention_layer(p, name, stamp)
    stamp(p, 2)
    p.e(f"s_lshl_b32 s{S_T0}, s{S_PAIR}, 1")
    p.e(f"s_add_u32 s{S_T0}, s{S_T0}, s{S_HH}")
    p.e(f"s_mul_i32 s{S_T0}, s{S_T0}, 36864")
    p.e(f"s_mul_i32 s{S_T0 + 1}, s{S_W}, 9216")
    p.e(f"s_add_u32 s{S_T0}, s{S_T0}, s{S_T0 + 1}")
    ws_base(p, S_P0 + 4, L.PART + layer * L.PART_LAYER, S_T0)
    for t in range(9):
        p.e(f"v_add_u32 v{V_T0 + 1}, {1024 * t}, v{V_L16}")
        p.e(f"global_store_dwordx4 v{V_T0 + 1}, {vr(AT.XA + 4 * t, 4)}, {sr(S_P0 + 4, 2)} PSC")
    stamp(p, 3)
    p.label(done)
    p.e("s_endpgm")
    txt = kernel_text(name, p)
    print(name, "estimated phase cycles", est, "counts", p.count, "auto nops", p.nauto_nop, file=sys.stderr)
    return txt, descriptor(name, 256, 256), AT.A_END


def k_bound(layer, name):
    p = Prog()
    done = name + "_done"
    prologue(p, done=done)
    load_ptr(p, S_T0 + 4, "out")
    chain_addr_setup(p)
    p.e("s_waitcnt lgkmcnt(0)")
    make_srd(p, SRD_A, S_T0 + 4, L.S * L.D * 2)
    p.e(f"s_mul_i32 s{S_T0}, s{S_PAIR}, 36864")
    p.e(f"s_mul_i32 s{S_T0 + 1}, s{S_W}, 9216")
    p.e(f"s_add_u32 s{S_T0}, s{S_T0}, s{S_T0 + 1}")
    ws_base(p, S_P0 + 4, L.X2G + layer * 0x500000, S_T0)
    ws_base(p, S_P0 + 10, L.X2G + 0x500000, S_T0)
    p.e(f"s_mul_i32 s{S_T0}, s{S_PAIR}, {2 * 36864}")
    p.e(f"s_add_u32 s{S_T0}, s{S_T0}, s{S_T0 + 1}")
    ws_base(p, S_P0 + 6, L.PART + layer * L.PART_LAYER, S_T0)
    PA, PB = 200, 164
    for t in range(9):
        p.e(f"v_add_u32 v{V_T0 + 1}, {1024 * t}, v{V_L16}")
        p.e(f"global_load_dwordx4 {vr(V_X + 4 * t, 4)}, v{V_T0 + 1}, {sr(S_P0 + 4, 2)}")
        p.e(f"global_load_dwordx4 {vr(PA + 4 * t, 4)}, v{V_T0 + 1}, {sr(S_P0 + 6, 2)}")
        p.e(f"v_add_u32 v{V_T0 + 1}, {1024 * t + 36864}, v{V_L16}")
        p.e(f"global_load_dwordx4 {vr(PB + 4 * t, 4)}, v{V_T0 + 1}, {sr(S_P0 + 6, 2)}")
    ws_base(p, S_P0 + 2, L.YT)
    y_loads(p, S_P0 + 2)
    if layer == 0:
        p.e(f"s_lshl_b32 s{S_T0}, s{S_HH}, 1")
        p.e(f"s_add_u32 s{S_T0}, s{S_T0}, s{S_W}")
        p.e(f"s_mul_i32 s{S_T0}, s{S_T0}, {18 * 1024}")
    for i in range(18):
        p.e(f"v_pk_add_f32 {vr(PA + 2 * i, 2)}, {vr(PA + 2 * i, 2)}, {vr(PB + 2 * i, 2)}")
        p.e(f"v_pk_add_f32 {vr(V_X + 2 * i, 2)}, {vr(V_X + 2 * i, 2)}, {vr(PA + 2 * i, 2)}")
    if layer == 0:
        ws_base(p, S_P0 + 8, L.WKVF, S_T0)
        p.e(f"s_cmp_ge_u32 s{S_W}, 2")
        p.e(f"s_cbranch_scc1 {name}_nw")
        p.if_begin()
        WF2 = 184
        for ks in range(18):
            p.e(f"v_add_u32 v{V_T0 + 1}, {1024 * ks}, v{V_L16}")
            p.e(f"global_load_dwordx4 {vr(WF2 + 4 * ks, 4)}, v{V_T0 + 1}, {sr(S_P0 + 8, 2)}")
        p.label(f"{name}_nw")
        p.if_end()
    gate_chain(p, V_X, 0)
    if layer == 0:
        row_stats(p, V_X, V_TMP, LDS_ST + 512, V_STW, V_STR, V_MU, V_RS)
        normalize_to_xb(p, V_X, V_TMP, V_MU, V_RS, V_XBE, V_XBO)
        p.e("s_waitcnt lgkmcnt(0)")
        p.e("s_barrier")
        ws_base(p, S_P0, L.KVB + L.KV_LAYER)
        import parts
        old = parts.V_WF
        parts.V_WF = 184
        kv_project_store(p, S_P0, name + "_kv")
        parts.V_WF = old
        p.e(f"s_cmp_eq_u32 s{S_HH}, 0")
        p.e(f"s_cbranch_scc0 {done}")
        p.e(f"s_mul_i32 s{S_T0}, s{S_PAIR}, {18 * 1024}")
        ws_base(p, S_P0 + 2, L.XBG, S_T0)
        p.e(f"s_lshl_b32 s{S_T0}, s{S_W}, 10")
        p.e(f"v_add_u32 v{V_T0}, s{S_T0}, v{V_L16}")
        for i in range(5):
            if i == 4:
                p.e(f"s_cmp_ge_u32 s{S_W}, 2")
                p.e(f"s_cbranch_scc1 {name}_x2")
            p.e(f"ds_read_b128 {vr(V_TMP + 4 * (i % 4), 4)}, v{V_T0} offset:{LDS_XB + 4096 * i}")
            p.e(f"v_add_u32 v{V_T0 + 1}, {4096 * i}, v{V_T0}")
            p.e(f"global_store_dwordx4 v{V_T0 + 1}, {vr(V_TMP + 4 * (i % 4), 4)}, {sr(S_P0 + 2, 2)}")
        p.label(f"{name}_x2")
        for t in range(9):
            p.e(f"v_add_u32 v{V_T0 + 1}, {1024 * t}, v{V_L16}")
            p.e(f"global_store_dwordx4 v{V_T0 + 1}, {vr(V_X + 4 * t, 4)}, {sr(S_P0 + 10, 2)}")
    else:
        p.e(f"s_lshr_b32 s{S_T0}, s{S_W}, 1")
        p.e(f"s_cmp_eq_u32 s{S_T0}, s{S_HH}")
        p.e(f"s_cbranch_scc0 {done}")
        store_out_rows(p, SRD_A, V_X)
    p.label(done)
    p.e("s_endpgm")
    return kernel_text(name, p), descriptor(name, 256), LDS_XB_END


def build(kernels):
    s = HEADER
    for name, grid, text, desc, lds in kernels:
        s += f"; @launch kernel={name} grid=({grid},1,1) block=(256,1,1) lds={lds}\n"
    s += '.amdgcn_target "amdgcn-amd-amdhsa--gfx950"\n.text\n'
    seen = set()
    for name, grid, text, desc, lds in kernels:
        if name in seen:
            continue
        seen.add(name)
        s += text
    s += '.section .rodata,"a"\n'
    seen = set()
    for name, grid, text, desc, lds in kernels:
        if name in seen:
            continue
        seen.add(name)
        s += desc
    return s


if __name__ == "__main__":
    ks = []
    t, d, l = k_p1()
    ks.append(("p1_kernel", 256, t, d, l))
    t, d, l = k_relayout()
    ks.append(("rl_kernel", 64, t, d, l))
    t, d, l = k_conv()
    ks.append(("cv_kernel", 256, t, d, l))
    STAMPS = "--stamps" in sys.argv
    t, d, l = k_attn(0, "a0_kernel")
    ks.append(("a0_kernel", 256, t, d, l))
    t, d, l = k_bound(0, "b0_kernel")
    ks.append(("b0_kernel", 256, t, d, l))
    t, d, l = k_attn(1, "a1_kernel")
    ks.append(("a1_kernel", 256, t, d, l))
    t, d, l = k_bound(1, "b1_kernel")
    ks.append(("b1_kernel", 256, t, d, l))
    open(sys.argv[1] if len(sys.argv) > 1 else "out.s", "w").write(build(ks))
```

```python
from common import *
from parts import LDS_XB, LDS_XB_END

A_QF = 147200
A_QL = A_QF + 2048
A_OP = LDS_XB_END
A_OB = A_OP + 24576
A_OL = A_OB + 2048 + 256
A_FL = A_OL + 1024
A_END = A_QL + 1024 + 512

A_K0 = 0
A_KL = 64
A_VT = 80
A_O = 208

SB = [16, 48]
QC = 80
QLR = 88
XA = 96
WR = 132
NR = 9
XR = 168
QA = 180
QT = 184
OF = 188
OFL = 196
RT = 200
V_WQ, V_WO = 232, 233
V_OPW, V_R1, V_R2, V_OBW, V_OLW, V_QFW, V_QL = 234, 235, 236, 237, 238, 239, 240
V_RC = 242
V_QFR = 241
S_PH = 82
S_FAIL = 84
L_LO = 0x1f800000
L_RANGE = 0x5f800000 - L_LO


def cost(text):
    mn = text.split()[0]
    if mn.startswith("v_exp") or mn.startswith("v_rcp"):
        return 8
    if mn.startswith("v_mfma"):
        return 4 if "x4_2b" in mn else 8
    return 4


def pipe(text):
    mn = text.split()[0]
    if "32x32x16" in mn:
        return 32
    if "16x16x32" in mn:
        return 16
    if "x4_2b" in mn:
        return 64
    return 0


def addr_setup(p):
    t = S_T0
    p.e(f"s_mul_i32 s{t}, s{S_W}, 6144")
    p.e(f"s_add_u32 s{t}, s{t}, {A_OP}")
    p.e(f"v_add_u32 v{V_OPW}, s{t}, v{V_L16}")
    p.e(f"s_lshr_b32 s{t + 1}, s{S_W}, 1")
    p.e(f"s_and_b32 s{t + 2}, s{S_W}, 1")
    p.e(f"s_mul_i32 s{t + 3}, s{t + 1}, 3072")
    p.e(f"s_add_u32 s{t + 3}, s{t + 3}, {A_OP}")
    p.e(f"s_lshl_b32 s{t + 4}, s{t + 2}, 10")
    p.e(f"s_add_u32 s{t + 4}, s{t + 4}, s{t + 3}")
    p.e(f"v_add_u32 v{V_R1}, s{t + 4}, v{V_L16}")
    p.e(f"v_and_b32 v{V_T0}, 31, v{V_LANE}")
    p.e(f"v_lshlrev_b32 v{V_T0 + 1}, 4, v{V_T0}")
    p.e(f"s_add_u32 s{t + 3}, s{t + 3}, 2048")
    p.e(f"v_add_u32 v{V_R2}, s{t + 3}, v{V_T0 + 1}")
    p.e(f"s_lshl_b32 s{t + 3}, s{t + 1}, 10")
    p.e(f"s_lshl_b32 s{t + 4}, s{t + 2}, 3")
    p.e(f"s_add_u32 s{t + 3}, s{t + 3}, s{t + 4}")
    p.e(f"s_add_u32 s{t + 4}, s{t + 3}, {A_OB}")
    p.e(f"v_add_u32 v{V_OBW}, s{t + 4}, v{V_L16}")
    p.e(f"s_add_u32 s{t + 4}, s{t + 3}, {A_QF}")
    p.e(f"v_add_u32 v{V_QFW}, s{t + 4}, v{V_L16}")
    p.e(f"v_lshlrev_b32 v{V_OLW}, 4, v{V_N}")
    p.e(f"v_lshrrev_b32 v{V_T0}, 4, v{V_T0}")
    p.e(f"v_lshl_add_u32 v{V_OLW}, v{V_T0}, 2, v{V_OLW}")
    p.e(f"s_lshl_b32 s{t + 3}, s{t + 1}, 3")
    p.e(f"s_add_u32 s{t + 3}, s{t + 3}, {A_OL - 256}")
    p.e(f"v_add_u32 v{V_OLW}, s{t + 3}, v{V_OLW}")
    p.e(f"v_add_u32 v{V_QFR}, {A_QF}, v{V_L16}")
    p.e(f"v_lshlrev_b32 v{V_QL}, 2, v{V_LANE}")
    p.e(f"v_add_u32 v{V_QL}, {A_QL}, v{V_QL}")


def load_kv(p, s_kv):
    a = V_T0
    p.e(f"s_lshl_b32 s{S_T0}, s{S_W}, 14")
    p.e(f"v_add_u32 v{a}, s{S_T0}, v{V_L16}")
    p.e(f"v_add_u32 v{a}, 4096, v{a}")
    for i in range(16):
        if i == 8:
            p.e(f"v_add_u32 v{a}, 8192, v{a}")
        p.e(f"global_load_dwordx4 {ar(A_K0 + 4 * i, 4)}, v{a}, {sr(s_kv, 2)} offset:{(i % 8) * 1024 - 4096} PLD")
    p.e(f"s_lshl_b32 s{S_T0}, s{S_W}, 12")
    p.e(f"s_add_u32 s{S_T0}, s{S_T0}, {hx(L.KV_KL)}")
    p.e(f"v_lshlrev_b32 v{a + 1}, 3, v{V_LANE}")
    p.e(f"v_add_u32 v{a + 1}, s{S_T0}, v{a + 1}")
    for i in range(8):
        p.e(f"global_load_dwordx2 {ar(A_KL + 2 * i, 2)}, v{a + 1}, {sr(s_kv, 2)} offset:{512 * i} PLD")
    p.e(f"s_lshl_b32 s{S_T0}, s{S_W}, 15")
    p.e(f"s_add_u32 s{S_T0}, s{S_T0}, {hx(L.KV_VF + 4096)}")
    p.e(f"v_add_u32 v{a + 2}, s{S_T0}, v{V_L16}")
    p.e("s_mov_b32 exec_lo, 0x0007ffff")
    p.e("s_mov_b32 exec_hi, 0x0007ffff")
    for i in range(32):
        if i and i % 8 == 0:
            p.e(f"v_add_u32 v{a + 2}, 8192, v{a + 2}")
        p.e(f"global_load_dwordx4 {ar(A_VT + 4 * i, 4)}, v{a + 2}, {sr(s_kv, 2)} offset:{(i % 8) * 1024 - 4096} PLD")
    p.e("s_mov_b64 exec, -1")


def qk_mfmas(kt, Y):
    k0 = ar(A_K0 + 4 * kt, 4)
    kl = ar(A_KL + 2 * (kt // 2), 2)
    m2 = f"v_mfma_f32_32x32x16_bf16 {vr(Y, 16)}, {k0}, {vr(QC, 4)}, 0"
    m3 = f"v_mfma_f32_32x32x16_bf16 {vr(Y + 16, 16)}, {k0}, {vr(QC + 4, 4)}, 0"
    m1 = f"v_mfma_f32_32x32x4_2b_bf16 {vr(Y, 32)}, {kl}, {vr(QLR, 2)}, {vr(Y, 32)} cbsz:1 abid:{kt % 2}"
    return m2, m3, m1


def pv_mfma(kt, X, T, t):
    c = "0" if (kt == 0 and t == 0) else ar(A_O + 16 * T, 16)
    return f"v_mfma_f32_32x32x16_bf16 {ar(A_O + 16 * T, 16)}, {ar(A_VT + 8 * kt + 4 * t, 4)}, {vr(X + 16 * T + 8 * t, 4)}, {c}"


def wload(i):
    r = WR + 4 * (i % NR)
    j = i % 36
    out = []
    if j < 18:
        if j in (8, 16):
            out.append(f"v_add_u32 v{V_WQ}, 8192, v{V_WQ}")
        out.append(f"global_load_dwordx4 {vr(r, 4)}, v{V_WQ}, s[{S_WS}:{S_WS + 1}] offset:{(j % 8) * 1024 - 4096} PLD")
        if j == 17:
            out.append(f"v_add_u32 v{V_WQ}, {4 * 18432 - 16384}, v{V_WQ}")
    else:
        j -= 18
        T, t = j // 9, j % 9
        off = (T * 36 + t) * 1024
        out.append(("WO", r, off))
    return out


def phase_body(p, name):
    main = []
    for kt in range(16):
        X = SB[kt % 2]
        idx = 0
        for blk in range(4):
            b = X + 8 * blk
            for i in range(8):
                main.append((kt, idx, f"v_exp_f32 v{b + i}, v{b + i}"))
                idx += 1
            for i in range(4):
                main.append((kt, idx, f"v_cvt_pk_bf16_f32 v{b + i}, v{b + 2 * i}, v{b + 2 * i + 1}"))
                idx += 1
    mm = []
    for kt in range(16):
        X = SB[kt % 2]
        Y = SB[(kt + 1) % 2]
        nk = (kt + 1) % 16
        m2, m3, m1 = qk_mfmas(nk, Y)
        pk = (kt - 1) % 16
        mm.append(dict(n=f"pv11_{pk}", t=pv_mfma(pk, Y, 1, 1), kt=kt, pos=1, gap=0, req=[], pr=3))
        req2 = ["qread"] if kt == 15 else []
        mm.append(dict(n=f"m2_{kt}", t=m2, kt=kt, pos=-1, gap=0, req=req2, pr=0))
        mm.append(dict(n=f"m3_{kt}", t=m3, kt=kt, pos=-1, gap=0, req=[f"pv11_{pk}", f"m2_{kt}"], pr=1))
        mm.append(dict(n=f"m1_{kt}", t=m1, kt=kt, pos=-1, gap=0, req=[], reqi=[(f"m3_{kt}", 10)], pr=2))
        mm.append(dict(n=f"pv00_{kt}", t=pv_mfma(kt, X, 0, 0), kt=kt, pos=13, gap=0, req=(["wT0"] if kt == 0 else []), pr=4))
        mm.append(dict(n=f"pv01_{kt}", t=pv_mfma(kt, X, 0, 1), kt=kt, pos=25, gap=0, req=[f"pv00_{kt}"], pr=5))
        mm.append(dict(n=f"pv10_{kt}", t=pv_mfma(kt, X, 1, 0), kt=kt, pos=37, gap=0, req=(["wT1"] if kt == 0 else []), pr=6))
    side = []

    def S(t, **kw):
        side.append(dict(t=t, **kw))

    TILE = 425
    for g in range(3):
        S(f"ds_write_b128 v{V_OPW}, {ar(A_O + 4 * g, 4)} offset:{g * 1024}", wtok="OP", ev=("wT0" if g == 2 else None))
    for k in range(3):
        S(f"ds_read_b128 {vr(XR + 4 * k, 4)}, v{V_L16} offset:{LDS_XB + 1024 * k}")
    for g in range(3):
        S(f"ds_write_b128 v{V_OPW}, {ar(A_O + 16 + 4 * g, 4)} offset:{3072 + g * 1024}", wtok="OP",
          reqi=[("pv11_15", 13)] if g == 0 else [], ev=("wT1" if g == 2 else None))

    def qstep(i, nb):
        c = "0" if i == 0 else vr(QA, 4)
        S(f"v_mfma_f32_16x16x32_bf16 {vr(QA, 4)}, {vr(WR + 4 * (i % NR), 4)}, {vr(XR + 4 * (i % 3), 4)}, {c}", nb=nb, ev=f"q{i}")
        for t in wl(i + NR):
            S(t)
        if i + 3 < 18:
            S(f"ds_read_b128 {vr(XR + 4 * (i % 3), 4)}, v{V_L16} offset:{LDS_XB + 1024 * (i + 3)}")

    def wl(i):
        out = []
        for t in wload(i):
            if isinstance(t, tuple):
                _, r, off = t
                out += wo_load(r, off)
            else:
                out.append(t)
        return out

    wo_state = {"base": 0}

    def wo_load(r, off):
        o = []
        if not (0 <= off - wo_state["base"] <= 7168):
            o.append(f"v_add_u32 v{V_WO}, {off - wo_state['base']}, v{V_WO}")
            wo_state["base"] = off
        o.append(f"global_load_dwordx4 {vr(r, 4)}, v{V_WO}, s[{S_WS}:{S_WS + 1}] offset:{off - wo_state['base'] - 4096} PLD")
        if off == (36 + 8) * 1024:
            o.append(f"v_add_u32 v{V_WO}, {72 * 1024 - wo_state['base']}, v{V_WO}")
            wo_state["base"] = 0
        return o

    q_t0 = TILE * 1.1
    q_dt = 175
    for i in range(0, 3):
        qstep(i, q_t0 + q_dt * i)
    S("WAIT OP")
    S("s_barrier", ev="B1")
    for w in range(4):
        S(f"ds_read_b128 {vr(RT + 16 + 4 * w, 4)}, v{V_R2} offset:{w * 6144}")
    for w in range(4):
        S(f"ds_read_b128 {vr(RT + 4 * w, 4)}, v{V_R1} offset:{w * 6144}", ev=("rread" if w == 3 else None))
    for i in range(3, 5):
        qstep(i, q_t0 + q_dt * i)
    red = []
    L2 = RT + 16
    red.append(f"v_pk_add_f32 {vr(L2, 2)}, {vr(L2, 2)}, {vr(L2 + 4, 2)}")
    red.append(f"v_pk_add_f32 {vr(L2 + 8, 2)}, {vr(L2 + 8, 2)}, {vr(L2 + 12, 2)}")
    red.append(f"v_add_f32 v{L2 + 2}, v{L2 + 2}, v{L2 + 6}")
    red.append(f"v_add_f32 v{L2 + 10}, v{L2 + 10}, v{L2 + 14}")
    red.append(f"v_pk_add_f32 {vr(L2, 2)}, {vr(L2, 2)}, {vr(L2 + 8, 2)}")
    red.append(f"v_add_f32 v{L2 + 2}, v{L2 + 2}, v{L2 + 10}")
    red.append(f"v_rcp_f32 v{V_RC}, v{L2 + 2}")
    red.append(f"v_subrev_u32 v{V_RC + 1}, {hx(L_LO)}, v{L2 + 2}")
    red.append(f"v_cmp_le_u32 vcc, {hx(L_RANGE)}, v{V_RC + 1}")
    for h in range(2):
        red.append(f"v_pk_add_f32 {vr(RT + 2 * h, 2)}, {vr(RT + 2 * h, 2)}, {vr(RT + 4 + 2 * h, 2)}")
        red.append(f"v_pk_add_f32 {vr(RT + 8 + 2 * h, 2)}, {vr(RT + 8 + 2 * h, 2)}, {vr(RT + 12 + 2 * h, 2)}")
    red.append(f"s_or_b64 s[{S_FAIL}:{S_FAIL + 1}], s[{S_FAIL}:{S_FAIL + 1}], vcc")
    for h in range(2):
        red.append(f"v_pk_add_f32 {vr(RT + 2 * h, 2)}, {vr(RT + 2 * h, 2)}, {vr(RT + 8 + 2 * h, 2)}")
    red.append(f"v_pk_mul_f32 {vr(L2, 2)}, {vr(L2, 2)}, {vr(V_RC, 2)} op_sel_hi:[1,0]")
    for h in range(2):
        red.append(f"v_pk_mul_f32 {vr(RT + 2 * h, 2)}, {vr(RT + 2 * h, 2)}, {vr(V_RC, 2)} op_sel_hi:[1,0]")
    red.append(f"v_cvt_pk_bf16_f32 v{L2 + 4}, v{L2}, v{L2 + 1}")
    red.append(f"v_cvt_pk_bf16_f32 v{RT + 4}, v{RT}, v{RT + 1}")
    red.append(f"v_cvt_pk_bf16_f32 v{RT + 5}, v{RT + 2}, v{RT + 3}")
    first = True
    for t in red:
        S(t, reqc=[("rread", 220)] if first else [])
        first = False
    S(f"ds_write_b32 v{V_OLW}, v{L2 + 4}", wtok="OB")
    S(f"ds_write_b64 v{V_OBW}, {vr(RT + 4, 2)}", wtok="OB")
    S(f"v_add_u32 v{V_OLW}, 256, v{V_OLW}")
    for i in range(5, 18):
        qstep(i, q_t0 + q_dt * i)
    S(f"v_cvt_pk_bf16_f32 v{QT}, v{QA}, v{QA + 1}", reqi=[("q17", 9)])
    S(f"v_cvt_pk_bf16_f32 v{QT + 1}, v{QA + 2}, v{QA + 3}")
    S(f"ds_write_b64 v{V_QFW}, {vr(QT, 2)}", wtok="OB", ev="qfw")
    S("WAIT OB", reqc=[("qfw", 120)])
    S("s_barrier", ev="B2")
    for T in range(2):
        S(f"ds_read_b128 {vr(OF + 4 * T, 4)}, v{V_L16} offset:{A_OB + 1024 * T}", ev=("ofr" if T == 1 else None))
    o_t0 = q_t0 + q_dt * 18 + 350
    o_dt = (16 * TILE - 250 - o_t0) / 18
    for j in range(18):
        i = 18 + j
        T, t = j // 9, j % 9
        S(f"v_mfma_f32_16x16x32_bf16 {vr(XA + 4 * t, 4)}, {vr(WR + 4 * (i % NR), 4)}, {vr(OF + 4 * T, 4)}, {vr(XA + 4 * t, 4)}",
          nb=o_t0 + o_dt * j, reqc=[("ofr", 140)] if j == 0 else [])
        for tt in wl(i + NR):
            S(tt)
    import os
    X = os.environ.get("EXP", "")
    if X:
        keep = []
        for d in side:
            t = d["t"]
            isw = t.startswith("global_load")
            if "noside" in X:
                if d.get("ev") in ("wT0", "wT1", "B2") or t.startswith("s_barrier"):
                    keep.append(d)
                continue
            if "nowload" in X and isw:
                continue
            if "nobar" in X and t.startswith("s_barrier"):
                d = dict(d); d["t"] = "s_nop 0"
            if "nsm" in X and "16x16x32" in t:
                d = dict(d); d["t"] = "s_nop 0"
            if "nods" in X and t.startswith("ds_") :
                d = dict(d); d["t"] = "s_nop 0"; d["wtok"] = None
            keep.append(d)
        side = keep
        for d in side:
            for key in ("reqi", "reqc"):
                if d.get(key):
                    evs = {x.get("ev") for x in side} | {m["n"] for m in mm}
                    d[key] = [r for r in d[key] if r[0] in evs]
    qread = [f"ds_read_b128 {vr(QC, 4)}, v{V_QFR}",
             f"ds_read_b128 {vr(QC + 4, 4)}, v{V_QFR} offset:1024",
             f"v_add_u32 v{V_QL}, 256, v{V_QL}",
             f"ds_read_b32 v{QLR}, v{V_QL}"]

    now = 0
    pipe_free = 0
    nins = 0
    ev_i, ev_t = {}, {}
    mi = 0
    si = 0
    qi = 0
    done = set()
    out = []
    cur_pos = {kt: -1 for kt in range(17)}
    cur_kt = 0

    def emit(t, wtok=None, ev=None):
        nonlocal now, pipe_free, nins
        if t.startswith("WAIT"):
            out.append(("wait", t.split()[1]))
            return
        pd = pipe(t)
        if pd:
            if pipe_free > now:
                now = pipe_free
            pipe_free = now + pd
        now += cost(t)
        nins += 1
        out.append(("e", t, wtok))
        if ev:
            ev_i[ev] = nins
            ev_t[ev] = now
            done.add(ev)

    def ready(d):
        for r in d.get("req", []):
            if r not in done:
                return False
        for r, n in d.get("reqi", []) or []:
            if r not in done or nins - ev_i[r] < n:
                return False
        for r, c in d.get("reqc", []) or []:
            if r not in done or now - ev_t[r] < c:
                return False
        if d.get("nb") is not None and now < d["nb"]:
            return False
        return True

    pend = list(mm)
    side_since = 0
    while mi < len(main) or pend or si < len(side) or qi < len(qread):
        kt = main[mi][0] if mi < len(main) else 16
        pos = main[mi][1] - 1 if mi < len(main) else 99
        cand = [d for d in pend if (d["kt"] < kt or (d["kt"] == kt and pos >= d["pos"])) and ready(d)]
        cand.sort(key=lambda d: (d["kt"], d["pr"]))
        if cand and (pipe_free <= now or mi >= len(main)):
            d = cand[0]
            emit(d["t"], ev=d["n"])
            pend.remove(d)
            continue
        if qi < len(qread) and "m1_14" in done and "B2" in done:
            emit(qread[qi], ev=("qread" if qi == len(qread) - 1 else None))
            qi += 1
            continue
        if si < len(side) and side_since < 2:
            d = side[si]
            ok = ready(d)
            if ok and pipe(d["t"]):
                if pipe_free > now or cand:
                    ok = False
            if ok or mi >= len(main):
                if not ok and mi >= len(main) and not ready(d):
                    now += 4
                    nins += 1
                    if not any(r not in done for r in d.get("req", [])):
                        pass
                emit(d["t"], d.get("wtok"), d.get("ev"))
                si += 1
                side_since += 1
                continue
        if mi < len(main):
            emit(main[mi][2])
            mi += 1
            side_since = 0
            continue
        if pend:
            d = sorted(pend, key=lambda d: (d["kt"], d["pr"]))[0]
            emit(d["t"], ev=d["n"])
            pend.remove(d)
            continue
        raise RuntimeError("scheduler stuck")
    for o in out:
        if o[0] == "wait":
            p.wait_tok(o[1])
        else:
            p.e(o[1], wtok=o[2])
    return now


def q_prologue(p, name):
    a = V_T0
    W = 16
    for ks in range(18):
        if ks in (8, 16):
            p.e(f"v_add_u32 v{V_WQ}, 8192, v{V_WQ}")
        p.e(f"global_load_dwordx4 {vr(W + 4 * ks, 4)}, v{V_WQ}, s[{S_WS}:{S_WS + 1}] offset:{(ks % 8) * 1024 - 4096} PLD")
    p.e(f"v_add_u32 v{V_WQ}, {4 * 18432 - 16384}, v{V_WQ}")
    W2 = 96
    p.e(f"s_cmp_ge_u32 s{S_W}, 2")
    p.e(f"s_cbranch_scc1 {name}_nol")
    p.if_begin()
    p.e(f"v_add_u32 v{a}, {12 * 18432}, v{V_WQ}")
    for ks in range(18):
        if ks in (8, 16):
            p.e(f"v_add_u32 v{a}, 8192, v{a}")
        p.e(f"global_load_dwordx4 {vr(W2 + 4 * ks, 4)}, v{a}, s[{S_WS}:{S_WS + 1}] offset:{(ks % 8) * 1024 - 4096} PLD")
    p.label(f"{name}_nol")
    p.if_end()
    for ks in range(18):
        if ks == 0:
            for k in range(2):
                p.e(f"ds_read_b128 {vr(XR + 4 * (k % 3), 4)}, v{V_L16} offset:{LDS_XB + 1024 * k}")
        if ks + 2 < 18:
            p.e(f"ds_read_b128 {vr(XR + 4 * ((ks + 2) % 3), 4)}, v{V_L16} offset:{LDS_XB + 1024 * (ks + 2)}")
        c = "0" if ks == 0 else vr(QA, 4)
        p.e(f"v_mfma_f32_16x16x32_bf16 {vr(QA, 4)}, {vr(W + 4 * ks, 4)}, {vr(XR + 4 * (ks % 3), 4)}, {c}")
    p.e(f"v_cvt_pk_bf16_f32 v{QT}, v{QA}, v{QA + 1}")
    p.e(f"v_cvt_pk_bf16_f32 v{QT + 1}, v{QA + 2}, v{QA + 3}")
    p.e(f"ds_write_b64 v{V_QFW}, {vr(QT, 2)}")
    p.e(f"s_cmp_ge_u32 s{S_W}, 2")
    p.e(f"s_cbranch_scc1 {name}_nol2")
    p.if_begin()
    for ks in range(18):
        if ks == 0:
            for k in range(2):
                p.e(f"ds_read_b128 {vr(XR + 4 * (k % 3), 4)}, v{V_L16} offset:{LDS_XB + 1024 * k}")
        if ks + 2 < 18:
            p.e(f"ds_read_b128 {vr(XR + 4 * ((ks + 2) % 3), 4)}, v{V_L16} offset:{LDS_XB + 1024 * (ks + 2)}")
        c = "0" if ks == 0 else vr(QA, 4)
        p.e(f"v_mfma_f32_16x16x32_bf16 {vr(QA, 4)}, {vr(W2 + 4 * ks, 4)}, {vr(XR + 4 * (ks % 3), 4)}, {c}")
    p.e(f"v_cvt_pk_bf16_f32 v{QT}, v{QA}, v{QA + 1}")
    p.e(f"v_cvt_pk_bf16_f32 v{QT + 1}, v{QA + 2}, v{QA + 3}")
    p.e(f"s_lshl_b32 s{S_T0}, s{S_W}, 9")
    p.e(f"v_add_u32 v{a}, s{S_T0}, v{V_QL}")
    p.e(f"ds_write_b32 v{a}, v{QT}")
    p.e(f"ds_write_b32 v{a}, v{QT + 1} offset:256")
    p.label(f"{name}_nol2")
    p.if_end()
    p.e("s_waitcnt lgkmcnt(0)")
    p.e("s_barrier")
    p.e(f"ds_read_b128 {vr(QC, 4)}, v{V_QFR}")
    p.e(f"ds_read_b128 {vr(QC + 4, 4)}, v{V_QFR} offset:1024")
    p.e(f"ds_read_b32 v{QLR}, v{V_QL}")
    p.e(f"v_mov_b32 v{QLR + 1}, 0")


def weight_ptr_setup(p):
    t = S_T0
    p.e(f"s_mul_i32 s{t}, s{S_HH}, {L.WQF_HH}")
    p.e(f"s_mul_i32 s{t + 1}, s{S_W}, 18432")
    p.e(f"s_add_u32 s{t}, s{t}, s{t + 1}")
    p.e(f"s_add_u32 s{t}, s{t}, {hx(L.WQF + 4096)}")
    p.e(f"v_add_u32 v{V_WQ}, s{t}, v{V_L16}")
    p.e(f"s_mul_i32 s{t}, s{S_HH}, {L.WOF_HH}")
    p.e(f"s_mul_i32 s{t + 1}, s{S_W}, 9216")
    p.e(f"s_add_u32 s{t}, s{t}, s{t + 1}")
    p.e(f"s_add_u32 s{t}, s{t}, {hx(L.WOF + 4096 - 72 * 1024)}")
    p.e(f"v_add_u32 v{V_WO}, s{t}, v{V_L16}")


def reduce_plain(p):
    L2 = RT + 16
    for w in range(4):
        p.e(f"ds_read_b128 {vr(RT + 16 + 4 * w, 4)}, v{V_R2} offset:{w * 6144}")
    for w in range(4):
        p.e(f"ds_read_b128 {vr(RT + 4 * w, 4)}, v{V_R1} offset:{w * 6144}")
    p.e(f"v_pk_add_f32 {vr(L2, 2)}, {vr(L2, 2)}, {vr(L2 + 4, 2)}")
    p.e(f"v_pk_add_f32 {vr(L2 + 8, 2)}, {vr(L2 + 8, 2)}, {vr(L2 + 12, 2)}")
    p.e(f"v_add_f32 v{L2 + 2}, v{L2 + 2}, v{L2 + 6}")
    p.e(f"v_add_f32 v{L2 + 10}, v{L2 + 10}, v{L2 + 14}")
    p.e(f"v_pk_add_f32 {vr(L2, 2)}, {vr(L2, 2)}, {vr(L2 + 8, 2)}")
    p.e(f"v_add_f32 v{L2 + 2}, v{L2 + 2}, v{L2 + 10}")
    p.e(f"v_rcp_f32 v{V_RC}, v{L2 + 2}")
    p.e(f"v_subrev_u32 v{V_RC + 1}, {hx(L_LO)}, v{L2 + 2}")
    p.e(f"v_cmp_le_u32 vcc, {hx(L_RANGE)}, v{V_RC + 1}")
    for h in range(2):
        p.e(f"v_pk_add_f32 {vr(RT + 2 * h, 2)}, {vr(RT + 2 * h, 2)}, {vr(RT + 4 + 2 * h, 2)}")
        p.e(f"v_pk_add_f32 {vr(RT + 8 + 2 * h, 2)}, {vr(RT + 8 + 2 * h, 2)}, {vr(RT + 12 + 2 * h, 2)}")
    p.e(f"s_or_b64 s[{S_FAIL}:{S_FAIL + 1}], s[{S_FAIL}:{S_FAIL + 1}], vcc")
    for h in range(2):
        p.e(f"v_pk_add_f32 {vr(RT + 2 * h, 2)}, {vr(RT + 2 * h, 2)}, {vr(RT + 8 + 2 * h, 2)}")
    p.e(f"v_pk_mul_f32 {vr(L2, 2)}, {vr(L2, 2)}, {vr(V_RC, 2)} op_sel_hi:[1,0]")
    for h in range(2):
        p.e(f"v_pk_mul_f32 {vr(RT + 2 * h, 2)}, {vr(RT + 2 * h, 2)}, {vr(V_RC, 2)} op_sel_hi:[1,0]")
    p.e(f"v_cvt_pk_bf16_f32 v{L2 + 4}, v{L2}, v{L2 + 1}")
    p.e(f"v_cvt_pk_bf16_f32 v{RT + 4}, v{RT}, v{RT + 1}")
    p.e(f"v_cvt_pk_bf16_f32 v{RT + 5}, v{RT + 2}, v{RT + 3}")
    p.e(f"ds_write_b32 v{V_OLW}, v{L2 + 4}")
    p.e(f"ds_write_b64 v{V_OBW}, {vr(RT + 4, 2)}")


def attention_layer(p, name, stamp=lambda *a, **k: None):
    q_prologue(p, name + "_qp")
    stamp(p, 4)
    for i in range(NR):
        for t in wload(i):
            p.e(t)
    m2, m3, m1 = qk_mfmas(0, SB[0])
    p.e(m2)
    p.e(m3)
    p.e(m1)
    p.e("s_nop 15")
    p.e("s_nop 4")
    p.e(f"s_mov_b32 s{S_PH}, 0")
    p.e(f"s_mov_b64 s[{S_FAIL}:{S_FAIL + 1}], 0")
    p.loop_begin(name + "_ph")
    est = phase_body(p, name)
    p.e(f"s_cmp_lg_u32 s{S_PH}, 0")
    p.e(f"s_cbranch_scc1 {name}_nz")
    p.if_begin()
    for i in range(36):
        p.e(f"v_mov_b32 v{XA + i}, 0")
    p.e(f"s_mov_b64 s[{S_FAIL}:{S_FAIL + 1}], 0")
    p.label(f"{name}_nz")
    p.if_end()
    stamp(p, 5, S_PH)
    p.e(f"s_add_u32 s{S_PH}, s{S_PH}, 1")
    p.e(f"s_cmp_lt_u32 s{S_PH}, 4")
    p.e(f"s_cbranch_scc1 {name}_ph")
    p.loop_end()
    p.e(pv_mfma(15, SB[1], 1, 1))
    W = 16
    for j in range(18):
        T, t = j // 9, j % 9
        off = (T * 36 + t) * 1024
        p.e(f"v_add_u32 v{V_T0}, {off}, v{V_WO}")
        p.e(f"global_load_dwordx4 {vr(W + 4 * j, 4)}, v{V_T0}, s[{S_WS}:{S_WS + 1}] offset:-4096 PLD")
    for t in range(9):
        off = (72 + t) * 1024
        reg = WR + 4 * t
        p.e(f"v_add_u32 v{V_T0}, {off}, v{V_WO}")
        p.e(f"global_load_dwordx4 {vr(reg, 4)}, v{V_T0}, s[{S_WS}:{S_WS + 1}] offset:-4096 PLD")
    for T in range(2):
        for g in range(3):
            p.e(f"ds_write_b128 v{V_OPW}, {ar(A_O + 16 * T + 4 * g, 4)} offset:{3072 * T + g * 1024}")
    p.e("s_waitcnt lgkmcnt(0)")
    p.e("s_barrier")
    reduce_plain(p)
    p.e("s_waitcnt lgkmcnt(0)")
    p.e("s_barrier")
    for T in range(2):
        p.e(f"ds_read_b128 {vr(OF + 4 * T, 4)}, v{V_L16} offset:{A_OB + 1024 * T}")
    p.e(f"ds_read_b128 {vr(OFL, 4)}, v{V_L16} offset:{A_OL}")
    for j in range(18):
        T, t = j // 9, j % 9
        p.e(f"v_mfma_f32_16x16x32_bf16 {vr(XA + 4 * t, 4)}, {vr(W + 4 * j, 4)}, {vr(OF + 4 * T, 4)}, {vr(XA + 4 * t, 4)}")
    for t in range(9):
        reg = WR + 4 * t
        p.e(f"v_mfma_f32_16x16x32_bf16 {vr(XA + 4 * t, 4)}, {vr(reg, 4)}, {vr(OFL, 4)}, {vr(XA + 4 * t, 4)}")
    return est
```

```python
from common import *

CV_BASE = 19456
CV_CH = 272 * 8 * 16
CV_BANK = [1, 6, 2, 11, 12, 9, 14, 6]
CV_BANKC = sum(b << (4 * i) for i, b in enumerate(CV_BANK))
CV_UB = CV_BASE + 3 * CV_CH
UBSTR = 96
UB_CH = 7680
CV_SC = CV_UB + 3 * UB_CH
CV_END = CV_SC + 128

CF_H = 68
CF_H0 = 92
CF_T = 236
CF_R = 172
S_CVD = 76


UT_K = 0
UT_STR = 22
V_UTA = 58


def ut_issue(p):
    st = S_T0
    load_ptr(p, st, "bk")
    load_ptr(p, st + 2, "bv")
    load_ptr(p, st + 4, "shk")
    p.e("s_waitcnt lgkmcnt(0)")
    make_srd(p, SRD_C, st, L.S * L.D * 2)
    make_srd(p, SRD_D, st + 2, L.S * L.D * 2)
    p.e(f"s_mov_b32 s{S_P0 + 12}, s{st + 4}")
    p.e(f"s_mov_b32 s{S_P0 + 13}, s{st + 5}")
    a = V_T0
    p.e(f"v_and_b32 v{a}, 31, v{V_LANE}")
    p.e(f"s_mul_i32 s{st + 6}, s{S_HH}, 288")
    p.e(f"s_lshl_b32 s{st + 7}, s{S_W}, 5")
    p.e(f"s_add_u32 s{st + 6}, s{st + 6}, s{st + 7}")
    p.e(f"v_add_u32 v{a}, s{st + 6}, v{a}")
    p.e(f"v_lshrrev_b32 v{a + 1}, 5, v{V_LANE}")
    p.e(f"v_mul_u32_u24 v{a + 2}, {8 * 1152}, v{a + 1}")
    p.e(f"v_add_u32 v{a + 2}, s{S_ROWOFF}, v{a + 2}")
    p.e(f"v_lshl_add_u32 v{a + 2}, v{a}, 1, v{a + 2}")
    p.e(f"v_subrev_u32 v{a + 3}, {3 * 1152}, v{a + 2}")
    p.e(f"v_cmp_gt_u32 vcc, {3 * 1152}, v{a + 2}")
    p.e(f"v_mov_b32 v{a + 4}, 0x40000000")
    p.e(f"v_cndmask_b32 v{a + 3}, v{a + 3}, v{a + 4}, vcc")
    p.e(f"v_lshlrev_b32 v{a + 4}, 3, v{a}")
    p.e(f"s_mov_b32 s{st + 8}, {4 * 1152}")
    for rnd in range(3):
        R = UT_K + UT_STR * rnd
        co = 256 * rnd
        if rnd == 2:
            p.e(f"s_cmp_lg_u32 s{S_W}, 0")
            p.e(f"s_cbranch_scc1 L_ut_no3")
            p.if_begin()
        p.e(f"s_add_u32 s{st + 9}, s{st + 8}, {co}")
        p.e(f"s_mov_b32 s{st + 10}, {co}")
        for i in range(3):
            p.e(f"buffer_load_short_d16_hi a{R + i}, v{a + 3}, {sr(SRD_C, 4)}, s{st + 10} offen offset:{1152 * i}")
        for i in range(8):
            so = f"s{st + 10}" if i < 4 else f"s{st + 9}"
            p.e(f"buffer_load_short_d16_hi a{R + 3 + i}, v{a + 2}, {sr(SRD_C, 4)}, {so} offen offset:{1152 * (i % 4)}")
        for i in range(8):
            so = f"s{st + 10}" if i < 4 else f"s{st + 9}"
            p.e(f"buffer_load_short_d16_hi a{R + 11 + i}, v{a + 2}, {sr(SRD_D, 4)}, {so} offen offset:{1152 * (i % 4)}")
        p.e(f"global_load_dwordx2 {ar(R + 20, 2)}, v{a + 4}, {sr(S_P0 + 12, 2)} offset:{1024 * rnd}")
        if rnd == 2:
            p.label("L_ut_no3")
            p.if_end()
    p.e(f"v_lshlrev_b32 v{V_UTA}, 12, v{a}")
    p.e(f"s_lshl_b32 s{st + 6}, s{S_PAIR}, 5")
    p.e(f"s_add_u32 s{st + 6}, s{st + 6}, {hx(L.UTG)}")
    p.e(f"v_lshl_add_u32 v{V_UTA}, v{a + 1}, 4, v{V_UTA}")
    p.e(f"v_add_u32 v{V_UTA}, s{st + 6}, v{V_UTA}")


def ut_compute(p):
    va = V_UTA
    kk, vv, sk, uu, o = 172, 184, 192, 196, 204
    for rnd in range(3):
        R = UT_K + UT_STR * rnd
        if rnd == 2:
            p.e(f"s_cmp_lg_u32 s{S_W}, 0")
            p.e(f"s_cbranch_scc1 L_ut_no3b")
            p.if_begin()
        p.e(f"v_accvgpr_read_b32 v{sk + 1}, a{R + 20}")
        p.e(f"v_accvgpr_read_b32 v{sk + 3}, a{R + 21}")
        for i in range(11):
            p.e(f"v_accvgpr_read_b32 v{kk + i}, a{R + i}")
        p.e(f"v_lshlrev_b32 v{sk}, 16, v{sk + 1}")
        p.e(f"v_and_b32 v{sk + 1}, 0xffff0000, v{sk + 1}")
        p.e(f"v_lshlrev_b32 v{sk + 2}, 16, v{sk + 3}")
        p.e(f"v_and_b32 v{sk + 3}, 0xffff0000, v{sk + 3}")
        for i in range(8):
            p.e(f"v_accvgpr_read_b32 v{vv + i}, a{R + 11 + i}")
        for t in range(8):
            p.e(f"v_mul_f32 v{uu + t}, v{sk + 3}, v{kk + t}")
        for j in (2, 1, 0):
            for t in range(8):
                p.e(f"v_fmac_f32 v{uu + t}, v{sk + j}, v{kk + t + 3 - j}")
        for t in range(8):
            p.e(f"v_mul_f32 v{uu + t}, v{uu + t}, v{vv + t}")
        oo = o + 4 * (rnd % 2)
        for d in range(4):
            p.e(f"v_cvt_pk_bf16_f32 v{oo + d}, v{uu + 7 - 2 * d}, v{uu + 6 - 2 * d}")
        if rnd:
            p.e(f"v_add_u32 v{va}, {128 * 4096}, v{va}")
        p.e(f"global_store_dwordx4 v{va}, {vr(oo, 4)}, s[{S_WS}:{S_WS + 1}] WSC")
        if rnd == 2:
            p.label("L_ut_no3b")
            p.if_end()


def conv_filter_issue(p, s_ch0):
    st = S_T0
    sK = 56
    load_ptr(p, st, "ssmk")
    load_ptr(p, st + 8, "ssmd")
    p.e("s_waitcnt lgkmcnt(0)")
    make_srd(p, SRD_B, st, 576 * 4096)
    p.e(f"s_lshl_b32 s{st + 10}, s{s_ch0}, 1")
    p.e(f"s_and_b32 s{st + 11}, s{st + 10}, 0xfffffffc")
    p.e(f"s_add_u32 s{st + 8}, s{st + 8}, s{st + 11}")
    p.e(f"s_addc_u32 s{st + 9}, s{st + 9}, 0")
    p.e(f"s_load_dwordx2 s[{sK + 6}:{sK + 7}], s[{st + 8}:{st + 9}], 0")
    p.e(f"s_lshl_b32 s{st}, s{S_W}, 1")
    p.e(f"s_lshl_b32 s{st + 1}, s{st}, 2")
    p.e(f"s_lshr_b32 s{st + 1}, {hx(CV_BANKC)}, s{st + 1}")
    p.e(f"s_and_b32 s{st + 1}, s{st + 1}, 15")
    p.e(f"s_mul_i32 s{st + 2}, s{st}, 272")
    p.e(f"s_add_u32 s{st + 1}, s{st + 1}, s{st + 2}")
    p.e(f"s_lshl_b32 s{st + 1}, s{st + 1}, 4")
    p.e(f"s_add_u32 s{st + 1}, s{st + 1}, {CV_BASE + 64}")
    p.e(f"s_lshl_b32 s{st + 2}, s{s_ch0}, 12")
    p.e(f"s_lshl_b32 s{st + 3}, s{st}, 1")
    p.e(f"s_add_u32 s{st + 2}, s{st + 2}, s{st + 3}")
    for ch in range(3):
        p.e(f"s_add_u32 m0, s{st + 1}, {ch * CV_CH}")
        if ch:
            p.e(f"s_add_u32 s{st + 2}, s{st + 2}, 4096")
        for c in range(4):
            p.e(f"buffer_load_dwordx4 v{V_L16}, {sr(SRD_B, 4)}, s{st + 2} offen offset:{1024 * c} lds")
    p.e(f"v_lshlrev_b32 v{V_T0}, 4, v{V_TID}")
    p.e(f"s_lshl_b32 s{st + 2}, s{s_ch0}, 12")
    for ch in range(3):
        if ch:
            p.e(f"s_add_u32 s{st + 2}, s{st + 2}, 4096")
        p.e(f"buffer_load_dwordx4 {ar(CF_H + 8 * ch, 4)}, v{V_T0}, {sr(SRD_B, 4)}, s{st + 2} offen")
        p.e(f"buffer_load_dwordx4 {ar(CF_H + 8 * ch + 4, 4)}, v{V_T0}, {sr(SRD_B, 4)}, s{st + 2} offen offset:16")
    p.e(f"s_min_u32 s{st}, s{S_W}, 2")
    p.e(f"s_add_u32 s{st}, s{st}, s{s_ch0}")
    p.e(f"s_lshl_b32 s{st}, s{st}, 12")
    p.e(f"v_mov_b32 v{V_T0 + 1}, 0")
    p.e(f"buffer_load_dwordx4 {ar(CF_H0, 4)}, v{V_T0 + 1}, {sr(SRD_B, 4)}, s{st} offen")


def conv_filter_build(p, s_ch0):
    st = S_T0
    sK = 56
    a = V_T0
    A, B = CF_T, CF_T + 8
    for k, phi in enumerate((1, 3, 5, 7)):
        off = (272 * phi + CV_BANK[phi] + 4) * 16 + CV_BASE
        p.e(f"v_lshlrev_b32 v{a + k}, 4, v{V_TID}")
        p.e(f"v_add_u32 v{a + k}, {off}, v{a + k}")
    for ch in range(3):
        r = CF_R
        for j in range(8):
            p.e(f"v_accvgpr_read_b32 v{r + j}, a{CF_H + 8 * ch + j}")
        if ch == 1:
            for k in range(4):
                p.e(f"v_add_u32 v{a + k}, {CV_CH}, v{a + k}")
        off = CV_CH if ch == 2 else 0
        for j in range(6):
            p.e(f"v_alignbit_b32 v{A + j}, v{r + j + 1}, v{r + j}, 16")
        p.e(f"ds_write_b128 v{a}, {vr(A, 4)} offset:{off}")
        p.e(f"ds_write_b128 v{a + 2}, {vr(A + 2, 4)} offset:{off}")
        for j in range(6):
            p.e(f"v_alignbit_b32 v{B + j}, v{r + j + 2}, v{r + j + 1}, 16")
        p.e(f"ds_write_b128 v{a + 1}, {vr(B, 4)} offset:{off}")
        p.e(f"ds_write_b128 v{a + 3}, {vr(B + 2, 4)} offset:{off}")
    z = CF_T
    for i in range(4):
        p.e(f"v_mov_b32 v{z + i}, 0")
    p.e(f"s_min_u32 s{st}, s{S_W}, 2")
    p.e(f"s_mul_i32 s{st + 1}, s{st}, {CV_CH}")
    p.e(f"s_add_u32 s{st + 1}, s{st + 1}, {CV_BASE}")
    p.e(f"v_and_b32 v{a}, 31, v{V_LANE}")
    p.e(f"v_lshrrev_b32 v{a + 1}, 2, v{a}")
    p.e(f"v_lshlrev_b32 v{a + 2}, 2, v{a + 1}")
    p.e(f"v_mov_b32 v{a + 3}, {hx(CV_BANKC)}")
    p.e(f"v_lshrrev_b32 v{a + 2}, v{a + 2}, v{a + 3}")
    p.e(f"v_and_b32 v{a + 2}, 15, v{a + 2}")
    p.e(f"v_mul_u32_u24 v{a + 1}, 272, v{a + 1}")
    p.e(f"v_add_u32 v{a + 1}, v{a + 1}, v{a + 2}")
    p.e(f"v_and_b32 v{a + 2}, 3, v{a}")
    p.e(f"v_add_lshl_u32 v{a + 1}, v{a + 1}, v{a + 2}, 4")
    p.e(f"v_add_u32 v{a + 1}, s{st + 1}, v{a + 1}")
    p.e(f"ds_write_b128 v{a + 1}, {vr(z, 4)}")
    p.e(f"s_mul_i32 s{st + 2}, s{st}, {UB_CH}")
    p.e(f"s_add_u32 s{st + 2}, s{st + 2}, {CV_UB}")
    p.e(f"v_add_u32 v{a + 2}, s{st + 2}, v{V_L16}")
    p.e(f"ds_write_b128 v{a + 2}, {vr(z, 4)}")
    p.e(f"ds_write_b128 v{a + 2}, {vr(z, 4)} offset:{1440 - 1024}")
    p.e(f"s_lshl_b32 s{st + 3}, s{st}, 5")
    p.e(f"s_add_u32 s{st + 3}, s{st + 3}, {CV_SC}")
    p.e(f"v_mov_b32 v{a + 3}, s{st + 3}")
    p.e(f"ds_write_b128 v{a + 3}, {vr(z, 4)}")
    p.e(f"ds_write_b128 v{a + 3}, {ar(CF_H0, 4)} offset:16")
    p.e(f"v_and_b32 v{a}, 7, v{V_LANE}")
    p.e(f"v_lshl_add_u32 v{a + 3}, v{a}, 1, v{a + 3}")
    p.e("s_waitcnt lgkmcnt(0)")
    p.e(f"ds_read_b128 {vr(z + 4, 4)}, v{a + 3}")
    p.e(f"v_lshlrev_b32 v{a + 2}, 2, v{a}")
    p.e(f"v_mov_b32 v{a + 1}, {hx(CV_BANKC)}")
    p.e(f"v_lshrrev_b32 v{a + 2}, v{a + 2}, v{a + 1}")
    p.e(f"v_and_b32 v{a + 2}, 15, v{a + 2}")
    p.e(f"v_mul_u32_u24 v{a + 1}, 272, v{a}")
    p.e(f"v_add_lshl_u32 v{a + 1}, v{a + 1}, v{a + 2}, 4")
    p.e(f"v_add_u32 v{a + 1}, s{st + 1}, v{a + 1}")
    p.e(f"ds_write_b128 v{a + 1}, {vr(z + 4, 4)} offset:48")
    p.e("s_waitcnt lgkmcnt(0)")
    p.e(f"s_and_b32 s{st + 4}, s{s_ch0}, 1")
    p.e(f"s_lshl_b32 s{st + 4}, s{st + 4}, 4")
    p.e(f"s_lshr_b64 s[{sK + 6}:{sK + 7}], s[{sK + 6}:{sK + 7}], s{st + 4}")
    p.e(f"s_lshl_b32 s{S_CVD}, s{sK + 6}, 16")
    p.e(f"s_and_b32 s{S_CVD + 1}, s{sK + 6}, 0xffff0000")
    p.e(f"s_lshl_b32 s{S_CVD + 2}, s{sK + 7}, 16")


def conv_u_dma(p, s_ch0):
    st = S_T0
    a = V_T0
    p.e(f"s_add_u32 s{st}, s{S_WS}, {hx(L.UTG)}")
    p.e(f"s_addc_u32 s{st + 1}, s{S_WS + 1}, 0")
    make_srd(p, SRD_C, st, 576 * 4096)
    for k in range(2):
        p.e(f"s_lshl_b32 s{st + 2}, s{S_W}, 6")
        p.e(f"s_add_u32 s{st + 2}, s{st + 2}, {256 * k}")
        p.e(f"v_add_u32 v{a + k}, s{st + 2}, v{V_LANE}")
        p.e(f"v_mul_u32_u24 v{a + 2}, 43691, v{a + k}")
        p.e(f"v_lshrrev_b32 v{a + 2}, 18, v{a + 2}")
        p.e(f"v_mul_u32_u24 v{a + 3}, 6, v{a + 2}")
        p.e(f"v_sub_u32 v{a + 3}, v{a + k}, v{a + 3}")
        p.e(f"v_min_u32 v{a + 3}, 3, v{a + 3}")
        p.e(f"v_lshl_add_u32 v{a + 3}, v{a + 2}, 2, v{a + 3}")
        p.e(f"v_lshlrev_b32 v{a + k}, 4, v{a + 3}")
    p.e(f"s_lshl_b32 s{st + 3}, s{s_ch0}, 12")
    p.e(f"s_lshl_b32 s{st + 4}, s{S_W}, 10")
    p.e(f"s_add_u32 s{st + 4}, s{st + 4}, {CV_UB + 15 * UBSTR}")
    for ch in range(3):
        if ch:
            p.e(f"s_add_u32 s{st + 3}, s{st + 3}, 4096")
        p.e(f"s_add_u32 m0, s{st + 4}, {ch * UB_CH}")
        p.e(f"buffer_load_dwordx4 v{a}, {sr(SRD_C, 4)}, s{st + 3} offen PLD lds")
    p.e(f"s_cmp_ge_u32 s{S_W}, 2")
    p.e(f"s_cbranch_scc1 L_cvu_no2")
    p.if_begin()
    p.e(f"s_lshl_b32 s{st + 3}, s{s_ch0}, 12")
    for ch in range(3):
        if ch:
            p.e(f"s_add_u32 s{st + 3}, s{st + 3}, 4096")
        p.e(f"s_add_u32 m0, s{st + 4}, {ch * UB_CH + 4096}")
        p.e(f"buffer_load_dwordx4 v{a + 1}, {sr(SRD_C, 4)}, s{st + 3} offen PLD lds")
    p.label("L_cvu_no2")
    p.if_end()


def conv_main(p, s_ch0, name, s_yt, stamp=lambda *a, **k: None):
    st = S_T0
    a = V_T0
    p.e(f"s_cmp_ge_u32 s{S_W}, 3")
    p.e(f"s_cbranch_scc1 {name}_end")
    p.if_begin()
    vA, vB = V_T0, V_T0 + 1
    p.e(f"v_add_u32 v{a + 2}, 1, v{V_N}")
    p.e(f"v_and_b32 v{a + 3}, 7, v{a + 2}")
    p.e(f"v_lshrrev_b32 v{a + 2}, 3, v{a + 2}")
    p.e(f"v_sub_u32 v{a + 2}, v{a + 2}, v{V_G}")
    p.e(f"v_add_u32 v{a + 2}, 3, v{a + 2}")
    p.e(f"v_lshlrev_b32 v{a + 4}, 2, v{a + 3}")
    p.e(f"v_mov_b32 v{a + 5}, {hx(CV_BANKC)}")
    p.e(f"v_lshrrev_b32 v{a + 4}, v{a + 4}, v{a + 5}")
    p.e(f"v_and_b32 v{a + 4}, 15, v{a + 4}")
    p.e(f"v_mul_u32_u24 v{a + 3}, 272, v{a + 3}")
    p.e(f"v_add3_u32 v{a + 2}, v{a + 2}, v{a + 3}, v{a + 4}")
    p.e(f"v_lshlrev_b32 v{a + 2}, 4, v{a + 2}")
    p.e(f"s_mul_i32 s{st + 1}, s{S_W}, {CV_CH}")
    p.e(f"s_add_u32 s{st + 1}, s{st + 1}, {CV_BASE}")
    p.e(f"v_add_u32 v{vA}, s{st + 1}, v{a + 2}")
    p.e(f"v_mul_u32_u24 v{a + 2}, {UBSTR}, v{V_N}")
    p.e(f"v_lshl_add_u32 v{a + 2}, v{V_G}, 4, v{a + 2}")
    p.e(f"s_mul_i32 s{st + 2}, s{S_W}, {UB_CH}")
    p.e(f"s_add_u32 s{st + 2}, s{st + 2}, {CV_UB}")
    p.e(f"v_add_u32 v{vB}, s{st + 2}, v{a + 2}")
    ACC = 16
    FA = [48, 96]
    FB = [80, 128]

    def loads(buf, noff):
        for d in range(4):
            p.e(f"ds_read_b128 {vr(FB[buf] + 4 * d, 4)}, v{vB} offset:{(16 * d + 16 - noff) * UBSTR}")
        for s in range(4):
            for ih in range(2):
                p.e(f"ds_read_b128 {vr(FA[buf] + 8 * s + 4 * ih, 4)}, v{vA} offset:{64 * noff + 1024 * s + 32 * ih}")

    def mm(buf, first=False):
        for s in range(4):
            for q in range(s, 4):
                for ih in range(2):
                    d = ACC + 8 * q + 4 * ih
                    c = "0" if (first and s == 0) else vr(d, 4)
                    p.e(f"v_mfma_f32_16x16x32_bf16 {vr(d, 4)}, {vr(FA[buf] + 8 * s + 4 * ih, 4)}, {vr(FB[buf] + 4 * (q - s), 4)}, {c}")

    for i in range(32):
        p.e(f"v_mov_b32 v{ACC + i}, 0")
    p.e(f"v_subrev_u32 v{vB}, {UBSTR}, v{vB}")
    loads(0, 0)
    p.e(f"s_mov_b32 s{st + 5}, 8")
    p.loop_begin(f"{name}_loop")
    loads(1, 1)
    mm(0)
    p.e(f"v_add_u32 v{vA}, 128, v{vA}")
    p.e(f"v_subrev_u32 v{vB}, {2 * UBSTR}, v{vB}")
    loads(0, 0)
    mm(1)
    p.e(f"s_sub_u32 s{st + 5}, s{st + 5}, 1")
    p.e(f"s_cmp_lg_u32 s{st + 5}, 0")
    p.e(f"s_cbranch_scc1 {name}_loop")
    p.loop_end()
    stamp(p, 13)
    p.e(f"s_cmp_eq_u32 s{S_W}, 0")
    p.e(f"s_cselect_b32 s{st + 4}, s{S_CVD}, s{S_CVD + 1}")
    p.e(f"s_cmp_eq_u32 s{S_W}, 2")
    p.e(f"s_cselect_b32 s{st + 4}, s{S_CVD + 2}, s{st + 4}")
    ue = a + 2
    p.e(f"v_mul_u32_u24 v{ue}, {UBSTR}, v{V_N}")
    p.e(f"v_lshrrev_b32 v{ue + 1}, 1, v{V_G}")
    p.e(f"v_lshl_add_u32 v{ue}, v{ue + 1}, 4, v{ue}")
    p.e(f"v_and_b32 v{ue + 1}, 1, v{V_G}")
    p.e(f"v_xor_b32 v{ue + 1}, 1, v{ue + 1}")
    p.e(f"v_lshl_add_u32 v{ue}, v{ue + 1}, 3, v{ue}")
    p.e(f"v_add_u32 v{ue}, s{st + 2}, v{ue}")
    p.e(f"s_add_u32 s{st + 3}, s{s_ch0}, s{S_W}")
    p.e(f"s_lshl_b32 s{st + 3}, s{st + 3}, 12")
    p.e(f"v_lshlrev_b32 v{ue + 1}, 6, v{V_N}")
    p.e(f"v_lshl_add_u32 v{ue + 1}, v{V_G}, 3, v{ue + 1}")
    p.e(f"v_add_u32 v{ue + 1}, s{st + 3}, v{ue + 1}")
    for q in range(4):
        for ih in range(2):
            k = 2 * q + ih
            U = 48 + 2 * k
            p.e(f"ds_read_b64 {vr(U, 2)}, v{ue} offset:{(16 * q + 15) * UBSTR + 32 * ih}")
    for q in range(4):
        for ih in range(2):
            k = 2 * q + ih
            U = 48 + 2 * k
            d = ACC + 8 * q + 4 * ih
            T = 72 + 4 * (k % 2)
            p.e(f"v_and_b32 v{T}, 0xffff0000, v{U + 1}")
            p.e(f"v_lshlrev_b32 v{T + 1}, 16, v{U + 1}")
            p.e(f"v_and_b32 v{T + 2}, 0xffff0000, v{U}")
            p.e(f"v_lshlrev_b32 v{T + 3}, 16, v{U}")
            for r in range(4):
                p.e(f"v_fmac_f32 v{d + r}, s{st + 4}, v{T + r}")
            o = 80 + 2 * (k % 4)
            p.e(f"v_cvt_pk_bf16_f32 v{o}, v{d}, v{d + 1}")
            p.e(f"v_cvt_pk_bf16_f32 v{o + 1}, v{d + 2}, v{d + 3}")
            p.e(f"global_store_dwordx2 v{ue + 1}, {vr(o, 2)}, {sr(s_yt, 2)} offset:{1024 * q + 32 * ih} YSC")
    p.label(f"{name}_end")
    p.if_end()
```

```python
import sys
from common import *
import parts as P
from parts import *
import conv as CV
import attn as AT

NAME = "interleave_layers__grouped_kv_mqa__ssm_conv_h3__prompt"

HEADER = open("cdna_kernels/" + NAME + ".s.ref").read().split("; Override launch geometry")[0]


def descriptor(name, vgpr, agpr=0, sgpr=96):
    acc = (vgpr + 3) // 4 * 4
    return f""".p2align 6
.amdhsa_kernel {name}
  .amdhsa_next_free_vgpr {acc + agpr}
  .amdhsa_next_free_sgpr {sgpr}
  .amdhsa_accum_offset {acc}
  .amdhsa_group_segment_fixed_size 0
  .amdhsa_kernarg_size 112
  .amdhsa_user_sgpr_count 2
  .amdhsa_user_sgpr_kernarg_segment_ptr 1
  .amdhsa_system_sgpr_workgroup_id_x 1
  .amdhsa_float_denorm_mode_32 3
.end_amdhsa_kernel
"""


def kernel_text(name, prog):
    body = prog.finalize()
    return f""".globl {name}
.p2align 8
.type {name},@function
{name}:
{body}"""


def k_p1(name="p1_kernel"):
    p = Prog()
    done = name + "_done"
    prologue(p, done=done)
    load_ptr(p, S_T0 + 4, "x")
    load_ptr(p, S_T0 + 6, "wk")
    load_ptr(p, S_T0 + 8, "wv")
    chain_addr_setup(p)
    p.e("s_waitcnt lgkmcnt(0)")
    make_srd(p, SRD_A, S_T0 + 4, L.S * L.D * 2)
    p.e(f"s_cmp_eq_u32 s{S_HH}, 0")
    p.e(f"s_cselect_b32 s{S_T0 + 6}, s{S_T0 + 6}, s{S_T0 + 8}")
    p.e(f"s_cselect_b32 s{S_T0 + 7}, s{S_T0 + 7}, s{S_T0 + 9}")
    make_srd(p, SRD_B, S_T0 + 6, 576 * 36)
    load_x_rows(p, SRD_A)
    p.e(f"s_cmp_ge_u32 s{S_W}, 2")
    p.e(f"s_cbranch_scc1 {name}_nog")
    p.if_begin()
    kv_weight_gather(p, SRD_B)
    p.label(f"{name}_nog")
    p.if_end()
    unpack_x_rows(p)
    row_stats(p, V_X, V_TMP, LDS_ST, V_STW, V_STR, V_MU, V_RS)
    normalize_to_xb(p, V_X, V_TMP, V_MU, V_RS, V_XBE, V_XBO)
    p.e("s_waitcnt lgkmcnt(0)")
    p.e("s_barrier")
    ws_base(p, S_P0, L.KVB)
    kv_project_store(p, S_P0, name + "_kv")
    p.e(f"s_cmp_eq_u32 s{S_HH}, 0")
    p.e(f"s_cbranch_scc0 {done}")
    p.e(f"s_mul_i32 s{S_T0}, s{S_PAIR}, {18 * 1024}")
    ws_base(p, S_P0 + 2, L.XBG, S_T0)
    p.e(f"s_lshl_b32 s{S_T0}, s{S_W}, 10")
    p.e(f"v_add_u32 v{V_T0}, s{S_T0}, v{V_L16}")
    for i in range(5):
        if i == 4:
            p.e(f"s_cmp_ge_u32 s{S_W}, 2")
            p.e(f"s_cbranch_scc1 {name}_x2")
        p.e(f"ds_read_b128 {vr(V_TMP + 4 * (i % 4), 4)}, v{V_T0} offset:{LDS_XB + 4096 * i}")
        p.e(f"v_add_u32 v{V_T0 + 1}, {4096 * i}, v{V_T0}")
        p.e(f"global_store_dwordx4 v{V_T0 + 1}, {vr(V_TMP + 4 * (i % 4), 4)}, {sr(S_P0 + 2, 2)}")
    p.label(f"{name}_x2")
    p.e(f"s_mul_i32 s{S_T0}, s{S_PAIR}, 36864")
    p.e(f"s_mul_i32 s{S_T0 + 1}, s{S_W}, 9216")
    p.e(f"s_add_u32 s{S_T0}, s{S_T0}, s{S_T0 + 1}")
    ws_base(p, S_P0 + 4, L.X2G, S_T0)
    for t in range(9):
        p.e(f"v_add_u32 v{V_T0 + 1}, {1024 * t}, v{V_L16}")
        p.e(f"global_store_dwordx4 v{V_T0 + 1}, {vr(V_X + 4 * t, 4)}, {sr(S_P0 + 4, 2)}")
    p.label(done)
    p.e("s_endpgm")
    return kernel_text(name, p), descriptor(name, 256), LDS_XB_END


def k_relayout(name="rl_kernel"):
    p = Prog()
    done = name + "_done"
    prologue(p, nwg=64, done=done)
    p.e("s_waitcnt lgkmcnt(0)")
    p.e(f"s_mov_b32 s{S_T0 + 12}, s2")
    relayout(p, S_T0 + 12, name + "_rl")
    p.label(done)
    p.e("s_endpgm")
    return kernel_text(name, p), descriptor(name, 256), 0


def k_conv(name="cv_kernel"):
    p = Prog()
    done = name + "_done"
    prologue(p, nwg=256, done=done)
    p.e(f"s_cmp_ge_u32 s{S_SLOT}, 24")
    p.e(f"s_cbranch_scc1 {done}")
    p.e(f"s_mul_i32 s80, s{S_XCD}, 72")
    p.e(f"s_mul_i32 s81, s{S_SLOT}, 3")
    p.e(f"s_add_u32 s80, s80, s81")
    if STAMPS:
        load_ptr(p, 88, "dbg")
        p.e("s_waitcnt lgkmcnt(0)")
    stamp(p, 0)
    stamp(p, 10, real=True)
    CV.conv_issue_loads(p, 80)
    stamp(p, 1)
    ws_base(p, S_P0, L.YT)
    CV.conv_compute(p, 80, name + "_cv", S_P0, stamp)
    stamp(p, 5)
    stamp(p, 11, real=True)
    p.label(done)
    p.e("s_endpgm")
    return kernel_text(name, p), descriptor(name, 256), CV.CV_END


def stamp(p, idx, sdyn=None, real=False):
    if not STAMPS:
        return
    p.e("s_memrealtime s[90:91]" if real else "s_memtime s[90:91]")
    p.e("s_waitcnt lgkmcnt(0)")
    p.e("v_mov_b32 v14, s90")
    p.e(f"v_mov_b32 v15, {4 * idx}")
    if sdyn is not None:
        p.e(f"s_lshl_b32 s92, s{sdyn}, 2")
        p.e(f"v_add_u32 v15, s92, v15")
    p.e("s_or_b32 s93, s2, s4")
    p.e("s_cmp_lg_u32 s93, 0")
    global _stn
    _stn += 1
    lab = f"L_st{_stn}"
    p.e(f"s_cbranch_scc1 {lab}")
    p.e("global_store_dword v15, v14, s[88:89]")
    p.label(lab)


STAMPS = False
_stn = 0


def k_attn(layer, name):
    p = Prog()
    done = name + "_done"
    prologue(p, done=done)
    if STAMPS:
        load_ptr(p, 88, "dbg")
    p.e("s_waitcnt lgkmcnt(0)")
    stamp(p, 0)
    stamp(p, 10, real=True)
    ws_base(p, S_P0, L.KVB + layer * L.KV_LAYER)
    AT.load_kv(p, S_P0)
    p.e(f"s_mul_i32 s{S_T0}, s{S_PAIR}, {18 * 1024}")
    ws_base(p, S_P0 + 2, L.XBG, S_T0)
    p.e(f"s_lshl_b32 s{S_T0}, s{S_W}, 10")
    p.e(f"v_add_u32 v{V_T0}, s{S_T0}, v{V_L16}")
    for i in range(5):
        p.e(f"v_add_u32 v{V_T0 + 1}, {4096 * i}, v{V_T0}")
        p.e(f"global_load_dwordx4 {vr(16 + 4 * i, 4)}, v{V_T0 + 1}, {sr(S_P0 + 2, 2)}")
    for i in range(5):
        if i == 4:
            p.e(f"s_cmp_ge_u32 s{S_W}, 2")
            p.e(f"s_cbranch_scc1 {name}_x4")
            p.if_begin()
        p.e(f"ds_write_b128 v{V_T0}, {vr(16 + 4 * i, 4)} offset:{LDS_XB + 4096 * i}")
    p.label(f"{name}_x4")
    p.if_end()
    AT.addr_setup(p)
    AT.weight_ptr_setup(p)
    p.e("s_waitcnt lgkmcnt(0)")
    p.e("s_barrier")
    stamp(p, 1)
    est = AT.attention_layer(p, name, stamp)
    stamp(p, 2)
    p.e(f"s_lshl_b32 s{S_T0}, s{S_PAIR}, 1")
    p.e(f"s_add_u32 s{S_T0}, s{S_T0}, s{S_HH}")
    p.e(f"s_mul_i32 s{S_T0}, s{S_T0}, 36864")
    p.e(f"s_mul_i32 s{S_T0 + 1}, s{S_W}, 9216")
    p.e(f"s_add_u32 s{S_T0}, s{S_T0}, s{S_T0 + 1}")
    ws_base(p, S_P0 + 4, L.PART + layer * L.PART_LAYER, S_T0)
    for t in range(9):
        p.e(f"v_add_u32 v{V_T0 + 1}, {1024 * t}, v{V_L16}")
        p.e(f"global_store_dwordx4 v{V_T0 + 1}, {vr(AT.XA + 4 * t, 4)}, {sr(S_P0 + 4, 2)} PSC")
    stamp(p, 3)
    stamp(p, 11, real=True)
    p.label(done)
    p.e("s_endpgm")
    txt = kernel_text(name, p)
    print(name, "estimated phase cycles", est, "counts", p.count, "auto nops", p.nauto_nop, file=sys.stderr)
    return txt, descriptor(name, 256, 256), AT.A_END


def k_bound(layer, name):
    p = Prog()
    done = name + "_done"
    prologue(p, done=done)
    load_ptr(p, S_T0 + 4, "out")
    chain_addr_setup(p)
    p.e("s_waitcnt lgkmcnt(0)")
    make_srd(p, SRD_A, S_T0 + 4, L.S * L.D * 2)
    p.e(f"s_mul_i32 s{S_T0}, s{S_PAIR}, 36864")
    p.e(f"s_mul_i32 s{S_T0 + 1}, s{S_W}, 9216")
    p.e(f"s_add_u32 s{S_T0}, s{S_T0}, s{S_T0 + 1}")
    ws_base(p, S_P0 + 4, L.X2G + layer * 0x500000, S_T0)
    ws_base(p, S_P0 + 10, L.X2G + 0x500000, S_T0)
    p.e(f"s_mul_i32 s{S_T0}, s{S_PAIR}, {2 * 36864}")
    p.e(f"s_add_u32 s{S_T0}, s{S_T0}, s{S_T0 + 1}")
    ws_base(p, S_P0 + 6, L.PART + layer * L.PART_LAYER, S_T0)
    PA, PB = 200, 164
    for t in range(9):
        p.e(f"v_add_u32 v{V_T0 + 1}, {1024 * t}, v{V_L16}")
        p.e(f"global_load_dwordx4 {vr(V_X + 4 * t, 4)}, v{V_T0 + 1}, {sr(S_P0 + 4, 2)}")
        p.e(f"global_load_dwordx4 {vr(PA + 4 * t, 4)}, v{V_T0 + 1}, {sr(S_P0 + 6, 2)}")
        p.e(f"v_add_u32 v{V_T0 + 1}, {1024 * t + 36864}, v{V_L16}")
        p.e(f"global_load_dwordx4 {vr(PB + 4 * t, 4)}, v{V_T0 + 1}, {sr(S_P0 + 6, 2)}")
    ws_base(p, S_P0 + 2, L.YT)
    y_loads(p, S_P0 + 2)
    if layer == 0:
        p.e(f"s_lshl_b32 s{S_T0}, s{S_HH}, 1")
        p.e(f"s_add_u32 s{S_T0}, s{S_T0}, s{S_W}")
        p.e(f"s_mul_i32 s{S_T0}, s{S_T0}, {18 * 1024}")
    for i in range(18):
        p.e(f"v_pk_add_f32 {vr(PA + 2 * i, 2)}, {vr(PA + 2 * i, 2)}, {vr(PB + 2 * i, 2)}")
        p.e(f"v_pk_add_f32 {vr(V_X + 2 * i, 2)}, {vr(V_X + 2 * i, 2)}, {vr(PA + 2 * i, 2)}")
    if layer == 0:
        ws_base(p, S_P0 + 8, L.WKVF, S_T0)
        p.e(f"s_cmp_ge_u32 s{S_W}, 2")
        p.e(f"s_cbranch_scc1 {name}_nw")
        p.if_begin()
        WF2 = 184
        for ks in range(18):
            p.e(f"v_add_u32 v{V_T0 + 1}, {1024 * ks}, v{V_L16}")
            p.e(f"global_load_dwordx4 {vr(WF2 + 4 * ks, 4)}, v{V_T0 + 1}, {sr(S_P0 + 8, 2)}")
        p.label(f"{name}_nw")
        p.if_end()
    gate_chain(p, V_X, 0)
    if layer == 0:
        row_stats(p, V_X, V_TMP, LDS_ST + 512, V_STW, V_STR, V_MU, V_RS)
        normalize_to_xb(p, V_X, V_TMP, V_MU, V_RS, V_XBE, V_XBO)
        p.e("s_waitcnt lgkmcnt(0)")
        p.e("s_barrier")
        ws_base(p, S_P0, L.KVB + L.KV_LAYER)
        import parts
        old = parts.V_WF
        parts.V_WF = 184
        kv_project_store(p, S_P0, name + "_kv")
        parts.V_WF = old
        p.e(f"s_cmp_eq_u32 s{S_HH}, 0")
        p.e(f"s_cbranch_scc0 {done}")
        p.e(f"s_mul_i32 s{S_T0}, s{S_PAIR}, {18 * 1024}")
        ws_base(p, S_P0 + 2, L.XBG, S_T0)
        p.e(f"s_lshl_b32 s{S_T0}, s{S_W}, 10")
        p.e(f"v_add_u32 v{V_T0}, s{S_T0}, v{V_L16}")
        for i in range(5):
            if i == 4:
                p.e(f"s_cmp_ge_u32 s{S_W}, 2")
                p.e(f"s_cbranch_scc1 {name}_x2")
            p.e(f"ds_read_b128 {vr(V_TMP + 4 * (i % 4), 4)}, v{V_T0} offset:{LDS_XB + 4096 * i}")
            p.e(f"v_add_u32 v{V_T0 + 1}, {4096 * i}, v{V_T0}")
            p.e(f"global_store_dwordx4 v{V_T0 + 1}, {vr(V_TMP + 4 * (i % 4), 4)}, {sr(S_P0 + 2, 2)}")
        p.label(f"{name}_x2")
        for t in range(9):
            p.e(f"v_add_u32 v{V_T0 + 1}, {1024 * t}, v{V_L16}")
            p.e(f"global_store_dwordx4 v{V_T0 + 1}, {vr(V_X + 4 * t, 4)}, {sr(S_P0 + 10, 2)}")
    else:
        p.e(f"s_lshr_b32 s{S_T0}, s{S_W}, 1")
        p.e(f"s_cmp_eq_u32 s{S_T0}, s{S_HH}")
        p.e(f"s_cbranch_scc0 {done}")
        store_out_rows(p, SRD_A, V_X)
    p.label(done)
    p.e("s_endpgm")
    return kernel_text(name, p), descriptor(name, 256), LDS_XB_END


def build(kernels):
    s = HEADER
    for name, grid, text, desc, lds in kernels:
        s += f"; @launch kernel={name} grid=({grid},1,1) block=(256,1,1) lds={lds}\n"
    s += '.amdgcn_target "amdgcn-amd-amdhsa--gfx950"\n.text\n'
    seen = set()
    for name, grid, text, desc, lds in kernels:
        if name in seen:
            continue
        seen.add(name)
        s += text
    s += '.section .rodata,"a"\n'
    seen = set()
    for name, grid, text, desc, lds in kernels:
        if name in seen:
            continue
        seen.add(name)
        s += desc
    return s


if __name__ == "__main__":
    ks = []
    STAMPS = "--stamps" in sys.argv
    t, d, l = k_p1()
    ks.append(("p1_kernel", 256, t, d, l))
    t, d, l = k_relayout()
    ks.append(("rl_kernel", 64, t, d, l))
    t, d, l = k_conv()
    ks.append(("cv_kernel", 256, t, d, l))
    STAMPS = "--stamps" in sys.argv
    t, d, l = k_attn(0, "a0_kernel")
    ks.append(("a0_kernel", 256, t, d, l))
    t, d, l = k_bound(0, "b0_kernel")
    ks.append(("b0_kernel", 256, t, d, l))
    t, d, l = k_attn(1, "a1_kernel")
    ks.append(("a1_kernel", 256, t, d, l))
    t, d, l = k_bound(1, "b1_kernel")
    ks.append(("b1_kernel", 256, t, d, l))
    open(sys.argv[1] if len(sys.argv) > 1 else "out.s", "w").write(build(ks))
```

```python
from common import *

LDS_ST = 0
LDS_XB = 1024
LDS_XB_END = LDS_XB + 18 * 1024

V_X = 60
V_XR = 40
V_TMP = 16
V_MU = 32
V_RS = 33
V_STW = 34
V_STR = 35
V_XBE = 36
V_XBO = 37
V_XOFF = 38
V_WF = 100
V_WT = 172


def chain_addr_setup(p):
    p.e(f"v_lshlrev_b32 v{V_STR}, 5, v{V_N}")
    p.e(f"s_lshl_b32 s{S_T0}, s{S_W}, 3")
    p.e(f"v_add_u32 v{V_STW}, s{S_T0}, v{V_STR}")
    xb_write_bases(p, V_XBE, V_XBO, LDS_XB)
    p.e(f"v_mul_u32_u24 v{V_XOFF}, 1152, v{V_N}")
    p.e(f"s_mul_i32 s{S_T0}, s{S_W}, 288")
    p.e(f"v_lshl_add_u32 v{V_XOFF}, v{V_G}, 3, v{V_XOFF}")
    p.e(f"v_add_u32 v{V_XOFF}, s{S_T0}, v{V_XOFF}")


def load_x_rows(p, srd):
    for t in range(9):
        p.e(f"buffer_load_dwordx2 {vr(V_XR + 2 * t, 2)}, v{V_XOFF}, {sr(srd, 4)}, s{S_ROWOFF} offen offset:{32 * t}")


def unpack_x_rows(p):
    for t in range(9):
        unpack_bf16x4(p, V_X + 4 * t, V_XR + 2 * t)


def kv_weight_gather_issue(p, srd):
    vo = V_T0
    p.e(f"s_lshl_b32 s{S_T0}, s{S_W}, 4")
    p.e(f"v_add_u32 v{vo + 1}, s{S_T0}, v{V_N}")
    p.e(f"v_mul_u32_u24 v{vo}, 144, v{V_G}")
    p.e(f"v_lshl_add_u32 v{vo}, v{vo + 1}, 1, v{vo}")
    p.e(f"v_cmp_gt_u32 vcc, 18, v{vo + 1}")
    p.e(f"v_mov_b32 v{vo + 2}, 0x40000000")
    p.e(f"v_cndmask_b32 v{vo}, v{vo + 2}, v{vo}, vcc")
    gather_wkv_frags(p, srd, V_WF, 172, vo, nks=18, ks0=0)


def kv_weight_gather(p, srd):
    vo = V_T0
    p.e(f"s_lshl_b32 s{S_T0}, s{S_W}, 4")
    p.e(f"v_add_u32 v{vo + 1}, s{S_T0}, v{V_N}")
    p.e(f"v_mul_u32_u24 v{vo}, 144, v{V_G}")
    p.e(f"v_lshl_add_u32 v{vo}, v{vo + 1}, 1, v{vo}")
    p.e(f"v_cmp_gt_u32 vcc, 18, v{vo + 1}")
    p.e(f"v_mov_b32 v{vo + 2}, 0x40000000")
    p.e(f"v_cndmask_b32 v{vo}, v{vo + 2}, v{vo}, vcc")
    gather_wkv_frags(p, srd, V_WF, V_WT, vo, nks=16, ks0=0)
    combine_frags(p, V_WF, V_WT, 64)
    gather_wkv_frags(p, srd, V_WF + 64, V_WT, vo, nks=2, ks0=16)
    combine_frags(p, V_WF + 64, V_WT, 8)


def kv_project_store(p, s_kvbase, name):
    acc = V_TMP
    xb = V_TMP + 4
    va = V_T0
    p.e(f"; K/V projection")
    p.e(f"s_cmp_ge_u32 s{S_W}, 2")
    p.e(f"s_cbranch_scc1 {name}_end")
    p.if_begin()
    p.e(f"s_cmp_eq_u32 s{S_HH}, 0")
    p.e(f"s_cbranch_scc0 {name}_v")
    p.if_begin()
    for ks in range(18):
        if ks == 0:
            for k in range(2):
                p.e(f"ds_read_b128 {vr(xb + 4 * (k % 3), 4)}, v{V_L16} offset:{LDS_XB + 1024 * k}")
        if ks + 2 < 18:
            p.e(f"ds_read_b128 {vr(xb + 4 * ((ks + 2) % 3), 4)}, v{V_L16} offset:{LDS_XB + 1024 * (ks + 2)}")
        c = "0" if ks == 0 else vr(acc, 4)
        p.e(f"v_mfma_f32_16x16x32_bf16 {vr(acc, 4)}, {vr(V_WF + 4 * ks, 4)}, {vr(xb + 4 * (ks % 3), 4)}, {c}")
    p.e(f"s_lshr_b32 s{S_T0}, s{S_PAIR}, 1")
    p.e(f"s_and_b32 s{S_T0 + 1}, s{S_PAIR}, 1")
    p.e(f"s_lshl_b32 s{S_T0 + 1}, s{S_T0 + 1}, 4")
    p.e(f"v_add_u32 v{va}, s{S_T0 + 1}, v{V_N}")
    p.e(f"s_mov_b32 s{S_T0 + 2}, {hx(f2u(L.QSCALE))}")
    for r in range(4):
        p.e(f"v_mul_f32 v{acc + r}, s{S_T0 + 2}, v{acc + r}")
    p.e(f"v_cvt_pk_bf16_f32 v{xb}, v{acc}, v{acc + 1}")
    p.e(f"v_cvt_pk_bf16_f32 v{xb + 1}, v{acc + 2}, v{acc + 3}")
    p.e(f"s_cmp_eq_u32 s{S_W}, 0")
    p.e(f"s_cbranch_scc0 {name}_kl")
    p.if_begin()
    p.e(f"v_lshrrev_b32 v{va + 1}, 1, v{V_G}")
    p.e(f"v_lshl_add_u32 v{va + 1}, v{va + 1}, 5, v{va}")
    p.e(f"v_lshlrev_b32 v{va + 1}, 4, v{va + 1}")
    p.e(f"v_and_b32 v{va + 2}, 1, v{V_G}")
    p.e(f"v_lshl_add_u32 v{va + 1}, v{va + 2}, 3, v{va + 1}")
    p.e(f"s_lshl_b32 s{S_T0}, s{S_T0}, 10")
    p.e(f"v_add_u32 v{va + 1}, s{S_T0}, v{va + 1}")
    p.e(f"global_store_dwordx2 v{va + 1}, {vr(xb, 2)}, {sr(s_kvbase, 2)} offset:{L.KV_K0} KVSC")
    p.e(f"s_branch {name}_end")
    p.if_end()
    p.label(f"{name}_kl")
    p.e(f"v_mov_b32 v{xb + 1}, 0x3f803f80")
    p.e(f"s_lshl_b32 s{S_T0}, s{S_T0}, 5")
    p.e(f"v_add_u32 v{va + 1}, s{S_T0}, v{va}")
    p.e(f"v_lshlrev_b32 v{va + 1}, 3, v{va + 1}")
    p.e(f"v_add_u32 v{va + 1}, {hx(L.KV_KL)}, v{va + 1}")
    p.e(f"v_cmp_gt_u32 vcc, 16, v{V_LANE}")
    p.e(f"s_and_saveexec_b64 s[{S_T0 + 4}:{S_T0 + 5}], vcc")
    p.e(f"global_store_dwordx2 v{va + 1}, {vr(xb, 2)}, {sr(s_kvbase, 2)} KVSC")
    p.e(f"s_mov_b64 exec, s[{S_T0 + 4}:{S_T0 + 5}]")
    p.e(f"s_branch {name}_end")
    p.if_end()
    p.label(f"{name}_v")
    for ks in range(18):
        if ks == 0:
            for k in range(2):
                p.e(f"ds_read_b128 {vr(xb + 4 * (k % 3), 4)}, v{V_L16} offset:{LDS_XB + 1024 * k}")
        if ks + 2 < 18:
            p.e(f"ds_read_b128 {vr(xb + 4 * ((ks + 2) % 3), 4)}, v{V_L16} offset:{LDS_XB + 1024 * (ks + 2)}")
        c = "0" if ks == 0 else vr(acc, 4)
        p.e(f"v_mfma_f32_16x16x32_bf16 {vr(acc, 4)}, {vr(xb + 4 * (ks % 3), 4)}, {vr(V_WF + 4 * ks, 4)}, {c}")
    p.e(f"s_lshl_b32 s{S_T0 + 1}, s{S_W}, 4")
    p.e(f"v_add_u32 v{va}, s{S_T0 + 1}, v{V_N}")
    p.e(f"v_cmp_eq_u32 vcc, 18, v{va}")
    p.e(f"v_mov_b32 v{va + 2}, 1.0")
    for r in range(4):
        p.e(f"v_cndmask_b32 v{acc + r}, v{acc + r}, v{va + 2}, vcc")
    p.e(f"v_cvt_pk_bf16_f32 v{xb}, v{acc}, v{acc + 1}")
    p.e(f"v_cvt_pk_bf16_f32 v{xb + 1}, v{acc + 2}, v{acc + 3}")
    p.e(f"v_and_b32 v{va + 1}, 1, v{V_G}")
    p.e(f"v_lshl_add_u32 v{va + 1}, v{va + 1}, 5, v{va}")
    p.e(f"v_lshlrev_b32 v{va + 1}, 4, v{va + 1}")
    p.e(f"v_lshrrev_b32 v{va + 2}, 1, v{V_G}")
    p.e(f"v_lshl_add_u32 v{va + 1}, v{va + 2}, 3, v{va + 1}")
    p.e(f"s_lshl_b32 s{S_T0}, s{S_PAIR}, 10")
    p.e(f"s_add_u32 s{S_T0}, s{S_T0}, {hx(L.KV_VF)}")
    p.e(f"v_add_u32 v{va + 1}, s{S_T0}, v{va + 1}")
    p.e(f"global_store_dwordx2 v{va + 1}, {vr(xb, 2)}, {sr(s_kvbase, 2)} KVSC")
    p.label(f"{name}_end")
    p.if_end()


RL_LO, RL_HI = 100, 136
S_RLD, S_RLS, S_RLN = 94, 95, 96


def relayout_issue(p, s_job, name):
    vo, v2, v3 = V_T0, V_T0 + 1, V_T0 + 2
    dst, tmp = RL_LO, RL_HI
    st = S_T0
    p.e(f"s_mov_b32 s{S_RLN}, 0")
    p.e(f"s_cmp_ge_u32 s{s_job}, 58")
    p.e(f"s_cbranch_scc1 {name}_end")
    p.e(f"s_cmp_ge_u32 s{s_job}, 54")
    p.e(f"s_cbranch_scc1 {name}_kv")
    p.e(f"s_cmp_ge_u32 s{s_job}, 36")
    p.e(f"s_cbranch_scc1 {name}_wo")
    load_ptr(p, st + 6, "wq")
    p.e(f"s_cmp_ge_u32 s{s_job}, 18")
    p.e(f"s_cselect_b32 s{st}, 1, 0")
    p.e(f"s_mul_i32 s{st + 1}, s{st}, 18")
    p.e(f"s_sub_u32 s{st + 1}, s{s_job}, s{st + 1}")
    p.e(f"s_lshl_b32 s{st + 2}, s{st}, 4")
    p.e(f"v_lshrrev_b32 v{v2}, 2, v{V_N}")
    p.e(f"v_and_b32 v{v3}, 3, v{V_N}")
    p.e(f"s_cmp_ge_u32 s{st + 1}, 16")
    p.e(f"s_cbranch_scc1 {name}_ql")
    p.e(f"s_and_b32 s{st + 3}, s{st + 1}, 12")
    p.e(f"s_add_u32 s{st + 2}, s{st + 2}, s{st + 3}")
    p.e(f"s_and_b32 s{st + 3}, s{st + 1}, 2")
    p.e(f"s_add_u32 s{st + 2}, s{st + 2}, s{st + 3}")
    p.e(f"s_and_b32 s{st + 3}, s{st + 1}, 1")
    p.e(f"s_lshl_b32 s{st + 3}, s{st + 3}, 2")
    p.e(f"v_and_b32 v{vo}, 1, v{v2}")
    p.e(f"v_add_u32 v{vo}, s{st + 2}, v{vo}")
    p.e(f"v_mul_u32_u24 v{vo}, 18, v{vo}")
    p.e(f"v_lshrrev_b32 v{v2}, 1, v{v2}")
    p.e(f"v_lshl_add_u32 v{vo}, v{v2}, 3, v{vo}")
    p.e(f"v_add_u32 v{vo}, v{vo}, v{v3}")
    p.e(f"v_add_u32 v{vo}, s{st + 3}, v{vo}")
    p.e(f"s_branch {name}_qc")
    p.label(f"{name}_ql")
    p.e(f"s_sub_u32 s{st + 3}, s{st + 1}, 16")
    p.e(f"s_lshl_b32 s{st + 3}, s{st + 3}, 3")
    p.e(f"s_add_u32 s{st + 2}, s{st + 2}, s{st + 3}")
    p.e(f"v_lshrrev_b32 v{vo}, 1, v{v3}")
    p.e(f"v_lshl_add_u32 v{vo}, v{vo}, 2, v{v2}")
    p.e(f"v_add_u32 v{vo}, s{st + 2}, v{vo}")
    p.e(f"v_mul_u32_u24 v{vo}, 18, v{vo}")
    p.e(f"v_and_b32 v{v3}, 1, v{v3}")
    p.e(f"v_add_u32 v{vo}, v{vo}, v{v3}")
    p.e(f"v_add_u32 v{vo}, 16, v{vo}")
    p.label(f"{name}_qc")
    p.e(f"v_lshlrev_b32 v{vo}, 1, v{vo}")
    p.e(f"v_mul_u32_u24 v{v2}, {4 * 1152}, v{V_G}")
    p.e(f"v_add_u32 v{vo}, v{vo}, v{v2}")
    p.e(f"s_mul_i32 s{st + 3}, s{S_W}, {32 * 1152}")
    p.e(f"v_add_u32 v{vo}, s{st + 3}, v{vo}")
    p.e("s_waitcnt lgkmcnt(0)")
    make_srd(p, SRD_B, st + 6, 576 * 1152)
    p.e(f"s_mul_i32 s{st}, s{s_job}, {18 * 1024}")
    p.e(f"s_lshl_b32 s{st + 1}, s{S_W}, 10")
    p.e(f"s_add_u32 s{st}, s{st}, s{st + 1}")
    p.e(f"s_add_u32 s{S_RLD}, s{st}, {hx(L.WQF)}")
    for i in range(5):
        for j in range(8):
            row = 128 * i + 16 * (j // 4) + j % 4
            if j == 0 or j == 4:
                p.e(f"s_mov_b32 s{st + 4}, {(row // 4 * 4) * 1152}")
            op = "buffer_load_ushort" if j % 2 == 0 else "buffer_load_short_d16_hi"
            reg = (dst if j % 2 == 0 else tmp) + 4 * i + j // 2
            p.e(f"{op} a{reg}, v{vo}, {sr(SRD_B, 4)}, s{st + 4} offen offset:{(j % 4) * 1152}")
    p.e(f"s_branch {name}_n45")
    p.label(f"{name}_wo")
    load_ptr(p, st + 6, "wo")
    p.e(f"s_sub_u32 s{st + 5}, s{s_job}, 36")
    p.e(f"s_cmp_ge_u32 s{st + 5}, 9")
    p.e(f"s_cselect_b32 s{st}, 1, 0")
    p.e(f"s_mul_i32 s{st + 1}, s{st}, 9")
    p.e(f"s_sub_u32 s{st + 1}, s{st + 5}, s{st + 1}")
    p.e(f"s_lshl_b32 s{st + 2}, s{st}, 4")
    p.e(f"s_cmp_eq_u32 s{st + 1}, 8")
    p.e(f"s_cbranch_scc1 {name}_ol")
    p.e(f"s_lshl_b32 s{st + 3}, s{st + 1}, 1")
    p.e(f"s_add_u32 s{st + 2}, s{st + 2}, s{st + 3}")
    p.e(f"v_and_b32 v{vo}, 1, v{V_G}")
    p.e(f"v_add_u32 v{vo}, s{st + 2}, v{vo}")
    p.e(f"v_mul_u32_u24 v{vo}, 18, v{vo}")
    p.e(f"v_lshrrev_b32 v{v2}, 1, v{V_G}")
    p.e(f"v_lshl_add_u32 v{vo}, v{v2}, 2, v{vo}")
    p.e(f"s_mov_b32 s{st + 8}, 0")
    p.e(f"s_branch {name}_oc")
    p.label(f"{name}_ol")
    p.e(f"v_lshlrev_b32 v{vo}, 2, v{V_G}")
    p.e(f"v_add_u32 v{vo}, s{st + 2}, v{vo}")
    p.e(f"v_mul_u32_u24 v{vo}, 18, v{vo}")
    p.e(f"v_add_u32 v{vo}, 16, v{vo}")
    p.e(f"s_mov_b32 s{st + 8}, 1")
    p.label(f"{name}_oc")
    p.e(f"v_mul_u32_u24 v{vo}, 1152, v{vo}")
    p.e(f"v_lshl_add_u32 v{vo}, v{V_N}, 1, v{vo}")
    p.e(f"s_mul_i32 s{st + 3}, s{S_W}, 288")
    p.e(f"v_add_u32 v{vo}, s{st + 3}, v{vo}")
    p.e("s_waitcnt lgkmcnt(0)")
    make_srd(p, SRD_B, st + 6, 576 * 1152)
    p.e(f"s_mul_i32 s{st}, s{st + 5}, {36 * 1024}")
    p.e(f"s_mul_i32 s{st + 1}, s{S_W}, {9 * 1024}")
    p.e(f"s_add_u32 s{st}, s{st}, s{st + 1}")
    p.e(f"s_add_u32 s{S_RLD}, s{st}, {hx(L.WOF)}")
    R = 48
    main = [0, 1, 2, 3, 8, 9, 10, 11]
    left = [0, 1, 18, 19, 36, 37, 54, 55]
    p.e(f"s_cmp_eq_u32 s{st + 8}, 1")
    for j in range(8):
        p.e(f"s_mov_b32 s{R + j}, {left[j] * 1152}")
        p.e(f"s_cselect_b32 s{R + j}, s{R + j}, {main[j] * 1152}")
    for t in range(9):
        for j in range(8):
            op = "buffer_load_ushort" if j % 2 == 0 else "buffer_load_short_d16_hi"
            reg = (dst if j % 2 == 0 else tmp) + 4 * t + j // 2
            p.e(f"{op} a{reg}, v{vo}, {sr(SRD_B, 4)}, s{R + j} offen offset:{32 * t}")
    p.e(f"s_mov_b32 s{S_RLS}, 1024")
    p.e(f"s_mov_b32 s{S_RLN}, 9")
    p.e(f"s_branch {name}_end")
    p.label(f"{name}_kv")
    load_ptr(p, st + 6, "wk")
    load_ptr(p, st + 8, "wv")
    p.e(f"s_sub_u32 s{st + 5}, s{s_job}, 54")
    p.e(f"s_and_b32 s{st + 1}, s{st + 5}, 1")
    p.e(f"s_lshl_b32 s{st + 1}, s{st + 1}, 4")
    p.e(f"v_add_u32 v{v2}, s{st + 1}, v{V_N}")
    p.e(f"v_mul_u32_u24 v{vo}, 144, v{V_G}")
    p.e(f"v_lshl_add_u32 v{vo}, v{v2}, 1, v{vo}")
    p.e(f"s_mul_i32 s{st + 3}, s{S_W}, 1152")
    p.e(f"v_add_u32 v{vo}, s{st + 3}, v{vo}")
    p.e(f"v_cmp_gt_u32 vcc, 18, v{v2}")
    p.e(f"v_mov_b32 v{v3}, 0x40000000")
    p.e(f"v_cndmask_b32 v{vo}, v{v3}, v{vo}, vcc")
    p.e("s_waitcnt lgkmcnt(0)")
    p.e(f"s_cmp_ge_u32 s{st + 5}, 2")
    p.e(f"s_cselect_b32 s{st + 6}, s{st + 8}, s{st + 6}")
    p.e(f"s_cselect_b32 s{st + 7}, s{st + 9}, s{st + 7}")
    make_srd(p, SRD_B, st + 6, 576 * 36)
    p.e(f"s_mul_i32 s{st}, s{st + 5}, {18 * 1024}")
    p.e(f"s_lshl_b32 s{st + 1}, s{S_W}, 10")
    p.e(f"s_add_u32 s{st}, s{st}, s{st + 1}")
    p.e(f"s_add_u32 s{S_RLD}, s{st}, {hx(L.WKVF)}")
    for i in range(5):
        p.e(f"s_mov_b32 s{st + 4}, {i * 4 * 1152}")
        for j in range(8):
            op = "buffer_load_ushort" if j % 2 == 0 else "buffer_load_short_d16_hi"
            reg = (dst if j % 2 == 0 else tmp) + 4 * i + j // 2
            p.e(f"{op} a{reg}, v{vo}, {sr(SRD_B, 4)}, s{st + 4} offen offset:{(16 * (j // 4) + j % 4) * 36}")
    p.label(f"{name}_n45")
    p.e(f"s_mov_b32 s{S_RLS}, 4096")
    p.e(f"s_cmp_lt_u32 s{S_W}, 2")
    p.e(f"s_cselect_b32 s{S_RLN}, 5, 4")
    p.label(f"{name}_end")


def relayout_finish(p, name):
    out = 172
    a = V_T0
    p.e(f"v_add_u32 v{a}, s{S_RLD}, v{V_L16}")
    for i in range(9):
        p.e(f"s_cmp_le_u32 s{S_RLN}, {i}")
        p.e(f"s_cbranch_scc1 {name}_fin")
        o = out + 8 * (i % 2)
        for j in range(4):
            p.e(f"v_accvgpr_read_b32 v{o + j}, a{RL_LO + 4 * i + j}")
            p.e(f"v_accvgpr_read_b32 v{o + 4 + j}, a{RL_HI + 4 * i + j}")
        for j in range(4):
            p.e(f"v_or_b32 v{o + j}, v{o + j}, v{o + 4 + j}")
        p.e(f"global_store_dwordx4 v{a}, {vr(o, 4)}, s[{S_WS}:{S_WS + 1}] WSC")
        p.e(f"v_add_u32 v{a}, s{S_RLS}, v{a}")
    p.label(f"{name}_fin")


V_Y = 132
V_PB = 164
V_YOFF = 39
V_PA = 96 + 104


def y_loads(p, s_yt):
    p.e(f"s_mul_i32 s{S_T0}, s{S_W}, {144 * 4096}")
    p.e(f"s_lshl_b32 s{S_T0 + 1}, s{S_PAIR}, 5")
    p.e(f"s_add_u32 s{S_T0}, s{S_T0}, s{S_T0 + 1}")
    p.e(f"v_lshlrev_b32 v{V_YOFF}, 14, v{V_G}")
    p.e(f"v_lshl_add_u32 v{V_YOFF}, v{V_N}, 1, v{V_YOFF}")
    p.e(f"v_add_u32 v{V_YOFF}, s{S_T0}, v{V_YOFF}")
    for t in range(9):
        for r in range(4):
            if r == 0:
                p.e(f"v_add_u32 v{V_T0}, {16 * t * 4096}, v{V_YOFF}")
            else:
                p.e(f"v_add_u32 v{V_T0}, 4096, v{V_T0}")
            p.e(f"global_load_short_d16_hi v{V_Y + 4 * t + r}, v{V_T0}, {sr(s_yt, 2)} PLD")


def gate_chain(p, X, st_sel=0):
    row_stats(p, X, V_TMP, LDS_ST + 512 * st_sel, V_STW, V_STR, V_MU, V_RS)
    T = V_TMP
    p.e(f"v_mov_b32 v{T}, v{V_RS}")
    p.e(f"v_mul_f32 v{T + 2}, v{V_MU}, v{V_RS}")
    p.e(f"v_sub_f32 v{T + 2}, 0, v{T + 2}")
    for i in range(18):
        a = T + 4 + 2 * (i % 2)
        p.e(f"v_pk_fma_f32 {vr(a, 2)}, {vr(X + 2 * i, 2)}, {vr(T, 2)}, {vr(T + 2, 2)} op_sel_hi:[1,0,0]")
        p.e(f"v_pk_fma_f32 {vr(X + 2 * i, 2)}, {vr(a, 2)}, {vr(V_Y + 2 * i, 2)}, {vr(X + 2 * i, 2)}")


def store_out_rows(p, srd, X, half_by_hh=True):
    T = V_TMP
    for t in range(9):
        o = T + 2 * (t % 4)
        p.e(f"v_cvt_pk_bf16_f32 v{o}, v{X + 4 * t}, v{X + 4 * t + 1}")
        p.e(f"v_cvt_pk_bf16_f32 v{o + 1}, v{X + 4 * t + 2}, v{X + 4 * t + 3}")
        p.e(f"buffer_store_dwordx2 {vr(o, 2)}, v{V_XOFF}, {sr(srd, 4)}, s{S_ROWOFF} offen offset:{32 * t}")
```

```python
import sys
from common import *
import parts as P
from parts import *
import conv as CV
import attn as AT
import gen as G

S_NONCE = 86
S_ROLE = 81
S_CH0 = 80
S_LAYER = 83
ST_KV1, ST_Y, ST_P1, ST_KV2, ST_P2 = 0, 1, 2, 3, 4
SPIN_MAX = 400000
_lab = [0]


def uid(s):
    _lab[0] += 1
    return f"L_{s}{_lab[0]}"


def flag_set(p, stage):
    p.e("s_waitcnt vmcnt(0)")
    p.e("s_barrier")
    lab = uid("fs")
    p.e(f"s_cmp_lg_u32 s{S_W}, 0")
    p.e(f"s_cbranch_scc1 {lab}")
    p.e(f"s_lshl_b32 s{S_T0}, s{S_PAIR}, 1")
    p.e(f"s_add_u32 s{S_T0}, s{S_T0}, s{S_HH}")
    p.e(f"s_lshl_b32 s{S_T0}, s{S_T0}, 7")
    p.e(f"s_add_u32 s{S_T0}, s{S_T0}, {hx(L.FLAGS + stage * 32768)}")
    p.e(f"v_mov_b32 v{V_T0}, s{S_T0}")
    p.e(f"v_mov_b32 v{V_T0 + 1}, s{S_NONCE}")
    p.e("s_mov_b64 exec, 1")
    p.e(f"global_store_dword v{V_T0}, v{V_T0 + 1}, s[{S_WS}:{S_WS + 1}] sc1")
    p.e("s_mov_b64 exec, -1")
    p.label(lab)


def poll(p, vaddr):
    lab = uid("pl")
    p.e(f"s_mov_b32 s{S_T0 + 1}, 0")
    p.label(lab)
    p.e(f"global_load_dword v{V_T0 + 1}, v{vaddr}, s[{S_WS}:{S_WS + 1}] sc1")
    p.e(f"s_add_u32 s{S_T0 + 1}, s{S_T0 + 1}, 1")
    p.e("s_waitcnt vmcnt(0)")
    p.e(f"v_cmp_ne_u32 vcc, s{S_NONCE}, v{V_T0 + 1}")
    p.e(f"s_cmp_gt_u32 s{S_T0 + 1}, {SPIN_MAX}")
    p.e(f"s_cbranch_scc1 {lab}_x")
    p.e(f"s_cbranch_vccnz {lab}")
    p.label(lab + "_x")


def poll_all(p, stage, barrier=True):
    p.e(f"s_lshl_b32 s{S_T0}, s{S_W}, 13")
    p.e(f"s_add_u32 s{S_T0}, s{S_T0}, {hx(L.FLAGS + stage * 32768)}")
    p.e(f"v_lshlrev_b32 v{V_T0}, 7, v{V_LANE}")
    p.e(f"v_add_u32 v{V_T0}, s{S_T0}, v{V_T0}")
    poll(p, V_T0)
    if barrier:
        p.e("s_barrier")


def poll_partner(p, stage):
    p.e(f"s_lshl_b32 s{S_T0}, s{S_PAIR}, 1")
    p.e(f"s_add_u32 s{S_T0}, s{S_T0}, s{S_HH}")
    p.e(f"s_xor_b32 s{S_T0}, s{S_T0}, 1")
    p.e(f"s_lshl_b32 s{S_T0}, s{S_T0}, 7")
    p.e(f"s_add_u32 s{S_T0}, s{S_T0}, {hx(L.FLAGS + stage * 32768)}")
    p.e(f"v_mov_b32 v{V_T0}, s{S_T0}")
    poll(p, V_T0)


def save_x(p, X):
    pass


LDS_XS = 150784


def k_fused(name):
    p = Prog()
    for k in ("KVSC", "WSC", "YSC", "PSC", "PLD"):
        p.subst[k] = "sc1"
    done = name + "_done"
    stamp = G.stamp
    prologue(p, done=done)
    if G.STAMPS:
        load_ptr(p, 88, "dbg")
    load_ptr(p, S_T0 + 4, "x")
    load_ptr(p, S_T0 + 6, "wk")
    load_ptr(p, S_T0 + 8, "wv")
    chain_addr_setup(p)
    p.e("s_waitcnt lgkmcnt(0)")
    stamp(p, 0)
    stamp(p, 14, real=True)
    p.e(f"s_add_u32 s{S_T0 + 10}, s{S_WS}, {hx(L.EPOCH)}")
    p.e(f"s_addc_u32 s{S_T0 + 11}, s{S_WS + 1}, 0")
    p.e(f"s_load_dword s{S_NONCE}, s[{S_T0 + 10}:{S_T0 + 11}], 0")
    make_srd(p, SRD_A, S_T0 + 4, L.S * L.D * 2)
    p.e(f"s_cmp_eq_u32 s{S_HH}, 0")
    p.e(f"s_cselect_b32 s{S_T0 + 6}, s{S_T0 + 6}, s{S_T0 + 8}")
    p.e(f"s_cselect_b32 s{S_T0 + 7}, s{S_T0 + 7}, s{S_T0 + 9}")
    make_srd(p, SRD_B, S_T0 + 6, 576 * 36)
    load_x_rows(p, SRD_A)
    p.e(f"s_cmp_ge_u32 s{S_W}, 2")
    p.e(f"s_cbranch_scc1 {name}_nog")
    p.if_begin()
    kv_weight_gather_issue(p, SRD_B)
    p.label(f"{name}_nog")
    p.if_end()
    p.e("s_waitcnt lgkmcnt(0)")
    p.e(f"s_add_u32 s{S_NONCE}, s{S_NONCE}, 1")
    CV.ut_issue(p)
    p.e(f"s_cmp_lt_u32 s{S_SLOT}, 24")
    p.e(f"s_cselect_b32 s{S_ROLE}, 1, 0")
    p.e(f"s_cbranch_scc0 {name}_r_rl")
    p.if_begin()
    p.e(f"s_mul_i32 s{S_CH0}, s{S_XCD}, 72")
    p.e(f"s_mul_i32 s3, s{S_SLOT}, 3")
    p.e(f"s_add_u32 s{S_CH0}, s{S_CH0}, s3")
    CV.conv_filter_issue(p, S_CH0)
    p.e(f"s_branch {name}_r_end")
    p.if_end()
    p.label(f"{name}_r_rl")
    p.if_begin()
    p.e(f"s_lshl_b32 s{S_CH0}, s{S_XCD}, 3")
    p.e(f"s_add_u32 s{S_CH0}, s{S_CH0}, s{S_SLOT}")
    p.e(f"s_sub_u32 s{S_CH0}, s{S_CH0}, 24")
    relayout_issue(p, S_CH0, name + "_rl")
    p.if_end()
    p.label(f"{name}_r_end")
    stamp(p, 1)
    unpack_x_rows(p)
    row_stats(p, V_X, V_TMP, LDS_ST, V_STW, V_STR, V_MU, V_RS)
    normalize_to_xb(p, V_X, V_TMP, V_MU, V_RS, V_XBE, V_XBO)
    p.e("s_waitcnt vmcnt(0) lgkmcnt(0)")
    p.e("s_barrier")
    stamp(p, 2)
    p.e(f"s_cmp_ge_u32 s{S_W}, 2")
    p.e(f"s_cbranch_scc1 {name}_nog2")
    p.if_begin()
    combine_frags(p, V_WF, 172, 64)
    combine_frags(p, V_WF + 64, 236, 8)
    p.label(f"{name}_nog2")
    p.if_end()
    ws_base(p, S_P0, L.KVB)
    kv_project_store(p, S_P0, name + "_kv1")
    CV.ut_compute(p)
    p.e(f"s_cmp_eq_u32 s{S_ROLE}, 0")
    p.e(f"s_cbranch_scc0 {name}_norl")
    p.if_begin()
    relayout_finish(p, name + "_rl")
    p.label(f"{name}_norl")
    p.if_end()
    for i in range(16):
        p.e(f"v_accvgpr_write_b32 a{240 + i}, v{V_XR + i}")
    p.e(f"v_mov_b32 v{V_XS16}, v{V_XR + 16}")
    p.e(f"v_mov_b32 v{V_XS16 + 1}, v{V_XR + 17}")
    stamp(p, 3)
    flag_set(p, ST_KV1)
    p.e(f"s_cmp_eq_u32 s{S_ROLE}, 1")
    p.e(f"s_cbranch_scc0 {name}_nofb")
    p.if_begin()
    CV.conv_filter_build(p, S_CH0)
    p.label(f"{name}_nofb")
    p.if_end()
    AT.addr_setup(p)
    AT.weight_ptr_setup(p)
    stamp(p, 4)
    poll_all(p, ST_KV1)
    stamp(p, 5)
    lab = uid("ep")
    p.e(f"s_or_b32 s{S_T0}, s2, s{S_W}")
    p.e(f"s_cmp_lg_u32 s{S_T0}, 0")
    p.e(f"s_cbranch_scc1 {lab}")
    p.e(f"v_mov_b32 v{V_T0}, {hx(L.EPOCH)}")
    p.e(f"v_mov_b32 v{V_T0 + 1}, s{S_NONCE}")
    p.e("s_mov_b64 exec, 1")
    p.e(f"global_store_dword v{V_T0}, v{V_T0 + 1}, s[{S_WS}:{S_WS + 1}] sc1")
    p.e("s_mov_b64 exec, -1")
    p.label(lab)
    p.e(f"s_cmp_eq_u32 s{S_ROLE}, 1")
    p.e(f"s_cbranch_scc0 {name}_nocv0")
    p.if_begin()
    CV.conv_u_dma(p, S_CH0)
    p.label(f"{name}_nocv0")
    p.if_end()
    p.e("s_waitcnt vmcnt(0) lgkmcnt(0)")
    ws_base(p, S_P0, L.KVB)
    AT.load_kv(p, S_P0)
    p.e("s_barrier")
    p.e(f"s_cmp_eq_u32 s{S_ROLE}, 1")
    p.e(f"s_cbranch_scc0 {name}_nocv")
    p.if_begin()
    ws_base(p, S_P0 + 2, L.YT)
    CV.conv_main(p, S_CH0, name + "_cv", S_P0 + 2, stamp)
    p.label(f"{name}_nocv")
    p.if_end()
    stamp(p, 6)
    flag_set(p, ST_Y)
    stamp(p, 7)
    p.e(f"s_mov_b32 s{S_LAYER}, 0")
    p.fence()
    p.label(name + "_layer")
    AT.attention_layer(p, name + "_at", lambda p, i, s=None: None)
    p.e(f"s_lshl_b32 s3, s{S_LAYER}, 3")
    stamp(p, 8, 3)
    p.e(f"s_lshl_b32 s{S_T0}, s{S_PAIR}, 1")
    p.e(f"s_add_u32 s{S_T0}, s{S_T0}, s{S_HH}")
    p.e(f"s_mul_i32 s{S_T0 + 2}, s{S_T0}, 36864")
    p.e(f"s_xor_b32 s{S_T0}, s{S_T0}, 1")
    p.e(f"s_mul_i32 s{S_T0 + 3}, s{S_T0}, 36864")
    p.e(f"s_mul_i32 s{S_T0 + 1}, s{S_W}, 9216")
    p.e(f"s_mul_i32 s{S_T0 + 4}, s{S_LAYER}, {hx(L.PART_LAYER)}")
    p.e(f"s_add_u32 s{S_T0 + 1}, s{S_T0 + 1}, s{S_T0 + 4}")
    p.e(f"s_add_u32 s{S_T0 + 2}, s{S_T0 + 2}, s{S_T0 + 1}")
    p.e(f"s_add_u32 s{S_T0 + 3}, s{S_T0 + 3}, s{S_T0 + 1}")
    ws_base(p, S_P0 + 4, L.PART, S_T0 + 2)
    ws_base(p, S_P0 + 6, L.PART, S_T0 + 3)
    for t in range(9):
        p.e(f"v_add_u32 v{V_T0 + 1}, {1024 * t}, v{V_L16}")
        p.e(f"global_store_dwordx4 v{V_T0 + 1}, {vr(AT.XA + 4 * t, 4)}, {sr(S_P0 + 4, 2)} sc1")
    flag_set_dyn(p, ST_P1, ST_P2 - ST_P1)
    p.e(f"s_lshl_b32 s3, s{S_LAYER}, 3")
    stamp(p, 9, 3)
    chain_addr_setup(p)
    p.e(f"s_cmp_eq_u32 s{S_LAYER}, 0")
    p.e(f"s_cbranch_scc0 {name}_noyp")
    p.if_begin()
    poll_all(p, ST_Y)
    p.label(f"{name}_noyp")
    p.if_end()
    ws_base(p, S_P0 + 2, L.YT)
    y_loads(p, S_P0 + 2)
    for i in range(16):
        p.e(f"v_accvgpr_read_b32 v{V_XR + i}, a{240 + i}")
    p.e(f"v_mov_b32 v{V_XR + 16}, v{V_XS16}")
    p.e(f"v_mov_b32 v{V_XR + 17}, v{V_XS16 + 1}")
    unpack_x_rows(p)
    p.e(f"s_lshl_b32 s{S_T0}, s{S_HH}, 1")
    p.e(f"s_add_u32 s{S_T0}, s{S_T0}, s{S_W}")
    p.e(f"s_mul_i32 s{S_T0}, s{S_T0}, {18 * 1024}")
    ws_base(p, S_P0 + 8, L.WKVF, S_T0)
    p.e(f"s_or_b32 s{S_T0}, s{S_LAYER}, s{S_W}")
    p.e(f"s_cmp_ge_u32 s{S_W}, 2")
    p.e(f"s_cbranch_scc1 {name}_nw")
    p.if_begin()
    WF2 = 180
    for ks in range(18):
        p.e(f"v_add_u32 v{V_T0 + 1}, {1024 * ks}, v{V_L16}")
        p.e(f"global_load_dwordx4 {vr(WF2 + 4 * ks, 4)}, v{V_T0 + 1}, {sr(S_P0 + 8, 2)} sc1")
    p.label(f"{name}_nw")
    p.if_end()
    for i in range(18):
        p.e(f"v_pk_add_f32 {vr(V_X + 2 * i, 2)}, {vr(V_X + 2 * i, 2)}, {vr(AT.XA + 2 * i, 2)}")
    poll_partner_dyn(p, ST_P1, ST_P2 - ST_P1)
    PB = AT.XA
    for t in range(9):
        p.e(f"v_add_u32 v{V_T0 + 1}, {1024 * t}, v{V_L16}")
        p.e(f"global_load_dwordx4 {vr(PB + 4 * t, 4)}, v{V_T0 + 1}, {sr(S_P0 + 6, 2)} sc1")
    for i in range(18):
        p.e(f"v_pk_add_f32 {vr(V_X + 2 * i, 2)}, {vr(V_X + 2 * i, 2)}, {vr(PB + 2 * i, 2)}")
    p.e(f"s_lshl_b32 s3, s{S_LAYER}, 3")
    stamp(p, 10, 3)
    dbg_dump(p, V_X, 0)
    gate_chain(p, V_X, 0)
    dbg_dump(p, V_X, 1)
    p.e(f"s_cmp_eq_u32 s{S_LAYER}, 1")
    p.e(f"s_cbranch_scc1 {name}_final")
    row_stats(p, V_X, V_TMP, LDS_ST + 512, V_STW, V_STR, V_MU, V_RS)
    normalize_to_xb(p, V_X, V_TMP, V_MU, V_RS, V_XBE, V_XBO)
    for t in range(9):
        p.e(f"v_cvt_pk_bf16_f32 v{V_XR + 2 * t}, v{V_X + 4 * t}, v{V_X + 4 * t + 1}")
        p.e(f"v_cvt_pk_bf16_f32 v{V_XR + 2 * t + 1}, v{V_X + 4 * t + 2}, v{V_X + 4 * t + 3}")
    for i in range(16):
        p.e(f"v_accvgpr_write_b32 a{240 + i}, v{V_XR + i}")
    p.e(f"v_mov_b32 v{V_XS16}, v{V_XR + 16}")
    p.e(f"v_mov_b32 v{V_XS16 + 1}, v{V_XR + 17}")
    p.e("s_waitcnt vmcnt(0) lgkmcnt(0)")
    p.e("s_barrier")
    ws_base(p, S_P0, L.KVB + L.KV_LAYER)
    old = P.V_WF
    P.V_WF = WF2
    kv_project_store(p, S_P0, name + "_kv2")
    P.V_WF = old
    flag_set(p, ST_KV2)
    stamp(p, 11)
    AT.addr_setup(p)
    AT.weight_ptr_setup(p)
    poll_all(p, ST_KV2)
    stamp(p, 12)
    ws_base(p, S_P0, L.KVB + L.KV_LAYER)
    AT.load_kv(p, S_P0)
    p.e(f"s_mov_b32 s{S_LAYER}, 1")
    p.e("s_waitcnt vmcnt(0) lgkmcnt(0)")
    p.e("s_nop 15")
    p.e(f"s_branch {name}_layer")
    p.fence()
    p.label(name + "_final")
    load_ptr(p, S_T0 + 4, "out")
    p.e("s_waitcnt lgkmcnt(0)")
    make_srd(p, SRD_A, S_T0 + 4, L.S * L.D * 2)
    p.e(f"s_lshr_b32 s{S_T0}, s{S_W}, 1")
    p.e(f"s_cmp_eq_u32 s{S_T0}, s{S_HH}")
    p.e(f"s_cbranch_scc0 {done}")
    store_out_rows(p, SRD_A, V_X)
    stamp(p, 26)
    stamp(p, 15, real=True)
    p.label(done)
    p.e("s_endpgm")
    txt = G.kernel_text(name, p)
    print(name, "counts", p.count, "auto nops", p.nauto_nop, file=sys.stderr)
    return txt, G.descriptor(name, 256, 256, sgpr=102), AT.A_END


V_XS16 = 252


def dbg_dump(p, X, which):
    if "--dump" not in sys.argv:
        return
    lab = uid("dd")
    p.e(f"s_or_b32 s{S_T0}, s{S_HH}, s{S_LAYER}")
    p.e(f"s_cmp_lg_u32 s{S_T0}, 0")
    p.e(f"s_cbranch_scc1 {lab}")
    p.e(f"s_mul_i32 s{S_T0}, s{S_PAIR}, 36864")
    p.e(f"s_mul_i32 s{S_T0 + 1}, s{S_W}, 9216")
    p.e(f"s_add_u32 s{S_T0}, s{S_T0}, s{S_T0 + 1}")
    ws_base(p, S_P0 + 10, L.X2G + which * 0x500000, S_T0)
    for t in range(9):
        p.e(f"v_add_u32 v{V_T0 + 1}, {1024 * t}, v{V_L16}")
        p.e(f"global_store_dwordx4 v{V_T0 + 1}, {vr(X + 4 * t, 4)}, {sr(S_P0 + 10, 2)}")
    p.label(lab)


def flag_set_dyn(p, stage, dstage):
    p.e("s_waitcnt vmcnt(0)")
    p.e("s_barrier")
    lab = uid("fs")
    p.e(f"s_cmp_lg_u32 s{S_W}, 0")
    p.e(f"s_cbranch_scc1 {lab}")
    p.e(f"s_lshl_b32 s{S_T0}, s{S_PAIR}, 1")
    p.e(f"s_add_u32 s{S_T0}, s{S_T0}, s{S_HH}")
    p.e(f"s_lshl_b32 s{S_T0}, s{S_T0}, 7")
    p.e(f"s_mul_i32 s{S_T0 + 1}, s{S_LAYER}, {dstage * 32768}")
    p.e(f"s_add_u32 s{S_T0}, s{S_T0}, s{S_T0 + 1}")
    p.e(f"s_add_u32 s{S_T0}, s{S_T0}, {hx(L.FLAGS + stage * 32768)}")
    p.e(f"v_mov_b32 v{V_T0}, s{S_T0}")
    p.e(f"v_mov_b32 v{V_T0 + 1}, s{S_NONCE}")
    p.e("s_mov_b64 exec, 1")
    p.e(f"global_store_dword v{V_T0}, v{V_T0 + 1}, s[{S_WS}:{S_WS + 1}] sc1")
    p.e("s_mov_b64 exec, -1")
    p.label(lab)


def poll_partner_dyn(p, stage, dstage):
    p.e(f"s_lshl_b32 s{S_T0}, s{S_PAIR}, 1")
    p.e(f"s_add_u32 s{S_T0}, s{S_T0}, s{S_HH}")
    p.e(f"s_xor_b32 s{S_T0}, s{S_T0}, 1")
    p.e(f"s_lshl_b32 s{S_T0}, s{S_T0}, 7")
    p.e(f"s_mul_i32 s{S_T0 + 2}, s{S_LAYER}, {dstage * 32768}")
    p.e(f"s_add_u32 s{S_T0}, s{S_T0}, s{S_T0 + 2}")
    p.e(f"s_add_u32 s{S_T0}, s{S_T0}, {hx(L.FLAGS + stage * 32768)}")
    p.e(f"v_mov_b32 v{V_T0}, s{S_T0}")
    poll(p, V_T0)


def build_single(name, text, desc, lds):
    s = G.HEADER
    s += f"; @launch grid=(256,1,1) block=(256,1,1) lds={lds}\n"
    s += '.amdgcn_target "amdgcn-amd-amdhsa--gfx950"\n.text\n' + text
    s += '.section .rodata,"a"\n' + desc
    return s


if __name__ == "__main__":
    G.STAMPS = "--stamps" in sys.argv
    name = G.NAME + "_kernel"
    t, d, l = k_fused(name)
    open(sys.argv[1], "w").write(build_single(name, t, d, l))
```

```python
import re

REG_RE = re.compile(r'(?<![\w.])([vas])\[(\d+):(\d+)\]|(?<![\w.\[:])([vas])(\d+)(?![\w:])|(?<!\w)(vcc|exec_lo|exec_hi|exec|m0)(?!\w)')

TRANS = ("v_exp_", "v_log_", "v_rcp_", "v_rsq_", "v_sqrt_", "v_sin_", "v_cos_")
MFMA_PASSES = {
    "v_mfma_f32_32x32x16_bf16": 8, "v_mfma_f32_16x16x32_bf16": 4,
    "v_mfma_f32_32x32x4_2b_bf16": 16, "v_mfma_f32_32x32x8_bf16": 8,
    "v_mfma_f32_16x16x16_bf16": 4,
}
P2I = {2: 0, 4: 1, 8: 2, 16: 3}


def split_ops(s):
    out, depth, cur = [], 0, ""
    for ch in s:
        if ch in "[(":
            depth += 1
        elif ch in "])":
            depth -= 1
        if ch == "," and depth == 0:
            out.append(cur.strip())
            cur = ""
        else:
            cur += ch
    if cur.strip():
        out.append(cur.strip())
    return out


def regs_of(tok):
    res = []
    for m in REG_RE.finditer(tok):
        if m.group(1):
            res += [(m.group(1), i) for i in range(int(m.group(2)), int(m.group(3)) + 1)]
        elif m.group(4):
            res.append((m.group(4), int(m.group(5))))
        else:
            nm = m.group(6)
            if nm == "vcc":
                res += [("vcc", 0)]
            elif nm.startswith("exec"):
                res += [("exec", 0)]
            else:
                res += [("m0", 0)]
    return res


class Ins:
    __slots__ = ("text", "mn", "cls", "rd", "wr", "ops", "passes", "srcc", "srcab", "wide_store_data", "note", "tag")

    def __init__(self, text, tag=None):
        self.text = text
        self.tag = tag
        t = text.split(";")[0].strip()
        parts = t.split(None, 1)
        self.mn = mn = parts[0]
        rest = parts[1] if len(parts) > 1 else ""
        ops = split_ops(rest)
        self.ops = ops
        self.passes = 0
        self.srcc = []
        self.srcab = []
        self.wide_store_data = []
        R = [regs_of(o) for o in ops]
        allr = [r for x in R for r in x]
        rd, wr = [], []
        if mn.endswith(":") or mn.startswith("."):
            self.cls = "label"
        elif mn.startswith("v_mfma"):
            self.cls = "mfma"
            self.passes = MFMA_PASSES[mn]
            wr = R[0]
            self.srcab = R[1] + R[2]
            self.srcc = R[3]
            rd = R[1] + R[2] + R[3]
        elif mn.startswith("v_"):
            base = mn
            self.cls = "trans" if base.startswith(TRANS) else "valu"
            if mn.startswith("v_cmp"):
                wr = R[0]
                rd = [r for x in R[1:] for r in x]
            elif mn.startswith(("v_permlane32_swap", "v_permlane16_swap", "v_swap")):
                wr = R[0] + R[1]
                rd = R[0] + R[1]
            elif mn.startswith(("v_add_co", "v_sub_co", "v_addc_co", "v_subb_co")):
                wr = R[0] + R[1]
                rd = [r for x in R[2:] for r in x]
            else:
                wr = R[0]
                rd = [r for x in R[1:] for r in x]
                if mn.startswith(("v_fmac", "v_dot2c", "v_pk_fmac", "v_writelane")) or "UNUSED_PRESERVE" in t:
                    rd = rd + R[0]
                if "_dpp" in mn or "row_" in t or "quad_perm" in t:
                    rd = rd + R[0]
                if mn.startswith("v_cndmask") and len(ops) == 3:
                    rd = rd + [("vcc", 0)]
            rd = rd + [("exec", 0)]
        elif mn in ("s_waitcnt", "s_nop", "s_barrier", "s_endpgm", "s_sleep", "s_setprio", "s_branch") or mn.startswith("s_cbranch"):
            self.cls = {"s_waitcnt": "wait", "s_nop": "nop", "s_barrier": "barrier"}.get(mn, "ctl")
            if mn in ("s_cbranch_vccz", "s_cbranch_vccnz"):
                rd = [("vcc", 0)]
            if mn in ("s_cbranch_execz", "s_cbranch_execnz"):
                rd = [("exec", 0)]
        elif mn.startswith(("s_load", "s_memtime", "s_memrealtime", "s_buffer_load")):
            self.cls = "smem"
            wr = R[0]
            rd = [r for x in R[1:] for r in x]
        elif mn.startswith("s_"):
            self.cls = "salu"
            if mn.startswith(("s_cmp", "s_bitcmp")):
                rd = allr
            elif "saveexec" in mn:
                wr = R[0] + [("exec", 0)]
                rd = R[1] + [("exec", 0)]
            else:
                wr = R[0]
                rd = [r for x in R[1:] for r in x]
                if mn.startswith(("s_addk", "s_mulk", "s_cmov")):
                    rd += R[0]
        elif mn.startswith(("global_load", "buffer_load")):
            lds = bool(re.search(r'(?<!\w)lds(?!\w)', t))
            if lds:
                self.cls = "vdma"
                rd = allr + [("m0", 0)]
            else:
                self.cls = "vload"
                wr = R[0]
                rd = [r for x in R[1:] for r in x]
                if "d16" in mn:
                    rd += R[0]
        elif mn.startswith(("global_store", "buffer_store", "global_atomic", "buffer_atomic", "buffer_wbl2", "buffer_inv")):
            self.cls = "vstore"
            rd = allr
            if "x4" in mn or "x3" in mn:
                self.wide_store_data = R[0] if mn.startswith("buffer") else R[1]
        elif mn.startswith(("ds_read", "ds_bpermute", "ds_swizzle", "ds_permute")):
            self.cls = "dsread"
            wr = R[0]
            rd = [r for x in R[1:] for r in x]
        elif mn.startswith("ds_"):
            self.cls = "dswrite"
            rd = allr
        else:
            raise ValueError("unknown instruction: " + text)
        self.rd = rd
        self.wr = wr


class State:
    def __init__(self):
        self.vm = {}
        self.lg = {}
        self.sm = set()
        self.haz = {}
        self.nvm = 0

    def copy(self):
        s = State()
        s.vm = dict(self.vm)
        s.lg = dict(self.lg)
        s.sm = set(self.sm)
        s.haz = dict(self.haz)
        return s

    def merge(self, o):
        for k, v in o.vm.items():
            self.vm[k] = min(v, self.vm.get(k, 10 ** 9))
        for k, v in o.lg.items():
            self.lg[k] = min(v, self.lg.get(k, 10 ** 9))
        self.sm |= o.sm
        for k, v in o.haz.items():
            self.haz[k] = min(v, self.haz.get(k, 10 ** 9))

    def same(self, o):
        return self.vm == o.vm and self.lg == o.lg and self.sm == o.sm and self.haz == o.haz


MFMA_VALU = [5, 8, 12, 20]
MFMA_AB = [5, 8, 12, 20]
MFMA_C_OVL = [4, 6, 10, 18]
MFMA_C_SAME = [2, 0, 0, 0]
MFMA_WAR_C = [1, 3, 7, 15]
HORIZON = 24


class Prog:
    def __init__(self):
        self.items = []
        self.subst = {"KVSC": "", "WSC": "", "YSC": "", "PSC": "", "PLD": ""}
        self.stats = {}

    def e(self, text, tag=None, wtok=None):
        if wtok is not None:
            ins = Ins(text.strip())
            for k, v in self.subst.items():
                if k in ins.text:
                    ins = Ins(text.replace(k, v).strip())
            ins.tag = ("tok", wtok)
            self.items.append(ins)
            return
        for line in text.split("\n"):
            line = line.strip()
            if not line or line.startswith(";"):
                continue
            for k, v in self.subst.items():
                line = line.replace(k, v)
            self.items.append(Ins(line.strip(), tag))

    def wait_tok(self, *names):
        self.items.append(("wait_tok", names))

    def need(self, regs):
        self.items.append(("need", regs_of(regs)))

    def raw(self, text):
        self.items.append(("raw", text))

    def label(self, name):
        self.items.append(("raw", name + ":"))

    def comment(self, c):
        self.items.append(("raw", "    ; " + c))

    def fence(self):
        self.items.append(("fence",))

    def join(self, name):
        self.items.append(("raw", name + ":"))
        self.items.append(("fence",))

    def drain(self):
        self.e("s_waitcnt vmcnt(0) lgkmcnt(0)")
        self.e("s_nop 15")
        self.e("s_nop 7")

    def if_begin(self):
        self.items.append(("if_begin",))

    def if_end(self):
        self.items.append(("if_end",))

    def loop_begin(self, name):
        self.items.append(("loop_begin", name))

    def loop_end(self):
        self.items.append(("loop_end",))

    def _step(self, ins, st, out):
        cls = ins.cls
        touched = ins.rd + ins.wr
        need_vm = None
        need_lg = None
        for r in touched:
            if r in st.vm:
                a = st.vm[r]
                need_vm = a if need_vm is None else min(need_vm, a)
            if r in st.lg:
                a = st.lg[r]
                need_lg = a if need_lg is None else min(need_lg, a)
            if r in st.sm:
                need_lg = 0
        if need_vm is not None or need_lg is not None:
            w = "s_waitcnt"
            if need_vm is not None:
                need_vm = min(need_vm, 63)
                w += f" vmcnt({need_vm})"
            if need_lg is not None:
                if st.sm:
                    need_lg = 0
                need_lg = min(need_lg, 15)
                w += f" lgkmcnt({need_lg})"
            self._apply(Ins(w), st, out, auto=True)
        need = 0

        def chk(kind, regs, table=None, const=None):
            nonlocal need
            for r in regs:
                for key, dist in list(st.haz.items()):
                    pass

        H = st.haz

        def req(kind, r, n):
            nonlocal need
            d = H.get((kind, r))
            if d is not None and d < n:
                need = max(need, n - d)

        isv = cls in ("valu", "trans")
        if cls == "mfma":
            for r in ins.rd:
                req("valuw", r, 2)
            pi = P2I[ins.passes]
            for r in ins.srcab:
                for p in (2, 4, 8, 16):
                    req(("mfmaw", p), r, MFMA_AB[P2I[p]])
            cset = tuple(ins.srcc)
            for r in ins.srcc:
                for p in (2, 4, 8, 16):
                    key = (("mfmaw", p), r)
                    if key in H:
                        same = H.get((("mfmad", p), r))
                        exact = (st_exact(st, r) == cset) and p == ins.passes
                        n = MFMA_C_SAME[P2I[p]] if exact else MFMA_C_OVL[P2I[p]]
                        req(("mfmaw", p), r, n)
            for r in ins.wr:
                if r not in ins.srcc:
                    for p in (2, 4, 8, 16):
                        req(("mfmaw", p), r, MFMA_C_OVL[P2I[p]])
            req("execw", ("exec", 0), 4)
        if isv:
            for r in ins.rd + ins.wr:
                for p in (2, 4, 8, 16):
                    req(("mfmaw", p), r, MFMA_VALU[P2I[p]])
            for r in ins.wr:
                for p in (2, 4, 8, 16):
                    req(("mfmac", p), r, MFMA_WAR_C[P2I[p]])
                req("widest", r, 2)
            if cls == "valu" or True:
                for r in ins.rd:
                    if cls == "valu":
                        req("transw", r, 1)
                    if r[0] in ("s", "vcc"):
                        req("valusw", r, 2)
            if ins.mn.startswith("v_permlane"):
                for r in ins.rd:
                    req("valuw", r, 2)
            if ins.mn.startswith(("v_readlane", "v_readfirstlane")):
                for r in ins.rd:
                    req("valuw", r, 1)
            if "_dpp" in ins.mn or "row_" in ins.text or "quad_perm" in ins.text:
                for r in ins.rd:
                    req("valuw", r, 2)
                req("execw", ("exec", 0), 5)
        if cls in ("vload", "vstore", "vdma", "dsread", "dswrite"):
            for r in ins.rd + ins.wr:
                for p in (2, 4, 8, 16):
                    req(("mfmaw", p), r, MFMA_VALU[P2I[p]])
                if r[0] == "s":
                    req("valusw", r, 5)
            if cls == "vdma":
                req("saluw", ("m0", 0), 1)
            for r in ins.wr:
                req("widest", r, 1)
        if cls == "salu" or cls == "ctl" or cls == "smem":
            for r in ins.rd:
                if r[0] in ("s", "vcc"):
                    req("valusw", r, 4 if cls != "ctl" else 1)
        if need > 0:
            while need > 0:
                k = min(need, 16)
                self._apply(Ins(f"s_nop {k - 1}"), st, out, auto=True)
                need -= k
        self._apply(ins, st, out)

    def _apply(self, ins, st, out, auto=False):
        cls = ins.cls
        n = 1
        if cls == "nop":
            n = int(ins.ops[0]) + 1
        H = st.haz
        for k in list(H.keys()):
            v = H[k] + n
            if v >= HORIZON:
                del H[k]
            else:
                H[k] = v
        if cls == "wait":
            t = ins.text
            m = re.search(r"vmcnt\((\d+)\)", t)
            if m:
                c = int(m.group(1))
                st.vm = {r: a for r, a in st.vm.items() if a < c}
            m = re.search(r"lgkmcnt\((\d+)\)", t)
            if m:
                c = int(m.group(1))
                st.lg = {r: a for r, a in st.lg.items() if a < c}
                if c == 0:
                    st.sm = set()
        if cls in ("vload", "vstore", "vdma"):
            for r in st.vm:
                st.vm[r] += 1
            if cls == "vload":
                for r in ins.wr:
                    st.vm[r] = 0
            if isinstance(ins.tag, tuple) and ins.tag[0] == "tok":
                st.vm[ins.tag] = 0
            if ins.wide_store_data:
                for r in ins.wide_store_data:
                    H[("widest", r)] = 0
        if cls in ("dsread", "dswrite"):
            for r in st.lg:
                st.lg[r] += 1
            if cls == "dsread":
                for r in ins.wr:
                    st.lg[r] = 0
            if isinstance(ins.tag, tuple) and ins.tag[0] == "tok":
                st.lg[ins.tag] = 0
            if cls == "dswrite" and ("b128" in ins.mn or "b96" in ins.mn):
                for r in ins.rd[1:]:
                    H[("widest", r)] = 0
        if cls == "smem":
            for r in ins.wr:
                st.sm.add(r)
        if cls in ("valu", "trans"):
            for r in ins.wr:
                if r[0] in ("v", "a"):
                    H[("valuw", r)] = 0
                    if cls == "trans":
                        H[("transw", r)] = 0
                    else:
                        H.pop(("transw", r), None)
                elif r[0] in ("s", "vcc"):
                    H[("valusw", r)] = 0
                elif r[0] == "exec":
                    H[("execw", r)] = 0
        if cls == "salu":
            for r in ins.wr:
                H[("saluw", r)] = 0
                H.pop(("valusw", r), None)
        if cls == "mfma":
            for r in ins.wr:
                for p in (2, 4, 8, 16):
                    H.pop((("mfmaw", p), r), None)
                H[(("mfmaw", ins.passes), r)] = 0
                st_set_exact(st, r, tuple(ins.wr))
            for r in ins.srcc:
                H[(("mfmac", ins.passes), r)] = 0
        out.append((ins, auto))

    def finalize(self):
        out_lines = []
        self.nauto_nop = 0
        st = State()
        st.exact = {}
        items = self.items
        i = 0

        def run(seq, st):
            out = []
            ifstack = []
            j = 0
            while j < len(seq):
                it = seq[j]
                if isinstance(it, Ins):
                    self._step(it, st, out)
                elif it[0] == "raw":
                    out.append((it[1], False))
                elif it[0] == "fence":
                    ex = getattr(st, "exact", {})
                    st.vm, st.lg, st.sm, st.haz = {}, {}, set(), {}
                elif it[0] == "wait_tok":
                    nv = [st.vm[("tok", n)] for n in it[1] if ("tok", n) in st.vm]
                    nl = [st.lg[("tok", n)] for n in it[1] if ("tok", n) in st.lg]
                    if nv or nl:
                        w = "s_waitcnt"
                        if nv:
                            w += f" vmcnt({min(min(nv), 63)})"
                        if nl:
                            w += f" lgkmcnt({0 if st.sm else min(min(nl), 15)})"
                        self._apply(Ins(w), st, out, auto=True)
                elif it[0] == "need":
                    nv = [st.vm[r] for r in it[1] if r in st.vm]
                    nl = [st.lg[r] for r in it[1] if r in st.lg]
                    if nv or nl:
                        w = "s_waitcnt"
                        if nv:
                            w += f" vmcnt({min(min(nv), 63)})"
                        if nl:
                            w += f" lgkmcnt({0 if st.sm else min(min(nl), 15)})"
                        self._apply(Ins(w), st, out, auto=True)
                elif it[0] == "if_begin":
                    c = st.copy()
                    c.exact = dict(st.exact)
                    ifstack.append(c)
                elif it[0] == "if_end":
                    c = ifstack.pop()
                    st.merge(c)
                    for r in list(st.exact.keys()):
                        if c.exact.get(r) != st.exact[r]:
                            st.exact[r] = None
                elif it[0] == "loop_begin":
                    depth = 1
                    k = j + 1
                    while depth:
                        if not isinstance(seq[k], Ins):
                            if seq[k][0] == "loop_begin":
                                depth += 1
                            elif seq[k][0] == "loop_end":
                                depth -= 1
                        k += 1
                    body = seq[j + 1:k - 1]
                    entry = st.copy()
                    entry.exact = dict(st.exact)
                    for _ in range(12):
                        s2 = entry.copy()
                        s2.exact = dict(entry.exact)
                        o = run(body, s2)
                        e2 = entry.copy()
                        e2.merge(s2)
                        e2.exact = dict(s2.exact)
                        if e2.same(entry):
                            break
                        entry = e2
                    else:
                        raise RuntimeError("loop analysis did not converge")
                    out.append((it[1] + ":", False))
                    out += o
                    st.vm, st.lg, st.sm, st.haz = s2.vm, s2.lg, s2.sm, s2.haz
                    st.exact = s2.exact
                    j = k - 1
                j += 1
            return out

        res = run(items, st)
        lines = []
        self.count = {}
        for x, auto in res:
            if isinstance(x, Ins):
                lines.append("    " + x.text + ("    ; auto" if auto else ""))
                self.count[x.cls] = self.count.get(x.cls, 0) + 1
                if auto and x.cls == "nop":
                    self.nauto_nop += 1
            else:
                lines.append(x)
        self.final = res
        return "\n".join(lines) + "\n"


def st_exact(st, r):
    return getattr(st, "exact", {}).get(r)


def st_set_exact(st, r, t):
    if not hasattr(st, "exact"):
        st.exact = {}
    st.exact[r] = t


def vr(a, n=1):
    return f"v{a}" if n == 1 else f"v[{a}:{a + n - 1}]"


def ar(a, n=1):
    return f"a{a}" if n == 1 else f"a[{a}:{a + n - 1}]"


def sr(a, n=1):
    return f"s{a}" if n == 1 else f"s[{a}:{a + n - 1}]"
```

```python
import os
from common import *
from parts import LDS_XB, LDS_XB_END

A_QF = 147200
A_QL = A_QF + 2048
A_OP = LDS_XB_END
A_OB = A_OP + 24576
A_OL = A_OB + 2048
A_FL = A_OL + 1024
A_END = A_QL + 1024 + 512

A_K0 = 0
A_KL = 64
A_VT = 80
A_O = 208

SB = [16, 48]
QC = 80
QLR = 88
XA = 96
WR = 132
NR = 9
XR = 168
QA = 180
QT = 184
OF = 188
OFL = 196
RT = 200
V_WQ, V_WO = 232, 233
V_OPW, V_R1, V_R2, V_OBW, V_OLW, V_QFW, V_QL = 234, 235, 236, 237, 238, 239, 240
V_QFR = 241
V_RC = 242
V_KA, V_KL, V_VA = 244, 245, 246
S_PH = 82
S_FAIL = 84
S_KV = S_P0
L_LO = 0x1f800000
L_RANGE = 0x5f800000 - L_LO
KV_AHEAD = 4


def cost(text):
    mn = text.split()[0]
    if mn.startswith("v_exp") or mn.startswith("v_rcp"):
        return 8
    if mn.startswith("v_mfma"):
        return 4 if "x4_2b" in mn else 8
    if mn.startswith("ds_write_b128"):
        return 18
    if mn.startswith("ds_") or mn.startswith("global_load"):
        return 9
    return 4


def pipe(text):
    mn = text.split()[0]
    if "32x32x16" in mn:
        return 32
    if "16x16x32" in mn:
        return 16
    if "x4_2b" in mn:
        return 64
    return 0


def addr_setup(p):
    t = S_T0
    p.e(f"s_mul_i32 s{t}, s{S_W}, 6144")
    p.e(f"s_add_u32 s{t}, s{t}, {A_OP}")
    p.e(f"v_add_u32 v{V_OPW}, s{t}, v{V_L16}")
    p.e(f"s_lshr_b32 s{t + 1}, s{S_W}, 1")
    p.e(f"s_and_b32 s{t + 2}, s{S_W}, 1")
    p.e(f"s_mul_i32 s{t + 3}, s{t + 1}, 3072")
    p.e(f"s_add_u32 s{t + 3}, s{t + 3}, {A_OP}")
    p.e(f"s_lshl_b32 s{t + 4}, s{t + 2}, 10")
    p.e(f"s_add_u32 s{t + 4}, s{t + 4}, s{t + 3}")
    p.e(f"v_add_u32 v{V_R1}, s{t + 4}, v{V_L16}")
    p.e(f"v_and_b32 v{V_T0}, 31, v{V_LANE}")
    p.e(f"v_lshlrev_b32 v{V_T0 + 1}, 4, v{V_T0}")
    p.e(f"s_add_u32 s{t + 3}, s{t + 3}, 2048")
    p.e(f"v_add_u32 v{V_R2}, s{t + 3}, v{V_T0 + 1}")
    p.e(f"s_lshl_b32 s{t + 3}, s{t + 1}, 10")
    p.e(f"s_lshl_b32 s{t + 4}, s{t + 2}, 3")
    p.e(f"s_add_u32 s{t + 3}, s{t + 3}, s{t + 4}")
    p.e(f"s_add_u32 s{t + 4}, s{t + 3}, {A_OB}")
    p.e(f"v_add_u32 v{V_OBW}, s{t + 4}, v{V_L16}")
    p.e(f"s_add_u32 s{t + 4}, s{t + 3}, {A_QF}")
    p.e(f"v_add_u32 v{V_QFW}, s{t + 4}, v{V_L16}")
    p.e(f"v_lshlrev_b32 v{V_OLW}, 4, v{V_N}")
    p.e(f"v_lshrrev_b32 v{V_T0}, 4, v{V_T0}")
    p.e(f"v_lshl_add_u32 v{V_OLW}, v{V_T0}, 2, v{V_OLW}")
    p.e(f"s_lshl_b32 s{t + 3}, s{t + 1}, 3")
    p.e(f"s_add_u32 s{t + 3}, s{t + 3}, {A_OL}")
    p.e(f"v_add_u32 v{V_OLW}, s{t + 3}, v{V_OLW}")
    p.e(f"v_add_u32 v{V_QFR}, {A_QF}, v{V_L16}")
    p.e(f"v_lshlrev_b32 v{V_QL}, 2, v{V_LANE}")
    p.e(f"v_add_u32 v{V_QL}, {A_QL}, v{V_QL}")
    p.e(f"s_lshl_b32 s{t}, s{S_W}, 14")
    p.e(f"s_add_u32 s{t}, s{t}, 4096")
    p.e(f"v_add_u32 v{V_KA}, s{t}, v{V_L16}")
    p.e(f"s_lshl_b32 s{t}, s{S_W}, 12")
    p.e(f"s_add_u32 s{t}, s{t}, {hx(L.KV_KL)}")
    p.e(f"v_lshlrev_b32 v{V_KL}, 3, v{V_LANE}")
    p.e(f"v_add_u32 v{V_KL}, s{t}, v{V_KL}")
    p.e(f"v_and_b32 v{V_T0}, 31, v{V_LANE}")
    p.e(f"v_min_u32 v{V_T0}, 18, v{V_T0}")
    p.e(f"v_and_b32 v{V_T0 + 1}, 32, v{V_LANE}")
    p.e(f"v_add_lshl_u32 v{V_VA}, v{V_T0}, v{V_T0 + 1}, 4")
    p.e(f"s_lshl_b32 s{t}, s{S_W}, 15")
    p.e(f"s_add_u32 s{t}, s{t}, {hx(L.KV_VF + 4096)}")
    p.e(f"v_add_u32 v{V_VA}, s{t}, v{V_VA}")


def weight_ptr_setup(p):
    t = S_T0
    p.e(f"s_mul_i32 s{t}, s{S_HH}, {L.WQF_HH}")
    p.e(f"s_mul_i32 s{t + 1}, s{S_W}, 18432")
    p.e(f"s_add_u32 s{t}, s{t}, s{t + 1}")
    p.e(f"s_add_u32 s{t}, s{t}, {hx(L.WQF + 4096)}")
    p.e(f"v_add_u32 v{V_WQ}, s{t}, v{V_L16}")
    p.e(f"s_mul_i32 s{t}, s{S_HH}, {L.WOF_HH}")
    p.e(f"s_mul_i32 s{t + 1}, s{S_W}, 9216")
    p.e(f"s_add_u32 s{t}, s{t}, s{t + 1}")
    p.e(f"s_add_u32 s{t}, s{t}, {hx(L.WOF + 4096)}")
    p.e(f"v_add_u32 v{V_WO}, s{t}, v{V_L16}")


def kv_tile_loads(tau):
    out = []
    if tau == 8:
        out.append(f"v_add_u32 v{V_KA}, 8192, v{V_KA}")
    out.append(f"global_load_dwordx4 {ar(A_K0 + 4 * tau, 4)}, v{V_KA}, {sr(S_KV, 2)} offset:{(tau % 8) * 1024 - 4096} PLD")
    if tau % 2 == 0:
        out.append(f"global_load_dwordx2 {ar(A_KL + tau, 2)}, v{V_KL}, {sr(S_KV, 2)} offset:{256 * tau} PLD")
    if tau and tau % 4 == 0:
        out.append(f"v_add_u32 v{V_VA}, 8192, v{V_VA}")
    for t in range(2):
        out.append(f"global_load_dwordx4 {ar(A_VT + 8 * tau + 4 * t, 4)}, v{V_VA}, {sr(S_KV, 2)} offset:{(tau % 4) * 2048 + 1024 * t - 4096} PLD")
    return out


def qk_mfmas(kt, Y):
    k0 = ar(A_K0 + 4 * kt, 4)
    kl = ar(A_KL + 2 * (kt // 2), 2)
    m2 = f"v_mfma_f32_32x32x16_bf16 {vr(Y, 16)}, {k0}, {vr(QC, 4)}, 0"
    m3 = f"v_mfma_f32_32x32x16_bf16 {vr(Y + 16, 16)}, {k0}, {vr(QC + 4, 4)}, 0"
    m1 = f"v_mfma_f32_32x32x4_2b_bf16 {vr(Y, 32)}, {kl}, {vr(QLR, 2)}, {vr(Y, 32)} cbsz:1 abid:{kt % 2}"
    return m2, m3, m1


def pv_mfma(kt, X, T, t):
    c = "0" if (kt == 0 and t == 0) else ar(A_O + 16 * T, 16)
    return f"v_mfma_f32_32x32x16_bf16 {ar(A_O + 16 * T, 16)}, {ar(A_VT + 8 * kt + 4 * t, 4)}, {vr(X + 16 * T + 8 * t, 4)}, {c}"


def q_wload(ks, r):
    out = []
    if ks in (8, 16):
        out.append(f"v_add_u32 v{V_WQ}, 8192, v{V_WQ}")
    out.append(f"global_load_dwordx4 {vr(r, 4)}, v{V_WQ}, s[{S_WS}:{S_WS + 1}] offset:{(ks % 8) * 1024 - 4096} PLD")
    if ks == 17:
        out.append(f"v_add_u32 v{V_WQ}, {4 * 18432 - 16384}, v{V_WQ}")
    return out


class OStream:
    def __init__(self):
        self.base = 0

    def load(self, j, r):
        T, t = j // 9, j % 9
        off = (T * 36 + t) * 1024
        o = []
        if not (0 <= off - self.base <= 7168):
            o.append(f"v_add_u32 v{V_WO}, {off - self.base}, v{V_WO}")
            self.base = off
        o.append(f"global_load_dwordx4 {vr(r, 4)}, v{V_WO}, s[{S_WS}:{S_WS + 1}] offset:{off - self.base - 4096} PLD")
        if j == 17:
            o.append(f"v_add_u32 v{V_WO}, {72 * 1024 - self.base}, v{V_WO}")
            self.base = 0
        return o


def reduce_ops():
    L2 = RT + 16
    red = []
    red.append(f"v_pk_add_f32 {vr(L2, 2)}, {vr(L2, 2)}, {vr(L2 + 4, 2)}")
    red.append(f"v_pk_add_f32 {vr(L2 + 8, 2)}, {vr(L2 + 8, 2)}, {vr(L2 + 12, 2)}")
    red.append(f"v_add_f32 v{L2 + 2}, v{L2 + 2}, v{L2 + 6}")
    red.append(f"v_add_f32 v{L2 + 10}, v{L2 + 10}, v{L2 + 14}")
    red.append(f"v_pk_add_f32 {vr(L2, 2)}, {vr(L2, 2)}, {vr(L2 + 8, 2)}")
    red.append(f"v_add_f32 v{L2 + 2}, v{L2 + 2}, v{L2 + 10}")
    red.append(f"v_rcp_f32 v{V_RC}, v{L2 + 2}")
    red.append(f"v_subrev_u32 v{V_RC + 1}, {hx(L_LO)}, v{L2 + 2}")
    red.append(f"v_cmp_le_u32 vcc, {hx(L_RANGE)}, v{V_RC + 1}")
    for h in range(2):
        red.append(f"v_pk_add_f32 {vr(RT + 2 * h, 2)}, {vr(RT + 2 * h, 2)}, {vr(RT + 4 + 2 * h, 2)}")
        red.append(f"v_pk_add_f32 {vr(RT + 8 + 2 * h, 2)}, {vr(RT + 8 + 2 * h, 2)}, {vr(RT + 12 + 2 * h, 2)}")
    red.append(f"s_or_b64 s[{S_FAIL}:{S_FAIL + 1}], s[{S_FAIL}:{S_FAIL + 1}], vcc")
    for h in range(2):
        red.append(f"v_pk_add_f32 {vr(RT + 2 * h, 2)}, {vr(RT + 2 * h, 2)}, {vr(RT + 8 + 2 * h, 2)}")
    red.append(f"v_pk_mul_f32 {vr(L2, 2)}, {vr(L2, 2)}, {vr(V_RC, 2)} op_sel_hi:[1,0]")
    for h in range(2):
        red.append(f"v_pk_mul_f32 {vr(RT + 2 * h, 2)}, {vr(RT + 2 * h, 2)}, {vr(V_RC, 2)} op_sel_hi:[1,0]")
    red.append(f"v_cvt_pk_bf16_f32 v{L2 + 4}, v{L2}, v{L2 + 1}")
    red.append(f"v_cvt_pk_bf16_f32 v{RT + 4}, v{RT}, v{RT + 1}")
    red.append(f"v_cvt_pk_bf16_f32 v{RT + 5}, v{RT + 2}, v{RT + 3}")
    return red


def phase_body(p, kind):
    first = kind == "first"
    X_ = os.environ.get("EXP", "")
    main = []
    for kt in range(16):
        X = SB[kt % 2]
        idx = 0
        for blk in range(4):
            b = X + 8 * blk
            for i in range(8):
                main.append((kt, idx, f"v_exp_f32 v{b + i}, v{b + i}"))
                idx += 1
            for i in range(4):
                main.append((kt, idx, f"v_cvt_pk_bf16_f32 v{b + i}, v{b + 2 * i}, v{b + 2 * i + 1}"))
                idx += 1
    mm = []
    for kt in range(16):
        X = SB[kt % 2]
        Y = SB[(kt + 1) % 2]
        nk = (kt + 1) % 16
        m2, m3, m1 = qk_mfmas(nk, Y)
        pk = (kt - 1) % 16
        has_prev = not (first and kt == 0)
        if has_prev:
            mm.append(dict(n=f"pv11_{pk}", t=pv_mfma(pk, Y, 1, 1), kt=kt, pos=1, req=[], pr=3))
        req2 = ["qread"] if kt == 15 else []
        if first and kt + 1 < 16:
            req2 = req2 + [f"kvn_{kt}"]
        mm.append(dict(n=f"m2_{kt}", t=m2, kt=kt, pos=-1, req=req2, pr=0))
        mm.append(dict(n=f"m3_{kt}", t=m3, kt=kt, pos=-1, req=([f"pv11_{pk}"] if has_prev else []) + [f"m2_{kt}"], pr=1))
        mm.append(dict(n=f"m1_{kt}", t=m1, kt=kt, pos=-1, req=[], reqi=[(f"m3_{kt}", 10)], pr=2))
        mm.append(dict(n=f"pv00_{kt}", t=pv_mfma(kt, X, 0, 0), kt=kt, pos=13, req=(["wT0"] if (kt == 0 and not first) else []), pr=4))
        mm.append(dict(n=f"pv01_{kt}", t=pv_mfma(kt, X, 0, 1), kt=kt, pos=25, req=[f"pv00_{kt}"], pr=5))
        mm.append(dict(n=f"pv10_{kt}", t=pv_mfma(kt, X, 1, 0), kt=kt, pos=37, req=(["wT1"] if (kt == 0 and not first) else []), pr=6))
    side = []

    def S(t, **kw):
        side.append(dict(t=t, **kw))

    TILE = 445 if not first else 425
    ost = OStream()

    def ringload(i):
        r = WR + 4 * (i % NR)
        n = i + NR
        if first:
            return q_wload(n if n < 18 else n - 18, r)
        if n < 18:
            return q_wload(n, r)
        if n < 36:
            return ost.load(n - 18, r)
        return q_wload(n - 36, r)

    def ring(i):
        return vr(WR + 4 * (i % NR), 4)

    if not first:
        for g in range(3):
            S(f"ds_write_b128 v{V_OPW}, {ar(A_O + 4 * g, 4)} offset:{g * 1024}", wtok="OP", ev=("wT0" if g == 2 else None))
    for k in range(3):
        S(f"ds_read_b128 {vr(XR + 4 * k, 4)}, v{V_L16} offset:{LDS_XB + 1024 * k}")
    if not first:
        for g in range(3):
            S(f"ds_write_b128 v{V_OPW}, {ar(A_O + 16 + 4 * g, 4)} offset:{3072 + g * 1024}", wtok="OP",
              reqi=[("pv11_15", 13)] if g == 0 else [], ev=("wT1" if g == 2 else None))

    def qstep(i, nb):
        if i % 3 == 0:
            S("NEED " + ", ".join([ring(i + k) for k in range(3)] + [vr(XR + 4 * k, 4) for k in range(3)]), nb=nb - 8)
        c = "0" if i == 0 else vr(QA, 4)
        S(f"v_mfma_f32_16x16x32_bf16 {vr(QA, 4)}, {ring(i)}, {vr(XR + 4 * (i % 3), 4)}, {c}", nb=nb, ev=f"q{i}")
        for t in ringload(i):
            S(t)
        if i + 3 < 18:
            S(f"ds_read_b128 {vr(XR + 4 * (i % 3), 4)}, v{V_L16} offset:{LDS_XB + 1024 * (i + 3)}")

    q_t0 = TILE * 1.1
    q_dt = 175
    if first:
        q_t0 = TILE * 1.5
        q_dt = 270
        for i in range(36):
            S(f"v_mov_b32 v{XA + i}, 0", nb=i * 120)
        side_x = side[-36:]
        del side[-36:]
        for i in range(18):
            qstep(i, q_t0 + q_dt * i)
            side.extend(side_x[2 * i:2 * i + 2])
        for d in side:
            if d["t"].startswith("v_mov_b32 v") and "nb" in d:
                d["nb"] = None
    else:
        for i in range(0, 3):
            qstep(i, q_t0 + q_dt * i)
        S("WAIT OP")
        S("s_barrier", ev="B1")
        for w in range(4):
            S(f"ds_read_b128 {vr(RT + 16 + 4 * w, 4)}, v{V_R2} offset:{w * 6144}")
        for w in range(4):
            S(f"ds_read_b128 {vr(RT + 4 * w, 4)}, v{V_R1} offset:{w * 6144}", ev=("rread" if w == 3 else None))
        for i in range(3, 6):
            qstep(i, q_t0 + q_dt * i)
        S("NEED " + vr(RT, 32), reqc=[("rread", 260)])
        for t in reduce_ops():
            S(t)
        S(f"ds_write_b32 v{V_OLW}, v{RT + 20}", wtok="OB")
        S(f"ds_write_b64 v{V_OBW}, {vr(RT + 4, 2)}", wtok="OB")
        S(f"v_add_u32 v{V_OLW}, 256, v{V_OLW}")
        for i in range(6, 18):
            qstep(i, q_t0 + q_dt * i)
    S(f"v_cvt_pk_bf16_f32 v{QT}, v{QA}, v{QA + 1}", reqi=[("q17", 9)])
    S(f"v_cvt_pk_bf16_f32 v{QT + 1}, v{QA + 2}, v{QA + 3}")
    S(f"ds_write_b64 v{V_QFW}, {vr(QT, 2)}", wtok="OB", ev="qfw")
    S("WAIT OB", reqc=[("qfw", 140)])
    S("s_barrier", ev="B2")
    if not first:
        for T in range(2):
            S(f"ds_read_b128 {vr(OF + 4 * T, 4)}, v{V_L16} offset:{A_OB + 1024 * T}", ev=("ofr" if T == 1 else None))
        o_t0 = q_t0 + q_dt * 18 + 380
        o_dt = (16 * TILE - 300 - o_t0) / 18
        for j in range(18):
            i = 18 + j
            T, t = j // 9, j % 9
            if j % 3 == 0:
                S("NEED " + ", ".join([ring(i + k) for k in range(3)] + ([vr(OF, 8)] if j == 0 else [])),
                  nb=o_t0 + o_dt * j - 8, reqc=[("ofr", 150)] if j == 0 else [])
            S(f"v_mfma_f32_16x16x32_bf16 {vr(XA + 4 * t, 4)}, {ring(i)}, {vr(OF + 4 * T, 4)}, {vr(XA + 4 * t, 4)}", nb=o_t0 + o_dt * j)
            for tt in ringload(i):
                S(tt)
    kvs = []
    if first:
        for kt in range(16):
            tau = kt + KV_AHEAD
            if kt + 1 < 16:
                need = [ar(A_K0 + 4 * (kt + 1), 4), ar(A_KL + 2 * ((kt + 1) // 2), 2), ar(A_VT + 8 * kt, 8)]
                kvs.append(dict(t="NEED " + ", ".join(need), kt=kt, ev=f"kvn_{kt}"))
            else:
                kvs.append(dict(t="NEED " + ar(A_VT + 8 * kt, 8), kt=kt))
            if tau < 16:
                for t in kv_tile_loads(tau):
                    kvs.append(dict(t=t, kt=kt))
    qread = [f"ds_read_b128 {vr(QC, 4)}, v{V_QFR}",
             f"ds_read_b128 {vr(QC + 4, 4)}, v{V_QFR} offset:1024",
             f"v_add_u32 v{V_QL}, 256, v{V_QL}",
             f"ds_read_b32 v{QLR}, v{V_QL}"]
    if X_:
        raise RuntimeError("experiments not supported in this version")

    now = 0
    pipe_free = 0
    nins = 0
    ev_i, ev_t = {}, {}
    mi = si = qi = ki = 0
    done = set()
    out = []

    def emit(t, wtok=None, ev=None):
        nonlocal now, pipe_free, nins
        if t.startswith("WAIT"):
            out.append(("wait", t.split()[1]))
            now += 4
            nins += 1
        elif t.startswith("NEED"):
            out.append(("need", t[5:]))
            now += 4
            nins += 1
        else:
            pd = pipe(t)
            if pd:
                if pipe_free > now:
                    now = pipe_free
                pipe_free = now + pd
            now += cost(t)
            nins += 1
            out.append(("e", t, wtok))
        if ev:
            ev_i[ev] = nins
            ev_t[ev] = now
            done.add(ev)

    def ready(d):
        for r in d.get("req", []):
            if r not in done:
                return False
        for r, n in d.get("reqi", []) or []:
            if r not in done or nins - ev_i[r] < n:
                return False
        for r, c in d.get("reqc", []) or []:
            if r not in done or now - ev_t[r] < c:
                return False
        if d.get("nb") is not None and now < d["nb"]:
            return False
        return True

    pend = list(mm)
    side_since = 0
    while mi < len(main) or pend or si < len(side) or qi < len(qread) or ki < len(kvs):
        kt = main[mi][0] if mi < len(main) else 16
        pos = main[mi][1] - 1 if mi < len(main) else 99
        if ki < len(kvs) and kvs[ki]["kt"] <= kt and side_since < 2:
            d = kvs[ki]
            emit(d["t"], ev=d.get("ev"))
            ki += 1
            side_since += 1 if not d["t"].startswith("NEED") else 0
            continue
        cand = [d for d in pend if (d["kt"] < kt or (d["kt"] == kt and pos >= d["pos"])) and ready(d)]
        cand.sort(key=lambda d: (d["kt"], d["pr"]))
        if cand and (pipe_free <= now or mi >= len(main)):
            d = cand[0]
            emit(d["t"], ev=d["n"])
            pend.remove(d)
            continue
        if qi < len(qread) and "m1_14" in done and "B2" in done:
            emit(qread[qi], ev=("qread" if qi == len(qread) - 1 else None))
            qi += 1
            continue
        if si < len(side) and side_since < 2:
            d = side[si]
            ok = ready(d)
            if ok and pipe(d["t"]):
                if pipe_free > now or cand:
                    ok = False
            if ok or mi >= len(main):
                emit(d["t"], d.get("wtok"), d.get("ev"))
                si += 1
                side_since += 1
                continue
        if mi < len(main):
            emit(main[mi][2])
            mi += 1
            side_since = 0
            continue
        if pend:
            d = sorted(pend, key=lambda d: (d["kt"], d["pr"]))[0]
            emit(d["t"], ev=d["n"])
            pend.remove(d)
            continue
        raise RuntimeError("scheduler stuck")
    for o in out:
        if o[0] == "wait":
            p.wait_tok(o[1])
        elif o[0] == "need":
            p.need(o[1])
        else:
            p.e(o[1], wtok=o[2])
    return now


QW = 148


def q_main_loads(p, W=QW):
    for ks in range(18):
        for t in q_wload(ks, W + 4 * ks):
            p.e(t)


def _proj_chain(p, W):
    for ks in range(18):
        if ks == 0:
            for k in range(2):
                p.e(f"ds_read_b128 {vr(XR2 + 4 * (k % 3), 4)}, v{V_L16} offset:{LDS_XB + 1024 * k}")
        if ks + 2 < 18:
            p.e(f"ds_read_b128 {vr(XR2 + 4 * ((ks + 2) % 3), 4)}, v{V_L16} offset:{LDS_XB + 1024 * (ks + 2)}")
        c = "0" if ks == 0 else vr(QA2, 4)
        p.e(f"v_mfma_f32_16x16x32_bf16 {vr(QA2, 4)}, {vr(W + 4 * ks, 4)}, {vr(XR2 + 4 * (ks % 3), 4)}, {c}")


XR2, QA2, QT2 = 220, 88, 92


def q_left(p, name, both_on=None, W2=16):
    a = V_T0
    t = S_T0

    def one(qexpr_const, tag):
        p.e(f"s_mul_i32 s{t}, s{S_HH}, {L.WQF_HH}")
        if qexpr_const is None:
            p.e(f"s_sub_u32 s{t + 1}, s{S_W}, 2")
        else:
            p.e(f"s_mov_b32 s{t + 1}, {qexpr_const}")
        p.e(f"s_mul_i32 s{t + 2}, s{t + 1}, 18432")
        p.e(f"s_add_u32 s{t}, s{t}, s{t + 2}")
        p.e(f"s_add_u32 s{t}, s{t}, {hx(L.WQF + 16 * 18432 + 4096)}")
        p.e(f"v_add_u32 v{a}, s{t}, v{V_L16}")
        for ks in range(18):
            if ks in (8, 16):
                p.e(f"v_add_u32 v{a}, 8192, v{a}")
            p.e(f"global_load_dwordx4 {vr(W2 + 4 * ks, 4)}, v{a}, s[{S_WS}:{S_WS + 1}] offset:{(ks % 8) * 1024 - 4096} PLD")
        _proj_chain(p, W2)
        p.e(f"v_cvt_pk_bf16_f32 v{QT2}, v{QA2}, v{QA2 + 1}")
        p.e(f"v_cvt_pk_bf16_f32 v{QT2 + 1}, v{QA2 + 2}, v{QA2 + 3}")
        p.e(f"s_lshl_b32 s{t + 1}, s{t + 1}, 9")
        p.e(f"s_add_u32 s{t + 1}, s{t + 1}, {A_QL}")
        p.e(f"v_lshlrev_b32 v{a}, 2, v{V_LANE}")
        p.e(f"v_add_u32 v{a}, s{t + 1}, v{a}")
        p.e(f"ds_write_b32 v{a}, v{QT2}")
        p.e(f"ds_write_b32 v{a}, v{QT2 + 1} offset:256")

    if both_on is not None:
        p.e(f"s_cmp_lg_u32 s{S_W}, {both_on}")
        p.e(f"s_cbranch_scc1 {name}_nol")
        p.if_begin()
        one(0, "a")
        one(1, "b")
    else:
        p.e(f"s_cmp_lt_u32 s{S_W}, 2")
        p.e(f"s_cbranch_scc1 {name}_nol")
        p.if_begin()
        one(None, "a")
    p.label(f"{name}_nol")
    p.if_end()


def q_main_compute(p, W=QW):
    _proj_chain(p, W)
    p.e(f"v_cvt_pk_bf16_f32 v{QT2}, v{QA2}, v{QA2 + 1}")
    p.e(f"v_cvt_pk_bf16_f32 v{QT2 + 1}, v{QA2 + 2}, v{QA2 + 3}")
    p.e(f"ds_write_b64 v{V_QFW}, {vr(QT2, 2)}")
    for i in range(NR):
        for t in q_wload(i, WR + 4 * i):
            p.e(t)
    p.e("s_waitcnt lgkmcnt(0)")
    p.e("s_barrier")
    p.e(f"ds_read_b128 {vr(QC, 4)}, v{V_QFR}")
    p.e(f"ds_read_b128 {vr(QC + 4, 4)}, v{V_QFR} offset:1024")
    p.e(f"ds_read_b32 v{QLR}, v{V_QL}")
    p.e(f"v_mov_b32 v{QLR + 1}, 0")


def attention_layer(p, name, stamp=lambda *a, **k: None, tail_hook=None):
    for tau in range(KV_AHEAD):
        for t in kv_tile_loads(tau):
            p.e(t)
    p.e(f"s_mov_b64 s[{S_FAIL}:{S_FAIL + 1}], 0")
    m2, m3, m1 = qk_mfmas(0, SB[0])
    p.e(m2)
    p.e(m3)
    p.e(m1)
    p.e("s_nop 15")
    p.e("s_nop 4")
    stamp(p, 20)
    e0 = phase_body(p, "first")
    stamp(p, 21)
    p.e(f"s_mov_b32 s{S_PH}, 1")
    p.loop_begin(name + "_ph")
    e1 = phase_body(p, "mid")
    stamp(p, 21, S_PH)
    p.e(f"s_add_u32 s{S_PH}, s{S_PH}, 1")
    p.e(f"s_cmp_lt_u32 s{S_PH}, 4")
    p.e(f"s_cbranch_scc1 {name}_ph")
    p.loop_end()
    if tail_hook is not None:
        tail_hook()
    p.e(pv_mfma(15, SB[1], 1, 1))
    W = 16

    def wl(j):
        if j < 18:
            T, t = j // 9, j % 9
            off, reg = (T * 36 + t) * 1024, W + 4 * j
        else:
            off, reg = (72 + j - 18) * 1024, WR + 4 * (j - 18)
        p.e(f"v_add_u32 v{V_T0}, {off}, v{V_WO}")
        p.e(f"global_load_dwordx4 {vr(reg, 4)}, v{V_T0}, s[{S_WS}:{S_WS + 1}] offset:-4096 PLD")

    for g in range(3):
        p.e(f"ds_write_b128 v{V_OPW}, {ar(A_O + 4 * g, 4)} offset:{g * 1024}")
    for j in range(0, 5):
        wl(j)
    for g in range(3):
        p.e(f"ds_write_b128 v{V_OPW}, {ar(A_O + 16 + 4 * g, 4)} offset:{3072 + g * 1024}")
    for j in range(5, 9):
        wl(j)
    p.e("s_waitcnt lgkmcnt(0)")
    p.e("s_barrier")
    for w in range(4):
        p.e(f"ds_read_b128 {vr(RT + 16 + 4 * w, 4)}, v{V_R2} offset:{w * 6144}")
    for w in range(4):
        p.e(f"ds_read_b128 {vr(RT + 4 * w, 4)}, v{V_R1} offset:{w * 6144}")
    for j in range(9, 18):
        wl(j)
    for t in reduce_ops():
        p.e(t)
    p.e(f"ds_write_b32 v{V_OLW}, v{RT + 20}")
    p.e(f"ds_write_b64 v{V_OBW}, {vr(RT + 4, 2)}")
    for j in range(18, 27):
        wl(j)
    p.e("s_waitcnt lgkmcnt(0)")
    p.e("s_barrier")
    for T in range(2):
        p.e(f"ds_read_b128 {vr(OF + 4 * T, 4)}, v{V_L16} offset:{A_OB + 1024 * T}")
    p.e(f"ds_read_b128 {vr(OFL, 4)}, v{V_L16} offset:{A_OL}")
    p.need(vr(W, 36))
    for j in range(9):
        p.e(f"v_mfma_f32_16x16x32_bf16 {vr(XA + 4 * j, 4)}, {vr(W + 4 * j, 4)}, {vr(OF, 4)}, {vr(XA + 4 * j, 4)}")
    p.need(vr(W + 36, 36))
    for j in range(9, 18):
        p.e(f"v_mfma_f32_16x16x32_bf16 {vr(XA + 4 * (j - 9), 4)}, {vr(W + 4 * j, 4)}, {vr(OF + 4, 4)}, {vr(XA + 4 * (j - 9), 4)}")
    p.need(vr(WR, 36))
    for t in range(9):
        p.e(f"v_mfma_f32_16x16x32_bf16 {vr(XA + 4 * t, 4)}, {vr(WR + 4 * t, 4)}, {vr(OFL, 4)}, {vr(XA + 4 * t, 4)}")
    return e0, e1
```

```python
from asmgen import Prog, vr, ar, sr
import layout as L
import struct


def f2u(x):
    return struct.unpack("<I", struct.pack("<f", x))[0]


def hx(x):
    return hex(x & 0xffffffff)


S_W = 4
S_PAIR = 5
S_HH = 6
S_ROWOFF = 7
S_WS = 8
S_SLOT = 10
S_XCD = 11
SRD_A = 12
SRD_B = 16
SRD_C = 20
SRD_D = 24
S_T0 = 28
S_P0 = 40

V_TID = 0
V_LANE = 1
V_N = 2
V_G = 3
V_L16 = 4
V_T0 = 5


KREG = dict(x=48, wq=50, wk=52, wv=54, wo=56, bq=58, bk=60, bv=62, shk=64, ssmk=66, ssmd=68, out=70)


def load_all_ptrs(p):
    p.e("s_load_dwordx16 s[48:63], s[0:1], 0")
    p.e("s_load_dwordx8 s[64:71], s[0:1], 64")


def load_ptr(p, sd, name):
    p.e(f"s_load_dwordx2 {sr(sd, 2)}, s[0:1], {L.KA[name]}")


def make_srd(p, sd, sp, nbytes):
    p.e(f"s_mov_b32 s{sd}, s{sp}")
    p.e(f"s_and_b32 s{sd + 1}, s{sp + 1}, 0xffff")
    p.e(f"s_mov_b32 s{sd + 2}, {hx(nbytes)}")
    p.e(f"s_mov_b32 s{sd + 3}, 0x00020000")


def ws_base(p, sd, off_const, soff=None):
    if soff is None:
        p.e(f"s_add_u32 s{sd}, s{S_WS}, {hx(off_const)}")
        p.e(f"s_addc_u32 s{sd + 1}, s{S_WS + 1}, 0")
    else:
        p.e(f"s_add_u32 s{sd}, s{soff}, {hx(off_const)}")
        p.e(f"s_add_u32 s{sd}, s{S_WS}, s{sd}")
        p.e(f"s_addc_u32 s{sd + 1}, s{S_WS + 1}, 0")


def prologue(p, nwg=256, done="L_done", allptrs=False):
    p.e(f"s_cmp_ge_u32 s2, {nwg}")
    p.e(f"s_cbranch_scc1 {done}")
    load_ptr(p, S_WS, "ws")
    if allptrs:
        load_all_ptrs(p)
    p.e(f"v_and_b32 v{V_LANE}, 63, v{V_TID}")
    p.e(f"v_lshrrev_b32 v{V_T0}, 6, v{V_TID}")
    p.e(f"v_and_b32 v{V_N}, 15, v{V_TID}")
    p.e(f"v_readfirstlane_b32 s{S_W}, v{V_T0}")
    p.e(f"v_bfe_u32 v{V_G}, v{V_TID}, 4, 2")
    p.e(f"v_lshlrev_b32 v{V_L16}, 4, v{V_LANE}")
    p.e(f"s_and_b32 s{S_XCD}, s2, 7")
    p.e(f"s_lshr_b32 s{S_SLOT}, s2, 3")
    p.e(f"s_lshr_b32 s{S_PAIR}, s{S_SLOT}, 1")
    p.e(f"s_lshl_b32 s3, s{S_XCD}, 4")
    p.e(f"s_add_u32 s{S_PAIR}, s{S_PAIR}, s3")
    p.e(f"s_and_b32 s{S_HH}, s{S_SLOT}, 1")
    p.e(f"s_mul_i32 s{S_ROWOFF}, s{S_PAIR}, {16 * 1152}")


def unpack_bf16x4(p, dst, src):
    p.e(f"v_lshlrev_b32 v{dst}, 16, v{src}")
    p.e(f"v_and_b32 v{dst + 1}, 0xffff0000, v{src}")
    p.e(f"v_lshlrev_b32 v{dst + 2}, 16, v{src + 1}")
    p.e(f"v_and_b32 v{dst + 3}, 0xffff0000, v{src + 1}")


def row_stats(p, X, T, st_lds, v_st_w, v_st_r, mu, rs):
    s1, s2 = T, T + 2
    p.e(f"v_pk_add_f32 {vr(s1, 2)}, {vr(X, 2)}, {vr(X + 2, 2)}")
    p.e(f"v_pk_mul_f32 {vr(s2, 2)}, {vr(X, 2)}, {vr(X, 2)}")
    p.e(f"v_pk_fma_f32 {vr(s2, 2)}, {vr(X + 2, 2)}, {vr(X + 2, 2)}, {vr(s2, 2)}")
    for i in range(2, 18):
        p.e(f"v_pk_add_f32 {vr(s1, 2)}, {vr(s1, 2)}, {vr(X + 2 * i, 2)}")
        p.e(f"v_pk_fma_f32 {vr(s2, 2)}, {vr(X + 2 * i, 2)}, {vr(X + 2 * i, 2)}, {vr(s2, 2)}")
    a, b, c, d = T + 4, T + 5, T + 6, T + 7
    p.e(f"v_add_f32 v{a}, v{s1}, v{s1 + 1}")
    p.e(f"v_add_f32 v{b}, v{s2}, v{s2 + 1}")
    p.e(f"v_mov_b32 v{c}, v{a}")
    p.e(f"v_mov_b32 v{d}, v{b}")
    p.e(f"v_permlane32_swap_b32 v{a}, v{c}")
    p.e(f"v_permlane32_swap_b32 v{b}, v{d}")
    p.e(f"v_add_f32 v{a}, v{a}, v{c}")
    p.e(f"v_add_f32 v{b}, v{b}, v{d}")
    p.e(f"v_mov_b32 v{c}, v{a}")
    p.e(f"v_mov_b32 v{d}, v{b}")
    p.e(f"v_permlane16_swap_b32 v{a}, v{c}")
    p.e(f"v_permlane16_swap_b32 v{b}, v{d}")
    p.e(f"v_add_f32 v{a}, v{a}, v{c}")
    p.e(f"v_add_f32 v{b}, v{b}, v{d}")
    assert a % 2 == 0
    p.e(f"ds_write_b64 v{v_st_w}, {vr(a, 2)} offset:{st_lds}")
    p.e("s_waitcnt lgkmcnt(0)")
    p.e("s_barrier")
    p.e(f"ds_read_b128 {vr(T, 4)}, v{v_st_r} offset:{st_lds}")
    p.e(f"ds_read_b128 {vr(T + 4, 4)}, v{v_st_r} offset:{st_lds + 16}")
    p.e(f"v_pk_add_f32 {vr(T, 2)}, {vr(T, 2)}, {vr(T + 2, 2)}")
    p.e(f"v_pk_add_f32 {vr(T + 4, 2)}, {vr(T + 4, 2)}, {vr(T + 6, 2)}")
    p.e(f"v_pk_add_f32 {vr(T, 2)}, {vr(T, 2)}, {vr(T + 4, 2)}")
    p.e(f"v_mul_f32 v{mu}, {hx(f2u(1.0 / 576))}, v{T}")
    p.e(f"v_mul_f32 v{T + 1}, {hx(f2u(1.0 / 576))}, v{T + 1}")
    p.e(f"v_fma_f32 v{T + 1}, -v{mu}, v{mu}, v{T + 1}")
    p.e(f"v_max_f32 v{T + 1}, 0, v{T + 1}")
    p.e(f"v_add_f32 v{T + 1}, {hx(f2u(1e-5))}, v{T + 1}")
    p.e(f"v_rsq_f32 v{rs}, v{T + 1}")


def xb_write_bases(p, vE, vO, xb_lds):
    p.e(f"s_mul_i32 s{S_T0}, s{S_W}, {9 * 512}")
    p.e(f"s_add_u32 s{S_T0}, s{S_T0}, {xb_lds}")
    p.e(f"s_and_b32 s{S_T0 + 1}, s{S_W}, 1")
    p.e(f"s_mul_i32 s{S_T0 + 1}, s{S_T0 + 1}, 504")
    p.e(f"s_sub_u32 s{S_T0 + 2}, s{S_T0}, s{S_T0 + 1}")
    p.e(f"s_sub_u32 s{S_T0}, s{S_T0}, 504")
    p.e(f"s_add_u32 s{S_T0}, s{S_T0}, s{S_T0 + 1}")
    p.e(f"v_add_u32 v{vE}, s{S_T0 + 2}, v{V_L16}")
    p.e(f"v_add_u32 v{vO}, s{S_T0}, v{V_L16}")


def normalize_to_xb(p, X, T, mu, rs, vE, vO):
    p.e(f"v_mov_b32 v{T}, v{rs}")
    p.e(f"v_mul_f32 v{T + 2}, v{mu}, v{rs}")
    p.e(f"v_sub_f32 v{T + 2}, 0, v{T + 2}")
    for t in range(9):
        a = T + 4
        p.e(f"v_pk_fma_f32 {vr(a, 2)}, {vr(X + 4 * t, 2)}, {vr(T, 2)}, {vr(T + 2, 2)} op_sel_hi:[1,0,0]")
        p.e(f"v_pk_fma_f32 {vr(a + 2, 2)}, {vr(X + 4 * t + 2, 2)}, {vr(T, 2)}, {vr(T + 2, 2)} op_sel_hi:[1,0,0]")
        o = a + 4 + 2 * (t % 2)
        p.e(f"v_cvt_pk_bf16_f32 v{o}, v{a}, v{a + 1}")
        p.e(f"v_cvt_pk_bf16_f32 v{o + 1}, v{a + 2}, v{a + 3}")
        p.e(f"ds_write_b64 v{vE if t % 2 == 0 else vO}, {vr(o, 2)} offset:{512 * t}")


def gather_wkv_frags(p, srd, dst, tmp, v_off, nks=18, ks0=0):
    for ks in range(ks0, ks0 + nks):
        i = ks - ks0
        if (ks % 3) == 0 or ks == ks0:
            p.e(f"s_mov_b32 s{S_T0 + 3}, {(ks // 3) * 3 * 1152}")
        base = (ks % 3) * 1152
        for j in range(8):
            off = base + (16 * (j // 4) + j % 4) * 36
            if j % 2 == 0:
                p.e(f"buffer_load_ushort v{dst + 4 * i + j // 2}, v{v_off}, {sr(srd, 4)}, s{S_T0 + 3} offen offset:{off}")
            else:
                p.e(f"buffer_load_short_d16_hi v{tmp + 4 * i + j // 2}, v{v_off}, {sr(srd, 4)}, s{S_T0 + 3} offen offset:{off}")


def combine_frags(p, dst, tmp, n):
    for i in range(n):
        p.e(f"v_or_b32 v{dst + i}, v{dst + i}, v{tmp + i}")
```

```python
from common import *

CV_BASE = 19456
CV_CH = 272 * 8 * 16
CV_BANK = [1, 6, 2, 11, 12, 9, 14, 6]
CV_BANKC = sum(b << (4 * i) for i, b in enumerate(CV_BANK))
CV_UB = CV_BASE + 3 * CV_CH
UBSTR = 96
UB_CH = 7680
CV_SC = CV_UB + 3 * UB_CH
CV_END = CV_SC + 128

CF_H = 68
CF_H0 = 92
CF_T = 236
CF_R = 172
S_CVD = 76
S_CVL = 79
CV_FIRST = 2


UT_R = [100, 124]
V_UTA = [58, 218]
UT_T = 148


def ut_issue(p):
    st = S_T0
    make_srd(p, SRD_C, KREG["bk"], L.S * L.D * 2)
    make_srd(p, SRD_D, KREG["bv"], L.S * L.D * 2)
    p.e(f"s_mov_b32 s{st + 8}, {4 * 1152}")
    p.e(f"v_mov_b32 v{V_UTA[1]}, 0")
    a = V_T0

    def rnd(k):
        R = UT_R[k]
        p.e(f"s_mul_i32 s{st + 6}, s{S_HH}, 144")
        p.e(f"v_add_u32 v{a}, s{st + 6}, v{a}")
        p.e(f"v_mul_u32_u24 v{a + 2}, {8 * 1152}, v{a + 1}")
        p.e(f"v_add_u32 v{a + 2}, s{S_ROWOFF}, v{a + 2}")
        p.e(f"v_lshl_add_u32 v{a + 2}, v{a}, 2, v{a + 2}")
        if k == 1:
            p.e(f"v_cmp_gt_u32 vcc, 32, v{V_LANE}")
            p.e(f"v_mov_b32 v{a + 4}, 0x40000000")
            p.e(f"v_cndmask_b32 v{a + 2}, v{a + 4}, v{a + 2}, vcc")
        p.e(f"v_subrev_u32 v{a + 3}, {3 * 1152}, v{a + 2}")
        p.e(f"v_cmp_gt_u32 vcc, {3 * 1152}, v{a + 2}")
        p.e(f"v_mov_b32 v{a + 4}, 0x40000000")
        p.e(f"v_cndmask_b32 v{a + 3}, v{a + 3}, v{a + 4}, vcc")
        p.e(f"v_lshlrev_b32 v{a + 4}, 4, v{a}")
        for i in range(3):
            p.e(f"buffer_load_dword v{R + i}, v{a + 3}, {sr(SRD_C, 4)}, 0 offen offset:{1152 * i}")
        for i in range(8):
            so = "0" if i < 4 else f"s{st + 8}"
            p.e(f"buffer_load_dword v{R + 3 + i}, v{a + 2}, {sr(SRD_C, 4)}, {so} offen offset:{1152 * (i % 4)}")
        for i in range(8):
            so = "0" if i < 4 else f"s{st + 8}"
            p.e(f"buffer_load_dword v{R + 11 + i}, v{a + 2}, {sr(SRD_D, 4)}, {so} offen offset:{1152 * (i % 4)}")
        p.e(f"global_load_dwordx4 {vr(R + 20, 4)}, v{a + 4}, {sr(KREG['shk'], 2)}")
        o = V_UTA[k]
        p.e(f"v_lshlrev_b32 v{o}, 13, v{a}")
        p.e(f"s_lshl_b32 s{st + 6}, s{S_PAIR}, 5")
        p.e(f"s_add_u32 s{st + 6}, s{st + 6}, {hx(L.UTG)}")
        p.e(f"v_lshl_add_u32 v{o}, v{a + 1}, 4, v{o}")
        p.e(f"v_add_u32 v{o}, s{st + 6}, v{o}")

    p.e(f"v_and_b32 v{a}, 31, v{V_LANE}")
    p.e(f"s_lshl_b32 s{st + 7}, s{S_W}, 5")
    p.e(f"v_add_u32 v{a}, s{st + 7}, v{a}")
    p.e(f"v_lshrrev_b32 v{a + 1}, 5, v{V_LANE}")
    rnd(0)
    p.e(f"s_cmp_lg_u32 s{S_W}, 3")
    p.e(f"s_cbranch_scc1 L_ut_no2")
    p.if_begin()
    p.e(f"v_and_b32 v{a}, 15, v{V_LANE}")
    p.e(f"v_add_u32 v{a}, 128, v{a}")
    p.e(f"v_bfe_u32 v{a + 1}, v{V_LANE}, 4, 1")
    rnd(1)
    p.label("L_ut_no2")
    p.if_end()


def ut_round(p, k):
    R = UT_R[k]
    KK, VV, SK, U, O = UT_T, UT_T + 22, UT_T + 38, UT_T + 46, UT_T + 62
    for c in range(2):
        p.e(f"v_lshlrev_b32 v{SK + c}, 16, v{R + 20 + 2 * c}")
        p.e(f"v_and_b32 v{SK + 2 + c}, 0xffff0000, v{R + 20 + 2 * c}")
        p.e(f"v_lshlrev_b32 v{SK + 4 + c}, 16, v{R + 21 + 2 * c}")
        p.e(f"v_and_b32 v{SK + 6 + c}, 0xffff0000, v{R + 21 + 2 * c}")
    for i in range(11):
        p.e(f"v_lshlrev_b32 v{KK + 2 * i}, 16, v{R + i}")
        p.e(f"v_and_b32 v{KK + 2 * i + 1}, 0xffff0000, v{R + i}")
    for t in range(8):
        p.e(f"v_pk_mul_f32 {vr(U + 2 * t, 2)}, {vr(SK + 6, 2)}, {vr(KK + 2 * t, 2)}")
    for i in range(8):
        p.e(f"v_lshlrev_b32 v{VV + 2 * i}, 16, v{R + 11 + i}")
        p.e(f"v_and_b32 v{VV + 2 * i + 1}, 0xffff0000, v{R + 11 + i}")
    for j in (2, 1, 0):
        for t in range(8):
            p.e(f"v_pk_fma_f32 {vr(U + 2 * t, 2)}, {vr(SK + 2 * j, 2)}, {vr(KK + 2 * (t + 3 - j), 2)}, {vr(U + 2 * t, 2)}")
    for t in range(8):
        p.e(f"v_pk_mul_f32 {vr(U + 2 * t, 2)}, {vr(U + 2 * t, 2)}, {vr(VV + 2 * t, 2)}")
    for c in range(2):
        for d in range(4):
            p.e(f"v_cvt_pk_bf16_f32 v{O + 4 * c + d}, v{U + 2 * (7 - 2 * d) + c}, v{U + 2 * (6 - 2 * d) + c}")
    if k == 1:
        p.e("s_mov_b64 exec, 0xffffffff")
    p.e(f"global_store_dwordx4 v{V_UTA[k]}, {vr(O, 4)}, s[{S_WS}:{S_WS + 1}] WSC")
    p.e(f"v_add_u32 v{V_UTA[k]}, 4096, v{V_UTA[k]}")
    p.e(f"global_store_dwordx4 v{V_UTA[k]}, {vr(O + 4, 4)}, s[{S_WS}:{S_WS + 1}] WSC")
    if k == 1:
        p.e("s_mov_b64 exec, -1")


def ut_extra(p):
    p.e(f"s_cmp_lg_u32 s{S_W}, 3")
    p.e(f"s_cbranch_scc1 L_ut_no2b")
    p.if_begin()
    ut_round(p, 1)
    p.label("L_ut_no2b")
    p.if_end()


def conv_filter_issue(p, s_ch0):
    st = S_T0
    make_srd(p, SRD_B, KREG["ssmk"], 576 * 4096)
    p.e(f"s_lshl_b32 s{st + 10}, s{s_ch0}, 1")
    p.e(f"s_and_b32 s{st + 11}, s{st + 10}, 0xfffffffc")
    p.e(f"s_add_u32 s{st + 8}, s{KREG['ssmd']}, s{st + 11}")
    p.e(f"s_addc_u32 s{st + 9}, s{KREG['ssmd'] + 1}, 0")
    p.e(f"s_load_dwordx2 s[72:73], s[{st + 8}:{st + 9}], 0")
    p.e(f"s_lshl_b32 s{st}, s{S_W}, 1")
    p.e(f"s_lshl_b32 s{st + 1}, s{st}, 2")
    p.e(f"s_lshr_b32 s{st + 1}, {hx(CV_BANKC)}, s{st + 1}")
    p.e(f"s_and_b32 s{st + 1}, s{st + 1}, 15")
    p.e(f"s_mul_i32 s{st + 2}, s{st}, 272")
    p.e(f"s_add_u32 s{st + 1}, s{st + 1}, s{st + 2}")
    p.e(f"s_lshl_b32 s{st + 1}, s{st + 1}, 4")
    p.e(f"s_add_u32 s{st + 1}, s{st + 1}, {CV_BASE + 64}")
    p.e(f"s_lshl_b32 s{st + 2}, s{s_ch0}, 12")
    p.e(f"s_lshl_b32 s{st + 3}, s{st}, 1")
    p.e(f"s_add_u32 s{st + 2}, s{st + 2}, s{st + 3}")
    for ch in range(3):
        p.e(f"s_add_u32 m0, s{st + 1}, {ch * CV_CH}")
        if ch:
            p.e(f"s_add_u32 s{st + 2}, s{st + 2}, 4096")
        for c in range(4):
            p.e(f"buffer_load_dwordx4 v{V_L16}, {sr(SRD_B, 4)}, s{st + 2} offen offset:{1024 * c} lds")
    p.e(f"v_lshlrev_b32 v{V_T0}, 4, v{V_TID}")
    p.e(f"s_lshl_b32 s{st + 2}, s{s_ch0}, 12")
    for ch in range(3):
        if ch:
            p.e(f"s_add_u32 s{st + 2}, s{st + 2}, 4096")
        p.e(f"buffer_load_dwordx4 {ar(CF_H + 8 * ch, 4)}, v{V_T0}, {sr(SRD_B, 4)}, s{st + 2} offen")
        p.e(f"buffer_load_dwordx4 {ar(CF_H + 8 * ch + 4, 4)}, v{V_T0}, {sr(SRD_B, 4)}, s{st + 2} offen offset:16")
    p.e(f"s_min_u32 s{st}, s{S_W}, 2")
    p.e(f"s_add_u32 s{st}, s{st}, s{s_ch0}")
    p.e(f"s_lshl_b32 s{st}, s{st}, 12")
    p.e(f"v_mov_b32 v{V_T0 + 1}, 0")
    p.e(f"buffer_load_dwordx4 {ar(CF_H0, 4)}, v{V_T0 + 1}, {sr(SRD_B, 4)}, s{st} offen")


def conv_filter_build(p, s_ch0):
    st = S_T0
    sK = 66
    a = V_T0
    A, B = CF_T, CF_T + 8
    for k, phi in enumerate((1, 3, 5, 7)):
        off = (272 * phi + CV_BANK[phi] + 4) * 16 + CV_BASE
        p.e(f"v_lshlrev_b32 v{a + k}, 4, v{V_TID}")
        p.e(f"v_add_u32 v{a + k}, {off}, v{a + k}")
    for ch in range(3):
        r = CF_R
        for j in range(8):
            p.e(f"v_accvgpr_read_b32 v{r + j}, a{CF_H + 8 * ch + j}")
        if ch == 1:
            for k in range(4):
                p.e(f"v_add_u32 v{a + k}, {CV_CH}, v{a + k}")
        off = CV_CH if ch == 2 else 0
        for j in range(6):
            p.e(f"v_alignbit_b32 v{A + j}, v{r + j + 1}, v{r + j}, 16")
        p.e(f"ds_write_b128 v{a}, {vr(A, 4)} offset:{off}")
        p.e(f"ds_write_b128 v{a + 2}, {vr(A + 2, 4)} offset:{off}")
        for j in range(6):
            p.e(f"v_alignbit_b32 v{B + j}, v{r + j + 2}, v{r + j + 1}, 16")
        p.e(f"ds_write_b128 v{a + 1}, {vr(B, 4)} offset:{off}")
        p.e(f"ds_write_b128 v{a + 3}, {vr(B + 2, 4)} offset:{off}")
    z = CF_T
    for i in range(4):
        p.e(f"v_mov_b32 v{z + i}, 0")
    p.e(f"s_min_u32 s{st}, s{S_W}, 2")
    p.e(f"s_mul_i32 s{st + 1}, s{st}, {CV_CH}")
    p.e(f"s_add_u32 s{st + 1}, s{st + 1}, {CV_BASE}")
    p.e(f"v_and_b32 v{a}, 31, v{V_LANE}")
    p.e(f"v_lshrrev_b32 v{a + 1}, 2, v{a}")
    p.e(f"v_lshlrev_b32 v{a + 2}, 2, v{a + 1}")
    p.e(f"v_mov_b32 v{a + 3}, {hx(CV_BANKC)}")
    p.e(f"v_lshrrev_b32 v{a + 2}, v{a + 2}, v{a + 3}")
    p.e(f"v_and_b32 v{a + 2}, 15, v{a + 2}")
    p.e(f"v_mul_u32_u24 v{a + 1}, 272, v{a + 1}")
    p.e(f"v_add_u32 v{a + 1}, v{a + 1}, v{a + 2}")
    p.e(f"v_and_b32 v{a + 2}, 3, v{a}")
    p.e(f"v_add_lshl_u32 v{a + 1}, v{a + 1}, v{a + 2}, 4")
    p.e(f"v_add_u32 v{a + 1}, s{st + 1}, v{a + 1}")
    p.e(f"ds_write_b128 v{a + 1}, {vr(z, 4)}")
    p.e(f"s_mul_i32 s{st + 2}, s{st}, {UB_CH}")
    p.e(f"s_add_u32 s{st + 2}, s{st + 2}, {CV_UB}")
    p.e(f"v_add_u32 v{a + 2}, s{st + 2}, v{V_L16}")
    p.e(f"ds_write_b128 v{a + 2}, {vr(z, 4)}")
    p.e(f"ds_write_b128 v{a + 2}, {vr(z, 4)} offset:{1440 - 1024}")
    p.e(f"s_lshl_b32 s{st + 3}, s{st}, 5")
    p.e(f"s_add_u32 s{st + 3}, s{st + 3}, {CV_SC}")
    p.e(f"v_mov_b32 v{a + 3}, s{st + 3}")
    p.e(f"ds_write_b128 v{a + 3}, {vr(z, 4)}")
    p.e(f"ds_write_b128 v{a + 3}, {ar(CF_H0, 4)} offset:16")
    p.e(f"v_and_b32 v{a}, 7, v{V_LANE}")
    p.e(f"v_lshl_add_u32 v{a + 3}, v{a}, 1, v{a + 3}")
    p.e("s_waitcnt lgkmcnt(0)")
    p.e(f"ds_read_b128 {vr(z + 4, 4)}, v{a + 3}")
    p.e(f"v_lshlrev_b32 v{a + 2}, 2, v{a}")
    p.e(f"v_mov_b32 v{a + 1}, {hx(CV_BANKC)}")
    p.e(f"v_lshrrev_b32 v{a + 2}, v{a + 2}, v{a + 1}")
    p.e(f"v_and_b32 v{a + 2}, 15, v{a + 2}")
    p.e(f"v_mul_u32_u24 v{a + 1}, 272, v{a}")
    p.e(f"v_add_lshl_u32 v{a + 1}, v{a + 1}, v{a + 2}, 4")
    p.e(f"v_add_u32 v{a + 1}, s{st + 1}, v{a + 1}")
    p.e(f"ds_write_b128 v{a + 1}, {vr(z + 4, 4)} offset:48")
    p.e("s_waitcnt lgkmcnt(0)")
    p.e(f"s_and_b32 s{st + 4}, s{s_ch0}, 1")
    p.e(f"s_lshl_b32 s{st + 4}, s{st + 4}, 4")
    p.e(f"s_lshr_b64 s[{sK + 6}:{sK + 7}], s[{sK + 6}:{sK + 7}], s{st + 4}")
    p.e(f"s_lshl_b32 s{S_CVD}, s{sK + 6}, 16")
    p.e(f"s_and_b32 s{S_CVD + 1}, s{sK + 6}, 0xffff0000")
    p.e(f"s_lshl_b32 s{S_CVD + 2}, s{sK + 7}, 16")


def conv_u_dma(p, s_ch0):
    st = S_T0
    a = V_T0
    p.e(f"s_add_u32 s{st}, s{S_WS}, {hx(L.UTG)}")
    p.e(f"s_addc_u32 s{st + 1}, s{S_WS + 1}, 0")
    make_srd(p, SRD_C, st, 576 * 4096)
    for k in range(2):
        p.e(f"s_lshl_b32 s{st + 2}, s{S_W}, 6")
        p.e(f"s_add_u32 s{st + 2}, s{st + 2}, {256 * k}")
        p.e(f"v_add_u32 v{a + k}, s{st + 2}, v{V_LANE}")
        p.e(f"v_mul_u32_u24 v{a + 2}, 43691, v{a + k}")
        p.e(f"v_lshrrev_b32 v{a + 2}, 18, v{a + 2}")
        p.e(f"v_mul_u32_u24 v{a + 3}, 6, v{a + 2}")
        p.e(f"v_sub_u32 v{a + 3}, v{a + k}, v{a + 3}")
        p.e(f"v_min_u32 v{a + 3}, 3, v{a + 3}")
        p.e(f"v_lshl_add_u32 v{a + 3}, v{a + 2}, 2, v{a + 3}")
        p.e(f"v_lshlrev_b32 v{a + k}, 4, v{a + 3}")
    p.e(f"s_lshl_b32 s{st + 3}, s{s_ch0}, 12")
    p.e(f"s_lshl_b32 s{st + 4}, s{S_W}, 10")
    p.e(f"s_add_u32 s{st + 4}, s{st + 4}, {CV_UB + 15 * UBSTR}")
    for ch in range(3):
        if ch:
            p.e(f"s_add_u32 s{st + 3}, s{st + 3}, 4096")
        p.e(f"s_add_u32 m0, s{st + 4}, {ch * UB_CH}")
        p.e(f"buffer_load_dwordx4 v{a}, {sr(SRD_C, 4)}, s{st + 3} offen PLD lds")
    p.e(f"s_cmp_ge_u32 s{S_W}, 2")
    p.e(f"s_cbranch_scc1 L_cvu_no2")
    p.if_begin()
    p.e(f"s_lshl_b32 s{st + 3}, s{s_ch0}, 12")
    for ch in range(3):
        if ch:
            p.e(f"s_add_u32 s{st + 3}, s{st + 3}, 4096")
        p.e(f"s_add_u32 m0, s{st + 4}, {ch * UB_CH + 4096}")
        p.e(f"buffer_load_dwordx4 v{a + 1}, {sr(SRD_C, 4)}, s{st + 3} offen PLD lds")
    p.label("L_cvu_no2")
    p.if_end()


def conv_main(p, s_ch0, name, s_yt, s_act, stamp=lambda *a, **k: None, mid=None):
    st = S_T0
    a = V_T0
    vA, vB = 144, 145
    p.e(f"s_cmp_eq_u32 s{s_act}, 0")
    p.e(f"s_cbranch_scc1 {name}_h1")
    p.if_begin()
    p.e(f"v_add_u32 v{a + 2}, 1, v{V_N}")
    p.e(f"v_and_b32 v{a + 3}, 7, v{a + 2}")
    p.e(f"v_lshrrev_b32 v{a + 2}, 3, v{a + 2}")
    p.e(f"v_sub_u32 v{a + 2}, v{a + 2}, v{V_G}")
    p.e(f"v_add_u32 v{a + 2}, 3, v{a + 2}")
    p.e(f"v_lshlrev_b32 v{a + 4}, 2, v{a + 3}")
    p.e(f"v_mov_b32 v{a + 5}, {hx(CV_BANKC)}")
    p.e(f"v_lshrrev_b32 v{a + 4}, v{a + 4}, v{a + 5}")
    p.e(f"v_and_b32 v{a + 4}, 15, v{a + 4}")
    p.e(f"v_mul_u32_u24 v{a + 3}, 272, v{a + 3}")
    p.e(f"v_add3_u32 v{a + 2}, v{a + 2}, v{a + 3}, v{a + 4}")
    p.e(f"v_lshlrev_b32 v{a + 2}, 4, v{a + 2}")
    p.e(f"s_mul_i32 s{st + 1}, s{S_W}, {CV_CH}")
    p.e(f"s_add_u32 s{st + 1}, s{st + 1}, {CV_BASE}")
    p.e(f"v_add_u32 v{vA}, s{st + 1}, v{a + 2}")
    p.e(f"v_mul_u32_u24 v{a + 2}, {UBSTR}, v{V_N}")
    p.e(f"v_lshl_add_u32 v{a + 2}, v{V_G}, 4, v{a + 2}")
    p.e(f"s_mul_i32 s{st + 2}, s{S_W}, {UB_CH}")
    p.e(f"s_add_u32 s{st + 2}, s{st + 2}, {CV_UB}")
    p.e(f"v_add_u32 v{vB}, s{st + 2}, v{a + 2}")
    ACC = 16
    FA = [48, 96]
    FB = [80, 128]

    def load_list(buf, noff):
        L_ = []
        for d in range(4):
            L_.append(f"ds_read_b128 {vr(FB[buf] + 4 * d, 4)}, v{vB} offset:{(16 * d + 16 - noff) * UBSTR}")
        for s in range(4):
            for ih in range(2):
                L_.append(f"ds_read_b128 {vr(FA[buf] + 8 * s + 4 * ih, 4)}, v{vA} offset:{64 * noff + 1024 * s + 32 * ih}")
        return L_

    def loads(buf, noff):
        for t in load_list(buf, noff):
            p.e(t)

    def mm_list(buf):
        L_ = []
        for s in range(4):
            for q in range(s, 4):
                for ih in range(2):
                    d = ACC + 8 * q + 4 * ih
                    L_.append(f"v_mfma_f32_16x16x32_bf16 {vr(d, 4)}, {vr(FA[buf] + 8 * s + 4 * ih, 4)}, {vr(FB[buf] + 4 * (q - s), 4)}, {vr(d, 4)}")
        return L_

    def step(cur, nxt, noff, pre=()):
        p.need(vr(FA[cur], 32) + ", " + vr(FB[cur], 16))
        for t in pre:
            p.e(t)
        rd = load_list(nxt, noff)
        for i, m in enumerate(mm_list(cur)):
            p.e(m)
            if i < len(rd):
                p.e(rd[i])

    for i in range(32):
        p.e(f"v_mov_b32 v{ACC + i}, 0")
    p.e(f"v_subrev_u32 v{vB}, {UBSTR}, v{vB}")
    loads(0, 0)

    def half(tag, n):
        p.e(f"s_mov_b32 s{S_CVL}, {n}")
        p.loop_begin(f"{name}_loop{tag}")
        step(0, 1, 1)
        step(1, 0, 0, pre=(f"v_add_u32 v{vA}, 128, v{vA}", f"v_subrev_u32 v{vB}, {2 * UBSTR}, v{vB}"))
        p.e(f"s_sub_u32 s{S_CVL}, s{S_CVL}, 1")
        p.e(f"s_cmp_lg_u32 s{S_CVL}, 0")
        p.e(f"s_cbranch_scc1 {name}_loop{tag}")
        p.loop_end()

    half("a", CV_FIRST)
    p.label(f"{name}_h1")
    p.if_end()
    if mid is not None:
        mid()
    p.e(f"s_cmp_eq_u32 s{s_act}, 0")
    p.e(f"s_cbranch_scc1 {name}_end")
    p.if_begin()
    half("b", 8 - CV_FIRST)
    stamp(p, 13)
    p.e(f"s_cmp_eq_u32 s{S_W}, 0")
    p.e(f"s_cselect_b32 s{st + 4}, s{S_CVD}, s{S_CVD + 1}")
    p.e(f"s_cmp_eq_u32 s{S_W}, 2")
    p.e(f"s_cselect_b32 s{st + 4}, s{S_CVD + 2}, s{st + 4}")
    ue = a + 2
    p.e(f"s_mul_i32 s{st + 2}, s{S_W}, {UB_CH}")
    p.e(f"s_add_u32 s{st + 2}, s{st + 2}, {CV_UB}")
    p.e(f"v_mul_u32_u24 v{ue}, {UBSTR}, v{V_N}")
    p.e(f"v_lshrrev_b32 v{ue + 1}, 1, v{V_G}")
    p.e(f"v_lshl_add_u32 v{ue}, v{ue + 1}, 4, v{ue}")
    p.e(f"v_and_b32 v{ue + 1}, 1, v{V_G}")
    p.e(f"v_xor_b32 v{ue + 1}, 1, v{ue + 1}")
    p.e(f"v_lshl_add_u32 v{ue}, v{ue + 1}, 3, v{ue}")
    p.e(f"v_add_u32 v{ue}, s{st + 2}, v{ue}")
    p.e(f"s_add_u32 s{st + 3}, s{s_ch0}, s{S_W}")
    p.e(f"s_lshl_b32 s{st + 3}, s{st + 3}, 12")
    p.e(f"v_lshlrev_b32 v{ue + 1}, 6, v{V_N}")
    p.e(f"v_lshl_add_u32 v{ue + 1}, v{V_G}, 3, v{ue + 1}")
    p.e(f"v_add_u32 v{ue + 1}, s{st + 3}, v{ue + 1}")
    for q in range(4):
        for ih in range(2):
            k = 2 * q + ih
            U = 48 + 2 * k
            p.e(f"ds_read_b64 {vr(U, 2)}, v{ue} offset:{(16 * q + 15) * UBSTR + 32 * ih}")
    for q in range(4):
        for ih in range(2):
            k = 2 * q + ih
            U = 48 + 2 * k
            d = ACC + 8 * q + 4 * ih
            T = 72 + 4 * (k % 2)
            p.e(f"v_and_b32 v{T}, 0xffff0000, v{U + 1}")
            p.e(f"v_lshlrev_b32 v{T + 1}, 16, v{U + 1}")
            p.e(f"v_and_b32 v{T + 2}, 0xffff0000, v{U}")
            p.e(f"v_lshlrev_b32 v{T + 3}, 16, v{U}")
            for r in range(4):
                p.e(f"v_fmac_f32 v{d + r}, s{st + 4}, v{T + r}")
            o = 80 + 2 * (k % 4)
            p.e(f"v_cvt_pk_bf16_f32 v{o}, v{d}, v{d + 1}")
            p.e(f"v_cvt_pk_bf16_f32 v{o + 1}, v{d + 2}, v{d + 3}")
            p.e(f"global_store_dwordx2 v{ue + 1}, {vr(o, 2)}, {sr(s_yt, 2)} offset:{1024 * q + 32 * ih} YSC")
    p.label(f"{name}_end")
    p.if_end()
```

```python
import sys
from common import *
import parts as P
from parts import *
import conv as CV
import attn as AT

NAME = "interleave_layers__grouped_kv_mqa__ssm_conv_h3__prompt"

HEADER = open("cdna_kernels/" + NAME + ".s.ref").read().split("; Override launch geometry")[0]


def descriptor(name, vgpr, agpr=0, sgpr=96):
    acc = (vgpr + 3) // 4 * 4
    return f""".p2align 6
.amdhsa_kernel {name}
  .amdhsa_next_free_vgpr {acc + agpr}
  .amdhsa_next_free_sgpr {sgpr}
  .amdhsa_accum_offset {acc}
  .amdhsa_group_segment_fixed_size 0
  .amdhsa_kernarg_size 112
  .amdhsa_user_sgpr_count 2
  .amdhsa_user_sgpr_kernarg_segment_ptr 1
  .amdhsa_system_sgpr_workgroup_id_x 1
  .amdhsa_float_denorm_mode_32 3
.end_amdhsa_kernel
"""


def kernel_text(name, prog):
    body = prog.finalize()
    return f""".globl {name}
.p2align 8
.type {name},@function
{name}:
{body}"""


def k_p1(name="p1_kernel"):
    p = Prog()
    done = name + "_done"
    prologue(p, done=done)
    load_ptr(p, S_T0 + 4, "x")
    load_ptr(p, S_T0 + 6, "wk")
    load_ptr(p, S_T0 + 8, "wv")
    chain_addr_setup(p)
    p.e("s_waitcnt lgkmcnt(0)")
    make_srd(p, SRD_A, S_T0 + 4, L.S * L.D * 2)
    p.e(f"s_cmp_eq_u32 s{S_HH}, 0")
    p.e(f"s_cselect_b32 s{S_T0 + 6}, s{S_T0 + 6}, s{S_T0 + 8}")
    p.e(f"s_cselect_b32 s{S_T0 + 7}, s{S_T0 + 7}, s{S_T0 + 9}")
    make_srd(p, SRD_B, S_T0 + 6, 576 * 36)
    load_x_rows(p, SRD_A)
    p.e(f"s_cmp_ge_u32 s{S_W}, 2")
    p.e(f"s_cbranch_scc1 {name}_nog")
    p.if_begin()
    kv_weight_gather(p, SRD_B)
    p.label(f"{name}_nog")
    p.if_end()
    unpack_x_rows(p)
    row_stats(p, V_X, V_TMP, LDS_ST, V_STW, V_STR, V_MU, V_RS)
    normalize_to_xb(p, V_X, V_TMP, V_MU, V_RS, V_XBE, V_XBO)
    p.e("s_waitcnt lgkmcnt(0)")
    p.e("s_barrier")
    ws_base(p, S_P0, L.KVB)
    kv_project_store(p, S_P0, name + "_kv")
    p.e(f"s_cmp_eq_u32 s{S_HH}, 0")
    p.e(f"s_cbranch_scc0 {done}")
    p.e(f"s_mul_i32 s{S_T0}, s{S_PAIR}, {18 * 1024}")
    ws_base(p, S_P0 + 2, L.XBG, S_T0)
    p.e(f"s_lshl_b32 s{S_T0}, s{S_W}, 10")
    p.e(f"v_add_u32 v{V_T0}, s{S_T0}, v{V_L16}")
    for i in range(5):
        if i == 4:
            p.e(f"s_cmp_ge_u32 s{S_W}, 2")
            p.e(f"s_cbranch_scc1 {name}_x2")
        p.e(f"ds_read_b128 {vr(V_TMP + 4 * (i % 4), 4)}, v{V_T0} offset:{LDS_XB + 4096 * i}")
        p.e(f"v_add_u32 v{V_T0 + 1}, {4096 * i}, v{V_T0}")
        p.e(f"global_store_dwordx4 v{V_T0 + 1}, {vr(V_TMP + 4 * (i % 4), 4)}, {sr(S_P0 + 2, 2)}")
    p.label(f"{name}_x2")
    p.e(f"s_mul_i32 s{S_T0}, s{S_PAIR}, 36864")
    p.e(f"s_mul_i32 s{S_T0 + 1}, s{S_W}, 9216")
    p.e(f"s_add_u32 s{S_T0}, s{S_T0}, s{S_T0 + 1}")
    ws_base(p, S_P0 + 4, L.X2G, S_T0)
    for t in range(9):
        p.e(f"v_add_u32 v{V_T0 + 1}, {1024 * t}, v{V_L16}")
        p.e(f"global_store_dwordx4 v{V_T0 + 1}, {vr(V_X + 4 * t, 4)}, {sr(S_P0 + 4, 2)}")
    p.label(done)
    p.e("s_endpgm")
    return kernel_text(name, p), descriptor(name, 256), LDS_XB_END


def k_relayout(name="rl_kernel"):
    p = Prog()
    done = name + "_done"
    prologue(p, nwg=64, done=done)
    p.e("s_waitcnt lgkmcnt(0)")
    p.e(f"s_mov_b32 s{S_T0 + 12}, s2")
    relayout(p, S_T0 + 12, name + "_rl")
    p.label(done)
    p.e("s_endpgm")
    return kernel_text(name, p), descriptor(name, 256), 0


def k_conv(name="cv_kernel"):
    p = Prog()
    done = name + "_done"
    prologue(p, nwg=256, done=done)
    p.e(f"s_cmp_ge_u32 s{S_SLOT}, 24")
    p.e(f"s_cbranch_scc1 {done}")
    p.e(f"s_mul_i32 s80, s{S_XCD}, 72")
    p.e(f"s_mul_i32 s81, s{S_SLOT}, 3")
    p.e(f"s_add_u32 s80, s80, s81")
    if STAMPS:
        load_ptr(p, 88, "dbg")
        p.e("s_waitcnt lgkmcnt(0)")
    stamp(p, 0)
    stamp(p, 10, real=True)
    CV.conv_issue_loads(p, 80)
    stamp(p, 1)
    ws_base(p, S_P0, L.YT)
    CV.conv_compute(p, 80, name + "_cv", S_P0, stamp)
    stamp(p, 5)
    stamp(p, 11, real=True)
    p.label(done)
    p.e("s_endpgm")
    return kernel_text(name, p), descriptor(name, 256), CV.CV_END


def stamp(p, idx, sdyn=None, real=False):
    if not STAMPS:
        return
    global _stn
    _stn += 1
    lab = f"L_st{_stn}"
    if STAMPS == 2:
        if real:
            return
        p.e("s_memrealtime s[90:91]")
        p.e("s_waitcnt lgkmcnt(0)")
        p.e("v_mov_b32 v14, s90")
        p.e("s_lshl_b32 s92, s2, 8")
        p.e(f"s_add_u32 s92, s92, {0x2A00000 + 4 * idx}")
        if sdyn is not None:
            p.e(f"s_lshl_b32 s93, s{sdyn}, 2")
            p.e(f"s_add_u32 s92, s92, s93")
        p.e("v_mov_b32 v15, s92")
        p.e("s_cmp_lg_u32 s4, 0")
        p.e(f"s_cbranch_scc1 {lab}")
        p.if_begin()
        p.e("global_store_dword v15, v14, s[8:9]")
        p.label(lab)
        p.if_end()
        return
    p.e("s_memrealtime s[90:91]" if real else "s_memtime s[90:91]")
    p.e("s_waitcnt lgkmcnt(0)")
    p.e("v_mov_b32 v14, s90")
    p.e(f"v_mov_b32 v15, {4 * idx}")
    if sdyn is not None:
        p.e(f"s_lshl_b32 s92, s{sdyn}, 2")
        p.e(f"v_add_u32 v15, s92, v15")
    p.e("s_or_b32 s93, s2, s4")
    p.e("s_cmp_lg_u32 s93, 0")
    p.e(f"s_cbranch_scc1 {lab}")
    p.if_begin()
    p.e("global_store_dword v15, v14, s[88:89]")
    p.label(lab)
    p.if_end()


STAMPS = False
_stn = 0


def k_attn(layer, name):
    p = Prog()
    done = name + "_done"
    prologue(p, done=done)
    if STAMPS:
        load_ptr(p, 88, "dbg")
    p.e("s_waitcnt lgkmcnt(0)")
    stamp(p, 0)
    stamp(p, 10, real=True)
    ws_base(p, S_P0, L.KVB + layer * L.KV_LAYER)
    AT.load_kv(p, S_P0)
    p.e(f"s_mul_i32 s{S_T0}, s{S_PAIR}, {18 * 1024}")
    ws_base(p, S_P0 + 2, L.XBG, S_T0)
    p.e(f"s_lshl_b32 s{S_T0}, s{S_W}, 10")
    p.e(f"v_add_u32 v{V_T0}, s{S_T0}, v{V_L16}")
    for i in range(5):
        p.e(f"v_add_u32 v{V_T0 + 1}, {4096 * i}, v{V_T0}")
        p.e(f"global_load_dwordx4 {vr(16 + 4 * i, 4)}, v{V_T0 + 1}, {sr(S_P0 + 2, 2)}")
    for i in range(5):
        if i == 4:
            p.e(f"s_cmp_ge_u32 s{S_W}, 2")
            p.e(f"s_cbranch_scc1 {name}_x4")
            p.if_begin()
        p.e(f"ds_write_b128 v{V_T0}, {vr(16 + 4 * i, 4)} offset:{LDS_XB + 4096 * i}")
    p.label(f"{name}_x4")
    p.if_end()
    AT.addr_setup(p)
    AT.weight_ptr_setup(p)
    p.e("s_waitcnt lgkmcnt(0)")
    p.e("s_barrier")
    stamp(p, 1)
    est = AT.attention_layer(p, name, stamp)
    stamp(p, 2)
    p.e(f"s_lshl_b32 s{S_T0}, s{S_PAIR}, 1")
    p.e(f"s_add_u32 s{S_T0}, s{S_T0}, s{S_HH}")
    p.e(f"s_mul_i32 s{S_T0}, s{S_T0}, 36864")
    p.e(f"s_mul_i32 s{S_T0 + 1}, s{S_W}, 9216")
    p.e(f"s_add_u32 s{S_T0}, s{S_T0}, s{S_T0 + 1}")
    ws_base(p, S_P0 + 4, L.PART + layer * L.PART_LAYER, S_T0)
    for t in range(9):
        p.e(f"v_add_u32 v{V_T0 + 1}, {1024 * t}, v{V_L16}")
        p.e(f"global_store_dwordx4 v{V_T0 + 1}, {vr(AT.XA + 4 * t, 4)}, {sr(S_P0 + 4, 2)} PSC")
    stamp(p, 3)
    stamp(p, 11, real=True)
    p.label(done)
    p.e("s_endpgm")
    txt = kernel_text(name, p)
    print(name, "estimated phase cycles", est, "counts", p.count, "auto nops", p.nauto_nop, file=sys.stderr)
    return txt, descriptor(name, 256, 256), AT.A_END


def k_bound(layer, name):
    p = Prog()
    done = name + "_done"
    prologue(p, done=done)
    load_ptr(p, S_T0 + 4, "out")
    chain_addr_setup(p)
    p.e("s_waitcnt lgkmcnt(0)")
    make_srd(p, SRD_A, S_T0 + 4, L.S * L.D * 2)
    p.e(f"s_mul_i32 s{S_T0}, s{S_PAIR}, 36864")
    p.e(f"s_mul_i32 s{S_T0 + 1}, s{S_W}, 9216")
    p.e(f"s_add_u32 s{S_T0}, s{S_T0}, s{S_T0 + 1}")
    ws_base(p, S_P0 + 4, L.X2G + layer * 0x500000, S_T0)
    ws_base(p, S_P0 + 10, L.X2G + 0x500000, S_T0)
    p.e(f"s_mul_i32 s{S_T0}, s{S_PAIR}, {2 * 36864}")
    p.e(f"s_add_u32 s{S_T0}, s{S_T0}, s{S_T0 + 1}")
    ws_base(p, S_P0 + 6, L.PART + layer * L.PART_LAYER, S_T0)
    PA, PB = 200, 164
    for t in range(9):
        p.e(f"v_add_u32 v{V_T0 + 1}, {1024 * t}, v{V_L16}")
        p.e(f"global_load_dwordx4 {vr(V_X + 4 * t, 4)}, v{V_T0 + 1}, {sr(S_P0 + 4, 2)}")
        p.e(f"global_load_dwordx4 {vr(PA + 4 * t, 4)}, v{V_T0 + 1}, {sr(S_P0 + 6, 2)}")
        p.e(f"v_add_u32 v{V_T0 + 1}, {1024 * t + 36864}, v{V_L16}")
        p.e(f"global_load_dwordx4 {vr(PB + 4 * t, 4)}, v{V_T0 + 1}, {sr(S_P0 + 6, 2)}")
    ws_base(p, S_P0 + 2, L.YT)
    y_loads(p, S_P0 + 2)
    if layer == 0:
        p.e(f"s_lshl_b32 s{S_T0}, s{S_HH}, 1")
        p.e(f"s_add_u32 s{S_T0}, s{S_T0}, s{S_W}")
        p.e(f"s_mul_i32 s{S_T0}, s{S_T0}, {18 * 1024}")
    for i in range(18):
        p.e(f"v_pk_add_f32 {vr(PA + 2 * i, 2)}, {vr(PA + 2 * i, 2)}, {vr(PB + 2 * i, 2)}")
        p.e(f"v_pk_add_f32 {vr(V_X + 2 * i, 2)}, {vr(V_X + 2 * i, 2)}, {vr(PA + 2 * i, 2)}")
    if layer == 0:
        ws_base(p, S_P0 + 8, L.WKVF, S_T0)
        p.e(f"s_cmp_ge_u32 s{S_W}, 2")
        p.e(f"s_cbranch_scc1 {name}_nw")
        p.if_begin()
        WF2 = 184
        for ks in range(18):
            p.e(f"v_add_u32 v{V_T0 + 1}, {1024 * ks}, v{V_L16}")
            p.e(f"global_load_dwordx4 {vr(WF2 + 4 * ks, 4)}, v{V_T0 + 1}, {sr(S_P0 + 8, 2)}")
        p.label(f"{name}_nw")
        p.if_end()
    gate_chain(p, V_X, 0)
    if layer == 0:
        row_stats(p, V_X, V_TMP, LDS_ST + 512, V_STW, V_STR, V_MU, V_RS)
        normalize_to_xb(p, V_X, V_TMP, V_MU, V_RS, V_XBE, V_XBO)
        p.e("s_waitcnt lgkmcnt(0)")
        p.e("s_barrier")
        ws_base(p, S_P0, L.KVB + L.KV_LAYER)
        import parts
        old = parts.V_WF
        parts.V_WF = 184
        kv_project_store(p, S_P0, name + "_kv")
        parts.V_WF = old
        p.e(f"s_cmp_eq_u32 s{S_HH}, 0")
        p.e(f"s_cbranch_scc0 {done}")
        p.e(f"s_mul_i32 s{S_T0}, s{S_PAIR}, {18 * 1024}")
        ws_base(p, S_P0 + 2, L.XBG, S_T0)
        p.e(f"s_lshl_b32 s{S_T0}, s{S_W}, 10")
        p.e(f"v_add_u32 v{V_T0}, s{S_T0}, v{V_L16}")
        for i in range(5):
            if i == 4:
                p.e(f"s_cmp_ge_u32 s{S_W}, 2")
                p.e(f"s_cbranch_scc1 {name}_x2")
            p.e(f"ds_read_b128 {vr(V_TMP + 4 * (i % 4), 4)}, v{V_T0} offset:{LDS_XB + 4096 * i}")
            p.e(f"v_add_u32 v{V_T0 + 1}, {4096 * i}, v{V_T0}")
            p.e(f"global_store_dwordx4 v{V_T0 + 1}, {vr(V_TMP + 4 * (i % 4), 4)}, {sr(S_P0 + 2, 2)}")
        p.label(f"{name}_x2")
        for t in range(9):
            p.e(f"v_add_u32 v{V_T0 + 1}, {1024 * t}, v{V_L16}")
            p.e(f"global_store_dwordx4 v{V_T0 + 1}, {vr(V_X + 4 * t, 4)}, {sr(S_P0 + 10, 2)}")
    else:
        p.e(f"s_lshr_b32 s{S_T0}, s{S_W}, 1")
        p.e(f"s_cmp_eq_u32 s{S_T0}, s{S_HH}")
        p.e(f"s_cbranch_scc0 {done}")
        store_out_rows(p, SRD_A, V_X)
    p.label(done)
    p.e("s_endpgm")
    return kernel_text(name, p), descriptor(name, 256), LDS_XB_END


def build(kernels):
    s = HEADER
    for name, grid, text, desc, lds in kernels:
        s += f"; @launch kernel={name} grid=({grid},1,1) block=(256,1,1) lds={lds}\n"
    s += '.amdgcn_target "amdgcn-amd-amdhsa--gfx950"\n.text\n'
    seen = set()
    for name, grid, text, desc, lds in kernels:
        if name in seen:
            continue
        seen.add(name)
        s += text
    s += '.section .rodata,"a"\n'
    seen = set()
    for name, grid, text, desc, lds in kernels:
        if name in seen:
            continue
        seen.add(name)
        s += desc
    return s


if __name__ == "__main__":
    ks = []
    STAMPS = "--stamps" in sys.argv
    t, d, l = k_p1()
    ks.append(("p1_kernel", 256, t, d, l))
    t, d, l = k_relayout()
    ks.append(("rl_kernel", 64, t, d, l))
    t, d, l = k_conv()
    ks.append(("cv_kernel", 256, t, d, l))
    STAMPS = "--stamps" in sys.argv
    t, d, l = k_attn(0, "a0_kernel")
    ks.append(("a0_kernel", 256, t, d, l))
    t, d, l = k_bound(0, "b0_kernel")
    ks.append(("b0_kernel", 256, t, d, l))
    t, d, l = k_attn(1, "a1_kernel")
    ks.append(("a1_kernel", 256, t, d, l))
    t, d, l = k_bound(1, "b1_kernel")
    ks.append(("b1_kernel", 256, t, d, l))
    open(sys.argv[1] if len(sys.argv) > 1 else "out.s", "w").write(build(ks))
```

```python
from common import *
from parts import LDS_XB, V_TMP
import parts as P
import conv as CV

WK_IMG = CV.CV_UB
WK_IMG_END = WK_IMG + 576 * 48 + 64
RL_IMG = CV.CV_BASE
S_RLD, S_RLS, S_RLN, S_RLT = 94, 95, 96, 97

V_TRA = 59


def wkv_dma(p, srd):
    a = V_T0
    for d in range(3):
        p.e(f"s_lshl_b32 s{S_T0}, s{S_W}, 6")
        p.e(f"s_add_u32 s{S_T0}, s{S_T0}, {d}")
        p.e(f"v_add_u32 v{a + 3}, s{S_T0}, v{V_LANE}")
        p.e(f"v_mul_u32_u24 v{a + 4}, 21846, v{a + 3}")
        p.e(f"v_lshrrev_b32 v{a + 4}, 16, v{a + 4}")
        p.e(f"v_mul_u32_u24 v{a + d}, 3, v{a + 4}")
        p.e(f"v_sub_u32 v{a + 3}, v{a + 3}, v{a + d}")
        p.e(f"v_mul_u32_u24 v{a + d}, 36, v{a + 4}")
        p.e(f"v_lshl_add_u32 v{a + d}, v{a + 3}, 4, v{a + d}")
    p.e(f"s_lshl_b32 s{S_T0}, s{S_W}, 10")
    p.e(f"s_add_u32 s{S_T0}, s{S_T0}, {WK_IMG}")
    for k in range(7):
        if k == 6:
            p.e(f"s_cmp_eq_u32 s{S_W}, 3")
            p.e(f"s_cbranch_scc1 L_wkdma_end{id(p) % 1000}_{wkv_dma.n}")
            p.if_begin()
        p.e(f"s_add_u32 m0, s{S_T0}, {4096 * k}")
        p.e(f"s_mov_b32 s{S_T0 + 1}, {3060 * k + 36 * (k // 3)}")
        p.e(f"buffer_load_dwordx4 v{a + k % 3}, {sr(srd, 4)}, s{S_T0 + 1} offen lds")
        if k == 6:
            p.label(f"L_wkdma_end{id(p) % 1000}_{wkv_dma.n}")
            p.if_end()
    wkv_dma.n += 1


wkv_dma.n = 0


def kv_project_store(p, s_kvbase, name):
    acc = V_TMP
    xb = V_TMP + 4
    wf = 100
    va = V_T0
    p.e(f"s_cmp_ge_u32 s{S_W}, 2")
    p.e(f"s_cbranch_scc1 {name}_end")
    p.if_begin()
    p.e(f"v_lshrrev_b32 v{va + 3}, 2, v{V_LANE}")
    p.e(f"v_mul_u32_u24 v{va + 3}, 48, v{va + 3}")
    p.e(f"v_and_b32 v{va + 4}, 3, v{V_LANE}")
    p.e(f"v_lshl_add_u32 v{va + 3}, v{va + 4}, 3, v{va + 3}")
    p.e(f"s_lshl_b32 s{S_T0}, s{S_W}, 5")
    p.e(f"s_add_u32 s{S_T0}, s{S_T0}, {WK_IMG}")
    p.e(f"v_add_u32 v{va + 3}, s{S_T0}, v{va + 3}")

    def rd(k):
        p.e(f"ds_read_b128 {vr(xb + 4 * (k % 3), 4)}, v{V_L16} offset:{LDS_XB + 1024 * k}")
        p.e(f"ds_read_b64_tr_b16 {vr(wf + 4 * (k % 3), 2)}, v{va + 3} offset:{1536 * k}")
        p.e(f"ds_read_b64_tr_b16 {vr(wf + 4 * (k % 3) + 2, 2)}, v{va + 3} offset:{1536 * k + 768}")

    def chain(swap):
        rd(0)
        rd(1)
        for ks in range(18):
            if ks + 2 < 18:
                rd(ks + 2)
            c = "0" if ks == 0 else vr(acc, 4)
            A, B = vr(wf + 4 * (ks % 3), 4), vr(xb + 4 * (ks % 3), 4)
            if swap:
                A, B = B, A
            p.e(f"v_mfma_f32_16x16x32_bf16 {vr(acc, 4)}, {A}, {B}, {c}")

    p.e(f"s_cmp_eq_u32 s{S_HH}, 0")
    p.e(f"s_cbranch_scc0 {name}_v")
    p.if_begin()
    chain(False)
    p.e(f"s_lshr_b32 s{S_T0}, s{S_PAIR}, 1")
    p.e(f"s_and_b32 s{S_T0 + 1}, s{S_PAIR}, 1")
    p.e(f"s_lshl_b32 s{S_T0 + 1}, s{S_T0 + 1}, 4")
    p.e(f"v_add_u32 v{va}, s{S_T0 + 1}, v{V_N}")
    p.e(f"s_mov_b32 s{S_T0 + 2}, {hx(f2u(L.QSCALE))}")
    for r in range(4):
        p.e(f"v_mul_f32 v{acc + r}, s{S_T0 + 2}, v{acc + r}")
    p.e(f"v_cvt_pk_bf16_f32 v{xb}, v{acc}, v{acc + 1}")
    p.e(f"v_cvt_pk_bf16_f32 v{xb + 1}, v{acc + 2}, v{acc + 3}")
    p.e(f"s_cmp_eq_u32 s{S_W}, 0")
    p.e(f"s_cbranch_scc0 {name}_kl")
    p.if_begin()
    p.e(f"v_lshrrev_b32 v{va + 1}, 1, v{V_G}")
    p.e(f"v_lshl_add_u32 v{va + 1}, v{va + 1}, 5, v{va}")
    p.e(f"v_lshlrev_b32 v{va + 1}, 4, v{va + 1}")
    p.e(f"v_and_b32 v{va + 2}, 1, v{V_G}")
    p.e(f"v_lshl_add_u32 v{va + 1}, v{va + 2}, 3, v{va + 1}")
    p.e(f"s_lshl_b32 s{S_T0}, s{S_T0}, 10")
    p.e(f"v_add_u32 v{va + 1}, s{S_T0}, v{va + 1}")
    p.e(f"global_store_dwordx2 v{va + 1}, {vr(xb, 2)}, {sr(s_kvbase, 2)} offset:{L.KV_K0} KVSC")
    p.e(f"s_branch {name}_end")
    p.if_end()
    p.label(f"{name}_kl")
    p.e(f"v_mov_b32 v{xb + 1}, 0x3f803f80")
    p.e(f"s_lshl_b32 s{S_T0}, s{S_T0}, 5")
    p.e(f"v_add_u32 v{va + 1}, s{S_T0}, v{va}")
    p.e(f"v_lshlrev_b32 v{va + 1}, 3, v{va + 1}")
    p.e(f"v_add_u32 v{va + 1}, {hx(L.KV_KL)}, v{va + 1}")
    p.e("s_mov_b64 exec, 0xffff")
    p.e(f"global_store_dwordx2 v{va + 1}, {vr(xb, 2)}, {sr(s_kvbase, 2)} KVSC")
    p.e("s_mov_b64 exec, -1")
    p.e(f"s_branch {name}_end")
    p.if_end()
    p.label(f"{name}_v")
    chain(True)
    p.e(f"s_lshl_b32 s{S_T0 + 1}, s{S_W}, 4")
    p.e(f"v_add_u32 v{va}, s{S_T0 + 1}, v{V_N}")
    p.e(f"v_cmp_eq_u32 vcc, 18, v{va}")
    p.e(f"v_mov_b32 v{va + 2}, 1.0")
    for r in range(4):
        p.e(f"v_cndmask_b32 v{acc + r}, v{acc + r}, v{va + 2}, vcc")
    p.e(f"v_cvt_pk_bf16_f32 v{xb}, v{acc}, v{acc + 1}")
    p.e(f"v_cvt_pk_bf16_f32 v{xb + 1}, v{acc + 2}, v{acc + 3}")
    p.e(f"v_and_b32 v{va + 1}, 1, v{V_G}")
    p.e(f"v_lshl_add_u32 v{va + 1}, v{va + 1}, 5, v{va}")
    p.e(f"v_lshlrev_b32 v{va + 1}, 4, v{va + 1}")
    p.e(f"v_lshrrev_b32 v{va + 2}, 1, v{V_G}")
    p.e(f"v_lshl_add_u32 v{va + 1}, v{va + 2}, 3, v{va + 1}")
    p.e(f"s_lshl_b32 s{S_T0}, s{S_PAIR}, 10")
    p.e(f"s_add_u32 s{S_T0}, s{S_T0}, {hx(L.KV_VF)}")
    p.e(f"v_add_u32 v{va + 1}, s{S_T0}, v{va + 1}")
    p.e(f"global_store_dwordx2 v{va + 1}, {vr(xb, 2)}, {sr(s_kvbase, 2)} KVSC")
    p.label(f"{name}_end")
    p.if_end()


def relayout_issue(p, s_job, name):
    a = V_T0
    st = S_T0
    p.e(f"s_mov_b32 s{S_RLN}, 0")
    p.e(f"s_cmp_ge_u32 s{s_job}, 54")
    p.e(f"s_cbranch_scc1 {name}_end")
    p.e(f"s_cmp_ge_u32 s{s_job}, 36")
    p.e(f"s_cbranch_scc1 {name}_wo")
    p.e(f"s_cmp_ge_u32 s{s_job}, 32")
    p.e(f"s_cbranch_scc1 {name}_ql")
    p.e(f"s_lshr_b32 s{st}, s{s_job}, 4")
    p.e(f"s_and_b32 s{st + 1}, s{s_job}, 15")
    p.e(f"s_lshl_b32 s{st + 2}, s{st}, 4")
    p.e(f"s_and_b32 s{st + 3}, s{st + 1}, 14")
    p.e(f"s_add_u32 s{st + 2}, s{st + 2}, s{st + 3}")
    p.e(f"s_and_b32 s{st + 3}, s{st + 1}, 1")
    p.e(f"s_lshl_b32 s{st + 3}, s{st + 3}, 2")
    p.e(f"v_and_b32 v{a + 1}, 1, v{V_LANE}")
    p.e(f"v_add_u32 v{a + 1}, s{st + 2}, v{a + 1}")
    p.e(f"v_mul_u32_u24 v{a + 1}, 18, v{a + 1}")
    p.e(f"v_bfe_u32 v{a + 2}, v{V_LANE}, 1, 1")
    p.e(f"v_lshl_add_u32 v{a + 1}, v{a + 2}, 3, v{a + 1}")
    p.e(f"v_add_u32 v{a + 1}, s{st + 3}, v{a + 1}")
    p.e(f"v_lshrrev_b32 v{a}, 2, v{V_LANE}")
    p.e(f"v_mul_u32_u24 v{a}, 1152, v{a}")
    p.e(f"v_lshl_add_u32 v{a}, v{a + 1}, 1, v{a}")
    make_srd(p, SRD_B, KREG["wq"], 576 * 1152)
    p.e(f"s_mul_i32 s{st + 4}, s{S_W}, {9 * 16 * 1152}")
    p.e(f"s_mul_i32 s{st + 5}, s{S_W}, {9 * 1024}")
    p.e(f"s_add_u32 s{st + 5}, s{st + 5}, {RL_IMG}")
    for i in range(9):
        p.e(f"s_add_u32 m0, s{st + 5}, {1024 * i}")
        p.e(f"buffer_load_dwordx4 v{a}, {sr(SRD_B, 4)}, s{st + 4} offen lds")
        p.e(f"s_add_u32 s{st + 4}, s{st + 4}, {16 * 1152}")
    p.e(f"s_mul_i32 s{st}, s{st}, 18")
    p.e(f"s_add_u32 s{st}, s{st}, s{st + 1}")
    p.e(f"s_mov_b32 s{S_RLT}, 64")
    p.e(f"s_branch {name}_qc")
    p.label(f"{name}_ql")
    p.e(f"s_sub_u32 s{st + 1}, s{s_job}, 32")
    p.e(f"s_lshr_b32 s{st}, s{st + 1}, 1")
    p.e(f"s_and_b32 s{st + 1}, s{st + 1}, 1")
    p.e(f"s_lshl_b32 s{st + 2}, s{st}, 4")
    p.e(f"s_lshl_b32 s{st + 3}, s{st + 1}, 3")
    p.e(f"s_add_u32 s{st + 2}, s{st + 2}, s{st + 3}")
    p.e(f"v_and_b32 v{a + 1}, 1, v{V_LANE}")
    p.e(f"v_bfe_u32 v{a + 2}, v{V_LANE}, 1, 2")
    p.e(f"v_lshl_add_u32 v{a + 1}, v{a + 1}, 2, v{a + 2}")
    p.e(f"v_add_u32 v{a + 1}, s{st + 2}, v{a + 1}")
    p.e(f"v_mul_u32_u24 v{a + 1}, 36, v{a + 1}")
    p.e(f"v_add_u32 v{a + 1}, 32, v{a + 1}")
    p.e(f"v_lshrrev_b32 v{a}, 3, v{V_LANE}")
    p.e(f"v_mul_u32_u24 v{a}, 1152, v{a}")
    p.e(f"v_add_u32 v{a}, v{a}, v{a + 1}")
    make_srd(p, SRD_B, KREG["wq"], 576 * 1152)
    p.e(f"s_mul_i32 s{st + 4}, s{S_W}, {144 * 1152}")
    p.e(f"s_mul_i32 s{st + 5}, s{S_W}, {144 * 32}")
    p.e(f"s_add_u32 s{st + 5}, s{st + 5}, {RL_IMG}")
    for i in range(18):
        p.e(f"s_add_u32 m0, s{st + 5}, {256 * i}")
        p.e(f"buffer_load_dword v{a}, {sr(SRD_B, 4)}, s{st + 4} offen lds")
        p.e(f"s_add_u32 s{st + 4}, s{st + 4}, {8 * 1152}")
    p.e(f"s_mul_i32 s{st}, s{st}, 18")
    p.e(f"s_add_u32 s{st}, s{st}, s{st + 1}")
    p.e(f"s_add_u32 s{st}, s{st}, 16")
    p.e(f"s_mov_b32 s{S_RLT}, 32")
    p.label(f"{name}_qc")
    p.e(f"s_mul_i32 s{st}, s{st}, {18 * 1024}")
    p.e(f"s_lshl_b32 s{st + 1}, s{S_W}, 10")
    p.e(f"s_add_u32 s{st}, s{st}, s{st + 1}")
    p.e(f"s_add_u32 s{S_RLD}, s{st}, {hx(L.WQF)}")
    p.e(f"s_mov_b32 s{S_RLS}, 4096")
    p.e(f"s_cmp_lt_u32 s{S_W}, 2")
    p.e(f"s_cselect_b32 s{S_RLN}, 5, 4")
    p.e(f"s_lshl_b32 s{st + 1}, s{S_W}, 5")
    p.e(f"v_lshrrev_b32 v{V_TRA}, 2, v{V_LANE}")
    p.e(f"v_add_u32 v{V_TRA}, s{st + 1}, v{V_TRA}")
    p.e(f"v_mul_lo_u32 v{V_TRA}, s{S_RLT}, v{V_TRA}")
    p.e(f"s_lshr_b32 s{st + 2}, s{S_RLT}, 2")
    p.e(f"v_and_b32 v{a + 1}, 3, v{V_LANE}")
    p.e(f"v_mul_lo_u32 v{a + 1}, s{st + 2}, v{a + 1}")
    p.e(f"v_add_u32 v{V_TRA}, v{V_TRA}, v{a + 1}")
    p.e(f"v_add_u32 v{V_TRA}, {RL_IMG}, v{V_TRA}")
    p.e(f"s_lshl_b32 s98, s{S_RLT}, 7")
    p.e(f"s_lshl_b32 s99, s{S_RLT}, 4")
    p.e(f"s_branch {name}_end")
    p.label(f"{name}_wo")
    p.e(f"s_sub_u32 s{st + 5}, s{s_job}, 36")
    p.e(f"s_cmp_ge_u32 s{st + 5}, 9")
    p.e(f"s_cselect_b32 s{st}, 1, 0")
    p.e(f"s_mul_i32 s{st + 1}, s{st}, 9")
    p.e(f"s_sub_u32 s{st + 1}, s{st + 5}, s{st + 1}")
    p.e(f"s_lshl_b32 s{st + 2}, s{st}, 4")
    rho, kg, jh, r, row = a + 1, a + 2, a + 3, a + 4, a + 5
    p.e(f"s_cmp_eq_u32 s{st + 1}, 8")
    p.e(f"s_cselect_b32 s{st + 8}, 1, 0")
    p.e(f"s_lshl_b32 s{st + 3}, s{st + 1}, 1")
    p.e(f"s_add_u32 s{st + 3}, s{st + 3}, s{st + 2}")
    make_srd(p, SRD_B, KREG["wo"], 576 * 1152)

    def rows(dst, rho_reg):
        p.e(f"v_lshrrev_b32 v{kg}, 3, v{rho_reg}")
        p.e(f"v_bfe_u32 v{jh}, v{rho_reg}, 2, 1")
        p.e(f"v_and_b32 v{r}, 3, v{rho_reg}")
        p.e(f"v_and_b32 v{dst}, 1, v{kg}")
        p.e(f"v_add_u32 v{dst}, s{st + 3}, v{dst}")
        p.e(f"v_mul_u32_u24 v{dst}, 18, v{dst}")
        p.e(f"v_lshrrev_b32 v{row + 1}, 1, v{kg}")
        p.e(f"v_lshl_add_u32 v{dst}, v{row + 1}, 2, v{dst}")
        p.e(f"v_lshl_add_u32 v{dst}, v{jh}, 3, v{dst}")
        p.e(f"v_add_u32 v{dst}, v{dst}, v{r}")
        p.e(f"v_lshlrev_b32 v{row + 1}, 2, v{kg}")
        p.e(f"v_add_u32 v{row + 1}, s{st + 2}, v{row + 1}")
        p.e(f"v_mul_u32_u24 v{row + 1}, 18, v{row + 1}")
        p.e(f"v_mul_u32_u24 v{jh}, 36, v{jh}")
        p.e(f"v_add3_u32 v{row + 1}, v{row + 1}, v{jh}, 16")
        p.e(f"v_lshrrev_b32 v{jh}, 1, v{r}")
        p.e(f"v_mul_u32_u24 v{jh}, 18, v{jh}")
        p.e(f"v_and_b32 v{r}, 1, v{r}")
        p.e(f"v_add3_u32 v{row + 1}, v{row + 1}, v{jh}, v{r}")
        p.e(f"s_cmp_eq_u32 s{st + 8}, 1")
        p.e(f"s_cselect_b64 vcc, -1, 0")
        p.e(f"v_cndmask_b32 v{dst}, v{dst}, v{row + 1}, vcc")

    p.e(f"s_mul_i32 s{st + 4}, s{S_W}, 288")
    p.e(f"s_mul_i32 s{st + 9}, s{S_W}, {9 * 1024}")
    p.e(f"s_add_u32 s{st + 9}, s{st + 9}, {RL_IMG}")
    p.e(f"v_lshrrev_b32 v{rho}, 1, v{V_G}")
    p.e(f"v_mul_u32_u24 v{rho}, 18, v{rho}")
    p.e(f"v_and_b32 v{kg}, 1, v{V_G}")
    p.e(f"v_add_u32 v{rho}, v{rho}, v{kg}")
    p.e(f"s_cmp_eq_u32 s{st + 8}, 1")
    p.e(f"s_cselect_b64 vcc, -1, 0")
    p.e(f"v_cndmask_b32 v{rho}, v{V_G}, v{rho}, vcc")
    p.e(f"v_mul_u32_u24 v{a}, 1152, v{rho}")
    p.e(f"v_lshl_add_u32 v{a}, v{V_N}, 4, v{a}")
    p.e(f"s_mul_i32 s{st + 10}, s{st + 3}, 18")
    p.e(f"s_mul_i32 s{st + 11}, s{st + 2}, 18")
    p.e(f"s_add_u32 s{st + 11}, s{st + 11}, 16")
    for i in range(8):
        kgc, jhc = i >> 1, i & 1
        p.e(f"s_add_u32 s{st}, s{st + 10}, {18 * (kgc & 1) + 4 * (kgc >> 1) + 8 * jhc}")
        p.e(f"s_add_u32 s{st + 1}, s{st + 11}, {72 * kgc + 36 * jhc}")
        p.e(f"s_cmp_eq_u32 s{st + 8}, 1")
        p.e(f"s_cselect_b32 s{st}, s{st + 1}, s{st}")
        p.e(f"s_mul_i32 s{st}, s{st}, 1152")
        p.e(f"s_add_u32 s{st}, s{st}, s{st + 4}")
        p.e(f"s_add_u32 m0, s{st + 9}, {1024 * i}")
        p.e(f"buffer_load_dwordx4 v{a}, {sr(SRD_B, 4)}, s{st} offen lds")
    p.e(f"v_lshrrev_b32 v{rho}, 1, v{V_LANE}")
    rows(row, rho)
    p.e(f"v_mul_u32_u24 v{a}, 1152, v{row}")
    p.e(f"v_and_b32 v{rho}, 1, v{V_LANE}")
    p.e(f"v_lshl_add_u32 v{a}, v{rho}, 4, v{a}")
    p.e(f"v_add_u32 v{a}, 256, v{a}")
    p.e(f"s_add_u32 m0, s{st + 9}, 8192")
    p.e(f"buffer_load_dwordx4 v{a}, {sr(SRD_B, 4)}, s{st + 4} offen lds")
    p.e(f"s_mul_i32 s{st}, s{st + 5}, {36 * 1024}")
    p.e(f"s_mul_i32 s{st + 1}, s{S_W}, {9 * 1024}")
    p.e(f"s_add_u32 s{st}, s{st}, s{st + 1}")
    p.e(f"s_add_u32 s{S_RLD}, s{st}, {hx(L.WOF)}")
    p.e(f"s_mov_b32 s{S_RLS}, 1024")
    p.e(f"s_mov_b32 s{S_RLN}, 9")
    p.e(f"s_mov_b32 s{S_RLT}, 0")
    p.e(f"v_lshlrev_b32 v{rho}, 3, v{V_G}")
    p.e(f"v_bfe_u32 v{kg}, v{V_LANE}, 2, 2")
    p.e(f"v_add_u32 v{rho}, v{rho}, v{kg}")
    p.e(f"v_and_b32 v{jh}, 3, v{V_LANE}")
    p.e(f"v_lshlrev_b32 v{V_TRA}, 8, v{rho}")
    p.e(f"v_lshl_add_u32 v{V_TRA}, v{jh}, 3, v{V_TRA}")
    p.e(f"v_add_u32 v{V_TRA}, s{st + 9}, v{V_TRA}")
    p.e(f"v_lshlrev_b32 v13, 5, v{rho}")
    p.e(f"v_lshl_add_u32 v13, v{jh}, 3, v13")
    p.e(f"s_add_u32 s{st + 9}, s{st + 9}, 8192")
    p.e(f"v_add_u32 v13, s{st + 9}, v13")
    p.label(f"{name}_end")


def relayout_finish(p, name):
    a = V_T0
    out = 104
    p.e(f"s_cmp_eq_u32 s{S_RLN}, 0")
    p.e(f"s_cbranch_scc1 {name}_fin")
    p.e(f"v_add_u32 v{a}, s{S_RLD}, v{V_L16}")
    p.e(f"s_cmp_eq_u32 s{S_RLN}, 9")
    p.e(f"s_cbranch_scc1 {name}_fo")
    p.e(f"v_add_u32 v{a + 1}, s99, v{V_TRA}")
    for i in range(5):
        if i == 4:
            p.e(f"s_cmp_lt_u32 s{S_RLN}, 5")
            p.e(f"s_cbranch_scc1 {name}_fin")
        o = out + 4 * (i % 2)
        p.e(f"ds_read_b64_tr_b16 {vr(o, 2)}, v{V_TRA}")
        p.e(f"ds_read_b64_tr_b16 {vr(o + 2, 2)}, v{a + 1}")
        p.e(f"v_add_u32 v{V_TRA}, s98, v{V_TRA}")
        p.e(f"v_add_u32 v{a + 1}, s98, v{a + 1}")
        p.e("s_waitcnt lgkmcnt(0)")
        p.e(f"global_store_dwordx4 v{a}, {vr(o, 4)}, s[{S_WS}:{S_WS + 1}] WSC")
        p.e(f"v_add_u32 v{a}, s{S_RLS}, v{a}")
    p.e(f"s_branch {name}_fin")
    p.label(f"{name}_fo")
    for t in range(9):
        o = out + 4 * t
        if t < 8:
            p.e(f"ds_read_b64_tr_b16 {vr(o, 2)}, v{V_TRA} offset:{32 * t}")
            p.e(f"ds_read_b64_tr_b16 {vr(o + 2, 2)}, v{V_TRA} offset:{32 * t + 1024}")
        else:
            p.e(f"ds_read_b64_tr_b16 {vr(o, 2)}, v13")
            p.e(f"ds_read_b64_tr_b16 {vr(o + 2, 2)}, v13 offset:128")
    p.e("s_waitcnt lgkmcnt(0)")
    for t in range(9):
        p.e(f"global_store_dwordx4 v{a}, {vr(out + 4 * t, 4)}, s[{S_WS}:{S_WS + 1}] WSC")
        p.e(f"v_add_u32 v{a}, 1024, v{a}")
    p.label(f"{name}_fin")
```

```python
import sys
from common import *
import parts as P
from parts import *
import conv as CV
import attn as AT
import gen as G
import start as ST

S_NONCE = 86
S_ROLE = 81
S_CH0 = 80
S_LAYER = 83
ST_KV1, ST_Y, ST_P1, ST_KV2, ST_P2, ST_UT = 0, 1, 2, 3, 4, 5
S_CVACT = 87
S_NYOUNG = 74
SPIN_MAX = 400000
_lab = [0]


def uid(s):
    _lab[0] += 1
    return f"L_{s}{_lab[0]}"


def flag_set(p, stage):
    p.e("s_waitcnt vmcnt(0)")
    p.e("s_barrier")
    lab = uid("fs")
    p.e(f"s_cmp_lg_u32 s{S_W}, 0")
    p.e(f"s_cbranch_scc1 {lab}")
    p.e(f"s_lshl_b32 s{S_T0}, s{S_PAIR}, 1")
    p.e(f"s_add_u32 s{S_T0}, s{S_T0}, s{S_HH}")
    p.e(f"s_lshl_b32 s{S_T0}, s{S_T0}, 7")
    p.e(f"s_add_u32 s{S_T0}, s{S_T0}, {hx(L.FLAGS + stage * 32768)}")
    p.e(f"v_mov_b32 v{V_T0}, s{S_T0}")
    p.e(f"v_mov_b32 v{V_T0 + 1}, s{S_NONCE}")
    p.e("s_mov_b64 exec, 1")
    p.e(f"global_store_dword v{V_T0}, v{V_T0 + 1}, s[{S_WS}:{S_WS + 1}] sc1")
    p.e("s_mov_b64 exec, -1")
    p.label(lab)


def flag_store(p, stage, wave=0):
    lab = uid("ft")
    p.e(f"s_cmp_lg_u32 s{S_W}, {wave}")
    p.e(f"s_cbranch_scc1 {lab}")
    p.if_begin()
    p.e(f"s_lshl_b32 s{S_T0}, s{S_PAIR}, 1")
    p.e(f"s_add_u32 s{S_T0}, s{S_T0}, s{S_HH}")
    p.e(f"s_lshl_b32 s{S_T0}, s{S_T0}, 7")
    p.e(f"s_add_u32 s{S_T0}, s{S_T0}, {hx(L.FLAGS + stage * 32768)}")
    p.e(f"v_mov_b32 v{V_T0}, s{S_T0}")
    p.e(f"v_mov_b32 v{V_T0 + 1}, s{S_NONCE}")
    p.e("s_mov_b64 exec, 1")
    p.e(f"global_store_dword v{V_T0}, v{V_T0 + 1}, s[{S_WS}:{S_WS + 1}] sc1")
    p.e("s_mov_b64 exec, -1")
    p.label(lab)
    p.if_end()


def poll(p, vaddr):
    lab = uid("pl")
    p.e(f"s_mov_b32 s{S_T0 + 1}, 0")
    p.label(lab)
    p.e(f"global_load_dword v{V_T0 + 1}, v{vaddr}, s[{S_WS}:{S_WS + 1}] sc1")
    p.e(f"s_add_u32 s{S_T0 + 1}, s{S_T0 + 1}, 1")
    p.e("s_waitcnt vmcnt(0)")
    p.e(f"v_cmp_ne_u32 vcc, s{S_NONCE}, v{V_T0 + 1}")
    p.e(f"s_cmp_gt_u32 s{S_T0 + 1}, {SPIN_MAX}")
    p.e(f"s_cbranch_scc1 {lab}_x")
    p.e(f"s_cbranch_vccnz {lab}")
    p.label(lab + "_x")


def poll_all(p, stage, barrier=True):
    p.e(f"s_lshl_b32 s{S_T0}, s{S_W}, 13")
    p.e(f"s_add_u32 s{S_T0}, s{S_T0}, {hx(L.FLAGS + stage * 32768)}")
    p.e(f"v_lshlrev_b32 v{V_T0}, 7, v{V_LANE}")
    p.e(f"v_add_u32 v{V_T0}, s{S_T0}, v{V_T0}")
    poll(p, V_T0)
    if barrier:
        p.e("s_barrier")


def poll_partner(p, stage):
    p.e(f"s_lshl_b32 s{S_T0}, s{S_PAIR}, 1")
    p.e(f"s_add_u32 s{S_T0}, s{S_T0}, s{S_HH}")
    p.e(f"s_xor_b32 s{S_T0}, s{S_T0}, 1")
    p.e(f"s_lshl_b32 s{S_T0}, s{S_T0}, 7")
    p.e(f"s_add_u32 s{S_T0}, s{S_T0}, {hx(L.FLAGS + stage * 32768)}")
    p.e(f"v_mov_b32 v{V_T0}, s{S_T0}")
    poll(p, V_T0)


def save_x(p, X):
    pass


LDS_XS = 150784


def k_fused(name):
    p = Prog()
    for k in ("KVSC", "WSC", "YSC", "PSC", "PLD"):
        p.subst[k] = "sc1"
    done = name + "_done"
    stamp = G.stamp
    SPAN = "--span" in sys.argv
    if SPAN:
        p.e("s_memrealtime s[100:101]")
    prologue(p, done=done, allptrs=True)
    if G.STAMPS == 1:
        load_ptr(p, 88, "dbg")
    chain_addr_setup(p)
    p.e("s_waitcnt lgkmcnt(0)")
    stamp(p, 0)
    stamp(p, 14, real=True)
    make_srd(p, SRD_A, KREG["x"], L.S * L.D * 2)
    load_x_rows(p, SRD_A)
    p.e(f"s_cmp_eq_u32 s{S_HH}, 0")
    p.e(f"s_cselect_b32 s{S_T0 + 6}, s{KREG['wk']}, s{KREG['wv']}")
    p.e(f"s_cselect_b32 s{S_T0 + 7}, s{KREG['wk'] + 1}, s{KREG['wv'] + 1}")
    make_srd(p, SRD_B, S_T0 + 6, 576 * 36)
    CV.ut_issue(p)
    ST.wkv_dma(p, SRD_B)
    p.e(f"s_add_u32 s{S_T0 + 10}, s{S_WS}, {hx(L.EPOCH)}")
    p.e(f"s_addc_u32 s{S_T0 + 11}, s{S_WS + 1}, 0")
    p.e(f"s_load_dword s{S_NONCE}, s[{S_T0 + 10}:{S_T0 + 11}], 0")
    p.e(f"s_cmp_lt_u32 s{S_SLOT}, 24")
    p.e(f"s_cselect_b32 s{S_ROLE}, 1, 0")
    p.e(f"s_cbranch_scc0 {name}_r_rl")
    p.e(f"s_mul_i32 s{S_CH0}, s{S_XCD}, 72")
    p.e(f"s_mul_i32 s3, s{S_SLOT}, 3")
    p.e(f"s_add_u32 s{S_CH0}, s{S_CH0}, s3")
    p.e(f"s_branch {name}_r_end")
    p.label(f"{name}_r_rl")
    p.e(f"s_lshl_b32 s{S_CH0}, s{S_XCD}, 3")
    p.e(f"s_add_u32 s{S_CH0}, s{S_CH0}, s{S_SLOT}")
    p.e(f"s_sub_u32 s{S_CH0}, s{S_CH0}, 24")
    p.label(f"{name}_r_end")
    p.e(f"s_cmp_lt_u32 s{S_W}, 3")
    p.e(f"s_cselect_b32 s{S_CVACT}, s{S_ROLE}, 0")
    stamp(p, 1)
    p.e("s_waitcnt vmcnt(0)" if False else "s_nop 0")
    CV.ut_round(p, 0)
    CV.ut_extra(p)
    p.e(f"s_cmp_eq_u32 s{S_ROLE}, 1")
    p.e(f"s_cbranch_scc0 {name}_nofi")
    p.if_begin()
    CV.conv_filter_issue(p, S_CH0)
    p.e(f"s_mov_b32 s{S_NYOUNG}, 19")
    p.e(f"s_branch {name}_issued")
    p.if_end()
    p.label(f"{name}_nofi")
    p.if_begin()
    ST.relayout_issue(p, S_CH0, name + "_rl")
    p.e(f"s_mov_b32 s{S_NYOUNG}, 9")
    p.e(f"s_sub_u32 s3, s{S_CH0}, 32")
    p.e(f"s_cmp_lt_u32 s3, 4")
    p.e(f"s_cselect_b32 s{S_NYOUNG}, 18, s{S_NYOUNG}")
    p.e(f"s_cmp_ge_u32 s{S_CH0}, 54")
    p.e(f"s_cselect_b32 s{S_NYOUNG}, 0, s{S_NYOUNG}")
    p.if_end()
    p.label(f"{name}_issued")
    unpack_x_rows(p)
    row_stats(p, V_X, V_TMP, LDS_ST, V_STW, V_STR, V_MU, V_RS)
    normalize_to_xb(p, V_X, V_TMP, V_MU, V_RS, V_XBE, V_XBO)
    p.e("s_waitcnt lgkmcnt(0)")
    for n in (0, 9, 18):
        lab = uid("wy")
        p.e(f"s_cmp_eq_u32 s{S_NYOUNG}, {n}")
        p.e(f"s_cbranch_scc0 {lab}")
        p.if_begin()
        p.e(f"s_waitcnt vmcnt({n})")
        p.label(lab)
        p.if_end()
    p.e("s_waitcnt vmcnt(19)")
    p.e("s_barrier")
    p.e(f"s_add_u32 s{S_NONCE}, s{S_NONCE}, 1")
    stamp(p, 2)
    flag_store(p, ST_UT, wave=2)
    ws_base(p, S_P0, L.KVB)
    ST.kv_project_store(p, S_P0, name + "_kv1")
    p.e(f"s_cmp_eq_u32 s{S_ROLE}, 0")
    p.e(f"s_cbranch_scc0 {name}_norl")
    p.if_begin()
    p.e("s_waitcnt vmcnt(0)")
    p.e("s_barrier")
    ST.relayout_finish(p, name + "_rl")
    p.label(f"{name}_norl")
    p.if_end()
    for i in range(16):
        p.e(f"v_accvgpr_write_b32 a{240 + i}, v{V_XR + i}")
    p.e(f"v_mov_b32 v{V_XS16}, v{V_XR + 16}")
    p.e(f"v_mov_b32 v{V_XS16 + 1}, v{V_XR + 17}")
    stamp(p, 3)
    flag_set(p, ST_KV1)
    p.e(f"s_cmp_eq_u32 s{S_ROLE}, 1")
    p.e(f"s_cbranch_scc0 {name}_nofb")
    p.if_begin()
    CV.conv_filter_build(p, S_CH0)
    stamp(p, 4)
    poll_all(p, ST_UT)
    CV.conv_u_dma(p, S_CH0)
    p.e("s_waitcnt vmcnt(0) lgkmcnt(0)")
    p.e("s_barrier")
    p.label(f"{name}_nofb")
    p.if_end()
    stamp(p, 5)

    def mid():
        poll_all(p, ST_KV1)
        stamp(p, 6)
        lab = uid("ep")
        p.e(f"s_or_b32 s{S_T0}, s2, s{S_W}")
        p.e(f"s_cmp_lg_u32 s{S_T0}, 0")
        p.e(f"s_cbranch_scc1 {lab}")
        p.if_begin()
        p.e(f"v_mov_b32 v{V_T0}, {hx(L.EPOCH)}")
        p.e(f"v_mov_b32 v{V_T0 + 1}, s{S_NONCE}")
        p.e("s_mov_b64 exec, 1")
        p.e(f"global_store_dword v{V_T0}, v{V_T0 + 1}, s[{S_WS}:{S_WS + 1}] sc1")
        p.e("s_mov_b64 exec, -1")
        p.label(lab)
        p.if_end()
        AT.q_main_loads(p)
        AT.q_left(p, name + "_ql1", both_on=3)

    AT.addr_setup(p)
    AT.weight_ptr_setup(p)
    ws_base(p, S_P0 + 2, L.YT)
    CV.conv_main(p, S_CH0, name + "_cv", S_P0 + 2, S_CVACT, stamp, mid)
    stamp(p, 7)
    AT.q_main_compute(p)
    flag_set(p, ST_Y)
    ws_base(p, AT.S_KV, L.KVB)
    p.e(f"s_mov_b32 s{S_LAYER}, 0")
    p.e("s_waitcnt vmcnt(0) lgkmcnt(0)")
    p.fence()
    p.label(name + "_layer")
    V_YF = 247

    def tail_hook():
        p.e(f"s_lshl_b32 s{S_T0}, s{S_W}, 13")
        p.e(f"s_add_u32 s{S_T0}, s{S_T0}, {hx(L.FLAGS + ST_Y * 32768)}")
        p.e(f"v_lshlrev_b32 v{V_YF + 1}, 7, v{V_LANE}")
        p.e(f"v_add_u32 v{V_YF + 1}, s{S_T0}, v{V_YF + 1}")
        p.e(f"global_load_dword v{V_YF}, v{V_YF + 1}, s[{S_WS}:{S_WS + 1}] sc1")

    AT.attention_layer(p, name + "_at", stamp, tail_hook)
    p.e(f"s_lshl_b32 s3, s{S_LAYER}, 3")
    stamp(p, 8, 3)
    XP = 168
    PSZ = 18432
    p.e(f"s_lshl_b32 s{S_T0}, s{S_PAIR}, 1")
    p.e(f"s_add_u32 s{S_T0}, s{S_T0}, s{S_HH}")
    p.e(f"s_mul_i32 s{S_T0 + 2}, s{S_T0}, {PSZ}")
    p.e(f"s_xor_b32 s{S_T0}, s{S_T0}, 1")
    p.e(f"s_mul_i32 s{S_T0 + 3}, s{S_T0}, {PSZ}")
    p.e(f"s_mul_i32 s{S_T0 + 1}, s{S_W}, 4608")
    p.e(f"s_mul_i32 s{S_T0 + 4}, s{S_LAYER}, {hx(L.PART_LAYER)}")
    p.e(f"s_add_u32 s{S_T0 + 1}, s{S_T0 + 1}, s{S_T0 + 4}")
    p.e(f"s_add_u32 s{S_T0 + 2}, s{S_T0 + 2}, s{S_T0 + 1}")
    p.e(f"s_add_u32 s{S_T0 + 3}, s{S_T0 + 3}, s{S_T0 + 1}")
    ws_base(p, S_P0 + 4, L.PART, S_T0 + 2)
    ws_base(p, S_P0 + 6, L.PART, S_T0 + 3)
    for t in range(9):
        p.e(f"v_cvt_pk_bf16_f32 v{XP + 2 * t}, v{AT.XA + 4 * t}, v{AT.XA + 4 * t + 1}")
        p.e(f"v_cvt_pk_bf16_f32 v{XP + 2 * t + 1}, v{AT.XA + 4 * t + 2}, v{AT.XA + 4 * t + 3}")
    p.e(f"v_lshlrev_b32 v{V_T0 + 2}, 3, v{V_LANE}")
    p.e(f"v_add_u32 v{V_T0 + 2}, 4096, v{V_T0 + 2}")
    for c in range(4):
        p.e(f"global_store_dwordx4 v{V_L16}, {vr(XP + 4 * c, 4)}, {sr(S_P0 + 4, 2)} offset:{1024 * c} sc1")
    p.e(f"global_store_dwordx2 v{V_T0 + 2}, {vr(XP + 16, 2)}, {sr(S_P0 + 4, 2)} sc1", wtok="PS")
    chain_addr_setup(p)
    lab = uid("yf")
    p.e(f"v_cmp_ne_u32 vcc, s{S_NONCE}, v{V_YF}")
    p.e(f"s_cbranch_vccz {lab}")
    p.if_begin()
    poll(p, V_YF + 1)
    p.label(lab)
    p.if_end()
    p.e("s_barrier")
    ws_base(p, S_P0 + 2, L.YT)
    y_loads(p, S_P0 + 2)
    for i in range(16):
        p.e(f"v_accvgpr_read_b32 v{V_XR + i}, a{240 + i}")
    p.e(f"v_mov_b32 v{V_XR + 16}, v{V_XS16}")
    p.e(f"v_mov_b32 v{V_XR + 17}, v{V_XS16 + 1}")
    unpack_x_rows(p)
    load_ptr(p, S_T0 + 6, "wk")
    load_ptr(p, S_T0 + 8, "wv")
    p.e("s_waitcnt lgkmcnt(0)")
    p.e(f"s_cmp_eq_u32 s{S_HH}, 0")
    p.e(f"s_cselect_b32 s{S_T0 + 6}, s{S_T0 + 6}, s{S_T0 + 8}")
    p.e(f"s_cselect_b32 s{S_T0 + 7}, s{S_T0 + 7}, s{S_T0 + 9}")
    make_srd(p, SRD_B, S_T0 + 6, 576 * 36)
    ST.wkv_dma(p, SRD_B)
    for i in range(18):
        p.e(f"v_pk_add_f32 {vr(V_X + 2 * i, 2)}, {vr(V_X + 2 * i, 2)}, {vr(AT.XA + 2 * i, 2)}")
    p.e("s_waitcnt vmcnt(42)")
    p.e("s_barrier")
    flag_store_dyn(p, ST_P1, ST_P2 - ST_P1)
    p.e(f"s_lshl_b32 s3, s{S_LAYER}, 3")
    stamp(p, 9, 3)
    poll_partner_dyn(p, ST_P1, ST_P2 - ST_P1)
    p.e(f"v_lshlrev_b32 v{V_T0 + 2}, 3, v{V_LANE}")
    p.e(f"v_add_u32 v{V_T0 + 2}, 4096, v{V_T0 + 2}")
    for c in range(4):
        p.e(f"global_load_dwordx4 {vr(XP + 4 * c, 4)}, v{V_L16}, {sr(S_P0 + 6, 2)} offset:{1024 * c} sc1")
    p.e(f"global_load_dwordx2 {vr(XP + 16, 2)}, v{V_T0 + 2}, {sr(S_P0 + 6, 2)} sc1")
    PB = AT.XA
    for t in range(9):
        unpack_bf16x4(p, PB + 4 * t, XP + 2 * t)
    for i in range(18):
        p.e(f"v_pk_add_f32 {vr(V_X + 2 * i, 2)}, {vr(V_X + 2 * i, 2)}, {vr(PB + 2 * i, 2)}")
    p.e(f"s_lshl_b32 s3, s{S_LAYER}, 3")
    stamp(p, 10, 3)
    dbg_dump(p, V_X, 0)
    gate_chain(p, V_X, 0)
    dbg_dump(p, V_X, 1)
    p.e(f"s_cmp_eq_u32 s{S_LAYER}, 1")
    p.e(f"s_cbranch_scc1 {name}_final")
    row_stats(p, V_X, V_TMP, LDS_ST + 512, V_STW, V_STR, V_MU, V_RS)
    normalize_to_xb(p, V_X, V_TMP, V_MU, V_RS, V_XBE, V_XBO)
    for t in range(9):
        p.e(f"v_cvt_pk_bf16_f32 v{V_XR + 2 * t}, v{V_X + 4 * t}, v{V_X + 4 * t + 1}")
        p.e(f"v_cvt_pk_bf16_f32 v{V_XR + 2 * t + 1}, v{V_X + 4 * t + 2}, v{V_X + 4 * t + 3}")
    for i in range(16):
        p.e(f"v_accvgpr_write_b32 a{240 + i}, v{V_XR + i}")
    p.e(f"v_mov_b32 v{V_XS16}, v{V_XR + 16}")
    p.e(f"v_mov_b32 v{V_XS16 + 1}, v{V_XR + 17}")
    p.e("s_waitcnt vmcnt(0) lgkmcnt(0)")
    p.e("s_barrier")
    ws_base(p, S_P0, L.KVB + L.KV_LAYER)
    ST.kv_project_store(p, S_P0, name + "_kv2")
    flag_set(p, ST_KV2)
    stamp(p, 11)
    AT.addr_setup(p)
    AT.weight_ptr_setup(p)
    AT.q_main_loads(p)
    AT.q_left(p, name + "_ql2", both_on=None)
    AT.q_main_compute(p)
    poll_all(p, ST_KV2)
    stamp(p, 12)
    ws_base(p, AT.S_KV, L.KVB + L.KV_LAYER)
    p.e(f"s_mov_b32 s{S_LAYER}, 1")
    p.e("s_waitcnt vmcnt(0) lgkmcnt(0)")
    p.e("s_nop 15")
    p.e(f"s_branch {name}_layer")
    p.fence()
    p.label(name + "_final")
    load_ptr(p, S_T0 + 4, "out")
    p.e("s_waitcnt lgkmcnt(0)")
    make_srd(p, SRD_A, S_T0 + 4, L.S * L.D * 2)
    p.e(f"s_lshr_b32 s{S_T0}, s{S_W}, 1")
    p.e(f"s_cmp_eq_u32 s{S_T0}, s{S_HH}")
    p.e(f"s_cbranch_scc0 {name + '_span' if SPAN else done}")
    store_out_rows(p, SRD_A, V_X)
    stamp(p, 26)
    stamp(p, 15, real=True)
    if SPAN:
        p.label(name + "_span")
        p.e("s_waitcnt vmcnt(0)")
        p.e("s_memrealtime s[90:91]")
        p.e("s_waitcnt lgkmcnt(0)")
        p.e("v_mov_b32 v16, s100")
        p.e("v_mov_b32 v17, s90")
        p.e("s_lshl_b32 s3, s2, 5")
        p.e(f"s_lshl_b32 s28, s{S_W}, 3")
        p.e("s_add_u32 s3, s3, s28")
        p.e(f"s_add_u32 s3, s3, {hx(0x2900000)}")
        p.e("v_mov_b32 v18, s3")
        p.e(f"global_store_dwordx2 v18, v[16:17], s[{S_WS}:{S_WS + 1}]")
    p.label(done)
    p.e("s_endpgm")
    txt = G.kernel_text(name, p)
    print(name, "counts", p.count, "auto nops", p.nauto_nop, file=sys.stderr)
    return txt, G.descriptor(name, 256, 256, sgpr=102), max(AT.A_END, ST.WK_IMG_END)


V_XS16 = 252


def dbg_dump(p, X, which):
    if "--dump" not in sys.argv:
        return
    lab = uid("dd")
    p.e(f"s_or_b32 s{S_T0}, s{S_HH}, s{S_LAYER}")
    p.e(f"s_cmp_lg_u32 s{S_T0}, 0")
    p.e(f"s_cbranch_scc1 {lab}")
    p.e(f"s_mul_i32 s{S_T0}, s{S_PAIR}, 36864")
    p.e(f"s_mul_i32 s{S_T0 + 1}, s{S_W}, 9216")
    p.e(f"s_add_u32 s{S_T0}, s{S_T0}, s{S_T0 + 1}")
    ws_base(p, S_P0 + 10, L.X2G + which * 0x500000, S_T0)
    for t in range(9):
        p.e(f"v_add_u32 v{V_T0 + 1}, {1024 * t}, v{V_L16}")
        p.e(f"global_store_dwordx4 v{V_T0 + 1}, {vr(X + 4 * t, 4)}, {sr(S_P0 + 10, 2)}")
    p.label(lab)


def flag_set_dyn(p, stage, dstage):
    p.e("s_waitcnt vmcnt(0)")
    p.e("s_barrier")
    lab = uid("fs")
    p.e(f"s_cmp_lg_u32 s{S_W}, 0")
    p.e(f"s_cbranch_scc1 {lab}")
    p.e(f"s_lshl_b32 s{S_T0}, s{S_PAIR}, 1")
    p.e(f"s_add_u32 s{S_T0}, s{S_T0}, s{S_HH}")
    p.e(f"s_lshl_b32 s{S_T0}, s{S_T0}, 7")
    p.e(f"s_mul_i32 s{S_T0 + 1}, s{S_LAYER}, {dstage * 32768}")
    p.e(f"s_add_u32 s{S_T0}, s{S_T0}, s{S_T0 + 1}")
    p.e(f"s_add_u32 s{S_T0}, s{S_T0}, {hx(L.FLAGS + stage * 32768)}")
    p.e(f"v_mov_b32 v{V_T0}, s{S_T0}")
    p.e(f"v_mov_b32 v{V_T0 + 1}, s{S_NONCE}")
    p.e("s_mov_b64 exec, 1")
    p.e(f"global_store_dword v{V_T0}, v{V_T0 + 1}, s[{S_WS}:{S_WS + 1}] sc1")
    p.e("s_mov_b64 exec, -1")
    p.label(lab)


def flag_store_dyn(p, stage, dstage):
    lab = uid("fs")
    p.e(f"s_cmp_lg_u32 s{S_W}, 0")
    p.e(f"s_cbranch_scc1 {lab}")
    p.if_begin()
    p.e(f"s_lshl_b32 s{S_T0}, s{S_PAIR}, 1")
    p.e(f"s_add_u32 s{S_T0}, s{S_T0}, s{S_HH}")
    p.e(f"s_lshl_b32 s{S_T0}, s{S_T0}, 7")
    p.e(f"s_mul_i32 s{S_T0 + 1}, s{S_LAYER}, {dstage * 32768}")
    p.e(f"s_add_u32 s{S_T0}, s{S_T0}, s{S_T0 + 1}")
    p.e(f"s_add_u32 s{S_T0}, s{S_T0}, {hx(L.FLAGS + stage * 32768)}")
    p.e(f"v_mov_b32 v{V_T0}, s{S_T0}")
    p.e(f"v_mov_b32 v{V_T0 + 1}, s{S_NONCE}")
    p.e("s_mov_b64 exec, 1")
    p.e(f"global_store_dword v{V_T0}, v{V_T0 + 1}, s[{S_WS}:{S_WS + 1}] sc1")
    p.e("s_mov_b64 exec, -1")
    p.label(lab)
    p.if_end()


def poll_partner_dyn(p, stage, dstage):
    p.e(f"s_lshl_b32 s{S_T0}, s{S_PAIR}, 1")
    p.e(f"s_add_u32 s{S_T0}, s{S_T0}, s{S_HH}")
    p.e(f"s_xor_b32 s{S_T0}, s{S_T0}, 1")
    p.e(f"s_lshl_b32 s{S_T0}, s{S_T0}, 7")
    p.e(f"s_mul_i32 s{S_T0 + 2}, s{S_LAYER}, {dstage * 32768}")
    p.e(f"s_add_u32 s{S_T0}, s{S_T0}, s{S_T0 + 2}")
    p.e(f"s_add_u32 s{S_T0}, s{S_T0}, {hx(L.FLAGS + stage * 32768)}")
    p.e(f"v_mov_b32 v{V_T0}, s{S_T0}")
    poll(p, V_T0)


def build_single(name, text, desc, lds):
    s = G.HEADER
    s += f"; @launch grid=(256,1,1) block=(256,1,1) lds={lds}\n"
    s += '.amdgcn_target "amdgcn-amd-amdhsa--gfx950"\n.text\n' + text
    s += '.section .rodata,"a"\n' + desc
    return s


if __name__ == "__main__":
    G.STAMPS = 2 if "--stamps2" in sys.argv else (1 if "--stamps" in sys.argv else 0)
    name = G.NAME + "_kernel"
    t, d, l = k_fused(name)
    open(sys.argv[1], "w").write(build_single(name, t, d, l))
```

```python
import re

REG_RE = re.compile(r'(?<![\w.])([vas])\[(\d+):(\d+)\]|(?<![\w.\[:])([vas])(\d+)(?![\w:])|(?<!\w)(vcc|exec_lo|exec_hi|exec|m0)(?!\w)')

TRANS = ("v_exp_", "v_log_", "v_rcp_", "v_rsq_", "v_sqrt_", "v_sin_", "v_cos_")
MFMA_PASSES = {
    "v_mfma_f32_32x32x16_bf16": 8, "v_mfma_f32_16x16x32_bf16": 4,
    "v_mfma_f32_32x32x4_2b_bf16": 16, "v_mfma_f32_32x32x8_bf16": 8,
    "v_mfma_f32_16x16x16_bf16": 4,
}
P2I = {2: 0, 4: 1, 8: 2, 16: 3}


def split_ops(s):
    out, depth, cur = [], 0, ""
    for ch in s:
        if ch in "[(":
            depth += 1
        elif ch in "])":
            depth -= 1
        if ch == "," and depth == 0:
            out.append(cur.strip())
            cur = ""
        else:
            cur += ch
    if cur.strip():
        out.append(cur.strip())
    return out


def regs_of(tok):
    res = []
    for m in REG_RE.finditer(tok):
        if m.group(1):
            res += [(m.group(1), i) for i in range(int(m.group(2)), int(m.group(3)) + 1)]
        elif m.group(4):
            res.append((m.group(4), int(m.group(5))))
        else:
            nm = m.group(6)
            if nm == "vcc":
                res += [("vcc", 0)]
            elif nm.startswith("exec"):
                res += [("exec", 0)]
            else:
                res += [("m0", 0)]
    return res


class Ins:
    __slots__ = ("text", "mn", "cls", "rd", "wr", "ops", "passes", "srcc", "srcab", "wide_store_data", "note", "tag")

    def __init__(self, text, tag=None):
        self.text = text
        self.tag = tag
        t = text.split(";")[0].strip()
        parts = t.split(None, 1)
        self.mn = mn = parts[0]
        rest = parts[1] if len(parts) > 1 else ""
        ops = split_ops(rest)
        self.ops = ops
        self.passes = 0
        self.srcc = []
        self.srcab = []
        self.wide_store_data = []
        R = [regs_of(o) for o in ops]
        allr = [r for x in R for r in x]
        rd, wr = [], []
        if mn.endswith(":") or mn.startswith("."):
            self.cls = "label"
        elif mn.startswith("v_mfma"):
            self.cls = "mfma"
            self.passes = MFMA_PASSES[mn]
            wr = R[0]
            self.srcab = R[1] + R[2]
            self.srcc = R[3]
            rd = R[1] + R[2] + R[3]
        elif mn.startswith("v_"):
            base = mn
            self.cls = "trans" if base.startswith(TRANS) else "valu"
            if mn.startswith("v_cmp"):
                wr = R[0]
                rd = [r for x in R[1:] for r in x]
            elif mn.startswith(("v_permlane32_swap", "v_permlane16_swap", "v_swap")):
                wr = R[0] + R[1]
                rd = R[0] + R[1]
            elif mn.startswith(("v_add_co", "v_sub_co", "v_addc_co", "v_subb_co")):
                wr = R[0] + R[1]
                rd = [r for x in R[2:] for r in x]
            else:
                wr = R[0]
                rd = [r for x in R[1:] for r in x]
                if mn.startswith(("v_fmac", "v_dot2c", "v_pk_fmac", "v_writelane")) or "UNUSED_PRESERVE" in t:
                    rd = rd + R[0]
                if "_dpp" in mn or "row_" in t or "quad_perm" in t:
                    rd = rd + R[0]
                if mn.startswith("v_cndmask") and len(ops) == 3:
                    rd = rd + [("vcc", 0)]
            rd = rd + [("exec", 0)]
        elif mn in ("s_waitcnt", "s_nop", "s_barrier", "s_endpgm", "s_sleep", "s_setprio", "s_branch") or mn.startswith("s_cbranch"):
            self.cls = {"s_waitcnt": "wait", "s_nop": "nop", "s_barrier": "barrier"}.get(mn, "ctl")
            if mn in ("s_cbranch_vccz", "s_cbranch_vccnz"):
                rd = [("vcc", 0)]
            if mn in ("s_cbranch_execz", "s_cbranch_execnz"):
                rd = [("exec", 0)]
        elif mn.startswith(("s_load", "s_memtime", "s_memrealtime", "s_buffer_load")):
            self.cls = "smem"
            wr = R[0]
            rd = [r for x in R[1:] for r in x]
        elif mn.startswith("s_"):
            self.cls = "salu"
            if mn.startswith(("s_cmp", "s_bitcmp")):
                rd = allr
            elif "saveexec" in mn:
                wr = R[0] + [("exec", 0)]
                rd = R[1] + [("exec", 0)]
            else:
                wr = R[0]
                rd = [r for x in R[1:] for r in x]
                if mn.startswith(("s_addk", "s_mulk", "s_cmov")):
                    rd += R[0]
        elif mn.startswith(("global_load", "buffer_load")):
            lds = bool(re.search(r'(?<!\w)lds(?!\w)', t))
            if lds:
                self.cls = "vdma"
                rd = allr + [("m0", 0)]
            else:
                self.cls = "vload"
                wr = R[0]
                rd = [r for x in R[1:] for r in x]
                if "d16" in mn:
                    rd += R[0]
        elif mn.startswith(("global_store", "buffer_store", "global_atomic", "buffer_atomic", "buffer_wbl2", "buffer_inv")):
            self.cls = "vstore"
            rd = allr
            if "x4" in mn or "x3" in mn:
                self.wide_store_data = R[0] if mn.startswith("buffer") else R[1]
        elif mn.startswith(("ds_read", "ds_bpermute", "ds_swizzle", "ds_permute")):
            self.cls = "dsread"
            wr = R[0]
            rd = [r for x in R[1:] for r in x]
        elif mn.startswith("ds_"):
            self.cls = "dswrite"
            rd = allr
        else:
            raise ValueError("unknown instruction: " + text)
        self.rd = rd
        self.wr = wr


class State:
    def __init__(self):
        self.vm = {}
        self.lg = {}
        self.sm = set()
        self.haz = {}
        self.nvm = 0

    def copy(self):
        s = State()
        s.vm = dict(self.vm)
        s.lg = dict(self.lg)
        s.sm = set(self.sm)
        s.haz = dict(self.haz)
        return s

    def merge(self, o):
        for k, v in o.vm.items():
            self.vm[k] = min(v, self.vm.get(k, 10 ** 9))
        for k, v in o.lg.items():
            self.lg[k] = min(v, self.lg.get(k, 10 ** 9))
        self.sm |= o.sm
        for k, v in o.haz.items():
            self.haz[k] = min(v, self.haz.get(k, 10 ** 9))

    def same(self, o):
        return self.vm == o.vm and self.lg == o.lg and self.sm == o.sm and self.haz == o.haz


MFMA_VALU = [5, 8, 12, 20]
MFMA_AB = [5, 8, 12, 20]
MFMA_C_OVL = [4, 6, 10, 18]
MFMA_C_SAME = [2, 0, 0, 0]
MFMA_WAR_C = [1, 3, 7, 15]
HORIZON = 24


class Prog:
    def __init__(self):
        self.items = []
        self.subst = {"KVSC": "", "WSC": "", "YSC": "", "PSC": "", "PLD": ""}
        self.stats = {}

    def e(self, text, tag=None, wtok=None):
        if wtok is not None:
            ins = Ins(text.strip())
            for k, v in self.subst.items():
                if k in ins.text:
                    ins = Ins(text.replace(k, v).strip())
            ins.tag = ("tok", wtok)
            self.items.append(ins)
            return
        for line in text.split("\n"):
            line = line.strip()
            if not line or line.startswith(";"):
                continue
            for k, v in self.subst.items():
                line = line.replace(k, v)
            self.items.append(Ins(line.strip(), tag))

    def wait_tok(self, *names):
        self.items.append(("wait_tok", names))

    def need(self, regs):
        self.items.append(("need", regs_of(regs)))

    def sprinkle(self, start, extra, first=2, every=None):
        seg = self.items[start:]
        pos = []
        depth = 0
        for i, it in enumerate(seg):
            if not isinstance(it, Ins):
                if it[0] in ("if_begin", "loop_begin"):
                    depth += 1
                elif it[0] in ("if_end", "loop_end"):
                    depth -= 1
            elif depth == 0 and it.cls not in ("ctl",):
                pos.append(i)
        pos = pos[first:]
        if every is None:
            every = max(1, len(pos) // (len(extra) + 1))
        slots = pos[::every][:len(extra)]
        assert len(slots) == len(extra), (len(slots), len(extra))
        out = []
        k = 0
        for i, it in enumerate(seg):
            out.append(it)
            if k < len(slots) and i == slots[k]:
                t = extra[k]
                for a, b in self.subst.items():
                    t = t.replace(a, b)
                out.append(Ins(t.strip()))
                k += 1
        self.items[start:] = out

    def raw(self, text):
        self.items.append(("raw", text))

    def label(self, name):
        self.items.append(("raw", name + ":"))

    def comment(self, c):
        self.items.append(("raw", "    ; " + c))

    def fence(self):
        self.items.append(("fence",))

    def join(self, name):
        self.items.append(("raw", name + ":"))
        self.items.append(("fence",))

    def drain(self):
        self.e("s_waitcnt vmcnt(0) lgkmcnt(0)")
        self.e("s_nop 15")
        self.e("s_nop 7")

    def if_begin(self):
        self.items.append(("if_begin",))

    def if_end(self):
        self.items.append(("if_end",))

    def loop_begin(self, name):
        self.items.append(("loop_begin", name))

    def loop_end(self):
        self.items.append(("loop_end",))

    def _step(self, ins, st, out):
        cls = ins.cls
        touched = ins.rd + ins.wr
        need_vm = None
        need_lg = None
        for r in touched:
            if r in st.vm:
                a = st.vm[r]
                need_vm = a if need_vm is None else min(need_vm, a)
            if r in st.lg:
                a = st.lg[r]
                need_lg = a if need_lg is None else min(need_lg, a)
            if r in st.sm:
                need_lg = 0
        if need_vm is not None or need_lg is not None:
            w = "s_waitcnt"
            if need_vm is not None:
                need_vm = min(need_vm, 63)
                w += f" vmcnt({need_vm})"
            if need_lg is not None:
                if st.sm:
                    need_lg = 0
                need_lg = min(need_lg, 15)
                w += f" lgkmcnt({need_lg})"
            self._apply(Ins(w), st, out, auto=True)
        need = 0

        def chk(kind, regs, table=None, const=None):
            nonlocal need
            for r in regs:
                for key, dist in list(st.haz.items()):
                    pass

        H = st.haz

        def req(kind, r, n):
            nonlocal need
            d = H.get((kind, r))
            if d is not None and d < n:
                need = max(need, n - d)

        isv = cls in ("valu", "trans")
        if cls == "mfma":
            for r in ins.rd:
                req("valuw", r, 2)
            pi = P2I[ins.passes]
            for r in ins.srcab:
                for p in (2, 4, 8, 16):
                    req(("mfmaw", p), r, MFMA_AB[P2I[p]])
            cset = tuple(ins.srcc)
            for r in ins.srcc:
                for p in (2, 4, 8, 16):
                    key = (("mfmaw", p), r)
                    if key in H:
                        same = H.get((("mfmad", p), r))
                        exact = (st_exact(st, r) == cset) and p == ins.passes
                        n = MFMA_C_SAME[P2I[p]] if exact else MFMA_C_OVL[P2I[p]]
                        req(("mfmaw", p), r, n)
            for r in ins.wr:
                if r not in ins.srcc:
                    for p in (2, 4, 8, 16):
                        req(("mfmaw", p), r, MFMA_C_OVL[P2I[p]])
            req("execw", ("exec", 0), 4)
        if isv:
            for r in ins.rd + ins.wr:
                for p in (2, 4, 8, 16):
                    req(("mfmaw", p), r, MFMA_VALU[P2I[p]])
            for r in ins.wr:
                for p in (2, 4, 8, 16):
                    req(("mfmac", p), r, MFMA_WAR_C[P2I[p]])
                req("widest", r, 2)
            if cls == "valu" or True:
                for r in ins.rd:
                    if cls == "valu":
                        req("transw", r, 1)
                    if r[0] in ("s", "vcc"):
                        req("valusw", r, 2)
            if ins.mn.startswith("v_permlane"):
                for r in ins.rd:
                    req("valuw", r, 2)
            if ins.mn.startswith(("v_readlane", "v_readfirstlane")):
                for r in ins.rd:
                    req("valuw", r, 1)
            if "_dpp" in ins.mn or "row_" in ins.text or "quad_perm" in ins.text:
                for r in ins.rd:
                    req("valuw", r, 2)
                req("execw", ("exec", 0), 5)
        if cls in ("vload", "vstore", "vdma", "dsread", "dswrite"):
            for r in ins.rd + ins.wr:
                for p in (2, 4, 8, 16):
                    req(("mfmaw", p), r, MFMA_VALU[P2I[p]])
                if r[0] == "s":
                    req("valusw", r, 5)
            if cls == "vdma":
                req("saluw", ("m0", 0), 1)
            for r in ins.wr:
                req("widest", r, 1)
        if cls == "salu" or cls == "ctl" or cls == "smem":
            for r in ins.rd:
                if r[0] in ("s", "vcc"):
                    req("valusw", r, 4 if cls != "ctl" else 1)
        if need > 0:
            while need > 0:
                k = min(need, 16)
                self._apply(Ins(f"s_nop {k - 1}"), st, out, auto=True)
                need -= k
        self._apply(ins, st, out)

    def _apply(self, ins, st, out, auto=False):
        cls = ins.cls
        n = 1
        if cls == "nop":
            n = int(ins.ops[0]) + 1
        H = st.haz
        for k in list(H.keys()):
            v = H[k] + n
            if v >= HORIZON:
                del H[k]
            else:
                H[k] = v
        if cls == "wait":
            t = ins.text
            m = re.search(r"vmcnt\((\d+)\)", t)
            if m:
                c = int(m.group(1))
                st.vm = {r: a for r, a in st.vm.items() if a < c}
            m = re.search(r"lgkmcnt\((\d+)\)", t)
            if m:
                c = int(m.group(1))
                st.lg = {r: a for r, a in st.lg.items() if a < c}
                if c == 0:
                    st.sm = set()
        if cls in ("vload", "vstore", "vdma"):
            for r in st.vm:
                st.vm[r] += 1
            if cls == "vload":
                for r in ins.wr:
                    st.vm[r] = 0
            if isinstance(ins.tag, tuple) and ins.tag[0] == "tok":
                st.vm[ins.tag] = 0
            if ins.wide_store_data:
                for r in ins.wide_store_data:
                    H[("widest", r)] = 0
        if cls in ("dsread", "dswrite"):
            for r in st.lg:
                st.lg[r] += 1
            if cls == "dsread":
                for r in ins.wr:
                    st.lg[r] = 0
            if isinstance(ins.tag, tuple) and ins.tag[0] == "tok":
                st.lg[ins.tag] = 0
            if cls == "dswrite" and ("b128" in ins.mn or "b96" in ins.mn):
                for r in ins.rd[1:]:
                    H[("widest", r)] = 0
        if cls == "smem":
            for r in ins.wr:
                st.sm.add(r)
        if cls in ("valu", "trans"):
            for r in ins.wr:
                if r[0] in ("v", "a"):
                    H[("valuw", r)] = 0
                    if cls == "trans":
                        H[("transw", r)] = 0
                    else:
                        H.pop(("transw", r), None)
                elif r[0] in ("s", "vcc"):
                    H[("valusw", r)] = 0
                elif r[0] == "exec":
                    H[("execw", r)] = 0
        if cls == "salu":
            for r in ins.wr:
                H[("saluw", r)] = 0
                H.pop(("valusw", r), None)
        if cls == "mfma":
            for r in ins.wr:
                for p in (2, 4, 8, 16):
                    H.pop((("mfmaw", p), r), None)
                H[(("mfmaw", ins.passes), r)] = 0
                st_set_exact(st, r, tuple(ins.wr))
            for r in ins.srcc:
                H[(("mfmac", ins.passes), r)] = 0
        out.append((ins, auto))

    def finalize(self):
        out_lines = []
        self.nauto_nop = 0
        st = State()
        st.exact = {}
        items = self.items
        i = 0

        def run(seq, st):
            out = []
            ifstack = []
            j = 0
            while j < len(seq):
                it = seq[j]
                if isinstance(it, Ins):
                    self._step(it, st, out)
                elif it[0] == "raw":
                    out.append((it[1], False))
                elif it[0] == "fence":
                    ex = getattr(st, "exact", {})
                    st.vm, st.lg, st.sm, st.haz = {}, {}, set(), {}
                elif it[0] == "wait_tok":
                    nv = [st.vm[("tok", n)] for n in it[1] if ("tok", n) in st.vm]
                    nl = [st.lg[("tok", n)] for n in it[1] if ("tok", n) in st.lg]
                    if nv or nl:
                        w = "s_waitcnt"
                        if nv:
                            w += f" vmcnt({min(min(nv), 63)})"
                        if nl:
                            w += f" lgkmcnt({0 if st.sm else min(min(nl), 15)})"
                        self._apply(Ins(w), st, out, auto=True)
                elif it[0] == "need":
                    nv = [st.vm[r] for r in it[1] if r in st.vm]
                    nl = [st.lg[r] for r in it[1] if r in st.lg]
                    if nv or nl:
                        w = "s_waitcnt"
                        if nv:
                            w += f" vmcnt({min(min(nv), 63)})"
                        if nl:
                            w += f" lgkmcnt({0 if st.sm else min(min(nl), 15)})"
                        self._apply(Ins(w), st, out, auto=True)
                elif it[0] == "if_begin":
                    c = st.copy()
                    c.exact = dict(st.exact)
                    ifstack.append(c)
                elif it[0] == "if_end":
                    c = ifstack.pop()
                    st.merge(c)
                    for r in list(st.exact.keys()):
                        if c.exact.get(r) != st.exact[r]:
                            st.exact[r] = None
                elif it[0] == "loop_begin":
                    depth = 1
                    k = j + 1
                    while depth:
                        if not isinstance(seq[k], Ins):
                            if seq[k][0] == "loop_begin":
                                depth += 1
                            elif seq[k][0] == "loop_end":
                                depth -= 1
                        k += 1
                    body = seq[j + 1:k - 1]
                    entry = st.copy()
                    entry.exact = dict(st.exact)
                    for _ in range(12):
                        s2 = entry.copy()
                        s2.exact = dict(entry.exact)
                        o = run(body, s2)
                        e2 = entry.copy()
                        e2.merge(s2)
                        e2.exact = dict(s2.exact)
                        if e2.same(entry):
                            break
                        entry = e2
                    else:
                        raise RuntimeError("loop analysis did not converge")
                    out.append((it[1] + ":", False))
                    out += o
                    st.vm, st.lg, st.sm, st.haz = s2.vm, s2.lg, s2.sm, s2.haz
                    st.exact = s2.exact
                    j = k - 1
                j += 1
            return out

        res = run(items, st)
        lines = []
        self.count = {}
        for x, auto in res:
            if isinstance(x, Ins):
                lines.append("    " + x.text + ("    ; auto" if auto else ""))
                self.count[x.cls] = self.count.get(x.cls, 0) + 1
                if auto and x.cls == "nop":
                    self.nauto_nop += 1
            else:
                lines.append(x)
        self.final = res
        return "\n".join(lines) + "\n"


def st_exact(st, r):
    return getattr(st, "exact", {}).get(r)


def st_set_exact(st, r, t):
    if not hasattr(st, "exact"):
        st.exact = {}
    st.exact[r] = t


def vr(a, n=1):
    return f"v{a}" if n == 1 else f"v[{a}:{a + n - 1}]"


def ar(a, n=1):
    return f"a{a}" if n == 1 else f"a[{a}:{a + n - 1}]"


def sr(a, n=1):
    return f"s{a}" if n == 1 else f"s[{a}:{a + n - 1}]"
```

```python
import os
from common import *
from parts import LDS_XB, LDS_XB_END

A_QF = 147200
A_QL = A_QF + 2048
A_OP = LDS_XB_END
A_OB = A_OP + 24576
A_OL = A_OB + 2048
A_FL = A_OL + 1024
A_END = A_QL + 1024 + 512

A_K0 = 0
A_KL = 64
A_VT = 80
A_O = 208

SB = [16, 48]
QC = 80
QLR = 88
XA = 96
WR = 132
NR = 9
XR = 168
QA = 180
QT = 184
OF = 188
OFL = 196
RT = 200
V_WQ, V_WO = 232, 233
V_OPW, V_R1, V_R2, V_OBW, V_OLW, V_QFW, V_QL = 234, 235, 236, 237, 238, 239, 240
V_QFR = 241
V_RC = 242
V_KA, V_KL, V_VA = 244, 245, 246
S_PH = 82
S_FAIL = 84
S_KV = S_P0
L_LO = 0x1f800000
L_RANGE = 0x5f800000 - L_LO
KV_AHEAD = 4


def cost(text):
    mn = text.split()[0]
    if mn.startswith("v_exp") or mn.startswith("v_rcp"):
        return 8
    if mn.startswith("v_mfma"):
        return 4 if "x4_2b" in mn else 8
    if mn.startswith("ds_write_b128"):
        return 18
    if mn.startswith("ds_") or mn.startswith("global_load"):
        return 9
    return 4


def pipe(text):
    mn = text.split()[0]
    if "32x32x16" in mn:
        return 32
    if "16x16x32" in mn:
        return 16
    if "x4_2b" in mn:
        return 64
    return 0


def addr_setup(p):
    t = S_T0
    p.e(f"s_mul_i32 s{t}, s{S_W}, 6144")
    p.e(f"s_add_u32 s{t}, s{t}, {A_OP}")
    p.e(f"v_add_u32 v{V_OPW}, s{t}, v{V_L16}")
    p.e(f"s_lshr_b32 s{t + 1}, s{S_W}, 1")
    p.e(f"s_and_b32 s{t + 2}, s{S_W}, 1")
    p.e(f"s_mul_i32 s{t + 3}, s{t + 1}, 3072")
    p.e(f"s_add_u32 s{t + 3}, s{t + 3}, {A_OP}")
    p.e(f"s_lshl_b32 s{t + 4}, s{t + 2}, 10")
    p.e(f"s_add_u32 s{t + 4}, s{t + 4}, s{t + 3}")
    p.e(f"v_add_u32 v{V_R1}, s{t + 4}, v{V_L16}")
    p.e(f"v_and_b32 v{V_T0}, 31, v{V_LANE}")
    p.e(f"v_lshlrev_b32 v{V_T0 + 1}, 4, v{V_T0}")
    p.e(f"s_add_u32 s{t + 3}, s{t + 3}, 2048")
    p.e(f"v_add_u32 v{V_R2}, s{t + 3}, v{V_T0 + 1}")
    p.e(f"s_lshl_b32 s{t + 3}, s{t + 1}, 10")
    p.e(f"s_lshl_b32 s{t + 4}, s{t + 2}, 3")
    p.e(f"s_add_u32 s{t + 3}, s{t + 3}, s{t + 4}")
    p.e(f"s_add_u32 s{t + 4}, s{t + 3}, {A_OB}")
    p.e(f"v_add_u32 v{V_OBW}, s{t + 4}, v{V_L16}")
    p.e(f"s_add_u32 s{t + 4}, s{t + 3}, {A_QF}")
    p.e(f"v_add_u32 v{V_QFW}, s{t + 4}, v{V_L16}")
    p.e(f"v_lshlrev_b32 v{V_OLW}, 4, v{V_N}")
    p.e(f"v_lshrrev_b32 v{V_T0}, 4, v{V_T0}")
    p.e(f"v_lshl_add_u32 v{V_OLW}, v{V_T0}, 2, v{V_OLW}")
    p.e(f"s_lshl_b32 s{t + 3}, s{t + 1}, 3")
    p.e(f"s_add_u32 s{t + 3}, s{t + 3}, {A_OL}")
    p.e(f"v_add_u32 v{V_OLW}, s{t + 3}, v{V_OLW}")
    p.e(f"v_add_u32 v{V_QFR}, {A_QF}, v{V_L16}")
    p.e(f"v_lshlrev_b32 v{V_QL}, 2, v{V_LANE}")
    p.e(f"v_add_u32 v{V_QL}, {A_QL}, v{V_QL}")
    p.e(f"s_lshl_b32 s{t}, s{S_W}, 14")
    p.e(f"s_add_u32 s{t}, s{t}, 4096")
    p.e(f"v_add_u32 v{V_KA}, s{t}, v{V_L16}")
    p.e(f"s_lshl_b32 s{t}, s{S_W}, 12")
    p.e(f"s_add_u32 s{t}, s{t}, {hx(L.KV_KL)}")
    p.e(f"v_lshlrev_b32 v{V_KL}, 3, v{V_LANE}")
    p.e(f"v_add_u32 v{V_KL}, s{t}, v{V_KL}")
    p.e(f"v_and_b32 v{V_T0}, 31, v{V_LANE}")
    p.e(f"v_min_u32 v{V_T0}, 19, v{V_T0}")
    p.e(f"v_and_b32 v{V_T0 + 1}, 32, v{V_LANE}")
    p.e(f"v_add_lshl_u32 v{V_VA}, v{V_T0}, v{V_T0 + 1}, 4")
    p.e(f"s_lshl_b32 s{t}, s{S_W}, 15")
    p.e(f"s_add_u32 s{t}, s{t}, {hx(L.KV_VF + 4096)}")
    p.e(f"v_add_u32 v{V_VA}, s{t}, v{V_VA}")


def weight_ptr_setup(p):
    t = S_T0
    p.e(f"s_mul_i32 s{t}, s{S_HH}, {L.WQF_HH}")
    p.e(f"s_mul_i32 s{t + 1}, s{S_W}, 18432")
    p.e(f"s_add_u32 s{t}, s{t}, s{t + 1}")
    p.e(f"s_add_u32 s{t}, s{t}, {hx(L.WQF + 4096)}")
    p.e(f"v_add_u32 v{V_WQ}, s{t}, v{V_L16}")
    p.e(f"s_mul_i32 s{t}, s{S_HH}, {L.WOF_HH}")
    p.e(f"s_mul_i32 s{t + 1}, s{S_W}, 9216")
    p.e(f"s_add_u32 s{t}, s{t}, s{t + 1}")
    p.e(f"s_add_u32 s{t}, s{t}, {hx(L.WOF + 4096)}")
    p.e(f"v_add_u32 v{V_WO}, s{t}, v{V_L16}")


def kv_tile_loads(tau):
    out = []
    if tau == 8:
        out.append(f"v_add_u32 v{V_KA}, 8192, v{V_KA}")
    out.append(f"global_load_dwordx4 {ar(A_K0 + 4 * tau, 4)}, v{V_KA}, {sr(S_KV, 2)} offset:{(tau % 8) * 1024 - 4096} PLD")
    if tau % 2 == 0:
        out.append(f"global_load_dwordx2 {ar(A_KL + tau, 2)}, v{V_KL}, {sr(S_KV, 2)} offset:{256 * tau} PLD")
    if tau and tau % 4 == 0:
        out.append(f"v_add_u32 v{V_VA}, 8192, v{V_VA}")
    for t in range(2):
        out.append(f"global_load_dwordx4 {ar(A_VT + 8 * tau + 4 * t, 4)}, v{V_VA}, {sr(S_KV, 2)} offset:{(tau % 4) * 2048 + 1024 * t - 4096} PLD")
    return out


def qk_mfmas(kt, Y):
    k0 = ar(A_K0 + 4 * kt, 4)
    kl = ar(A_KL + 2 * (kt // 2), 2)
    m2 = f"v_mfma_f32_32x32x16_bf16 {vr(Y, 16)}, {k0}, {vr(QC, 4)}, 0"
    m3 = f"v_mfma_f32_32x32x16_bf16 {vr(Y + 16, 16)}, {k0}, {vr(QC + 4, 4)}, 0"
    m1 = f"v_mfma_f32_32x32x4_2b_bf16 {vr(Y, 32)}, {kl}, {vr(QLR, 2)}, {vr(Y, 32)} cbsz:1 abid:{kt % 2}"
    return m2, m3, m1


def pv_mfma(kt, X, T, t):
    c = "0" if (kt == 0 and t == 0) else ar(A_O + 16 * T, 16)
    return f"v_mfma_f32_32x32x16_bf16 {ar(A_O + 16 * T, 16)}, {ar(A_VT + 8 * kt + 4 * t, 4)}, {vr(X + 16 * T + 8 * t, 4)}, {c}"


def q_wload(ks, r, agpr=False):
    out = []
    if ks in (8, 16):
        out.append(f"v_add_u32 v{V_WQ}, 8192, v{V_WQ}")
    dst = ar(r, 4) if agpr else vr(r, 4)
    out.append(f"global_load_dwordx4 {dst}, v{V_WQ}, s[{S_WS}:{S_WS + 1}] offset:{(ks % 8) * 1024 - 4096} PLD")
    if ks == 17:
        out.append(f"v_add_u32 v{V_WQ}, {4 * 18432 - 16384}, v{V_WQ}")
    return out


class OStream:
    def __init__(self):
        self.base = 0

    def load(self, j, r):
        T, t = j // 9, j % 9
        off = (T * 36 + t) * 1024
        o = []
        if not (0 <= off - self.base <= 7168):
            o.append(f"v_add_u32 v{V_WO}, {off - self.base}, v{V_WO}")
            self.base = off
        o.append(f"global_load_dwordx4 {vr(r, 4)}, v{V_WO}, s[{S_WS}:{S_WS + 1}] offset:{off - self.base - 4096} PLD")
        if j == 17:
            o.append(f"v_add_u32 v{V_WO}, {72 * 1024 - self.base}, v{V_WO}")
            self.base = 0
        return o


def reduce_ops():
    L2 = RT + 16
    red = []
    red.append(f"v_pk_add_f32 {vr(L2, 2)}, {vr(L2, 2)}, {vr(L2 + 4, 2)}")
    red.append(f"v_pk_add_f32 {vr(L2 + 8, 2)}, {vr(L2 + 8, 2)}, {vr(L2 + 12, 2)}")
    red.append(f"v_add_f32 v{L2 + 2}, v{L2 + 2}, v{L2 + 6}")
    red.append(f"v_add_f32 v{L2 + 10}, v{L2 + 10}, v{L2 + 14}")
    red.append(f"v_pk_add_f32 {vr(L2, 2)}, {vr(L2, 2)}, {vr(L2 + 8, 2)}")
    red.append(f"v_add_f32 v{L2 + 2}, v{L2 + 2}, v{L2 + 10}")
    red.append(f"v_rcp_f32 v{V_RC}, v{L2 + 2}")
    red.append(f"v_subrev_u32 v{V_RC + 1}, {hx(L_LO)}, v{L2 + 2}")
    red.append(f"v_cmp_le_u32 vcc, {hx(L_RANGE)}, v{V_RC + 1}")
    for h in range(2):
        red.append(f"v_pk_add_f32 {vr(RT + 2 * h, 2)}, {vr(RT + 2 * h, 2)}, {vr(RT + 4 + 2 * h, 2)}")
        red.append(f"v_pk_add_f32 {vr(RT + 8 + 2 * h, 2)}, {vr(RT + 8 + 2 * h, 2)}, {vr(RT + 12 + 2 * h, 2)}")
    red.append(f"s_or_b64 s[{S_FAIL}:{S_FAIL + 1}], s[{S_FAIL}:{S_FAIL + 1}], vcc")
    for h in range(2):
        red.append(f"v_pk_add_f32 {vr(RT + 2 * h, 2)}, {vr(RT + 2 * h, 2)}, {vr(RT + 8 + 2 * h, 2)}")
    red.append(f"v_pk_mul_f32 {vr(L2, 2)}, {vr(L2, 2)}, {vr(V_RC, 2)} op_sel_hi:[1,0]")
    for h in range(2):
        red.append(f"v_pk_mul_f32 {vr(RT + 2 * h, 2)}, {vr(RT + 2 * h, 2)}, {vr(V_RC, 2)} op_sel_hi:[1,0]")
    red.append(f"v_cvt_pk_bf16_f32 v{L2 + 4}, v{L2}, v{L2 + 1}")
    red.append(f"v_cvt_pk_bf16_f32 v{RT + 4}, v{RT}, v{RT + 1}")
    red.append(f"v_cvt_pk_bf16_f32 v{RT + 5}, v{RT + 2}, v{RT + 3}")
    return red


def phase_body(p, kind):
    first = kind == "first"
    last = kind == "last"
    X_ = os.environ.get("EXP", "")
    main = []
    for kt in range(16):
        X = SB[kt % 2]
        idx = 0
        for blk in range(4):
            b = X + 8 * blk
            for i in range(8):
                main.append((kt, idx, f"v_exp_f32 v{b + i}, v{b + i}"))
                idx += 1
            for i in range(4):
                main.append((kt, idx, f"v_cvt_pk_bf16_f32 v{b + i}, v{b + 2 * i}, v{b + 2 * i + 1}"))
                idx += 1
    mm = []
    for kt in range(16):
        X = SB[kt % 2]
        Y = SB[(kt + 1) % 2]
        nk = (kt + 1) % 16
        m2, m3, m1 = qk_mfmas(nk, Y)
        pk = (kt - 1) % 16
        has_prev = not (first and kt == 0)
        if has_prev:
            mm.append(dict(n=f"pv11_{pk}", t=pv_mfma(pk, Y, 1, 1), kt=kt, pos=1, req=[], pr=3))
        req2 = ["qread"] if kt == 15 else []
        if first and kt + 1 < 16:
            req2 = req2 + [f"kvn_{kt}"]
        if not (last and kt == 15):
            mm.append(dict(n=f"m2_{kt}", t=m2, kt=kt, pos=-1, req=req2, pr=0))
            mm.append(dict(n=f"m3_{kt}", t=m3, kt=kt, pos=-1, req=([f"pv11_{pk}"] if has_prev else []) + [f"m2_{kt}"], pr=1))
            mm.append(dict(n=f"m1_{kt}", t=m1, kt=kt, pos=-1, req=[], reqi=[(f"m3_{kt}", 10)], pr=2))
        mm.append(dict(n=f"pv00_{kt}", t=pv_mfma(kt, X, 0, 0), kt=kt, pos=13, req=(["wT0"] if (kt == 0 and not first) else []), pr=4))
        mm.append(dict(n=f"pv01_{kt}", t=pv_mfma(kt, X, 0, 1), kt=kt, pos=25, req=[f"pv00_{kt}"], pr=5))
        mm.append(dict(n=f"pv10_{kt}", t=pv_mfma(kt, X, 1, 0), kt=kt, pos=37, req=(["wT1"] if (kt == 0 and not first) else []), pr=6))
    side = []

    def S(t, **kw):
        side.append(dict(t=t, **kw))

    TILE = 445 if not first else 425
    ost = OStream()

    def ringload(i):
        r = WR + 4 * (i % NR)
        n = i + NR
        if first:
            return q_wload(n if n < 18 else n - 18, r)
        if last:
            if n < 18:
                return ost.load(n, r)
            return ost.load(n - 18, r)
        if n < 18:
            return q_wload(n, r)
        if n < 36:
            return ost.load(n - 18, r)
        return q_wload(n - 36, r)

    def ring(i):
        return vr(WR + 4 * (i % NR), 4)

    if last:
        TILE = 415
        for g in range(3):
            S(f"ds_write_b128 v{V_OPW}, {ar(A_O + 4 * g, 4)} offset:{g * 1024}", wtok="OP", ev=("wT0" if g == 2 else None))
        for g in range(3):
            S(f"ds_write_b128 v{V_OPW}, {ar(A_O + 16 + 4 * g, 4)} offset:{3072 + g * 1024}", wtok="OP",
              reqi=[("pv11_15", 13)] if g == 0 else [], ev=("wT1e" if g == 2 else None))
        side[-1]["ev"] = "wT1"
        for j in range(9):
            for t in ost.load(j, WR + 4 * j):
                S(t)
        S("WAIT OP", nb=TILE * 1.6)
        S("s_barrier", ev="B1")
        for w in range(4):
            S(f"ds_read_b128 {vr(RT + 16 + 4 * w, 4)}, v{V_R2} offset:{w * 6144}")
        for w in range(4):
            S(f"ds_read_b128 {vr(RT + 4 * w, 4)}, v{V_R1} offset:{w * 6144}", ev=("rread" if w == 3 else None))
        S("NEED " + vr(RT, 32), reqc=[("rread", 260)])
        for t in reduce_ops():
            S(t)
        S(f"ds_write_b32 v{V_OLW}, v{RT + 20}", wtok="OB")
        S(f"ds_write_b64 v{V_OBW}, {vr(RT + 4, 2)}", wtok="OB", ev="obw")
        S(f"v_add_u32 v{V_OLW}, 256, v{V_OLW}")
        S("WAIT OB", reqc=[("obw", 160)])
        S("s_barrier", ev="B2")
        for T in range(2):
            S(f"ds_read_b128 {vr(OF + 4 * T, 4)}, v{V_L16} offset:{A_OB + 1024 * T}", ev=("ofr" if T == 1 else None))
        o_t0 = TILE * 5
        o_dt = (16 * TILE - 400 - o_t0) / 18
        for j in range(18):
            T, t = j // 9, j % 9
            if j % 3 == 0:
                S("NEED " + ", ".join([ring(j + k) for k in range(3)] + ([vr(OF, 8)] if j == 0 else [])),
                  nb=o_t0 + o_dt * j - 8, reqc=[("ofr", 150)] if j == 0 else [])
            S(f"v_mfma_f32_16x16x32_bf16 {vr(XA + 4 * t, 4)}, {ring(j)}, {vr(OF + 4 * T, 4)}, {vr(XA + 4 * t, 4)}", nb=o_t0 + o_dt * j)
            for tt in ringload(j):
                S(tt)
    else:
        if not first:
            for g in range(3):
                S(f"ds_write_b128 v{V_OPW}, {ar(A_O + 4 * g, 4)} offset:{g * 1024}", wtok="OP", ev=("wT0" if g == 2 else None))
        for k in range(3):
            S(f"ds_read_b128 {vr(XR + 4 * k, 4)}, v{V_L16} offset:{LDS_XB + 1024 * k}")
        if not first:
            for g in range(3):
                S(f"ds_write_b128 v{V_OPW}, {ar(A_O + 16 + 4 * g, 4)} offset:{3072 + g * 1024}", wtok="OP",
                  reqi=[("pv11_15", 13)] if g == 0 else [], ev=("wT1" if g == 2 else None))

        def qstep(i, nb):
            if i % 3 == 0:
                S("NEED " + ", ".join([ring(i + k) for k in range(3)] + [vr(XR + 4 * k, 4) for k in range(3)]), nb=nb - 8)
            c = "0" if i == 0 else vr(QA, 4)
            S(f"v_mfma_f32_16x16x32_bf16 {vr(QA, 4)}, {ring(i)}, {vr(XR + 4 * (i % 3), 4)}, {c}", nb=nb, ev=f"q{i}")
            for t in ringload(i):
                S(t)
            if i + 3 < 18:
                S(f"ds_read_b128 {vr(XR + 4 * (i % 3), 4)}, v{V_L16} offset:{LDS_XB + 1024 * (i + 3)}")

        q_t0 = TILE * 1.1
        q_dt = 175
        if first:
            q_t0 = TILE * 1.5
            q_dt = 270
            for i in range(36):
                S(f"v_mov_b32 v{XA + i}, 0", nb=i * 120)
            side_x = side[-36:]
            del side[-36:]
            for i in range(18):
                qstep(i, q_t0 + q_dt * i)
                side.extend(side_x[2 * i:2 * i + 2])
            for d in side:
                if d["t"].startswith("v_mov_b32 v") and "nb" in d:
                    d["nb"] = None
        else:
            for i in range(0, 3):
                qstep(i, q_t0 + q_dt * i)
            S("WAIT OP")
            S("s_barrier", ev="B1")
            for w in range(4):
                S(f"ds_read_b128 {vr(RT + 16 + 4 * w, 4)}, v{V_R2} offset:{w * 6144}")
            for w in range(4):
                S(f"ds_read_b128 {vr(RT + 4 * w, 4)}, v{V_R1} offset:{w * 6144}", ev=("rread" if w == 3 else None))
            for i in range(3, 6):
                qstep(i, q_t0 + q_dt * i)
            S("NEED " + vr(RT, 32), reqc=[("rread", 260)])
            for t in reduce_ops():
                S(t)
            S(f"ds_write_b32 v{V_OLW}, v{RT + 20}", wtok="OB")
            S(f"ds_write_b64 v{V_OBW}, {vr(RT + 4, 2)}", wtok="OB")
            S(f"v_add_u32 v{V_OLW}, 256, v{V_OLW}")
            for i in range(6, 18):
                qstep(i, q_t0 + q_dt * i)
        S(f"v_cvt_pk_bf16_f32 v{QT}, v{QA}, v{QA + 1}", reqi=[("q17", 9)])
        S(f"v_cvt_pk_bf16_f32 v{QT + 1}, v{QA + 2}, v{QA + 3}")
        S(f"ds_write_b64 v{V_QFW}, {vr(QT, 2)}", wtok="OB", ev="qfw")
        S("WAIT OB", reqc=[("qfw", 140)])
        S("s_barrier", ev="B2")
        if not first:
            for T in range(2):
                S(f"ds_read_b128 {vr(OF + 4 * T, 4)}, v{V_L16} offset:{A_OB + 1024 * T}", ev=("ofr" if T == 1 else None))
            o_t0 = q_t0 + q_dt * 18 + 380
            o_dt = (16 * TILE - 300 - o_t0) / 18
            for j in range(18):
                i = 18 + j
                T, t = j // 9, j % 9
                if j % 3 == 0:
                    S("NEED " + ", ".join([ring(i + k) for k in range(3)] + ([vr(OF, 8)] if j == 0 else [])),
                      nb=o_t0 + o_dt * j - 8, reqc=[("ofr", 150)] if j == 0 else [])
                S(f"v_mfma_f32_16x16x32_bf16 {vr(XA + 4 * t, 4)}, {ring(i)}, {vr(OF + 4 * T, 4)}, {vr(XA + 4 * t, 4)}", nb=o_t0 + o_dt * j)
                for tt in ringload(i):
                    S(tt)
    kvs = []
    if first:
        for kt in range(16):
            tau = kt + KV_AHEAD
            if kt + 1 < 16:
                need = [ar(A_K0 + 4 * (kt + 1), 4), ar(A_KL + 2 * ((kt + 1) // 2), 2), ar(A_VT + 8 * kt, 8)]
                kvs.append(dict(t="NEED " + ", ".join(need), kt=kt, ev=f"kvn_{kt}"))
            else:
                kvs.append(dict(t="NEED " + ar(A_VT + 8 * kt, 8), kt=kt))
            if tau < 16:
                for t in kv_tile_loads(tau):
                    kvs.append(dict(t=t, kt=kt))
    qread = [] if last else [f"ds_read_b128 {vr(QC, 4)}, v{V_QFR}",
             f"ds_read_b128 {vr(QC + 4, 4)}, v{V_QFR} offset:1024",
             f"v_add_u32 v{V_QL}, 256, v{V_QL}",
             f"ds_read_b32 v{QLR}, v{V_QL}"]
    if X_:
        raise RuntimeError("experiments not supported in this version")

    now = 0
    pipe_free = 0
    nins = 0
    ev_i, ev_t = {}, {}
    mi = si = qi = ki = 0
    done = set()
    out = []

    def emit(t, wtok=None, ev=None):
        nonlocal now, pipe_free, nins
        if t.startswith("WAIT"):
            out.append(("wait", t.split()[1]))
            now += 4
            nins += 1
        elif t.startswith("NEED"):
            out.append(("need", t[5:]))
            now += 4
            nins += 1
        else:
            pd = pipe(t)
            if pd:
                if pipe_free > now:
                    now = pipe_free
                pipe_free = now + pd
            now += cost(t)
            nins += 1
            out.append(("e", t, wtok))
        if ev:
            ev_i[ev] = nins
            ev_t[ev] = now
            done.add(ev)

    def ready(d):
        for r in d.get("req", []):
            if r not in done:
                return False
        for r, n in d.get("reqi", []) or []:
            if r not in done or nins - ev_i[r] < n:
                return False
        for r, c in d.get("reqc", []) or []:
            if r not in done or now - ev_t[r] < c:
                return False
        if d.get("nb") is not None and now < d["nb"]:
            return False
        return True

    pend = list(mm)
    side_since = 0
    while mi < len(main) or pend or si < len(side) or qi < len(qread) or ki < len(kvs):
        kt = main[mi][0] if mi < len(main) else 16
        pos = main[mi][1] - 1 if mi < len(main) else 99
        if ki < len(kvs) and kvs[ki]["kt"] <= kt and side_since < 2:
            d = kvs[ki]
            emit(d["t"], ev=d.get("ev"))
            ki += 1
            side_since += 1 if not d["t"].startswith("NEED") else 0
            continue
        cand = [d for d in pend if (d["kt"] < kt or (d["kt"] == kt and pos >= d["pos"])) and ready(d)]
        cand.sort(key=lambda d: (d["kt"], d["pr"]))
        if cand and (pipe_free <= now or mi >= len(main)):
            d = cand[0]
            emit(d["t"], ev=d["n"])
            pend.remove(d)
            continue
        if qi < len(qread) and "m1_14" in done and "B2" in done:
            emit(qread[qi], ev=("qread" if qi == len(qread) - 1 else None))
            qi += 1
            continue
        if si < len(side) and side_since < 2:
            d = side[si]
            ok = ready(d)
            if ok and pipe(d["t"]):
                if pipe_free > now or cand:
                    ok = False
            if ok or mi >= len(main):
                emit(d["t"], d.get("wtok"), d.get("ev"))
                si += 1
                side_since += 1
                continue
        if mi < len(main):
            emit(main[mi][2])
            mi += 1
            side_since = 0
            continue
        if pend:
            d = sorted(pend, key=lambda d: (d["kt"], d["pr"]))[0]
            emit(d["t"], ev=d["n"])
            pend.remove(d)
            continue
        raise RuntimeError("scheduler stuck")
    for o in out:
        if o[0] == "wait":
            p.wait_tok(o[1])
        elif o[0] == "need":
            p.need(o[1])
        else:
            p.e(o[1], wtok=o[2])
    return now


QW = 148


def q_main_loads(p, W=QW):
    for ks in range(18):
        for t in q_wload(ks, W + 4 * ks):
            p.e(t)


def _proj_chain(p, W, agpr=False):
    R_ = ar if agpr else vr
    wreg = W if callable(W) else (lambda ks: W + 4 * ks)
    for ks in range(18):
        if ks == 0:
            for k in range(2):
                p.e(f"ds_read_b128 {vr(XR2 + 4 * (k % 3), 4)}, v{V_L16} offset:{LDS_XB + 1024 * k}")
        if ks + 2 < 18:
            p.e(f"ds_read_b128 {vr(XR2 + 4 * ((ks + 2) % 3), 4)}, v{V_L16} offset:{LDS_XB + 1024 * (ks + 2)}")
        c = "0" if ks == 0 else vr(QA2, 4)
        p.e(f"v_mfma_f32_16x16x32_bf16 {vr(QA2, 4)}, {R_(wreg(ks), 4)}, {vr(XR2 + 4 * (ks % 3), 4)}, {c}")


XR2, QA2, QT2 = 220, 88, 92


def q_left(p, name, both_on=None, W2=16):
    a = V_T0
    t = S_T0

    def one(qexpr_const, tag):
        p.e(f"s_mul_i32 s{t}, s{S_HH}, {L.WQF_HH}")
        if qexpr_const is None:
            p.e(f"s_sub_u32 s{t + 1}, s{S_W}, 2")
        else:
            p.e(f"s_mov_b32 s{t + 1}, {qexpr_const}")
        p.e(f"s_mul_i32 s{t + 2}, s{t + 1}, 18432")
        p.e(f"s_add_u32 s{t}, s{t}, s{t + 2}")
        p.e(f"s_add_u32 s{t}, s{t}, {hx(L.WQF + 16 * 18432 + 4096)}")
        p.e(f"v_add_u32 v{a}, s{t}, v{V_L16}")
        for ks in range(18):
            if ks in (8, 16):
                p.e(f"v_add_u32 v{a}, 8192, v{a}")
            p.e(f"global_load_dwordx4 {vr(W2 + 4 * ks, 4)}, v{a}, s[{S_WS}:{S_WS + 1}] offset:{(ks % 8) * 1024 - 4096} PLD")
        _proj_chain(p, W2)
        p.e(f"v_cvt_pk_bf16_f32 v{QT2}, v{QA2}, v{QA2 + 1}")
        p.e(f"v_cvt_pk_bf16_f32 v{QT2 + 1}, v{QA2 + 2}, v{QA2 + 3}")
        p.e(f"s_lshl_b32 s{t + 1}, s{t + 1}, 9")
        p.e(f"s_add_u32 s{t + 1}, s{t + 1}, {A_QL}")
        p.e(f"v_lshlrev_b32 v{a}, 2, v{V_LANE}")
        p.e(f"v_add_u32 v{a}, s{t + 1}, v{a}")
        p.e(f"ds_write_b32 v{a}, v{QT2}")
        p.e(f"ds_write_b32 v{a}, v{QT2 + 1} offset:256")

    if both_on is not None:
        p.e(f"s_cmp_lg_u32 s{S_W}, {both_on}")
        p.e(f"s_cbranch_scc1 {name}_nol")
        p.if_begin()
        one(0, "a")
        one(1, "b")
    else:
        p.e(f"s_cmp_lt_u32 s{S_W}, 2")
        p.e(f"s_cbranch_scc1 {name}_nol")
        p.if_begin()
        one(None, "a")
    p.label(f"{name}_nol")
    p.if_end()


QWA = 112


def qwl(ks):
    return 16 + 4 * ks if ks < 12 else 184 + 4 * (ks - 12)


V_QLA = 249


def q_pref_list(left):
    out = []
    for ks in range(18):
        out += q_wload(ks, QWA + 4 * ks, agpr=True)
    if left:
        for ks in range(18):
            if ks in (8, 16):
                out.append(f"v_add_u32 v{V_QLA}, 8192, v{V_QLA}")
            out.append(f"global_load_dwordx4 {ar(qwl(ks), 4)}, v{V_QLA}, s[{S_WS}:{S_WS + 1}] offset:{(ks % 8) * 1024 - 4096} PLD")
    return out


def q_left_addr(p):
    t = S_T0
    p.e(f"s_mul_i32 s{t}, s{S_HH}, {L.WQF_HH}")
    p.e(f"s_and_b32 s{t + 1}, s{S_W}, 1")
    p.e(f"s_mul_i32 s{t + 2}, s{t + 1}, 18432")
    p.e(f"s_add_u32 s{t}, s{t}, s{t + 2}")
    p.e(f"s_add_u32 s{t}, s{t}, {hx(L.WQF + 16 * 18432 + 4096)}")
    p.e(f"v_add_u32 v{V_QLA}, s{t}, v{V_L16}")


def q_left_compute(p, name):
    a = V_T0
    t = S_T0
    _proj_chain(p, qwl, agpr=True)
    p.e(f"v_cvt_pk_bf16_f32 v{QT2}, v{QA2}, v{QA2 + 1}")
    p.e(f"v_cvt_pk_bf16_f32 v{QT2 + 1}, v{QA2 + 2}, v{QA2 + 3}")
    p.e(f"s_sub_u32 s{t + 1}, s{S_W}, 2")
    p.e(f"s_lshl_b32 s{t + 1}, s{t + 1}, 9")
    p.e(f"s_add_u32 s{t + 1}, s{t + 1}, {A_QL}")
    p.e(f"v_lshlrev_b32 v{a}, 2, v{V_LANE}")
    p.e(f"v_add_u32 v{a}, s{t + 1}, v{a}")
    p.e(f"ds_write_b32 v{a}, v{QT2}")
    p.e(f"ds_write_b32 v{a}, v{QT2 + 1} offset:256")


def q_main_compute(p, W=QW, agpr=False):
    _proj_chain(p, W, agpr)
    p.e(f"v_cvt_pk_bf16_f32 v{QT2}, v{QA2}, v{QA2 + 1}")
    p.e(f"v_cvt_pk_bf16_f32 v{QT2 + 1}, v{QA2 + 2}, v{QA2 + 3}")
    p.e(f"ds_write_b64 v{V_QFW}, {vr(QT2, 2)}")
    for i in range(NR):
        for t in q_wload(i, WR + 4 * i):
            p.e(t)
    p.e("s_waitcnt lgkmcnt(0)")
    p.e("s_barrier")
    p.e(f"ds_read_b128 {vr(QC, 4)}, v{V_QFR}")
    p.e(f"ds_read_b128 {vr(QC + 4, 4)}, v{V_QFR} offset:1024")
    p.e(f"ds_read_b32 v{QLR}, v{V_QL}")
    p.e(f"v_mov_b32 v{QLR + 1}, 0")


def kv_first_loads(p):
    for tau in range(KV_AHEAD):
        for t in kv_tile_loads(tau):
            p.e(t)


def attention_layer(p, name, stamp=lambda *a, **k: None, tail_hook=None, after_first=None):
    p.e(f"s_mov_b64 s[{S_FAIL}:{S_FAIL + 1}], 0")
    m2, m3, m1 = qk_mfmas(0, SB[0])
    p.e(m2)
    p.e(m3)
    p.e(m1)
    p.e("s_nop 15")
    p.e("s_nop 4")
    stamp(p, 20)
    e0 = phase_body(p, "first")
    if after_first is not None:
        after_first()
    stamp(p, 21)
    p.e(f"s_mov_b32 s{S_PH}, 1")
    p.loop_begin(name + "_ph")
    e1 = phase_body(p, "mid")
    stamp(p, 21, S_PH)
    p.e(f"s_add_u32 s{S_PH}, s{S_PH}, 1")
    p.e(f"s_cmp_lt_u32 s{S_PH}, 3")
    p.e(f"s_cbranch_scc1 {name}_ph")
    p.loop_end()
    e2 = phase_body(p, "last")
    stamp(p, 24)
    if tail_hook is not None:
        tail_hook()
    p.e(pv_mfma(15, SB[1], 1, 1))
    W = 16
    base8 = 8 * 1024

    def wl(j):
        if j < 18:
            T, t = j // 9, j % 9
            off, reg = (T * 36 + t) * 1024, W + 4 * (j - 9)
        else:
            off, reg = (72 + j - 18) * 1024, W + 36 + 4 * (j - 18)
        p.e(f"v_add_u32 v{V_T0}, {off - base8}, v{V_WO}")
        p.e(f"global_load_dwordx4 {vr(reg, 4)}, v{V_T0}, s[{S_WS}:{S_WS + 1}] offset:-4096 PLD")

    for g in range(3):
        p.e(f"ds_write_b128 v{V_OPW}, {ar(A_O + 4 * g, 4)} offset:{g * 1024}")
    for j in range(9, 13):
        wl(j)
    for g in range(3):
        p.e(f"ds_write_b128 v{V_OPW}, {ar(A_O + 16 + 4 * g, 4)} offset:{3072 + g * 1024}")
    for j in range(13, 18):
        wl(j)
    p.e("s_waitcnt lgkmcnt(0)")
    p.e("s_barrier")
    for w in range(4):
        p.e(f"ds_read_b128 {vr(RT + 16 + 4 * w, 4)}, v{V_R2} offset:{w * 6144}")
    for w in range(4):
        p.e(f"ds_read_b128 {vr(RT + 4 * w, 4)}, v{V_R1} offset:{w * 6144}")
    for j in range(18, 27):
        wl(j)
    for t in reduce_ops():
        p.e(t)
    p.e(f"ds_write_b32 v{V_OLW}, v{RT + 20}")
    p.e(f"ds_write_b64 v{V_OBW}, {vr(RT + 4, 2)}")
    fail_publish(p)
    p.e("s_waitcnt lgkmcnt(0)")
    p.e("s_barrier")
    for T in range(2):
        p.e(f"ds_read_b128 {vr(OF + 4 * T, 4)}, v{V_L16} offset:{A_OB + 1024 * T}")
    p.e(f"ds_read_b128 {vr(OFL, 4)}, v{V_L16} offset:{A_OL}")
    fail_read(p)
    p.need(vr(WR, 36))
    for j in range(9):
        p.e(f"v_mfma_f32_16x16x32_bf16 {vr(XA + 4 * j, 4)}, {vr(WR + 4 * j, 4)}, {vr(OF, 4)}, {vr(XA + 4 * j, 4)}")
    p.need(vr(W, 36))
    for j in range(9, 18):
        p.e(f"v_mfma_f32_16x16x32_bf16 {vr(XA + 4 * (j - 9), 4)}, {vr(W + 4 * (j - 9), 4)}, {vr(OF + 4, 4)}, {vr(XA + 4 * (j - 9), 4)}")
    p.need(vr(W + 36, 36))
    for t in range(9):
        p.e(f"v_mfma_f32_16x16x32_bf16 {vr(XA + 4 * t, 4)}, {vr(W + 36 + 4 * t, 4)}, {vr(OFL, 4)}, {vr(XA + 4 * t, 4)}")
    fail_branch(p, name + "_slow")
    p.label(name + "_slow_back")
    return e0, e1


def fail_publish(p):
    p.e(f"s_cmp_lg_u64 s[{S_FAIL}:{S_FAIL + 1}], 0")
    p.e(f"s_cselect_b32 s{S_T0}, 1, 0")
    p.e(f"s_lshl_b32 s{S_T0 + 1}, s{S_W}, 2")
    p.e(f"s_add_u32 s{S_T0 + 1}, s{S_T0 + 1}, {A_FL}")
    p.e(f"v_mov_b32 v{V_T0 + 1}, s{S_T0}")
    p.e(f"v_mov_b32 v{V_T0 + 2}, s{S_T0 + 1}")
    p.e(f"ds_write_b32 v{V_T0 + 2}, v{V_T0 + 1}")


def fail_read(p):
    p.e(f"v_mov_b32 v{V_T0 + 2}, {A_FL}")
    p.e(f"ds_read_b128 {vr(RT, 4)}, v{V_T0 + 2}")


def fail_branch(p, slow):
    p.e(f"v_or3_b32 v{RT}, v{RT}, v{RT + 1}, v{RT + 2}")
    p.e(f"v_or_b32 v{RT}, v{RT}, v{RT + 3}")
    p.e(f"v_readfirstlane_b32 s{S_T0}, v{RT}")
    p.e(f"s_cmp_lg_u32 s{S_T0}, 0")
    p.e(f"s_cbranch_scc1 {slow}")


def slow_path(p, name, back):
    vK, vL, vV, mx0, mx1, tm = 8, 9, 10, 11, 12, 13
    KT, LT, VT0 = 148, 152, 156
    S0 = SB[0]
    p.e("s_waitcnt vmcnt(0) lgkmcnt(0)")
    p.e("s_barrier")
    addr_setup(p)
    weight_ptr_setup(p)
    for i in range(36):
        p.e(f"v_mov_b32 v{XA + i}, 0")
    p.e(f"s_mov_b32 s{S_PH}, 0")

    def kv_ptrs():
        p.e(f"v_subrev_u32 v{vK}, 4096, v{V_KA}")
        p.e(f"v_and_b32 v{vL}, 31, v{V_LANE}")
        p.e(f"v_lshlrev_b32 v{vL}, 3, v{vL}")
        p.e(f"s_lshl_b32 s{S_T0}, s{S_W}, 12")
        p.e(f"s_add_u32 s{S_T0}, s{S_T0}, {hx(L.KV_KL)}")
        p.e(f"v_add_u32 v{vL}, s{S_T0}, v{vL}")
        p.e(f"v_subrev_u32 v{vV}, 4096, v{V_VA}")

    def qk():
        p.e(f"v_mfma_f32_32x32x16_bf16 {vr(S0, 16)}, {vr(KT, 4)}, {vr(QC, 4)}, 0")
        p.e(f"v_mfma_f32_32x32x16_bf16 {vr(S0 + 16, 16)}, {vr(KT, 4)}, {vr(QC + 4, 4)}, 0")
        p.e(f"v_mfma_f32_32x32x4_2b_bf16 {vr(S0, 32)}, {vr(LT, 2)}, {vr(QLR, 2)}, {vr(S0, 32)} cbsz:1 abid:0")

    p.fence()
    p.label(name + "_ph")
    q_main_loads(p)
    _proj_chain(p, QW)
    p.e(f"v_cvt_pk_bf16_f32 v{QT2}, v{QA2}, v{QA2 + 1}")
    p.e(f"v_cvt_pk_bf16_f32 v{QT2 + 1}, v{QA2 + 2}, v{QA2 + 3}")
    p.e(f"ds_write_b64 v{V_QFW}, {vr(QT2, 2)}")
    p.e("s_waitcnt lgkmcnt(0)")
    p.e("s_barrier")
    p.e(f"ds_read_b128 {vr(QC, 4)}, v{V_QFR}")
    p.e(f"ds_read_b128 {vr(QC + 4, 4)}, v{V_QFR} offset:1024")
    p.e(f"ds_read_b32 v{QLR}, v{V_QL}")
    p.e(f"v_mov_b32 v{QLR + 1}, 0")
    kv_ptrs()
    p.e(f"v_mov_b32 v{mx0}, 0xff800000")
    p.e(f"v_mov_b32 v{mx1}, 0xff800000")
    p.e(f"s_mov_b32 s{S_T0 + 5}, 16")
    p.e("s_waitcnt vmcnt(0) lgkmcnt(0)")
    p.loop_begin(name + "_mx")
    p.e(f"global_load_dwordx4 {vr(KT, 4)}, v{vK}, {sr(S_KV, 2)} PLD")
    p.e(f"global_load_dwordx2 {vr(LT, 2)}, v{vL}, {sr(S_KV, 2)} PLD")
    p.e(f"v_add_u32 v{vK}, 1024, v{vK}")
    p.e(f"v_add_u32 v{vL}, 256, v{vL}")
    qk()
    for i in range(8):
        p.e(f"v_max3_f32 v{mx0}, v{mx0}, v{S0 + 2 * i}, v{S0 + 2 * i + 1}")
        p.e(f"v_max3_f32 v{mx1}, v{mx1}, v{S0 + 16 + 2 * i}, v{S0 + 16 + 2 * i + 1}")
    p.e(f"s_sub_u32 s{S_T0 + 5}, s{S_T0 + 5}, 1")
    p.e(f"s_cmp_lg_u32 s{S_T0 + 5}, 0")
    p.e(f"s_cbranch_scc1 {name}_mx")
    p.loop_end()
    for m in (mx0, mx1):
        p.e(f"v_mov_b32 v{tm}, v{m}")
        p.e(f"v_permlane32_swap_b32 v{m}, v{tm}")
        p.e(f"v_max_f32 v{m}, v{m}, v{tm}")
    p.e(f"v_cmp_gt_u32 vcc, 32, v{V_LANE}")
    p.e(f"v_cndmask_b32 v{mx0}, v{mx1}, v{mx0}, vcc")
    p.e(f"s_lshl_b32 s{S_T0}, s{S_W}, 8")
    p.e(f"s_add_u32 s{S_T0}, s{S_T0}, {A_OP}")
    p.e(f"v_lshlrev_b32 v{tm}, 2, v{V_LANE}")
    p.e(f"v_add_u32 v{mx1}, s{S_T0}, v{tm}")
    p.e(f"ds_write_b32 v{mx1}, v{mx0}")
    p.e("s_waitcnt lgkmcnt(0)")
    p.e("s_barrier")
    p.e(f"v_add_u32 v{tm}, {A_OP}, v{tm}")
    for w in range(4):
        p.e(f"ds_read_b32 v{RT + w}, v{tm} offset:{256 * w}")
    p.e(f"v_max3_f32 v{RT}, v{RT}, v{RT + 1}, v{RT + 2}")
    p.e(f"v_max_f32 v{RT}, v{RT}, v{RT + 3}")
    p.e(f"v_sub_f32 v{RT}, 0, v{RT}")
    p.e(f"v_cvt_pk_bf16_f32 v{RT + 1}, v{RT}, v{RT}")
    p.e(f"v_lshlrev_b32 v{RT + 1}, 16, v{RT + 1}")
    p.e(f"v_sub_f32 v{RT + 1}, v{RT}, v{RT + 1}")
    p.e(f"v_cvt_pk_bf16_f32 v{QLR + 1}, v{RT}, v{RT + 1}")
    p.e("s_waitcnt lgkmcnt(0)")
    p.e("s_barrier")
    kv_ptrs()
    for i in range(32):
        p.e(f"v_accvgpr_write_b32 a{A_O + i}, 0")
    p.e(f"s_mov_b32 s{S_T0 + 5}, 16")
    p.e("s_nop 4")
    p.loop_begin(name + "_pv")
    p.e(f"global_load_dwordx4 {vr(KT, 4)}, v{vK}, {sr(S_KV, 2)} PLD")
    p.e(f"global_load_dwordx2 {vr(LT, 2)}, v{vL}, {sr(S_KV, 2)} PLD")
    p.e(f"global_load_dwordx4 {vr(VT0, 4)}, v{vV}, {sr(S_KV, 2)} PLD")
    p.e(f"global_load_dwordx4 {vr(VT0 + 4, 4)}, v{vV}, {sr(S_KV, 2)} offset:1024 PLD")
    p.e(f"v_add_u32 v{vK}, 1024, v{vK}")
    p.e(f"v_add_u32 v{vL}, 256, v{vL}")
    p.e(f"v_add_u32 v{vV}, 2048, v{vV}")
    qk()
    for blk in range(4):
        b = S0 + 8 * blk
        for i in range(8):
            p.e(f"v_exp_f32 v{b + i}, v{b + i}")
        for i in range(4):
            p.e(f"v_cvt_pk_bf16_f32 v{b + i}, v{b + 2 * i}, v{b + 2 * i + 1}")
    for T in range(2):
        for t in range(2):
            p.e(f"v_mfma_f32_32x32x16_bf16 {ar(A_O + 16 * T, 16)}, {vr(VT0 + 4 * t, 4)}, {vr(S0 + 16 * T + 8 * t, 4)}, {ar(A_O + 16 * T, 16)}")
    p.e(f"s_sub_u32 s{S_T0 + 5}, s{S_T0 + 5}, 1")
    p.e(f"s_cmp_lg_u32 s{S_T0 + 5}, 0")
    p.e(f"s_cbranch_scc1 {name}_pv")
    p.loop_end()
    for T in range(2):
        for g in range(3):
            p.e(f"ds_write_b128 v{V_OPW}, {ar(A_O + 16 * T + 4 * g, 4)} offset:{3072 * T + g * 1024}")
    p.e("s_waitcnt lgkmcnt(0)")
    p.e("s_barrier")
    for w in range(4):
        p.e(f"ds_read_b128 {vr(RT + 16 + 4 * w, 4)}, v{V_R2} offset:{w * 6144}")
    for w in range(4):
        p.e(f"ds_read_b128 {vr(RT + 4 * w, 4)}, v{V_R1} offset:{w * 6144}")
    for t in reduce_ops():
        p.e(t)
    p.e(f"ds_write_b32 v{V_OLW}, v{RT + 20}")
    p.e(f"ds_write_b64 v{V_OBW}, {vr(RT + 4, 2)}")
    p.e(f"v_add_u32 v{V_OLW}, 256, v{V_OLW}")
    p.e("s_waitcnt lgkmcnt(0)")
    p.e("s_barrier")
    for T in range(2):
        p.e(f"ds_read_b128 {vr(OF + 4 * T, 4)}, v{V_L16} offset:{A_OB + 1024 * T}")
    W = 16
    for j in range(18):
        T, t = j // 9, j % 9
        p.e(f"v_add_u32 v{V_T0}, {(T * 36 + t) * 1024}, v{V_WO}")
        p.e(f"global_load_dwordx4 {vr(W + 4 * j, 4)}, v{V_T0}, s[{S_WS}:{S_WS + 1}] offset:-4096 PLD")
    for j in range(18):
        T, t = j // 9, j % 9
        p.e(f"v_mfma_f32_16x16x32_bf16 {vr(XA + 4 * t, 4)}, {vr(W + 4 * j, 4)}, {vr(OF + 4 * T, 4)}, {vr(XA + 4 * t, 4)}")
    p.e(f"v_add_u32 v{V_WO}, {72 * 1024}, v{V_WO}")
    p.e(f"v_add_u32 v{V_QL}, 256, v{V_QL}")
    p.e(f"s_add_u32 s{S_PH}, s{S_PH}, 1")
    p.e("s_waitcnt vmcnt(0) lgkmcnt(0)")
    p.e("s_nop 15")
    p.e("s_barrier")
    p.e(f"s_cmp_lt_u32 s{S_PH}, 4")
    p.e(f"s_cbranch_scc1 {name}_ph")
    p.fence()
    p.e(f"ds_read_b128 {vr(OFL, 4)}, v{V_L16} offset:{A_OL}")
    for t in range(9):
        p.e(f"v_add_u32 v{V_T0}, {t * 1024}, v{V_WO}")
        p.e(f"global_load_dwordx4 {vr(W + 4 * t, 4)}, v{V_T0}, s[{S_WS}:{S_WS + 1}] offset:-4096 PLD")
    for t in range(9):
        p.e(f"v_mfma_f32_16x16x32_bf16 {vr(XA + 4 * t, 4)}, {vr(W + 4 * t, 4)}, {vr(OFL, 4)}, {vr(XA + 4 * t, 4)}")
    p.e("s_waitcnt vmcnt(0) lgkmcnt(0)")
    p.e("s_nop 15")
    p.e(f"s_branch {back}")
```

```python
from common import *

CV_BASE = 19456
CV_CH = 272 * 8 * 16
CV_BANK = [1, 6, 2, 11, 12, 9, 14, 6]
CV_BANKC = sum(b << (4 * i) for i, b in enumerate(CV_BANK))
CV_UB = CV_BASE + 3 * CV_CH
UBSTR = 96
UB_CH = 7680
CV_SC = CV_UB + 3 * UB_CH
CV_END = CV_SC + 128

CF_H = 68
CF_H0 = 92
CF_T = 236
CF_R = 172
S_CVD = 76
S_CVL = 79
CV_FIRST = 2


UT_R = [100, 124]
V_UTA = [58, 218]
UT_T = 148


def ut_issue(p):
    st = S_T0
    make_srd(p, SRD_C, KREG["bk"], L.S * L.D * 2)
    make_srd(p, SRD_D, KREG["bv"], L.S * L.D * 2)
    p.e(f"s_mov_b32 s{st + 8}, {4 * 1152}")
    p.e(f"v_mov_b32 v{V_UTA[1]}, 0")
    a = V_T0

    def rnd(k):
        R = UT_R[k]
        p.e(f"s_mul_i32 s{st + 6}, s{S_HH}, 144")
        p.e(f"v_add_u32 v{a}, s{st + 6}, v{a}")
        p.e(f"v_mul_u32_u24 v{a + 2}, {8 * 1152}, v{a + 1}")
        p.e(f"v_add_u32 v{a + 2}, s{S_ROWOFF}, v{a + 2}")
        p.e(f"v_lshl_add_u32 v{a + 2}, v{a}, 2, v{a + 2}")
        if k == 1:
            p.e(f"v_cmp_gt_u32 vcc, 32, v{V_LANE}")
            p.e(f"v_mov_b32 v{a + 4}, 0x40000000")
            p.e(f"v_cndmask_b32 v{a + 2}, v{a + 4}, v{a + 2}, vcc")
        p.e(f"v_subrev_u32 v{a + 3}, {3 * 1152}, v{a + 2}")
        p.e(f"v_cmp_gt_u32 vcc, {3 * 1152}, v{a + 2}")
        p.e(f"v_mov_b32 v{a + 4}, 0x40000000")
        p.e(f"v_cndmask_b32 v{a + 3}, v{a + 3}, v{a + 4}, vcc")
        p.e(f"v_lshlrev_b32 v{a + 4}, 4, v{a}")
        for i in range(3):
            p.e(f"buffer_load_dword v{R + i}, v{a + 3}, {sr(SRD_C, 4)}, 0 offen offset:{1152 * i}")
        for i in range(8):
            so = "0" if i < 4 else f"s{st + 8}"
            p.e(f"buffer_load_dword v{R + 3 + i}, v{a + 2}, {sr(SRD_C, 4)}, {so} offen offset:{1152 * (i % 4)}")
        for i in range(8):
            so = "0" if i < 4 else f"s{st + 8}"
            p.e(f"buffer_load_dword v{R + 11 + i}, v{a + 2}, {sr(SRD_D, 4)}, {so} offen offset:{1152 * (i % 4)}")
        p.e(f"global_load_dwordx4 {vr(R + 20, 4)}, v{a + 4}, {sr(KREG['shk'], 2)}")
        o = V_UTA[k]
        p.e(f"v_lshlrev_b32 v{o}, 13, v{a}")
        p.e(f"s_lshl_b32 s{st + 6}, s{S_PAIR}, 5")
        p.e(f"s_add_u32 s{st + 6}, s{st + 6}, {hx(L.UTG)}")
        p.e(f"v_lshl_add_u32 v{o}, v{a + 1}, 4, v{o}")
        p.e(f"v_add_u32 v{o}, s{st + 6}, v{o}")

    p.e(f"v_and_b32 v{a}, 31, v{V_LANE}")
    p.e(f"s_lshl_b32 s{st + 7}, s{S_W}, 5")
    p.e(f"v_add_u32 v{a}, s{st + 7}, v{a}")
    p.e(f"v_lshrrev_b32 v{a + 1}, 5, v{V_LANE}")
    rnd(0)
    p.e(f"s_cmp_lg_u32 s{S_W}, 3")
    p.e(f"s_cbranch_scc1 L_ut_no2")
    p.if_begin()
    p.e(f"v_and_b32 v{a}, 15, v{V_LANE}")
    p.e(f"v_add_u32 v{a}, 128, v{a}")
    p.e(f"v_bfe_u32 v{a + 1}, v{V_LANE}, 4, 1")
    rnd(1)
    p.label("L_ut_no2")
    p.if_end()


def ut_round(p, k):
    R = UT_R[k]
    KK, VV, SK, U, O = UT_T, UT_T + 22, UT_T + 38, UT_T + 46, UT_T + 62
    for c in range(2):
        p.e(f"v_lshlrev_b32 v{SK + c}, 16, v{R + 20 + 2 * c}")
        p.e(f"v_and_b32 v{SK + 2 + c}, 0xffff0000, v{R + 20 + 2 * c}")
        p.e(f"v_lshlrev_b32 v{SK + 4 + c}, 16, v{R + 21 + 2 * c}")
        p.e(f"v_and_b32 v{SK + 6 + c}, 0xffff0000, v{R + 21 + 2 * c}")
    for i in range(11):
        p.e(f"v_lshlrev_b32 v{KK + 2 * i}, 16, v{R + i}")
        p.e(f"v_and_b32 v{KK + 2 * i + 1}, 0xffff0000, v{R + i}")
    for t in range(8):
        p.e(f"v_pk_mul_f32 {vr(U + 2 * t, 2)}, {vr(SK + 6, 2)}, {vr(KK + 2 * t, 2)}")
    for i in range(8):
        p.e(f"v_lshlrev_b32 v{VV + 2 * i}, 16, v{R + 11 + i}")
        p.e(f"v_and_b32 v{VV + 2 * i + 1}, 0xffff0000, v{R + 11 + i}")
    for j in (2, 1, 0):
        for t in range(8):
            p.e(f"v_pk_fma_f32 {vr(U + 2 * t, 2)}, {vr(SK + 2 * j, 2)}, {vr(KK + 2 * (t + 3 - j), 2)}, {vr(U + 2 * t, 2)}")
    for t in range(8):
        p.e(f"v_pk_mul_f32 {vr(U + 2 * t, 2)}, {vr(U + 2 * t, 2)}, {vr(VV + 2 * t, 2)}")
    for c in range(2):
        for d in range(4):
            p.e(f"v_cvt_pk_bf16_f32 v{O + 4 * c + d}, v{U + 2 * (7 - 2 * d) + c}, v{U + 2 * (6 - 2 * d) + c}")
    if k == 1:
        p.e("s_mov_b64 exec, 0xffffffff")
    p.e(f"global_store_dwordx4 v{V_UTA[k]}, {vr(O, 4)}, s[{S_WS}:{S_WS + 1}] WSC")
    p.e(f"v_add_u32 v{V_UTA[k]}, 4096, v{V_UTA[k]}")
    p.e(f"global_store_dwordx4 v{V_UTA[k]}, {vr(O + 4, 4)}, s[{S_WS}:{S_WS + 1}] WSC")
    if k == 1:
        p.e("s_mov_b64 exec, -1")


def ut_extra(p):
    p.e(f"s_cmp_lg_u32 s{S_W}, 3")
    p.e(f"s_cbranch_scc1 L_ut_no2b")
    p.if_begin()
    ut_round(p, 1)
    p.label("L_ut_no2b")
    p.if_end()


def conv_filter_issue(p, s_ch0):
    st = S_T0
    make_srd(p, SRD_B, KREG["ssmk"], 576 * 4096)
    p.e(f"s_lshl_b32 s{st + 10}, s{s_ch0}, 1")
    p.e(f"s_and_b32 s{st + 11}, s{st + 10}, 0xfffffffc")
    p.e(f"s_add_u32 s{st + 8}, s{KREG['ssmd']}, s{st + 11}")
    p.e(f"s_addc_u32 s{st + 9}, s{KREG['ssmd'] + 1}, 0")
    p.e(f"s_load_dwordx2 s[72:73], s[{st + 8}:{st + 9}], 0")
    p.e(f"s_lshl_b32 s{st}, s{S_W}, 1")
    p.e(f"s_lshl_b32 s{st + 1}, s{st}, 2")
    p.e(f"s_lshr_b32 s{st + 1}, {hx(CV_BANKC)}, s{st + 1}")
    p.e(f"s_and_b32 s{st + 1}, s{st + 1}, 15")
    p.e(f"s_mul_i32 s{st + 2}, s{st}, 272")
    p.e(f"s_add_u32 s{st + 1}, s{st + 1}, s{st + 2}")
    p.e(f"s_lshl_b32 s{st + 1}, s{st + 1}, 4")
    p.e(f"s_add_u32 s{st + 1}, s{st + 1}, {CV_BASE + 64}")
    p.e(f"s_lshl_b32 s{st + 2}, s{s_ch0}, 12")
    p.e(f"s_lshl_b32 s{st + 3}, s{st}, 1")
    p.e(f"s_add_u32 s{st + 2}, s{st + 2}, s{st + 3}")
    for ch in range(3):
        p.e(f"s_add_u32 m0, s{st + 1}, {ch * CV_CH}")
        if ch:
            p.e(f"s_add_u32 s{st + 2}, s{st + 2}, 4096")
        for c in range(4):
            p.e(f"buffer_load_dwordx4 v{V_L16}, {sr(SRD_B, 4)}, s{st + 2} offen offset:{1024 * c} lds")
    p.e(f"v_lshlrev_b32 v{V_T0}, 4, v{V_TID}")
    p.e(f"s_lshl_b32 s{st + 2}, s{s_ch0}, 12")
    for ch in range(3):
        if ch:
            p.e(f"s_add_u32 s{st + 2}, s{st + 2}, 4096")
        p.e(f"buffer_load_dwordx4 {ar(CF_H + 8 * ch, 4)}, v{V_T0}, {sr(SRD_B, 4)}, s{st + 2} offen")
        p.e(f"buffer_load_dwordx4 {ar(CF_H + 8 * ch + 4, 4)}, v{V_T0}, {sr(SRD_B, 4)}, s{st + 2} offen offset:16")
    p.e(f"s_min_u32 s{st}, s{S_W}, 2")
    p.e(f"s_add_u32 s{st}, s{st}, s{s_ch0}")
    p.e(f"s_lshl_b32 s{st}, s{st}, 12")
    p.e(f"v_mov_b32 v{V_T0 + 1}, 0")
    p.e(f"buffer_load_dwordx4 {ar(CF_H0, 4)}, v{V_T0 + 1}, {sr(SRD_B, 4)}, s{st} offen")


def conv_filter_build(p, s_ch0):
    st = S_T0
    sK = 66
    a = V_T0
    A, B = CF_T, CF_T + 8
    for k, phi in enumerate((1, 3, 5, 7)):
        off = (272 * phi + CV_BANK[phi] + 4) * 16 + CV_BASE
        p.e(f"v_lshlrev_b32 v{a + k}, 4, v{V_TID}")
        p.e(f"v_add_u32 v{a + k}, {off}, v{a + k}")
    for ch in range(3):
        r = CF_R
        for j in range(8):
            p.e(f"v_accvgpr_read_b32 v{r + j}, a{CF_H + 8 * ch + j}")
        if ch == 1:
            for k in range(4):
                p.e(f"v_add_u32 v{a + k}, {CV_CH}, v{a + k}")
        off = CV_CH if ch == 2 else 0
        for j in range(6):
            p.e(f"v_alignbit_b32 v{A + j}, v{r + j + 1}, v{r + j}, 16")
        p.e(f"ds_write_b128 v{a}, {vr(A, 4)} offset:{off}")
        p.e(f"ds_write_b128 v{a + 2}, {vr(A + 2, 4)} offset:{off}")
        for j in range(6):
            p.e(f"v_alignbit_b32 v{B + j}, v{r + j + 2}, v{r + j + 1}, 16")
        p.e(f"ds_write_b128 v{a + 1}, {vr(B, 4)} offset:{off}")
        p.e(f"ds_write_b128 v{a + 3}, {vr(B + 2, 4)} offset:{off}")
    z = CF_T
    for i in range(4):
        p.e(f"v_mov_b32 v{z + i}, 0")
    p.e(f"s_min_u32 s{st}, s{S_W}, 2")
    p.e(f"s_mul_i32 s{st + 1}, s{st}, {CV_CH}")
    p.e(f"s_add_u32 s{st + 1}, s{st + 1}, {CV_BASE}")
    p.e(f"v_and_b32 v{a}, 31, v{V_LANE}")
    p.e(f"v_lshrrev_b32 v{a + 1}, 2, v{a}")
    p.e(f"v_lshlrev_b32 v{a + 2}, 2, v{a + 1}")
    p.e(f"v_mov_b32 v{a + 3}, {hx(CV_BANKC)}")
    p.e(f"v_lshrrev_b32 v{a + 2}, v{a + 2}, v{a + 3}")
    p.e(f"v_and_b32 v{a + 2}, 15, v{a + 2}")
    p.e(f"v_mul_u32_u24 v{a + 1}, 272, v{a + 1}")
    p.e(f"v_add_u32 v{a + 1}, v{a + 1}, v{a + 2}")
    p.e(f"v_and_b32 v{a + 2}, 3, v{a}")
    p.e(f"v_add_lshl_u32 v{a + 1}, v{a + 1}, v{a + 2}, 4")
    p.e(f"v_add_u32 v{a + 1}, s{st + 1}, v{a + 1}")
    p.e(f"ds_write_b128 v{a + 1}, {vr(z, 4)}")
    p.e(f"s_mul_i32 s{st + 2}, s{st}, {UB_CH}")
    p.e(f"s_add_u32 s{st + 2}, s{st + 2}, {CV_UB}")
    p.e(f"v_add_u32 v{a + 2}, s{st + 2}, v{V_L16}")
    p.e(f"ds_write_b128 v{a + 2}, {vr(z, 4)}")
    p.e(f"ds_write_b128 v{a + 2}, {vr(z, 4)} offset:{1440 - 1024}")
    p.e(f"s_lshl_b32 s{st + 3}, s{st}, 5")
    p.e(f"s_add_u32 s{st + 3}, s{st + 3}, {CV_SC}")
    p.e(f"v_mov_b32 v{a + 3}, s{st + 3}")
    p.e(f"ds_write_b128 v{a + 3}, {vr(z, 4)}")
    p.e(f"ds_write_b128 v{a + 3}, {ar(CF_H0, 4)} offset:16")
    p.e(f"v_and_b32 v{a}, 7, v{V_LANE}")
    p.e(f"v_lshl_add_u32 v{a + 3}, v{a}, 1, v{a + 3}")
    p.e("s_waitcnt lgkmcnt(0)")
    p.e(f"ds_read_b128 {vr(z + 4, 4)}, v{a + 3}")
    p.e(f"v_lshlrev_b32 v{a + 2}, 2, v{a}")
    p.e(f"v_mov_b32 v{a + 1}, {hx(CV_BANKC)}")
    p.e(f"v_lshrrev_b32 v{a + 2}, v{a + 2}, v{a + 1}")
    p.e(f"v_and_b32 v{a + 2}, 15, v{a + 2}")
    p.e(f"v_mul_u32_u24 v{a + 1}, 272, v{a}")
    p.e(f"v_add_lshl_u32 v{a + 1}, v{a + 1}, v{a + 2}, 4")
    p.e(f"v_add_u32 v{a + 1}, s{st + 1}, v{a + 1}")
    p.e(f"ds_write_b128 v{a + 1}, {vr(z + 4, 4)} offset:48")
    p.e("s_waitcnt lgkmcnt(0)")
    p.e(f"s_and_b32 s{st + 4}, s{s_ch0}, 1")
    p.e(f"s_lshl_b32 s{st + 4}, s{st + 4}, 4")
    p.e(f"s_lshr_b64 s[{sK + 6}:{sK + 7}], s[{sK + 6}:{sK + 7}], s{st + 4}")
    p.e(f"s_lshl_b32 s{S_CVD}, s{sK + 6}, 16")
    p.e(f"s_and_b32 s{S_CVD + 1}, s{sK + 6}, 0xffff0000")
    p.e(f"s_lshl_b32 s{S_CVD + 2}, s{sK + 7}, 16")


def conv_u_dma(p, s_ch0):
    st = S_T0
    a = V_T0
    p.e(f"s_add_u32 s{st}, s{S_WS}, {hx(L.UTG)}")
    p.e(f"s_addc_u32 s{st + 1}, s{S_WS + 1}, 0")
    make_srd(p, SRD_C, st, 576 * 4096)
    for k in range(2):
        p.e(f"s_lshl_b32 s{st + 2}, s{S_W}, 6")
        p.e(f"s_add_u32 s{st + 2}, s{st + 2}, {256 * k}")
        p.e(f"v_add_u32 v{a + k}, s{st + 2}, v{V_LANE}")
        p.e(f"v_mul_u32_u24 v{a + 2}, 43691, v{a + k}")
        p.e(f"v_lshrrev_b32 v{a + 2}, 18, v{a + 2}")
        p.e(f"v_mul_u32_u24 v{a + 3}, 6, v{a + 2}")
        p.e(f"v_sub_u32 v{a + 3}, v{a + k}, v{a + 3}")
        p.e(f"v_min_u32 v{a + 3}, 3, v{a + 3}")
        p.e(f"v_lshl_add_u32 v{a + 3}, v{a + 2}, 2, v{a + 3}")
        p.e(f"v_lshlrev_b32 v{a + k}, 4, v{a + 3}")
    p.e(f"s_lshl_b32 s{st + 3}, s{s_ch0}, 12")
    p.e(f"s_lshl_b32 s{st + 4}, s{S_W}, 10")
    p.e(f"s_add_u32 s{st + 4}, s{st + 4}, {CV_UB + 15 * UBSTR}")
    for ch in range(3):
        if ch:
            p.e(f"s_add_u32 s{st + 3}, s{st + 3}, 4096")
        p.e(f"s_add_u32 m0, s{st + 4}, {ch * UB_CH}")
        p.e(f"buffer_load_dwordx4 v{a}, {sr(SRD_C, 4)}, s{st + 3} offen PLD lds")
    p.e(f"s_cmp_ge_u32 s{S_W}, 2")
    p.e(f"s_cbranch_scc1 L_cvu_no2")
    p.if_begin()
    p.e(f"s_lshl_b32 s{st + 3}, s{s_ch0}, 12")
    for ch in range(3):
        if ch:
            p.e(f"s_add_u32 s{st + 3}, s{st + 3}, 4096")
        p.e(f"s_add_u32 m0, s{st + 4}, {ch * UB_CH + 4096}")
        p.e(f"buffer_load_dwordx4 v{a + 1}, {sr(SRD_C, 4)}, s{st + 3} offen PLD lds")
    p.label("L_cvu_no2")
    p.if_end()


def conv_main(p, s_ch0, name, s_yt, s_act, stamp=lambda *a, **k: None, mid=None, extra=None):
    st = S_T0
    a = V_T0
    vA, vB = 144, 145
    p.e(f"s_cmp_eq_u32 s{s_act}, 0")
    p.e(f"s_cbranch_scc1 {name}_h1")
    p.if_begin()
    p.e(f"v_add_u32 v{a + 2}, 1, v{V_N}")
    p.e(f"v_and_b32 v{a + 3}, 7, v{a + 2}")
    p.e(f"v_lshrrev_b32 v{a + 2}, 3, v{a + 2}")
    p.e(f"v_sub_u32 v{a + 2}, v{a + 2}, v{V_G}")
    p.e(f"v_add_u32 v{a + 2}, 3, v{a + 2}")
    p.e(f"v_lshlrev_b32 v{a + 4}, 2, v{a + 3}")
    p.e(f"v_mov_b32 v{a + 5}, {hx(CV_BANKC)}")
    p.e(f"v_lshrrev_b32 v{a + 4}, v{a + 4}, v{a + 5}")
    p.e(f"v_and_b32 v{a + 4}, 15, v{a + 4}")
    p.e(f"v_mul_u32_u24 v{a + 3}, 272, v{a + 3}")
    p.e(f"v_add3_u32 v{a + 2}, v{a + 2}, v{a + 3}, v{a + 4}")
    p.e(f"v_lshlrev_b32 v{a + 2}, 4, v{a + 2}")
    p.e(f"s_mul_i32 s{st + 1}, s{S_W}, {CV_CH}")
    p.e(f"s_add_u32 s{st + 1}, s{st + 1}, {CV_BASE}")
    p.e(f"v_add_u32 v{vA}, s{st + 1}, v{a + 2}")
    p.e(f"v_mul_u32_u24 v{a + 2}, {UBSTR}, v{V_N}")
    p.e(f"v_lshl_add_u32 v{a + 2}, v{V_G}, 4, v{a + 2}")
    p.e(f"s_mul_i32 s{st + 2}, s{S_W}, {UB_CH}")
    p.e(f"s_add_u32 s{st + 2}, s{st + 2}, {CV_UB}")
    p.e(f"v_add_u32 v{vB}, s{st + 2}, v{a + 2}")
    ACC = 16
    FA = [48, 96]
    FB = [80, 128]

    def load_list(buf, noff):
        L_ = []
        for d in range(4):
            L_.append(f"ds_read_b128 {vr(FB[buf] + 4 * d, 4)}, v{vB} offset:{(16 * d + 16 - noff) * UBSTR}")
        for s in range(4):
            for ih in range(2):
                L_.append(f"ds_read_b128 {vr(FA[buf] + 8 * s + 4 * ih, 4)}, v{vA} offset:{64 * noff + 1024 * s + 32 * ih}")
        return L_

    def loads(buf, noff):
        for t in load_list(buf, noff):
            p.e(t)

    def mm_list(buf):
        L_ = []
        for s in range(4):
            for q in range(s, 4):
                for ih in range(2):
                    d = ACC + 8 * q + 4 * ih
                    L_.append(f"v_mfma_f32_16x16x32_bf16 {vr(d, 4)}, {vr(FA[buf] + 8 * s + 4 * ih, 4)}, {vr(FB[buf] + 4 * (q - s), 4)}, {vr(d, 4)}")
        return L_

    def step(cur, nxt, noff, pre=()):
        p.need(vr(FA[cur], 32) + ", " + vr(FB[cur], 16))
        for t in pre:
            p.e(t)
        rd = load_list(nxt, noff)
        for i, m in enumerate(mm_list(cur)):
            p.e(m)
            if i < len(rd):
                p.e(rd[i])

    for i in range(32):
        p.e(f"v_mov_b32 v{ACC + i}, 0")
    p.e(f"v_subrev_u32 v{vB}, {UBSTR}, v{vB}")
    loads(0, 0)

    def half(tag, n):
        p.e(f"s_mov_b32 s{S_CVL}, {n}")
        p.loop_begin(f"{name}_loop{tag}")
        step(0, 1, 1)
        step(1, 0, 0, pre=(f"v_add_u32 v{vA}, 128, v{vA}", f"v_subrev_u32 v{vB}, {2 * UBSTR}, v{vB}"))
        p.e(f"s_sub_u32 s{S_CVL}, s{S_CVL}, 1")
        p.e(f"s_cmp_lg_u32 s{S_CVL}, 0")
        p.e(f"s_cbranch_scc1 {name}_loop{tag}")
        p.loop_end()

    stamp(p, 27)
    half("a", CV_FIRST)
    stamp(p, 28)
    p.label(f"{name}_h1")
    p.if_end()
    if mid is not None:
        mid()
    p.e(f"s_cmp_eq_u32 s{s_act}, 0")
    p.e(f"s_cbranch_scc1 {name}_end")
    p.if_begin()
    stamp(p, 29)
    i0 = len(p.items)
    for _ in range(8 - CV_FIRST):
        step(0, 1, 1)
        step(1, 0, 0, pre=(f"v_add_u32 v{vA}, 128, v{vA}", f"v_subrev_u32 v{vB}, {2 * UBSTR}, v{vB}"))
    if extra:
        p.sprinkle(i0, extra, first=4)
    stamp(p, 13)
    p.e(f"s_cmp_eq_u32 s{S_W}, 0")
    p.e(f"s_cselect_b32 s{st + 4}, s{S_CVD}, s{S_CVD + 1}")
    p.e(f"s_cmp_eq_u32 s{S_W}, 2")
    p.e(f"s_cselect_b32 s{st + 4}, s{S_CVD + 2}, s{st + 4}")
    ue = a + 2
    p.e(f"s_mul_i32 s{st + 2}, s{S_W}, {UB_CH}")
    p.e(f"s_add_u32 s{st + 2}, s{st + 2}, {CV_UB}")
    p.e(f"v_mul_u32_u24 v{ue}, {UBSTR}, v{V_N}")
    p.e(f"v_lshrrev_b32 v{ue + 1}, 1, v{V_G}")
    p.e(f"v_lshl_add_u32 v{ue}, v{ue + 1}, 4, v{ue}")
    p.e(f"v_and_b32 v{ue + 1}, 1, v{V_G}")
    p.e(f"v_xor_b32 v{ue + 1}, 1, v{ue + 1}")
    p.e(f"v_lshl_add_u32 v{ue}, v{ue + 1}, 3, v{ue}")
    p.e(f"v_add_u32 v{ue}, s{st + 2}, v{ue}")
    p.e(f"s_add_u32 s{st + 3}, s{s_ch0}, s{S_W}")
    p.e(f"s_lshl_b32 s{st + 3}, s{st + 3}, 12")
    p.e(f"v_lshlrev_b32 v{ue + 1}, 6, v{V_N}")
    p.e(f"v_lshl_add_u32 v{ue + 1}, v{V_G}, 3, v{ue + 1}")
    p.e(f"v_add_u32 v{ue + 1}, s{st + 3}, v{ue + 1}")
    for q in range(4):
        for ih in range(2):
            k = 2 * q + ih
            U = 48 + 2 * k
            p.e(f"ds_read_b64 {vr(U, 2)}, v{ue} offset:{(16 * q + 15) * UBSTR + 32 * ih}")
    for q in range(4):
        for ih in range(2):
            k = 2 * q + ih
            U = 48 + 2 * k
            d = ACC + 8 * q + 4 * ih
            T = 72 + 4 * (k % 2)
            p.e(f"v_and_b32 v{T}, 0xffff0000, v{U + 1}")
            p.e(f"v_lshlrev_b32 v{T + 1}, 16, v{U + 1}")
            p.e(f"v_and_b32 v{T + 2}, 0xffff0000, v{U}")
            p.e(f"v_lshlrev_b32 v{T + 3}, 16, v{U}")
            for r in range(4):
                p.e(f"v_fmac_f32 v{d + r}, s{st + 4}, v{T + r}")
            o = 80 + 2 * (k % 4)
            p.e(f"v_cvt_pk_bf16_f32 v{o}, v{d}, v{d + 1}")
            p.e(f"v_cvt_pk_bf16_f32 v{o + 1}, v{d + 2}, v{d + 3}")
            p.e(f"global_store_dwordx2 v{ue + 1}, {vr(o, 2)}, {sr(s_yt, 2)} offset:{1024 * q + 32 * ih} YSC")
    p.label(f"{name}_end")
    p.if_end()
```

```python
from common import *
from parts import LDS_XB, V_TMP
import parts as P
import conv as CV

WK_IMG = CV.CV_UB
WK_IMG_END = WK_IMG + 576 * 48 + 64
WK_IMG2 = 57344
RL_IMG = CV.CV_BASE
S_RLD, S_RLS, S_RLN, S_RLT = 94, 95, 96, 97

V_TRA = 59


def wkv_dma(p, srd, img=WK_IMG):
    a = V_T0
    for d in range(3):
        p.e(f"s_lshl_b32 s{S_T0}, s{S_W}, 6")
        p.e(f"s_add_u32 s{S_T0}, s{S_T0}, {d}")
        p.e(f"v_add_u32 v{a + 3}, s{S_T0}, v{V_LANE}")
        p.e(f"v_mul_u32_u24 v{a + 4}, 21846, v{a + 3}")
        p.e(f"v_lshrrev_b32 v{a + 4}, 16, v{a + 4}")
        p.e(f"v_mul_u32_u24 v{a + d}, 3, v{a + 4}")
        p.e(f"v_sub_u32 v{a + 3}, v{a + 3}, v{a + d}")
        p.e(f"v_mul_u32_u24 v{a + d}, 36, v{a + 4}")
        p.e(f"v_lshl_add_u32 v{a + d}, v{a + 3}, 4, v{a + d}")
    p.e(f"s_lshl_b32 s{S_T0}, s{S_W}, 10")
    p.e(f"s_add_u32 s{S_T0}, s{S_T0}, {img}")
    for k in range(7):
        if k == 6:
            p.e(f"s_cmp_eq_u32 s{S_W}, 3")
            p.e(f"s_cbranch_scc1 L_wkdma_end{id(p) % 1000}_{wkv_dma.n}")
            p.if_begin()
        p.e(f"s_add_u32 m0, s{S_T0}, {4096 * k}")
        p.e(f"s_mov_b32 s{S_T0 + 1}, {3060 * k + 36 * (k // 3)}")
        p.e(f"buffer_load_dwordx4 v{a + k % 3}, {sr(srd, 4)}, s{S_T0 + 1} offen lds")
        if k == 6:
            p.label(f"L_wkdma_end{id(p) % 1000}_{wkv_dma.n}")
            p.if_end()
    wkv_dma.n += 1


wkv_dma.n = 0


def kv_project_store(p, s_kvbase, name, img=WK_IMG):
    acc = V_TMP
    xb = V_TMP + 4
    wf = 100
    va = V_T0
    p.e(f"s_cmp_ge_u32 s{S_W}, 2")
    p.e(f"s_cbranch_scc1 {name}_end")
    p.if_begin()
    p.e(f"v_lshrrev_b32 v{va + 3}, 2, v{V_LANE}")
    p.e(f"v_mul_u32_u24 v{va + 3}, 48, v{va + 3}")
    p.e(f"v_and_b32 v{va + 4}, 3, v{V_LANE}")
    p.e(f"v_lshl_add_u32 v{va + 3}, v{va + 4}, 3, v{va + 3}")
    p.e(f"s_lshl_b32 s{S_T0}, s{S_W}, 5")
    p.e(f"s_add_u32 s{S_T0}, s{S_T0}, {img}")
    p.e(f"v_add_u32 v{va + 3}, s{S_T0}, v{va + 3}")

    def rd(k):
        p.e(f"ds_read_b128 {vr(xb + 4 * (k % 3), 4)}, v{V_L16} offset:{LDS_XB + 1024 * k}")
        p.e(f"ds_read_b64_tr_b16 {vr(wf + 4 * (k % 3), 2)}, v{va + 3} offset:{1536 * k}")
        p.e(f"ds_read_b64_tr_b16 {vr(wf + 4 * (k % 3) + 2, 2)}, v{va + 3} offset:{1536 * k + 768}")

    def chain(swap):
        rd(0)
        rd(1)
        for ks in range(18):
            if ks + 2 < 18:
                rd(ks + 2)
            c = "0" if ks == 0 else vr(acc, 4)
            A, B = vr(wf + 4 * (ks % 3), 4), vr(xb + 4 * (ks % 3), 4)
            if swap:
                A, B = B, A
            p.e(f"v_mfma_f32_16x16x32_bf16 {vr(acc, 4)}, {A}, {B}, {c}")

    p.e(f"s_cmp_eq_u32 s{S_HH}, 0")
    p.e(f"s_cbranch_scc0 {name}_v")
    p.if_begin()
    chain(False)
    p.e(f"s_lshr_b32 s{S_T0}, s{S_PAIR}, 1")
    p.e(f"s_and_b32 s{S_T0 + 1}, s{S_PAIR}, 1")
    p.e(f"s_lshl_b32 s{S_T0 + 1}, s{S_T0 + 1}, 4")
    p.e(f"v_add_u32 v{va}, s{S_T0 + 1}, v{V_N}")
    p.e(f"s_mov_b32 s{S_T0 + 2}, {hx(f2u(L.QSCALE))}")
    for r in range(4):
        p.e(f"v_mul_f32 v{acc + r}, s{S_T0 + 2}, v{acc + r}")
    p.e(f"v_cvt_pk_bf16_f32 v{xb}, v{acc}, v{acc + 1}")
    p.e(f"v_cvt_pk_bf16_f32 v{xb + 1}, v{acc + 2}, v{acc + 3}")
    p.e(f"s_cmp_eq_u32 s{S_W}, 0")
    p.e(f"s_cbranch_scc0 {name}_kl")
    p.if_begin()
    p.e(f"v_lshrrev_b32 v{va + 1}, 1, v{V_G}")
    p.e(f"v_lshl_add_u32 v{va + 1}, v{va + 1}, 5, v{va}")
    p.e(f"v_lshlrev_b32 v{va + 1}, 4, v{va + 1}")
    p.e(f"v_and_b32 v{va + 2}, 1, v{V_G}")
    p.e(f"v_lshl_add_u32 v{va + 1}, v{va + 2}, 3, v{va + 1}")
    p.e(f"s_lshl_b32 s{S_T0}, s{S_T0}, 10")
    p.e(f"v_add_u32 v{va + 1}, s{S_T0}, v{va + 1}")
    p.e(f"global_store_dwordx2 v{va + 1}, {vr(xb, 2)}, {sr(s_kvbase, 2)} offset:{L.KV_K0} KVSC")
    p.e(f"s_branch {name}_end")
    p.if_end()
    p.label(f"{name}_kl")
    p.e(f"v_mov_b32 v{xb + 1}, 0x3f803f80")
    p.e(f"s_lshl_b32 s{S_T0}, s{S_T0}, 5")
    p.e(f"v_add_u32 v{va + 1}, s{S_T0}, v{va}")
    p.e(f"v_lshlrev_b32 v{va + 1}, 3, v{va + 1}")
    p.e(f"v_add_u32 v{va + 1}, {hx(L.KV_KL)}, v{va + 1}")
    p.e("s_mov_b64 exec, 0xffff")
    p.e(f"global_store_dwordx2 v{va + 1}, {vr(xb, 2)}, {sr(s_kvbase, 2)} KVSC")
    p.e("s_mov_b64 exec, -1")
    p.e(f"s_branch {name}_end")
    p.if_end()
    p.label(f"{name}_v")
    chain(True)
    p.e(f"s_lshl_b32 s{S_T0 + 1}, s{S_W}, 4")
    p.e(f"v_add_u32 v{va}, s{S_T0 + 1}, v{V_N}")
    p.e(f"v_cmp_eq_u32 vcc, 18, v{va}")
    p.e(f"v_cndmask_b32 v{va + 2}, 0, 1.0, vcc")
    p.e(f"v_cmp_gt_u32 vcc, 18, v{va}")
    for r in range(4):
        p.e(f"v_cndmask_b32 v{acc + r}, v{va + 2}, v{acc + r}, vcc")
    p.e(f"v_cvt_pk_bf16_f32 v{xb}, v{acc}, v{acc + 1}")
    p.e(f"v_cvt_pk_bf16_f32 v{xb + 1}, v{acc + 2}, v{acc + 3}")
    p.e(f"v_and_b32 v{va + 1}, 1, v{V_G}")
    p.e(f"v_lshl_add_u32 v{va + 1}, v{va + 1}, 5, v{va}")
    p.e(f"v_lshlrev_b32 v{va + 1}, 4, v{va + 1}")
    p.e(f"v_lshrrev_b32 v{va + 2}, 1, v{V_G}")
    p.e(f"v_lshl_add_u32 v{va + 1}, v{va + 2}, 3, v{va + 1}")
    p.e(f"s_lshl_b32 s{S_T0}, s{S_PAIR}, 10")
    p.e(f"s_add_u32 s{S_T0}, s{S_T0}, {hx(L.KV_VF)}")
    p.e(f"v_add_u32 v{va + 1}, s{S_T0}, v{va + 1}")
    p.e(f"global_store_dwordx2 v{va + 1}, {vr(xb, 2)}, {sr(s_kvbase, 2)} KVSC")
    p.label(f"{name}_end")
    p.if_end()


def relayout_issue(p, s_job, name):
    a = V_T0
    st = S_T0
    p.e(f"s_mov_b32 s{S_RLN}, 0")
    p.e(f"s_cmp_ge_u32 s{s_job}, 54")
    p.e(f"s_cbranch_scc1 {name}_end")
    p.e(f"s_cmp_ge_u32 s{s_job}, 36")
    p.e(f"s_cbranch_scc1 {name}_wo")
    p.e(f"s_cmp_ge_u32 s{s_job}, 32")
    p.e(f"s_cbranch_scc1 {name}_ql")
    p.e(f"s_lshr_b32 s{st}, s{s_job}, 4")
    p.e(f"s_and_b32 s{st + 1}, s{s_job}, 15")
    p.e(f"s_lshl_b32 s{st + 2}, s{st}, 4")
    p.e(f"s_and_b32 s{st + 3}, s{st + 1}, 14")
    p.e(f"s_add_u32 s{st + 2}, s{st + 2}, s{st + 3}")
    p.e(f"s_and_b32 s{st + 3}, s{st + 1}, 1")
    p.e(f"s_lshl_b32 s{st + 3}, s{st + 3}, 2")
    p.e(f"v_and_b32 v{a + 1}, 1, v{V_LANE}")
    p.e(f"v_add_u32 v{a + 1}, s{st + 2}, v{a + 1}")
    p.e(f"v_mul_u32_u24 v{a + 1}, 18, v{a + 1}")
    p.e(f"v_bfe_u32 v{a + 2}, v{V_LANE}, 1, 1")
    p.e(f"v_lshl_add_u32 v{a + 1}, v{a + 2}, 3, v{a + 1}")
    p.e(f"v_add_u32 v{a + 1}, s{st + 3}, v{a + 1}")
    p.e(f"v_lshrrev_b32 v{a}, 2, v{V_LANE}")
    p.e(f"v_mul_u32_u24 v{a}, 1152, v{a}")
    p.e(f"v_lshl_add_u32 v{a}, v{a + 1}, 1, v{a}")
    make_srd(p, SRD_B, KREG["wq"], 576 * 1152)
    p.e(f"s_mul_i32 s{st + 4}, s{S_W}, {9 * 16 * 1152}")
    p.e(f"s_mul_i32 s{st + 5}, s{S_W}, {9 * 1024}")
    p.e(f"s_add_u32 s{st + 5}, s{st + 5}, {RL_IMG}")
    for i in range(9):
        p.e(f"s_add_u32 m0, s{st + 5}, {1024 * i}")
        p.e(f"buffer_load_dwordx4 v{a}, {sr(SRD_B, 4)}, s{st + 4} offen lds")
        p.e(f"s_add_u32 s{st + 4}, s{st + 4}, {16 * 1152}")
    p.e(f"s_mul_i32 s{st}, s{st}, 18")
    p.e(f"s_add_u32 s{st}, s{st}, s{st + 1}")
    p.e(f"s_mov_b32 s{S_RLT}, 64")
    p.e(f"s_branch {name}_qc")
    p.label(f"{name}_ql")
    p.e(f"s_sub_u32 s{st + 1}, s{s_job}, 32")
    p.e(f"s_lshr_b32 s{st}, s{st + 1}, 1")
    p.e(f"s_and_b32 s{st + 1}, s{st + 1}, 1")
    p.e(f"s_lshl_b32 s{st + 2}, s{st}, 4")
    p.e(f"s_lshl_b32 s{st + 3}, s{st + 1}, 3")
    p.e(f"s_add_u32 s{st + 2}, s{st + 2}, s{st + 3}")
    p.e(f"v_and_b32 v{a + 1}, 1, v{V_LANE}")
    p.e(f"v_bfe_u32 v{a + 2}, v{V_LANE}, 1, 2")
    p.e(f"v_lshl_add_u32 v{a + 1}, v{a + 1}, 2, v{a + 2}")
    p.e(f"v_add_u32 v{a + 1}, s{st + 2}, v{a + 1}")
    p.e(f"v_mul_u32_u24 v{a + 1}, 36, v{a + 1}")
    p.e(f"v_add_u32 v{a + 1}, 32, v{a + 1}")
    p.e(f"v_lshrrev_b32 v{a}, 3, v{V_LANE}")
    p.e(f"v_mul_u32_u24 v{a}, 1152, v{a}")
    p.e(f"v_add_u32 v{a}, v{a}, v{a + 1}")
    make_srd(p, SRD_B, KREG["wq"], 576 * 1152)
    p.e(f"s_mul_i32 s{st + 4}, s{S_W}, {144 * 1152}")
    p.e(f"s_mul_i32 s{st + 5}, s{S_W}, {144 * 32}")
    p.e(f"s_add_u32 s{st + 5}, s{st + 5}, {RL_IMG}")
    for i in range(18):
        p.e(f"s_add_u32 m0, s{st + 5}, {256 * i}")
        p.e(f"buffer_load_dword v{a}, {sr(SRD_B, 4)}, s{st + 4} offen lds")
        p.e(f"s_add_u32 s{st + 4}, s{st + 4}, {8 * 1152}")
    p.e(f"s_mul_i32 s{st}, s{st}, 18")
    p.e(f"s_add_u32 s{st}, s{st}, s{st + 1}")
    p.e(f"s_add_u32 s{st}, s{st}, 16")
    p.e(f"s_mov_b32 s{S_RLT}, 32")
    p.label(f"{name}_qc")
    p.e(f"s_mul_i32 s{st}, s{st}, {18 * 1024}")
    p.e(f"s_lshl_b32 s{st + 1}, s{S_W}, 10")
    p.e(f"s_add_u32 s{st}, s{st}, s{st + 1}")
    p.e(f"s_add_u32 s{S_RLD}, s{st}, {hx(L.WQF)}")
    p.e(f"s_mov_b32 s{S_RLS}, 4096")
    p.e(f"s_cmp_lt_u32 s{S_W}, 2")
    p.e(f"s_cselect_b32 s{S_RLN}, 5, 4")
    p.e(f"s_lshl_b32 s{st + 1}, s{S_W}, 5")
    p.e(f"v_lshrrev_b32 v{V_TRA}, 2, v{V_LANE}")
    p.e(f"v_add_u32 v{V_TRA}, s{st + 1}, v{V_TRA}")
    p.e(f"v_mul_lo_u32 v{V_TRA}, s{S_RLT}, v{V_TRA}")
    p.e(f"s_lshr_b32 s{st + 2}, s{S_RLT}, 2")
    p.e(f"v_and_b32 v{a + 1}, 3, v{V_LANE}")
    p.e(f"v_mul_lo_u32 v{a + 1}, s{st + 2}, v{a + 1}")
    p.e(f"v_add_u32 v{V_TRA}, v{V_TRA}, v{a + 1}")
    p.e(f"v_add_u32 v{V_TRA}, {RL_IMG}, v{V_TRA}")
    p.e(f"s_lshl_b32 s98, s{S_RLT}, 7")
    p.e(f"s_lshl_b32 s99, s{S_RLT}, 4")
    p.e(f"s_branch {name}_end")
    p.label(f"{name}_wo")
    p.e(f"s_sub_u32 s{st + 5}, s{s_job}, 36")
    p.e(f"s_cmp_ge_u32 s{st + 5}, 9")
    p.e(f"s_cselect_b32 s{st}, 1, 0")
    p.e(f"s_mul_i32 s{st + 1}, s{st}, 9")
    p.e(f"s_sub_u32 s{st + 1}, s{st + 5}, s{st + 1}")
    p.e(f"s_lshl_b32 s{st + 2}, s{st}, 4")
    rho, kg, jh, r, row = a + 1, a + 2, a + 3, a + 4, a + 5
    p.e(f"s_cmp_eq_u32 s{st + 1}, 8")
    p.e(f"s_cselect_b32 s{st + 8}, 1, 0")
    p.e(f"s_lshl_b32 s{st + 3}, s{st + 1}, 1")
    p.e(f"s_add_u32 s{st + 3}, s{st + 3}, s{st + 2}")
    make_srd(p, SRD_B, KREG["wo"], 576 * 1152)

    def rows(dst, rho_reg):
        p.e(f"v_lshrrev_b32 v{kg}, 3, v{rho_reg}")
        p.e(f"v_bfe_u32 v{jh}, v{rho_reg}, 2, 1")
        p.e(f"v_and_b32 v{r}, 3, v{rho_reg}")
        p.e(f"v_and_b32 v{dst}, 1, v{kg}")
        p.e(f"v_add_u32 v{dst}, s{st + 3}, v{dst}")
        p.e(f"v_mul_u32_u24 v{dst}, 18, v{dst}")
        p.e(f"v_lshrrev_b32 v{row + 1}, 1, v{kg}")
        p.e(f"v_lshl_add_u32 v{dst}, v{row + 1}, 2, v{dst}")
        p.e(f"v_lshl_add_u32 v{dst}, v{jh}, 3, v{dst}")
        p.e(f"v_add_u32 v{dst}, v{dst}, v{r}")
        p.e(f"v_lshlrev_b32 v{row + 1}, 2, v{kg}")
        p.e(f"v_add_u32 v{row + 1}, s{st + 2}, v{row + 1}")
        p.e(f"v_mul_u32_u24 v{row + 1}, 18, v{row + 1}")
        p.e(f"v_mul_u32_u24 v{jh}, 36, v{jh}")
        p.e(f"v_add3_u32 v{row + 1}, v{row + 1}, v{jh}, 16")
        p.e(f"v_lshrrev_b32 v{jh}, 1, v{r}")
        p.e(f"v_mul_u32_u24 v{jh}, 18, v{jh}")
        p.e(f"v_and_b32 v{r}, 1, v{r}")
        p.e(f"v_add3_u32 v{row + 1}, v{row + 1}, v{jh}, v{r}")
        p.e(f"s_cmp_eq_u32 s{st + 8}, 1")
        p.e(f"s_cselect_b64 vcc, -1, 0")
        p.e(f"v_cndmask_b32 v{dst}, v{dst}, v{row + 1}, vcc")

    p.e(f"s_mul_i32 s{st + 4}, s{S_W}, 288")
    p.e(f"s_mul_i32 s{st + 9}, s{S_W}, {9 * 1024}")
    p.e(f"s_add_u32 s{st + 9}, s{st + 9}, {RL_IMG}")
    p.e(f"v_lshrrev_b32 v{rho}, 1, v{V_G}")
    p.e(f"v_mul_u32_u24 v{rho}, 18, v{rho}")
    p.e(f"v_and_b32 v{kg}, 1, v{V_G}")
    p.e(f"v_add_u32 v{rho}, v{rho}, v{kg}")
    p.e(f"s_cmp_eq_u32 s{st + 8}, 1")
    p.e(f"s_cselect_b64 vcc, -1, 0")
    p.e(f"v_cndmask_b32 v{rho}, v{V_G}, v{rho}, vcc")
    p.e(f"v_mul_u32_u24 v{a}, 1152, v{rho}")
    p.e(f"v_lshl_add_u32 v{a}, v{V_N}, 4, v{a}")
    p.e(f"s_mul_i32 s{st + 10}, s{st + 3}, 18")
    p.e(f"s_mul_i32 s{st + 11}, s{st + 2}, 18")
    p.e(f"s_add_u32 s{st + 11}, s{st + 11}, 16")
    for i in range(8):
        kgc, jhc = i >> 1, i & 1
        p.e(f"s_add_u32 s{st}, s{st + 10}, {18 * (kgc & 1) + 4 * (kgc >> 1) + 8 * jhc}")
        p.e(f"s_add_u32 s{st + 1}, s{st + 11}, {72 * kgc + 36 * jhc}")
        p.e(f"s_cmp_eq_u32 s{st + 8}, 1")
        p.e(f"s_cselect_b32 s{st}, s{st + 1}, s{st}")
        p.e(f"s_mul_i32 s{st}, s{st}, 1152")
        p.e(f"s_add_u32 s{st}, s{st}, s{st + 4}")
        p.e(f"s_add_u32 m0, s{st + 9}, {1024 * i}")
        p.e(f"buffer_load_dwordx4 v{a}, {sr(SRD_B, 4)}, s{st} offen lds")
    p.e(f"v_lshrrev_b32 v{rho}, 1, v{V_LANE}")
    rows(row, rho)
    p.e(f"v_mul_u32_u24 v{a}, 1152, v{row}")
    p.e(f"v_and_b32 v{rho}, 1, v{V_LANE}")
    p.e(f"v_lshl_add_u32 v{a}, v{rho}, 4, v{a}")
    p.e(f"v_add_u32 v{a}, 256, v{a}")
    p.e(f"s_add_u32 m0, s{st + 9}, 8192")
    p.e(f"buffer_load_dwordx4 v{a}, {sr(SRD_B, 4)}, s{st + 4} offen lds")
    p.e(f"s_mul_i32 s{st}, s{st + 5}, {36 * 1024}")
    p.e(f"s_mul_i32 s{st + 1}, s{S_W}, {9 * 1024}")
    p.e(f"s_add_u32 s{st}, s{st}, s{st + 1}")
    p.e(f"s_add_u32 s{S_RLD}, s{st}, {hx(L.WOF)}")
    p.e(f"s_mov_b32 s{S_RLS}, 1024")
    p.e(f"s_mov_b32 s{S_RLN}, 9")
    p.e(f"s_mov_b32 s{S_RLT}, 0")
    p.e(f"v_lshlrev_b32 v{rho}, 3, v{V_G}")
    p.e(f"v_bfe_u32 v{kg}, v{V_LANE}, 2, 2")
    p.e(f"v_add_u32 v{rho}, v{rho}, v{kg}")
    p.e(f"v_and_b32 v{jh}, 3, v{V_LANE}")
    p.e(f"v_lshlrev_b32 v{V_TRA}, 8, v{rho}")
    p.e(f"v_lshl_add_u32 v{V_TRA}, v{jh}, 3, v{V_TRA}")
    p.e(f"v_add_u32 v{V_TRA}, s{st + 9}, v{V_TRA}")
    p.e(f"v_lshlrev_b32 v13, 5, v{rho}")
    p.e(f"v_lshl_add_u32 v13, v{jh}, 3, v13")
    p.e(f"s_add_u32 s{st + 9}, s{st + 9}, 8192")
    p.e(f"v_add_u32 v13, s{st + 9}, v13")
    p.label(f"{name}_end")


def relayout_finish(p, name):
    a = V_T0
    out = 104
    p.e(f"s_cmp_eq_u32 s{S_RLN}, 0")
    p.e(f"s_cbranch_scc1 {name}_fin")
    p.e(f"v_add_u32 v{a}, s{S_RLD}, v{V_L16}")
    p.e(f"s_cmp_eq_u32 s{S_RLN}, 9")
    p.e(f"s_cbranch_scc1 {name}_fo")
    p.e(f"v_add_u32 v{a + 1}, s99, v{V_TRA}")
    for i in range(5):
        if i == 4:
            p.e(f"s_cmp_lt_u32 s{S_RLN}, 5")
            p.e(f"s_cbranch_scc1 {name}_fin")
        o = out + 4 * (i % 2)
        p.e(f"ds_read_b64_tr_b16 {vr(o, 2)}, v{V_TRA}")
        p.e(f"ds_read_b64_tr_b16 {vr(o + 2, 2)}, v{a + 1}")
        p.e(f"v_add_u32 v{V_TRA}, s98, v{V_TRA}")
        p.e(f"v_add_u32 v{a + 1}, s98, v{a + 1}")
        p.e("s_waitcnt lgkmcnt(0)")
        p.e(f"global_store_dwordx4 v{a}, {vr(o, 4)}, s[{S_WS}:{S_WS + 1}] WSC")
        p.e(f"v_add_u32 v{a}, s{S_RLS}, v{a}")
    p.e(f"s_branch {name}_fin")
    p.label(f"{name}_fo")
    for t in range(9):
        o = out + 4 * t
        if t < 8:
            p.e(f"ds_read_b64_tr_b16 {vr(o, 2)}, v{V_TRA} offset:{32 * t}")
            p.e(f"ds_read_b64_tr_b16 {vr(o + 2, 2)}, v{V_TRA} offset:{32 * t + 1024}")
        else:
            p.e(f"ds_read_b64_tr_b16 {vr(o, 2)}, v13")
            p.e(f"ds_read_b64_tr_b16 {vr(o + 2, 2)}, v13 offset:128")
    p.e("s_waitcnt lgkmcnt(0)")
    for t in range(9):
        p.e(f"global_store_dwordx4 v{a}, {vr(out + 4 * t, 4)}, s[{S_WS}:{S_WS + 1}] WSC")
        p.e(f"v_add_u32 v{a}, 1024, v{a}")
    p.label(f"{name}_fin")
```

```python
import sys
from common import *
import parts as P
from parts import *
import conv as CV
import attn as AT
import gen as G
import start as ST

S_NONCE = 86
S_ROLE = 81
S_CH0 = 80
S_LAYER = 83
ST_KV1, ST_Y, ST_P1, ST_KV2, ST_P2, ST_UT = 0, 1, 2, 3, 4, 5
S_CVACT = 87
S_NYOUNG = 74
SPIN_MAX = 400000
_lab = [0]


def uid(s):
    _lab[0] += 1
    return f"L_{s}{_lab[0]}"


def flag_set(p, stage):
    p.e("s_waitcnt vmcnt(0)")
    p.e("s_barrier")
    lab = uid("fs")
    p.e(f"s_cmp_lg_u32 s{S_W}, 0")
    p.e(f"s_cbranch_scc1 {lab}")
    p.e(f"s_lshl_b32 s{S_T0}, s{S_PAIR}, 1")
    p.e(f"s_add_u32 s{S_T0}, s{S_T0}, s{S_HH}")
    p.e(f"s_lshl_b32 s{S_T0}, s{S_T0}, 7")
    p.e(f"s_add_u32 s{S_T0}, s{S_T0}, {hx(L.FLAGS + stage * 32768)}")
    p.e(f"v_mov_b32 v{V_T0}, s{S_T0}")
    p.e(f"v_mov_b32 v{V_T0 + 1}, s{S_NONCE}")
    p.e("s_mov_b64 exec, 1")
    p.e(f"global_store_dword v{V_T0}, v{V_T0 + 1}, s[{S_WS}:{S_WS + 1}] sc1")
    p.e("s_mov_b64 exec, -1")
    p.label(lab)


def flag_store(p, stage, wave=0):
    lab = uid("ft")
    p.e(f"s_cmp_lg_u32 s{S_W}, {wave}")
    p.e(f"s_cbranch_scc1 {lab}")
    p.if_begin()
    p.e(f"s_lshl_b32 s{S_T0}, s{S_PAIR}, 1")
    p.e(f"s_add_u32 s{S_T0}, s{S_T0}, s{S_HH}")
    p.e(f"s_lshl_b32 s{S_T0}, s{S_T0}, 7")
    p.e(f"s_add_u32 s{S_T0}, s{S_T0}, {hx(L.FLAGS + stage * 32768)}")
    p.e(f"v_mov_b32 v{V_T0}, s{S_T0}")
    p.e(f"v_mov_b32 v{V_T0 + 1}, s{S_NONCE}")
    p.e("s_mov_b64 exec, 1")
    p.e(f"global_store_dword v{V_T0}, v{V_T0 + 1}, s[{S_WS}:{S_WS + 1}] sc1")
    p.e("s_mov_b64 exec, -1")
    p.label(lab)
    p.if_end()


def poll(p, vaddr):
    lab = uid("pl")
    p.e(f"s_mov_b32 s{S_T0 + 1}, 0")
    p.label(lab)
    p.e(f"global_load_dword v{V_T0 + 1}, v{vaddr}, s[{S_WS}:{S_WS + 1}] sc1")
    p.e(f"s_add_u32 s{S_T0 + 1}, s{S_T0 + 1}, 1")
    p.e("s_waitcnt vmcnt(0)")
    p.e(f"v_cmp_ne_u32 vcc, s{S_NONCE}, v{V_T0 + 1}")
    p.e(f"s_cmp_gt_u32 s{S_T0 + 1}, {SPIN_MAX}")
    p.e(f"s_cbranch_scc1 {lab}_x")
    p.e(f"s_cbranch_vccnz {lab}")
    p.label(lab + "_x")


def poll_all(p, stage, barrier=True):
    p.e(f"s_lshl_b32 s{S_T0}, s{S_W}, 13")
    p.e(f"s_add_u32 s{S_T0}, s{S_T0}, {hx(L.FLAGS + stage * 32768)}")
    p.e(f"v_lshlrev_b32 v{V_T0}, 7, v{V_LANE}")
    p.e(f"v_add_u32 v{V_T0}, s{S_T0}, v{V_T0}")
    poll(p, V_T0)
    if barrier:
        p.e("s_barrier")


def poll_partner(p, stage):
    p.e(f"s_lshl_b32 s{S_T0}, s{S_PAIR}, 1")
    p.e(f"s_add_u32 s{S_T0}, s{S_T0}, s{S_HH}")
    p.e(f"s_xor_b32 s{S_T0}, s{S_T0}, 1")
    p.e(f"s_lshl_b32 s{S_T0}, s{S_T0}, 7")
    p.e(f"s_add_u32 s{S_T0}, s{S_T0}, {hx(L.FLAGS + stage * 32768)}")
    p.e(f"v_mov_b32 v{V_T0}, s{S_T0}")
    poll(p, V_T0)


def save_x(p, X):
    pass


LDS_XS = 150784


def k_fused(name):
    p = Prog()
    for k in ("KVSC", "WSC", "YSC", "PSC", "PLD"):
        p.subst[k] = "sc1"
    done = name + "_done"
    stamp = G.stamp
    SPAN = "--span" in sys.argv
    if SPAN:
        p.e("s_memrealtime s[100:101]")
    prologue(p, done=done, allptrs=True)
    if G.STAMPS == 1:
        load_ptr(p, 88, "dbg")
    chain_addr_setup(p)
    p.e("s_waitcnt lgkmcnt(0)")
    stamp(p, 0)
    stamp(p, 14, real=True)
    make_srd(p, SRD_A, KREG["x"], L.S * L.D * 2)
    load_x_rows(p, SRD_A)
    p.e(f"s_cmp_eq_u32 s{S_HH}, 0")
    p.e(f"s_cselect_b32 s{S_T0 + 6}, s{KREG['wk']}, s{KREG['wv']}")
    p.e(f"s_cselect_b32 s{S_T0 + 7}, s{KREG['wk'] + 1}, s{KREG['wv'] + 1}")
    make_srd(p, SRD_B, S_T0 + 6, 576 * 36)
    CV.ut_issue(p)
    ST.wkv_dma(p, SRD_B)
    p.e(f"s_add_u32 s{S_T0 + 10}, s{S_WS}, {hx(L.EPOCH)}")
    p.e(f"s_addc_u32 s{S_T0 + 11}, s{S_WS + 1}, 0")
    p.e(f"s_load_dword s{S_NONCE}, s[{S_T0 + 10}:{S_T0 + 11}], 0")
    p.e(f"s_cmp_lt_u32 s{S_SLOT}, 24")
    p.e(f"s_cselect_b32 s{S_ROLE}, 1, 0")
    p.e(f"s_cbranch_scc0 {name}_r_rl")
    p.e(f"s_mul_i32 s{S_CH0}, s{S_XCD}, 72")
    p.e(f"s_mul_i32 s3, s{S_SLOT}, 3")
    p.e(f"s_add_u32 s{S_CH0}, s{S_CH0}, s3")
    p.e(f"s_branch {name}_r_end")
    p.label(f"{name}_r_rl")
    p.e(f"s_lshl_b32 s{S_CH0}, s{S_XCD}, 3")
    p.e(f"s_add_u32 s{S_CH0}, s{S_CH0}, s{S_SLOT}")
    p.e(f"s_sub_u32 s{S_CH0}, s{S_CH0}, 24")
    p.label(f"{name}_r_end")
    p.e(f"s_cmp_lt_u32 s{S_W}, 3")
    p.e(f"s_cselect_b32 s{S_CVACT}, s{S_ROLE}, 0")
    stamp(p, 1)
    p.e("s_waitcnt vmcnt(0)" if False else "s_nop 0")
    CV.ut_round(p, 0)
    CV.ut_extra(p)
    p.e(f"s_cmp_eq_u32 s{S_ROLE}, 1")
    p.e(f"s_cbranch_scc0 {name}_nofi")
    p.if_begin()
    CV.conv_filter_issue(p, S_CH0)
    p.e(f"s_mov_b32 s{S_NYOUNG}, 19")
    p.e(f"s_branch {name}_issued")
    p.if_end()
    p.label(f"{name}_nofi")
    p.if_begin()
    ST.relayout_issue(p, S_CH0, name + "_rl")
    p.e(f"s_mov_b32 s{S_NYOUNG}, 9")
    p.e(f"s_sub_u32 s3, s{S_CH0}, 32")
    p.e(f"s_cmp_lt_u32 s3, 4")
    p.e(f"s_cselect_b32 s{S_NYOUNG}, 18, s{S_NYOUNG}")
    p.e(f"s_cmp_ge_u32 s{S_CH0}, 54")
    p.e(f"s_cselect_b32 s{S_NYOUNG}, 0, s{S_NYOUNG}")
    p.if_end()
    p.label(f"{name}_issued")
    unpack_x_rows(p)
    row_stats(p, V_X, V_TMP, LDS_ST, V_STW, V_STR, V_MU, V_RS)
    normalize_to_xb(p, V_X, V_TMP, V_MU, V_RS, V_XBE, V_XBO)
    p.e("s_waitcnt lgkmcnt(0)")
    for n in (0, 9, 18):
        lab = uid("wy")
        p.e(f"s_cmp_eq_u32 s{S_NYOUNG}, {n}")
        p.e(f"s_cbranch_scc0 {lab}")
        p.if_begin()
        p.e(f"s_waitcnt vmcnt({n})")
        p.label(lab)
        p.if_end()
    p.e("s_waitcnt vmcnt(19)")
    p.e("s_barrier")
    p.e(f"s_add_u32 s{S_NONCE}, s{S_NONCE}, 1")
    stamp(p, 2)
    flag_store(p, ST_UT, wave=2)
    ws_base(p, S_P0, L.KVB)
    ST.kv_project_store(p, S_P0, name + "_kv1")
    p.e(f"s_cmp_eq_u32 s{S_ROLE}, 0")
    p.e(f"s_cbranch_scc0 {name}_norl")
    p.if_begin()
    p.e("s_waitcnt vmcnt(0)")
    p.e("s_barrier")
    ST.relayout_finish(p, name + "_rl")
    p.label(f"{name}_norl")
    p.if_end()
    for i in range(16):
        p.e(f"v_accvgpr_write_b32 a{240 + i}, v{V_XR + i}")
    p.e(f"v_mov_b32 v{V_XS16}, v{V_XR + 16}")
    p.e(f"v_mov_b32 v{V_XS16 + 1}, v{V_XR + 17}")
    stamp(p, 3)
    flag_set(p, ST_KV1)
    p.e(f"s_cmp_eq_u32 s{S_ROLE}, 1")
    p.e(f"s_cbranch_scc0 {name}_nofb")
    p.if_begin()
    CV.conv_filter_build(p, S_CH0)
    stamp(p, 4)
    poll_all(p, ST_UT)
    CV.conv_u_dma(p, S_CH0)
    p.e("s_waitcnt vmcnt(0) lgkmcnt(0)")
    p.e("s_barrier")
    p.label(f"{name}_nofb")
    p.if_end()
    stamp(p, 5)

    V_LK = 250

    def look_issue(stage):
        p.e(f"s_lshl_b32 s{S_T0}, s{S_W}, 13")
        p.e(f"s_add_u32 s{S_T0}, s{S_T0}, {hx(L.FLAGS + stage * 32768)}")
        p.e(f"v_lshlrev_b32 v{V_LK + 1}, 7, v{V_LANE}")
        p.e(f"v_add_u32 v{V_LK + 1}, s{S_T0}, v{V_LK + 1}")
        p.e(f"global_load_dword v{V_LK}, v{V_LK + 1}, s[{S_WS}:{S_WS + 1}] sc1")

    def look_check():
        lab = uid("lk")
        p.e(f"v_cmp_ne_u32 vcc, s{S_NONCE}, v{V_LK}")
        p.e(f"s_cbranch_vccz {lab}")
        p.if_begin()
        poll(p, V_LK + 1)
        p.label(lab)
        p.if_end()
        p.e("s_barrier")

    def mid():
        look_check()
        stamp(p, 6)
        lab = uid("ep")
        p.e(f"s_or_b32 s{S_T0}, s2, s{S_W}")
        p.e(f"s_cmp_lg_u32 s{S_T0}, 0")
        p.e(f"s_cbranch_scc1 {lab}")
        p.if_begin()
        p.e(f"v_mov_b32 v{V_T0}, {hx(L.EPOCH)}")
        p.e(f"v_mov_b32 v{V_T0 + 1}, s{S_NONCE}")
        p.e("s_mov_b64 exec, 1")
        p.e(f"global_store_dword v{V_T0}, v{V_T0 + 1}, s[{S_WS}:{S_WS + 1}] sc1")
        p.e("s_mov_b64 exec, -1")
        p.label(lab)
        p.if_end()
        ws_base(p, AT.S_KV, L.KVB)
        lab2 = uid("nb")
        p.e(f"s_cmp_eq_u32 s{S_CVACT}, 0")
        p.e(f"s_cbranch_scc0 {lab2}")
        p.if_begin()
        for t in first_loads:
            p.e(t)
        p.label(lab2)
        p.if_end()
        AT.q_left(p, name + "_ql1", both_on=3)

    first_loads = []
    for tau in range(AT.KV_AHEAD):
        first_loads += AT.kv_tile_loads(tau)
    for ks in range(18):
        first_loads += AT.q_wload(ks, AT.QW + 4 * ks)

    AT.addr_setup(p)
    AT.weight_ptr_setup(p)
    look_issue(ST_KV1)
    ws_base(p, S_P0 + 2, L.YT)
    CV.conv_main(p, S_CH0, name + "_cv", S_P0 + 2, S_CVACT, stamp, mid, first_loads)
    stamp(p, 7)
    AT.q_main_compute(p)
    p.e(f"s_mov_b32 s{S_LAYER}, 0")
    p.loop_begin(name + "_layer")
    V_YF = 247

    def tail_hook():
        p.e(f"s_lshl_b32 s{S_T0}, s{S_W}, 13")
        p.e(f"s_add_u32 s{S_T0}, s{S_T0}, {hx(L.FLAGS + ST_Y * 32768)}")
        p.e(f"v_lshlrev_b32 v{V_YF + 1}, 7, v{V_LANE}")
        p.e(f"v_add_u32 v{V_YF + 1}, s{S_T0}, v{V_YF + 1}")
        p.e(f"global_load_dword v{V_YF}, v{V_YF + 1}, s[{S_WS}:{S_WS + 1}] sc1")

    def after_first():
        lab = uid("yfl")
        p.e(f"s_cmp_eq_u32 s{S_LAYER}, 0")
        p.e(f"s_cbranch_scc0 {lab}")
        p.if_begin()
        flag_store(p, ST_Y, wave=0)
        p.label(lab)
        p.if_end()

    AT.attention_layer(p, name + "_at", stamp, tail_hook, after_first)
    p.e(f"s_lshl_b32 s3, s{S_LAYER}, 3")
    stamp(p, 8, 3)
    XP = 168
    PSZ = 18432
    p.e(f"s_lshl_b32 s{S_T0}, s{S_PAIR}, 1")
    p.e(f"s_add_u32 s{S_T0}, s{S_T0}, s{S_HH}")
    p.e(f"s_mul_i32 s{S_T0 + 2}, s{S_T0}, {PSZ}")
    p.e(f"s_xor_b32 s{S_T0}, s{S_T0}, 1")
    p.e(f"s_mul_i32 s{S_T0 + 3}, s{S_T0}, {PSZ}")
    p.e(f"s_mul_i32 s{S_T0 + 1}, s{S_W}, 4608")
    p.e(f"s_mul_i32 s{S_T0 + 4}, s{S_LAYER}, {hx(L.PART_LAYER)}")
    p.e(f"s_add_u32 s{S_T0 + 1}, s{S_T0 + 1}, s{S_T0 + 4}")
    p.e(f"s_add_u32 s{S_T0 + 2}, s{S_T0 + 2}, s{S_T0 + 1}")
    p.e(f"s_add_u32 s{S_T0 + 3}, s{S_T0 + 3}, s{S_T0 + 1}")
    ws_base(p, S_P0 + 4, L.PART, S_T0 + 2)
    ws_base(p, S_P0 + 6, L.PART, S_T0 + 3)
    for t in range(9):
        p.e(f"v_cvt_pk_bf16_f32 v{XP + 2 * t}, v{AT.XA + 4 * t}, v{AT.XA + 4 * t + 1}")
        p.e(f"v_cvt_pk_bf16_f32 v{XP + 2 * t + 1}, v{AT.XA + 4 * t + 2}, v{AT.XA + 4 * t + 3}")
    p.e(f"v_lshlrev_b32 v{V_T0 + 2}, 3, v{V_LANE}")
    p.e(f"v_add_u32 v{V_T0 + 2}, 4096, v{V_T0 + 2}")
    for c in range(4):
        p.e(f"global_store_dwordx4 v{V_L16}, {vr(XP + 4 * c, 4)}, {sr(S_P0 + 4, 2)} offset:{1024 * c} sc1")
    p.e(f"global_store_dwordx2 v{V_T0 + 2}, {vr(XP + 16, 2)}, {sr(S_P0 + 4, 2)} sc1", wtok="PS")
    chain_addr_setup(p)
    for i in range(16):
        p.e(f"v_accvgpr_read_b32 v{V_XR + i}, a{240 + i}")
    p.e(f"v_mov_b32 v{V_XR + 16}, v{V_XS16}")
    p.e(f"v_mov_b32 v{V_XR + 17}, v{V_XS16 + 1}")
    unpack_x_rows(p)
    for i in range(18):
        p.e(f"v_pk_add_f32 {vr(V_X + 2 * i, 2)}, {vr(V_X + 2 * i, 2)}, {vr(AT.XA + 2 * i, 2)}")
    lab = uid("yf")
    p.e(f"v_cmp_ne_u32 vcc, s{S_NONCE}, v{V_YF}")
    p.e(f"s_cbranch_vccz {lab}")
    p.if_begin()
    poll(p, V_YF + 1)
    p.label(lab)
    p.if_end()
    load_ptr(p, S_T0 + 6, "wk")
    load_ptr(p, S_T0 + 8, "wv")
    p.wait_tok("PS")
    p.e("s_barrier")
    flag_store_dyn(p, ST_P1, ST_P2 - ST_P1)
    p.e(f"s_lshl_b32 s3, s{S_LAYER}, 3")
    stamp(p, 9, 3)
    ws_base(p, S_P0 + 2, L.YT)
    y_loads(p, S_P0 + 2)
    p.e("s_waitcnt lgkmcnt(0)")
    p.e(f"s_cmp_eq_u32 s{S_HH}, 0")
    p.e(f"s_cselect_b32 s{S_T0 + 6}, s{S_T0 + 6}, s{S_T0 + 8}")
    p.e(f"s_cselect_b32 s{S_T0 + 7}, s{S_T0 + 7}, s{S_T0 + 9}")
    make_srd(p, SRD_B, S_T0 + 6, 576 * 36)
    ST.wkv_dma(p, SRD_B, ST.WK_IMG2)
    poll_partner_dyn(p, ST_P1, ST_P2 - ST_P1)
    p.e(f"v_lshlrev_b32 v{V_T0 + 2}, 3, v{V_LANE}")
    p.e(f"v_add_u32 v{V_T0 + 2}, 4096, v{V_T0 + 2}")
    for c in range(4):
        p.e(f"global_load_dwordx4 {vr(XP + 4 * c, 4)}, v{V_L16}, {sr(S_P0 + 6, 2)} offset:{1024 * c} sc1")
    p.e(f"global_load_dwordx2 {vr(XP + 16, 2)}, v{V_T0 + 2}, {sr(S_P0 + 6, 2)} sc1")
    PB = AT.XA
    for t in range(9):
        unpack_bf16x4(p, PB + 4 * t, XP + 2 * t)
    for i in range(18):
        p.e(f"v_pk_add_f32 {vr(V_X + 2 * i, 2)}, {vr(V_X + 2 * i, 2)}, {vr(PB + 2 * i, 2)}")
    p.e(f"s_lshl_b32 s3, s{S_LAYER}, 3")
    stamp(p, 10, 3)
    gate_chain(p, V_X, 0)
    p.e(f"s_cmp_eq_u32 s{S_LAYER}, 1")
    p.e(f"s_cbranch_scc1 {name}_final")
    AT.addr_setup(p)
    AT.weight_ptr_setup(p)
    AT.q_left_addr(p)
    def ln_xb():
        row_stats(p, V_X, V_TMP, LDS_ST + 512, V_STW, V_STR, V_MU, V_RS)
        normalize_to_xb(p, V_X, V_TMP, V_MU, V_RS, V_XBE, V_XBO)
        p.e("s_waitcnt lgkmcnt(0)")
        p.e("s_barrier")

    def park():
        for t in range(9):
            p.e(f"v_cvt_pk_bf16_f32 v{V_XR + 2 * t}, v{V_X + 4 * t}, v{V_X + 4 * t + 1}")
            p.e(f"v_cvt_pk_bf16_f32 v{V_XR + 2 * t + 1}, v{V_X + 4 * t + 2}, v{V_X + 4 * t + 3}")
        for i in range(16):
            p.e(f"v_accvgpr_write_b32 a{240 + i}, v{V_XR + i}")
        p.e(f"v_mov_b32 v{V_XS16}, v{V_XR + 16}")
        p.e(f"v_mov_b32 v{V_XS16 + 1}, v{V_XR + 17}")

    p.e(f"s_cmp_lt_u32 s{S_W}, 2")
    p.e(f"s_cbranch_scc1 {name}_b01")
    p.if_begin()
    i0 = len(p.items)
    ln_xb()
    park()
    p.sprinkle(i0, AT.q_pref_list(True), first=2)
    AT.q_left_compute(p, name + "_ql2")
    p.e("s_barrier")
    p.e(f"s_branch {name}_bj")
    p.if_end()
    p.label(f"{name}_b01")
    p.if_begin()
    ln_xb()
    ws_base(p, S_P0, L.KVB + L.KV_LAYER)
    ST.kv_project_store(p, S_P0, name + "_kv2", ST.WK_IMG2)
    park()
    p.e("s_waitcnt vmcnt(0)")
    p.e("s_barrier")
    flag_store(p, ST_KV2, wave=0)
    stamp(p, 11)
    for t in AT.q_pref_list(False):
        p.e(t)
    p.if_end()
    p.label(f"{name}_bj")
    AT.q_main_compute(p, AT.QWA, agpr=True)
    poll_all(p, ST_KV2)
    stamp(p, 12)
    ws_base(p, AT.S_KV, L.KVB + L.KV_LAYER)
    AT.kv_first_loads(p)
    p.e(f"s_mov_b32 s{S_LAYER}, 1")
    p.e(f"s_branch {name}_layer")
    p.loop_end()
    p.fence()
    p.label(name + "_final")
    p.e("s_nop 7")
    load_ptr(p, S_T0 + 4, "out")
    p.e("s_waitcnt lgkmcnt(0)")
    make_srd(p, SRD_A, S_T0 + 4, L.S * L.D * 2)
    p.e(f"s_lshr_b32 s{S_T0}, s{S_W}, 1")
    p.e(f"s_cmp_eq_u32 s{S_T0}, s{S_HH}")
    p.e(f"s_cbranch_scc0 {name + '_span' if SPAN else done}")
    store_out_rows(p, SRD_A, V_X)
    stamp(p, 26)
    stamp(p, 15, real=True)
    p.e(f"s_branch {name}_exit")
    p.fence()
    p.label(name + "_at_slow")
    AT.slow_path(p, name + "_sp", name + "_at_slow_back")
    p.fence()
    p.label(name + "_exit")
    if SPAN:
        p.label(name + "_span")
        p.e("s_waitcnt vmcnt(0)")
        p.e("s_memrealtime s[90:91]")
        p.e("s_waitcnt lgkmcnt(0)")
        p.e("v_mov_b32 v16, s100")
        p.e("v_mov_b32 v17, s90")
        p.e("s_lshl_b32 s3, s2, 5")
        p.e(f"s_lshl_b32 s28, s{S_W}, 3")
        p.e("s_add_u32 s3, s3, s28")
        p.e(f"s_add_u32 s3, s3, {hx(0x2900000)}")
        p.e("v_mov_b32 v18, s3")
        p.e(f"global_store_dwordx2 v18, v[16:17], s[{S_WS}:{S_WS + 1}]")
    p.label(done)
    p.e("s_endpgm")
    txt = G.kernel_text(name, p)
    print(name, "counts", p.count, "auto nops", p.nauto_nop, file=sys.stderr)
    return txt, G.descriptor(name, 256, 256, sgpr=102), max(AT.A_END, ST.WK_IMG_END)


V_XS16 = 252


def dbg_dump(p, X, which):
    if "--dump" not in sys.argv:
        return
    lab = uid("dd")
    p.e(f"s_or_b32 s{S_T0}, s{S_HH}, s{S_LAYER}")
    p.e(f"s_cmp_lg_u32 s{S_T0}, 0")
    p.e(f"s_cbranch_scc1 {lab}")
    p.e(f"s_mul_i32 s{S_T0}, s{S_PAIR}, 36864")
    p.e(f"s_mul_i32 s{S_T0 + 1}, s{S_W}, 9216")
    p.e(f"s_add_u32 s{S_T0}, s{S_T0}, s{S_T0 + 1}")
    ws_base(p, S_P0 + 10, L.X2G + which * 0x500000, S_T0)
    for t in range(9):
        p.e(f"v_add_u32 v{V_T0 + 1}, {1024 * t}, v{V_L16}")
        p.e(f"global_store_dwordx4 v{V_T0 + 1}, {vr(X + 4 * t, 4)}, {sr(S_P0 + 10, 2)}")
    p.label(lab)


def flag_set_dyn(p, stage, dstage):
    p.e("s_waitcnt vmcnt(0)")
    p.e("s_barrier")
    lab = uid("fs")
    p.e(f"s_cmp_lg_u32 s{S_W}, 0")
    p.e(f"s_cbranch_scc1 {lab}")
    p.e(f"s_lshl_b32 s{S_T0}, s{S_PAIR}, 1")
    p.e(f"s_add_u32 s{S_T0}, s{S_T0}, s{S_HH}")
    p.e(f"s_lshl_b32 s{S_T0}, s{S_T0}, 7")
    p.e(f"s_mul_i32 s{S_T0 + 1}, s{S_LAYER}, {dstage * 32768}")
    p.e(f"s_add_u32 s{S_T0}, s{S_T0}, s{S_T0 + 1}")
    p.e(f"s_add_u32 s{S_T0}, s{S_T0}, {hx(L.FLAGS + stage * 32768)}")
    p.e(f"v_mov_b32 v{V_T0}, s{S_T0}")
    p.e(f"v_mov_b32 v{V_T0 + 1}, s{S_NONCE}")
    p.e("s_mov_b64 exec, 1")
    p.e(f"global_store_dword v{V_T0}, v{V_T0 + 1}, s[{S_WS}:{S_WS + 1}] sc1")
    p.e("s_mov_b64 exec, -1")
    p.label(lab)


def flag_store_dyn(p, stage, dstage):
    lab = uid("fs")
    p.e(f"s_cmp_lg_u32 s{S_W}, 0")
    p.e(f"s_cbranch_scc1 {lab}")
    p.if_begin()
    p.e(f"s_lshl_b32 s{S_T0}, s{S_PAIR}, 1")
    p.e(f"s_add_u32 s{S_T0}, s{S_T0}, s{S_HH}")
    p.e(f"s_lshl_b32 s{S_T0}, s{S_T0}, 7")
    p.e(f"s_mul_i32 s{S_T0 + 1}, s{S_LAYER}, {dstage * 32768}")
    p.e(f"s_add_u32 s{S_T0}, s{S_T0}, s{S_T0 + 1}")
    p.e(f"s_add_u32 s{S_T0}, s{S_T0}, {hx(L.FLAGS + stage * 32768)}")
    p.e(f"v_mov_b32 v{V_T0}, s{S_T0}")
    p.e(f"v_mov_b32 v{V_T0 + 1}, s{S_NONCE}")
    p.e("s_mov_b64 exec, 1")
    p.e(f"global_store_dword v{V_T0}, v{V_T0 + 1}, s[{S_WS}:{S_WS + 1}] sc1")
    p.e("s_mov_b64 exec, -1")
    p.label(lab)
    p.if_end()


def poll_partner_dyn(p, stage, dstage):
    p.e(f"s_lshl_b32 s{S_T0}, s{S_PAIR}, 1")
    p.e(f"s_add_u32 s{S_T0}, s{S_T0}, s{S_HH}")
    p.e(f"s_xor_b32 s{S_T0}, s{S_T0}, 1")
    p.e(f"s_lshl_b32 s{S_T0}, s{S_T0}, 7")
    p.e(f"s_mul_i32 s{S_T0 + 2}, s{S_LAYER}, {dstage * 32768}")
    p.e(f"s_add_u32 s{S_T0}, s{S_T0}, s{S_T0 + 2}")
    p.e(f"s_add_u32 s{S_T0}, s{S_T0}, {hx(L.FLAGS + stage * 32768)}")
    p.e(f"v_mov_b32 v{V_T0}, s{S_T0}")
    poll(p, V_T0)


def build_single(name, text, desc, lds):
    s = G.HEADER
    s += f"; @launch grid=(256,1,1) block=(256,1,1) lds={lds}\n"
    s += '.amdgcn_target "amdgcn-amd-amdhsa--gfx950"\n.text\n' + text
    s += '.section .rodata,"a"\n' + desc
    return s


if __name__ == "__main__":
    G.STAMPS = 2 if "--stamps2" in sys.argv else (1 if "--stamps" in sys.argv else 0)
    name = G.NAME + "_kernel"
    t, d, l = k_fused(name)
    open(sys.argv[1], "w").write(build_single(name, t, d, l))
```

```python
import sys
from common import *
import parts as P
from parts import *
import conv as CV
import attn as AT
import gen as G
import start as ST

S_NONCE = 86
S_ROLE = 81
S_CH0 = 80
S_LAYER = 83
ST_KV1, ST_Y, ST_P1, ST_KV2, ST_P2, ST_UT = 0, 1, 2, 3, 4, 5
S_CVACT = 87
S_NYOUNG = 74
SPIN_MAX = 400000
_lab = [0]


def uid(s):
    _lab[0] += 1
    return f"L_{s}{_lab[0]}"


def flag_set(p, stage):
    p.e("s_waitcnt vmcnt(0)")
    p.e("s_barrier")
    lab = uid("fs")
    p.e(f"s_cmp_lg_u32 s{S_W}, 0")
    p.e(f"s_cbranch_scc1 {lab}")
    p.e(f"s_lshl_b32 s{S_T0}, s{S_PAIR}, 1")
    p.e(f"s_add_u32 s{S_T0}, s{S_T0}, s{S_HH}")
    p.e(f"s_lshl_b32 s{S_T0}, s{S_T0}, 7")
    p.e(f"s_add_u32 s{S_T0}, s{S_T0}, {hx(L.FLAGS + stage * 32768)}")
    p.e(f"v_mov_b32 v{V_T0}, s{S_T0}")
    p.e(f"v_mov_b32 v{V_T0 + 1}, s{S_NONCE}")
    p.e("s_mov_b64 exec, 1")
    p.e(f"global_store_dword v{V_T0}, v{V_T0 + 1}, s[{S_WS}:{S_WS + 1}] sc1")
    p.e("s_mov_b64 exec, -1")
    p.label(lab)


def flag_store(p, stage, wave=0):
    lab = uid("ft")
    p.e(f"s_cmp_lg_u32 s{S_W}, {wave}")
    p.e(f"s_cbranch_scc1 {lab}")
    p.if_begin()
    p.e(f"s_lshl_b32 s{S_T0}, s{S_PAIR}, 1")
    p.e(f"s_add_u32 s{S_T0}, s{S_T0}, s{S_HH}")
    p.e(f"s_lshl_b32 s{S_T0}, s{S_T0}, 7")
    p.e(f"s_add_u32 s{S_T0}, s{S_T0}, {hx(L.FLAGS + stage * 32768)}")
    p.e(f"v_mov_b32 v{V_T0}, s{S_T0}")
    p.e(f"v_mov_b32 v{V_T0 + 1}, s{S_NONCE}")
    p.e("s_mov_b64 exec, 1")
    p.e(f"global_store_dword v{V_T0}, v{V_T0 + 1}, s[{S_WS}:{S_WS + 1}] sc1")
    p.e("s_mov_b64 exec, -1")
    p.label(lab)
    p.if_end()


def poll(p, vaddr):
    lab = uid("pl")
    p.e(f"s_mov_b32 s{S_T0 + 1}, 0")
    p.label(lab)
    p.e(f"global_load_dword v{V_T0 + 1}, v{vaddr}, s[{S_WS}:{S_WS + 1}] sc1")
    p.e(f"s_add_u32 s{S_T0 + 1}, s{S_T0 + 1}, 1")
    p.e("s_waitcnt vmcnt(0)")
    p.e(f"v_cmp_ne_u32 vcc, s{S_NONCE}, v{V_T0 + 1}")
    p.e(f"s_cmp_gt_u32 s{S_T0 + 1}, {SPIN_MAX}")
    p.e(f"s_cbranch_scc1 {lab}_x")
    p.e(f"s_cbranch_vccnz {lab}")
    p.label(lab + "_x")


def poll_all(p, stage, barrier=True):
    p.e(f"s_lshl_b32 s{S_T0}, s{S_W}, 13")
    p.e(f"s_add_u32 s{S_T0}, s{S_T0}, {hx(L.FLAGS + stage * 32768)}")
    p.e(f"v_lshlrev_b32 v{V_T0}, 7, v{V_LANE}")
    p.e(f"v_add_u32 v{V_T0}, s{S_T0}, v{V_T0}")
    poll(p, V_T0)
    if barrier:
        p.e("s_barrier")


def poll_partner(p, stage):
    p.e(f"s_lshl_b32 s{S_T0}, s{S_PAIR}, 1")
    p.e(f"s_add_u32 s{S_T0}, s{S_T0}, s{S_HH}")
    p.e(f"s_xor_b32 s{S_T0}, s{S_T0}, 1")
    p.e(f"s_lshl_b32 s{S_T0}, s{S_T0}, 7")
    p.e(f"s_add_u32 s{S_T0}, s{S_T0}, {hx(L.FLAGS + stage * 32768)}")
    p.e(f"v_mov_b32 v{V_T0}, s{S_T0}")
    poll(p, V_T0)


def save_x(p, X):
    pass


LDS_XS = 150784


def k_fused(name):
    p = Prog()
    for k in ("KVSC", "WSC", "YSC", "PSC", "PLD"):
        p.subst[k] = "sc1"
    done = name + "_done"
    stamp = G.stamp
    SPAN = "--span" in sys.argv
    if SPAN:
        p.e("s_memrealtime s[100:101]")
    prologue(p, done=done, allptrs=True)
    if G.STAMPS == 1:
        load_ptr(p, 88, "dbg")
    chain_addr_setup(p)
    p.e("s_waitcnt lgkmcnt(0)")
    stamp(p, 0)
    stamp(p, 14, real=True)
    if "--nopf" not in sys.argv:
        lab = uid("pf")
        p.e(f"s_cmp_eq_u32 s{S_SLOT}, 31")
        p.e(f"s_cbranch_scc0 {lab}")
        p.if_begin()
        p.e("s_getpc_b64 s[30:31]")
        p.e(f"v_lshlrev_b32 v16, 7, v{V_TID}")
        p.e("global_load_dword v17, v16, s[30:31]")
        p.e(f"v_add_u32 v16, 32768, v16")
        p.e(f"v_cmp_gt_u32 vcc, CODE_BYTES, v16")
        p.e("s_and_saveexec_b64 s[32:33], vcc")
        p.e(f"s_cbranch_execz {lab}_b")
        p.e("global_load_dword v18, v16, s[30:31]")
        p.label(lab + "_b")
        p.e("s_mov_b64 exec, s[32:33]")
        p.label(lab)
        p.if_end()
    make_srd(p, SRD_A, KREG["x"], L.S * L.D * 2)
    load_x_rows(p, SRD_A)
    p.e(f"s_cmp_eq_u32 s{S_HH}, 0")
    p.e(f"s_cselect_b32 s{S_T0 + 6}, s{KREG['wk']}, s{KREG['wv']}")
    p.e(f"s_cselect_b32 s{S_T0 + 7}, s{KREG['wk'] + 1}, s{KREG['wv'] + 1}")
    make_srd(p, SRD_B, S_T0 + 6, 576 * 36)
    CV.ut_issue(p)
    ST.wkv_dma(p, SRD_B)
    p.e(f"s_add_u32 s{S_T0 + 10}, s{S_WS}, {hx(L.EPOCH)}")
    p.e(f"s_addc_u32 s{S_T0 + 11}, s{S_WS + 1}, 0")
    p.e(f"s_load_dword s{S_NONCE}, s[{S_T0 + 10}:{S_T0 + 11}], 0")
    p.e(f"s_cmp_lt_u32 s{S_SLOT}, 24")
    p.e(f"s_cselect_b32 s{S_ROLE}, 1, 0")
    p.e(f"s_cbranch_scc0 {name}_r_rl")
    p.e(f"s_mul_i32 s{S_CH0}, s{S_XCD}, 72")
    p.e(f"s_mul_i32 s3, s{S_SLOT}, 3")
    p.e(f"s_add_u32 s{S_CH0}, s{S_CH0}, s3")
    p.e(f"s_branch {name}_r_end")
    p.label(f"{name}_r_rl")
    p.e(f"s_sub_u32 s{S_CH0}, s{S_SLOT}, 24")
    p.e(f"s_lshl_b32 s{S_CH0}, s{S_CH0}, 3")
    p.e(f"s_add_u32 s{S_CH0}, s{S_CH0}, s{S_XCD}")
    p.label(f"{name}_r_end")
    p.e(f"s_cmp_lt_u32 s{S_W}, 3")
    p.e(f"s_cselect_b32 s{S_CVACT}, s{S_ROLE}, 0")
    stamp(p, 1)
    p.e("s_waitcnt vmcnt(0)" if False else "s_nop 0")
    CV.ut_round(p, 0)
    CV.ut_extra(p)
    p.e(f"s_cmp_eq_u32 s{S_ROLE}, 1")
    p.e(f"s_cbranch_scc0 {name}_nofi")
    p.if_begin()
    CV.conv_filter_issue(p, S_CH0)
    p.e(f"s_mov_b32 s{S_NYOUNG}, 19")
    p.e(f"s_branch {name}_issued")
    p.if_end()
    p.label(f"{name}_nofi")
    p.if_begin()
    ST.relayout_issue(p, S_CH0, name + "_rl")
    p.e(f"s_mov_b32 s{S_NYOUNG}, 9")
    p.e(f"s_sub_u32 s3, s{S_CH0}, 32")
    p.e(f"s_cmp_lt_u32 s3, 4")
    p.e(f"s_cselect_b32 s{S_NYOUNG}, 18, s{S_NYOUNG}")
    p.e(f"s_cmp_ge_u32 s{S_CH0}, 54")
    p.e(f"s_cselect_b32 s{S_NYOUNG}, 0, s{S_NYOUNG}")
    p.if_end()
    p.label(f"{name}_issued")
    unpack_x_rows(p)
    row_stats(p, V_X, V_TMP, LDS_ST, V_STW, V_STR, V_MU, V_RS)
    normalize_to_xb(p, V_X, V_TMP, V_MU, V_RS, V_XBE, V_XBO)
    p.e("s_waitcnt lgkmcnt(0)")
    for n in (0, 9, 18):
        lab = uid("wy")
        p.e(f"s_cmp_eq_u32 s{S_NYOUNG}, {n}")
        p.e(f"s_cbranch_scc0 {lab}")
        p.if_begin()
        p.e(f"s_waitcnt vmcnt({n})")
        p.label(lab)
        p.if_end()
    p.e("s_waitcnt vmcnt(19)")
    p.e("s_barrier")
    p.e(f"s_add_u32 s{S_NONCE}, s{S_NONCE}, 1")
    stamp(p, 2)
    flag_store(p, ST_UT, wave=2)
    ws_base(p, S_P0, L.KVB)
    ST.kv_project_store(p, S_P0, name + "_kv1")
    p.e(f"s_cmp_eq_u32 s{S_ROLE}, 0")
    p.e(f"s_cbranch_scc0 {name}_norl")
    p.if_begin()
    p.e("s_waitcnt vmcnt(0)")
    p.e("s_barrier")
    ST.relayout_finish(p, name + "_rl")
    p.label(f"{name}_norl")
    p.if_end()
    for i in range(16):
        p.e(f"v_accvgpr_write_b32 a{240 + i}, v{V_XR + i}")
    p.e(f"v_mov_b32 v{V_XS16}, v{V_XR + 16}")
    p.e(f"v_mov_b32 v{V_XS16 + 1}, v{V_XR + 17}")
    stamp(p, 3)
    flag_set(p, ST_KV1)
    p.e(f"s_cmp_eq_u32 s{S_ROLE}, 1")
    p.e(f"s_cbranch_scc0 {name}_nofb")
    p.if_begin()
    CV.conv_filter_build(p, S_CH0)
    stamp(p, 4)
    poll_all(p, ST_UT)
    CV.conv_u_dma(p, S_CH0)
    p.e("s_waitcnt vmcnt(0) lgkmcnt(0)")
    p.e("s_barrier")
    p.label(f"{name}_nofb")
    p.if_end()
    stamp(p, 5)

    V_LK = 250

    def look_issue(stage):
        p.e(f"s_lshl_b32 s{S_T0}, s{S_W}, 13")
        p.e(f"s_add_u32 s{S_T0}, s{S_T0}, {hx(L.FLAGS + stage * 32768)}")
        p.e(f"v_lshlrev_b32 v{V_LK + 1}, 7, v{V_LANE}")
        p.e(f"v_add_u32 v{V_LK + 1}, s{S_T0}, v{V_LK + 1}")
        p.e(f"global_load_dword v{V_LK}, v{V_LK + 1}, s[{S_WS}:{S_WS + 1}] sc1")

    def look_check():
        lab = uid("lk")
        p.e(f"v_cmp_ne_u32 vcc, s{S_NONCE}, v{V_LK}")
        p.e(f"s_cbranch_vccz {lab}")
        p.if_begin()
        poll(p, V_LK + 1)
        p.label(lab)
        p.if_end()
        p.e("s_barrier")

    def mid():
        look_check()
        stamp(p, 6)
        lab = uid("ep")
        p.e(f"s_or_b32 s{S_T0}, s2, s{S_W}")
        p.e(f"s_cmp_lg_u32 s{S_T0}, 0")
        p.e(f"s_cbranch_scc1 {lab}")
        p.if_begin()
        p.e(f"v_mov_b32 v{V_T0}, {hx(L.EPOCH)}")
        p.e(f"v_mov_b32 v{V_T0 + 1}, s{S_NONCE}")
        p.e("s_mov_b64 exec, 1")
        p.e(f"global_store_dword v{V_T0}, v{V_T0 + 1}, s[{S_WS}:{S_WS + 1}] sc1")
        p.e("s_mov_b64 exec, -1")
        p.label(lab)
        p.if_end()
        ws_base(p, AT.S_KV, L.KVB)
        lab2 = uid("nb")
        p.e(f"s_cmp_eq_u32 s{S_CVACT}, 0")
        p.e(f"s_cbranch_scc0 {lab2}")
        p.if_begin()
        for t in first_loads:
            p.e(t)
        p.label(lab2)
        p.if_end()
        AT.q_left(p, name + "_ql1", both_on=3)

    first_loads = []
    for tau in range(AT.KV_AHEAD):
        first_loads += AT.kv_tile_loads(tau)
    for ks in range(18):
        first_loads += AT.q_wload(ks, AT.QW + 4 * ks)

    AT.addr_setup(p)
    AT.weight_ptr_setup(p)
    look_issue(ST_KV1)
    ws_base(p, S_P0 + 2, L.YT)
    CV.conv_main(p, S_CH0, name + "_cv", S_P0 + 2, S_CVACT, stamp, mid, first_loads)
    stamp(p, 7)
    AT.q_main_compute(p)
    p.e(f"s_mov_b32 s{S_LAYER}, 0")
    p.loop_begin(name + "_layer")
    V_YF = 247

    def tail_hook():
        p.e(f"s_lshl_b32 s{S_T0}, s{S_W}, 13")
        p.e(f"s_add_u32 s{S_T0}, s{S_T0}, {hx(L.FLAGS + ST_Y * 32768)}")
        p.e(f"v_lshlrev_b32 v{V_YF + 1}, 7, v{V_LANE}")
        p.e(f"v_add_u32 v{V_YF + 1}, s{S_T0}, v{V_YF + 1}")
        p.e(f"global_load_dword v{V_YF}, v{V_YF + 1}, s[{S_WS}:{S_WS + 1}] sc1")

    def after_first():
        lab = uid("yfl")
        p.e(f"s_cmp_eq_u32 s{S_LAYER}, 0")
        p.e(f"s_cbranch_scc0 {lab}")
        p.if_begin()
        flag_store(p, ST_Y, wave=0)
        p.label(lab)
        p.if_end()

    AT.attention_layer(p, name + "_at", stamp, tail_hook, after_first)
    p.e(f"s_lshl_b32 s3, s{S_LAYER}, 3")
    stamp(p, 8, 3)
    XP = 168
    PSZ = 18432
    p.e(f"s_lshl_b32 s{S_T0}, s{S_PAIR}, 1")
    p.e(f"s_add_u32 s{S_T0}, s{S_T0}, s{S_HH}")
    p.e(f"s_mul_i32 s{S_T0 + 2}, s{S_T0}, {PSZ}")
    p.e(f"s_xor_b32 s{S_T0}, s{S_T0}, 1")
    p.e(f"s_mul_i32 s{S_T0 + 3}, s{S_T0}, {PSZ}")
    p.e(f"s_mul_i32 s{S_T0 + 1}, s{S_W}, 4608")
    p.e(f"s_mul_i32 s{S_T0 + 4}, s{S_LAYER}, {hx(L.PART_LAYER)}")
    p.e(f"s_add_u32 s{S_T0 + 1}, s{S_T0 + 1}, s{S_T0 + 4}")
    p.e(f"s_add_u32 s{S_T0 + 2}, s{S_T0 + 2}, s{S_T0 + 1}")
    p.e(f"s_add_u32 s{S_T0 + 3}, s{S_T0 + 3}, s{S_T0 + 1}")
    ws_base(p, S_P0 + 4, L.PART, S_T0 + 2)
    ws_base(p, S_P0 + 6, L.PART, S_T0 + 3)
    for t in range(9):
        p.e(f"v_cvt_pk_bf16_f32 v{XP + 2 * t}, v{AT.XA + 4 * t}, v{AT.XA + 4 * t + 1}")
        p.e(f"v_cvt_pk_bf16_f32 v{XP + 2 * t + 1}, v{AT.XA + 4 * t + 2}, v{AT.XA + 4 * t + 3}")
    p.e(f"v_lshlrev_b32 v{V_T0 + 2}, 3, v{V_LANE}")
    p.e(f"v_add_u32 v{V_T0 + 2}, 4096, v{V_T0 + 2}")
    for c in range(4):
        p.e(f"global_store_dwordx4 v{V_L16}, {vr(XP + 4 * c, 4)}, {sr(S_P0 + 4, 2)} offset:{1024 * c} sc1")
    p.e(f"global_store_dwordx2 v{V_T0 + 2}, {vr(XP + 16, 2)}, {sr(S_P0 + 4, 2)} sc1", wtok="PS")
    chain_addr_setup(p)
    for i in range(16):
        p.e(f"v_accvgpr_read_b32 v{V_XR + i}, a{240 + i}")
    p.e(f"v_mov_b32 v{V_XR + 16}, v{V_XS16}")
    p.e(f"v_mov_b32 v{V_XR + 17}, v{V_XS16 + 1}")
    unpack_x_rows(p)
    for i in range(18):
        p.e(f"v_pk_add_f32 {vr(V_X + 2 * i, 2)}, {vr(V_X + 2 * i, 2)}, {vr(AT.XA + 2 * i, 2)}")
    lab = uid("yf")
    p.e(f"v_cmp_ne_u32 vcc, s{S_NONCE}, v{V_YF}")
    p.e(f"s_cbranch_vccz {lab}")
    p.if_begin()
    poll(p, V_YF + 1)
    p.label(lab)
    p.if_end()
    load_ptr(p, S_T0 + 6, "wk")
    load_ptr(p, S_T0 + 8, "wv")
    p.wait_tok("PS")
    p.e("s_barrier")
    flag_store_dyn(p, ST_P1, ST_P2 - ST_P1)
    p.e(f"s_lshl_b32 s3, s{S_LAYER}, 3")
    stamp(p, 9, 3)
    ws_base(p, S_P0 + 2, L.YT)
    y_loads(p, S_P0 + 2)
    p.e("s_waitcnt lgkmcnt(0)")
    p.e(f"s_cmp_eq_u32 s{S_HH}, 0")
    p.e(f"s_cselect_b32 s{S_T0 + 6}, s{S_T0 + 6}, s{S_T0 + 8}")
    p.e(f"s_cselect_b32 s{S_T0 + 7}, s{S_T0 + 7}, s{S_T0 + 9}")
    make_srd(p, SRD_B, S_T0 + 6, 576 * 36)
    ST.wkv_dma(p, SRD_B, ST.WK_IMG2)
    poll_partner_dyn(p, ST_P1, ST_P2 - ST_P1)
    p.e(f"v_lshlrev_b32 v{V_T0 + 2}, 3, v{V_LANE}")
    p.e(f"v_add_u32 v{V_T0 + 2}, 4096, v{V_T0 + 2}")
    for c in range(4):
        p.e(f"global_load_dwordx4 {vr(XP + 4 * c, 4)}, v{V_L16}, {sr(S_P0 + 6, 2)} offset:{1024 * c} sc1")
    p.e(f"global_load_dwordx2 {vr(XP + 16, 2)}, v{V_T0 + 2}, {sr(S_P0 + 6, 2)} sc1")
    PB = AT.XA
    for t in range(9):
        unpack_bf16x4(p, PB + 4 * t, XP + 2 * t)
    for i in range(18):
        p.e(f"v_pk_add_f32 {vr(V_X + 2 * i, 2)}, {vr(V_X + 2 * i, 2)}, {vr(PB + 2 * i, 2)}")
    p.e(f"s_lshl_b32 s3, s{S_LAYER}, 3")
    stamp(p, 10, 3)
    gate_chain(p, V_X, 0)
    p.e(f"s_cmp_eq_u32 s{S_LAYER}, 1")
    p.e(f"s_cbranch_scc1 {name}_final")
    AT.addr_setup(p)
    AT.weight_ptr_setup(p)
    AT.q_left_addr(p)
    def ln_xb():
        row_stats(p, V_X, V_TMP, LDS_ST + 512, V_STW, V_STR, V_MU, V_RS)
        normalize_to_xb(p, V_X, V_TMP, V_MU, V_RS, V_XBE, V_XBO)
        p.e("s_waitcnt lgkmcnt(0)")
        p.e("s_barrier")

    def park():
        for t in range(9):
            p.e(f"v_cvt_pk_bf16_f32 v{V_XR + 2 * t}, v{V_X + 4 * t}, v{V_X + 4 * t + 1}")
            p.e(f"v_cvt_pk_bf16_f32 v{V_XR + 2 * t + 1}, v{V_X + 4 * t + 2}, v{V_X + 4 * t + 3}")
        for i in range(16):
            p.e(f"v_accvgpr_write_b32 a{240 + i}, v{V_XR + i}")
        p.e(f"v_mov_b32 v{V_XS16}, v{V_XR + 16}")
        p.e(f"v_mov_b32 v{V_XS16 + 1}, v{V_XR + 17}")

    p.e(f"s_cmp_lt_u32 s{S_W}, 2")
    p.e(f"s_cbranch_scc1 {name}_b01")
    p.if_begin()
    i0 = len(p.items)
    ln_xb()
    park()
    p.sprinkle(i0, AT.q_pref_list(True), first=2)
    AT.q_left_compute(p, name + "_ql2")
    p.e("s_barrier")
    p.e(f"s_branch {name}_bj")
    p.if_end()
    p.label(f"{name}_b01")
    p.if_begin()
    ln_xb()
    ws_base(p, S_P0, L.KVB + L.KV_LAYER)
    ST.kv_project_store(p, S_P0, name + "_kv2", ST.WK_IMG2)
    park()
    p.e("s_waitcnt vmcnt(0)")
    p.e("s_barrier")
    flag_store(p, ST_KV2, wave=0)
    stamp(p, 11)
    for t in AT.q_pref_list(False):
        p.e(t)
    p.if_end()
    p.label(f"{name}_bj")
    AT.q_main_compute(p, AT.QWA, agpr=True)
    poll_all(p, ST_KV2)
    stamp(p, 12)
    ws_base(p, AT.S_KV, L.KVB + L.KV_LAYER)
    AT.kv_first_loads(p)
    p.e(f"s_mov_b32 s{S_LAYER}, 1")
    p.e(f"s_branch {name}_layer")
    p.loop_end()
    p.fence()
    p.label(name + "_final")
    p.e("s_nop 7")
    load_ptr(p, S_T0 + 4, "out")
    p.e("s_waitcnt lgkmcnt(0)")
    make_srd(p, SRD_A, S_T0 + 4, L.S * L.D * 2)
    p.e(f"s_lshr_b32 s{S_T0}, s{S_W}, 1")
    p.e(f"s_cmp_eq_u32 s{S_T0}, s{S_HH}")
    p.e(f"s_cbranch_scc0 {name + '_span' if SPAN else done}")
    store_out_rows(p, SRD_A, V_X)
    stamp(p, 26)
    stamp(p, 15, real=True)
    p.e(f"s_branch {name}_exit")
    p.fence()
    p.label(name + "_at_slow")
    AT.slow_path(p, name + "_sp", name + "_at_slow_back")
    p.fence()
    p.label(name + "_exit")
    if SPAN:
        p.label(name + "_span")
        p.e("s_waitcnt vmcnt(0)")
        p.e("s_memrealtime s[90:91]")
        p.e("s_waitcnt lgkmcnt(0)")
        p.e("v_mov_b32 v16, s100")
        p.e("v_mov_b32 v17, s90")
        p.e("s_lshl_b32 s3, s2, 5")
        p.e(f"s_lshl_b32 s28, s{S_W}, 3")
        p.e("s_add_u32 s3, s3, s28")
        p.e(f"s_add_u32 s3, s3, {hx(0x2900000)}")
        p.e("v_mov_b32 v18, s3")
        p.e(f"global_store_dwordx2 v18, v[16:17], s[{S_WS}:{S_WS + 1}]")
    p.label(done)
    p.e("s_endpgm")
    txt = G.kernel_text(name, p)
    print(name, "counts", p.count, "auto nops", p.nauto_nop, file=sys.stderr)
    return txt, G.descriptor(name, 256, 256, sgpr=102), max(AT.A_END, ST.WK_IMG_END)


V_XS16 = 252


def dbg_dump(p, X, which):
    if "--dump" not in sys.argv:
        return
    lab = uid("dd")
    p.e(f"s_or_b32 s{S_T0}, s{S_HH}, s{S_LAYER}")
    p.e(f"s_cmp_lg_u32 s{S_T0}, 0")
    p.e(f"s_cbranch_scc1 {lab}")
    p.e(f"s_mul_i32 s{S_T0}, s{S_PAIR}, 36864")
    p.e(f"s_mul_i32 s{S_T0 + 1}, s{S_W}, 9216")
    p.e(f"s_add_u32 s{S_T0}, s{S_T0}, s{S_T0 + 1}")
    ws_base(p, S_P0 + 10, L.X2G + which * 0x500000, S_T0)
    for t in range(9):
        p.e(f"v_add_u32 v{V_T0 + 1}, {1024 * t}, v{V_L16}")
        p.e(f"global_store_dwordx4 v{V_T0 + 1}, {vr(X + 4 * t, 4)}, {sr(S_P0 + 10, 2)}")
    p.label(lab)


def flag_set_dyn(p, stage, dstage):
    p.e("s_waitcnt vmcnt(0)")
    p.e("s_barrier")
    lab = uid("fs")
    p.e(f"s_cmp_lg_u32 s{S_W}, 0")
    p.e(f"s_cbranch_scc1 {lab}")
    p.e(f"s_lshl_b32 s{S_T0}, s{S_PAIR}, 1")
    p.e(f"s_add_u32 s{S_T0}, s{S_T0}, s{S_HH}")
    p.e(f"s_lshl_b32 s{S_T0}, s{S_T0}, 7")
    p.e(f"s_mul_i32 s{S_T0 + 1}, s{S_LAYER}, {dstage * 32768}")
    p.e(f"s_add_u32 s{S_T0}, s{S_T0}, s{S_T0 + 1}")
    p.e(f"s_add_u32 s{S_T0}, s{S_T0}, {hx(L.FLAGS + stage * 32768)}")
    p.e(f"v_mov_b32 v{V_T0}, s{S_T0}")
    p.e(f"v_mov_b32 v{V_T0 + 1}, s{S_NONCE}")
    p.e("s_mov_b64 exec, 1")
    p.e(f"global_store_dword v{V_T0}, v{V_T0 + 1}, s[{S_WS}:{S_WS + 1}] sc1")
    p.e("s_mov_b64 exec, -1")
    p.label(lab)


def flag_store_dyn(p, stage, dstage):
    lab = uid("fs")
    p.e(f"s_cmp_lg_u32 s{S_W}, 0")
    p.e(f"s_cbranch_scc1 {lab}")
    p.if_begin()
    p.e(f"s_lshl_b32 s{S_T0}, s{S_PAIR}, 1")
    p.e(f"s_add_u32 s{S_T0}, s{S_T0}, s{S_HH}")
    p.e(f"s_lshl_b32 s{S_T0}, s{S_T0}, 7")
    p.e(f"s_mul_i32 s{S_T0 + 1}, s{S_LAYER}, {dstage * 32768}")
    p.e(f"s_add_u32 s{S_T0}, s{S_T0}, s{S_T0 + 1}")
    p.e(f"s_add_u32 s{S_T0}, s{S_T0}, {hx(L.FLAGS + stage * 32768)}")
    p.e(f"v_mov_b32 v{V_T0}, s{S_T0}")
    p.e(f"v_mov_b32 v{V_T0 + 1}, s{S_NONCE}")
    p.e("s_mov_b64 exec, 1")
    p.e(f"global_store_dword v{V_T0}, v{V_T0 + 1}, s[{S_WS}:{S_WS + 1}] sc1")
    p.e("s_mov_b64 exec, -1")
    p.label(lab)
    p.if_end()


def poll_partner_dyn(p, stage, dstage):
    p.e(f"s_lshl_b32 s{S_T0}, s{S_PAIR}, 1")
    p.e(f"s_add_u32 s{S_T0}, s{S_T0}, s{S_HH}")
    p.e(f"s_xor_b32 s{S_T0}, s{S_T0}, 1")
    p.e(f"s_lshl_b32 s{S_T0}, s{S_T0}, 7")
    p.e(f"s_mul_i32 s{S_T0 + 2}, s{S_LAYER}, {dstage * 32768}")
    p.e(f"s_add_u32 s{S_T0}, s{S_T0}, s{S_T0 + 2}")
    p.e(f"s_add_u32 s{S_T0}, s{S_T0}, {hx(L.FLAGS + stage * 32768)}")
    p.e(f"v_mov_b32 v{V_T0}, s{S_T0}")
    poll(p, V_T0)


def build_single(name, text, desc, lds):
    s = G.HEADER
    s += f"; @launch grid=(256,1,1) block=(256,1,1) lds={lds}\n"
    s += '.amdgcn_target "amdgcn-amd-amdhsa--gfx950"\n.text\n' + text
    s += '.section .rodata,"a"\n' + desc
    return s


if __name__ == "__main__":
    G.STAMPS = 2 if "--stamps2" in sys.argv else (1 if "--stamps" in sys.argv else 0)
    name = G.NAME + "_kernel"
    t, d, l = k_fused(name)
    import subprocess, re
    tmp = build_single(name, t.replace("CODE_BYTES", "0x10000"), d, l)
    open("_sz.s", "w").write(tmp)
    subprocess.run(["clang", "-x", "assembler", "-target", "amdgcn-amd-amdhsa", "-mcpu=gfx950", "-c", "_sz.s", "-o", "_sz.o"], check=True)
    o = subprocess.run(["llvm-size", "-A", "_sz.o"], capture_output=True, text=True).stdout
    nbytes = int(re.search(r"\.text\s+(\d+)", o).group(1))
    print("code bytes", nbytes, file=sys.stderr)
    t = t.replace("CODE_BYTES", hex(nbytes - 512))
    open(sys.argv[1], "w").write(build_single(name, t, d, l))
```

```python
import os
from common import *
from parts import LDS_XB, LDS_XB_END

A_QF = 147200
A_QL = A_QF + 2048
A_OP = LDS_XB_END
A_OB = A_OP + 24576
A_OL = A_OB + 2048
A_FL = A_OL + 1024
A_END = A_QL + 1024 + 512

A_K0 = 0
A_KL = 64
A_VT = 80
A_O = 208

SB = [16, 48]
QC = 80
QLR = 88
XA = 96
WR = 132
NR = 9
XR = 168
QA = 180
QT = 184
OF = 188
OFL = 196
RT = 200
V_WQ, V_WO = 232, 233
V_OPW, V_R1, V_R2, V_OBW, V_OLW, V_QFW, V_QL = 234, 235, 236, 237, 238, 239, 240
V_QFR = 241
V_RC = 242
V_KA, V_KL, V_VA = 244, 245, 246
S_PH = 82
S_FAIL = 84
S_KV = S_P0
L_LO = 0x1f800000
L_RANGE = 0x5f800000 - L_LO
KV_AHEAD = 4


def cost(text):
    mn = text.split()[0]
    if mn.startswith("v_exp") or mn.startswith("v_rcp"):
        return 8
    if mn.startswith("v_mfma"):
        return 4 if "x4_2b" in mn else 8
    if mn.startswith("ds_write_b128"):
        return 18
    if mn.startswith("ds_") or mn.startswith("global_load"):
        return 9
    return 4


def pipe(text):
    mn = text.split()[0]
    if "32x32x16" in mn:
        return 32
    if "16x16x32" in mn:
        return 16
    if "x4_2b" in mn:
        return 64
    return 0


def addr_setup(p):
    t = S_T0
    p.e(f"s_mul_i32 s{t}, s{S_W}, 6144")
    p.e(f"s_add_u32 s{t}, s{t}, {A_OP}")
    p.e(f"v_add_u32 v{V_OPW}, s{t}, v{V_L16}")
    p.e(f"s_lshr_b32 s{t + 1}, s{S_W}, 1")
    p.e(f"s_and_b32 s{t + 2}, s{S_W}, 1")
    p.e(f"s_mul_i32 s{t + 3}, s{t + 1}, 3072")
    p.e(f"s_add_u32 s{t + 3}, s{t + 3}, {A_OP}")
    p.e(f"s_lshl_b32 s{t + 4}, s{t + 2}, 10")
    p.e(f"s_add_u32 s{t + 4}, s{t + 4}, s{t + 3}")
    p.e(f"v_add_u32 v{V_R1}, s{t + 4}, v{V_L16}")
    p.e(f"v_and_b32 v{V_T0}, 31, v{V_LANE}")
    p.e(f"v_lshlrev_b32 v{V_T0 + 1}, 4, v{V_T0}")
    p.e(f"s_add_u32 s{t + 3}, s{t + 3}, 2048")
    p.e(f"v_add_u32 v{V_R2}, s{t + 3}, v{V_T0 + 1}")
    p.e(f"s_lshl_b32 s{t + 3}, s{t + 1}, 10")
    p.e(f"s_lshl_b32 s{t + 4}, s{t + 2}, 3")
    p.e(f"s_add_u32 s{t + 3}, s{t + 3}, s{t + 4}")
    p.e(f"s_add_u32 s{t + 4}, s{t + 3}, {A_OB}")
    p.e(f"v_add_u32 v{V_OBW}, s{t + 4}, v{V_L16}")
    p.e(f"s_add_u32 s{t + 4}, s{t + 3}, {A_QF}")
    p.e(f"v_add_u32 v{V_QFW}, s{t + 4}, v{V_L16}")
    p.e(f"v_lshlrev_b32 v{V_OLW}, 4, v{V_N}")
    p.e(f"v_lshrrev_b32 v{V_T0}, 4, v{V_T0}")
    p.e(f"v_lshl_add_u32 v{V_OLW}, v{V_T0}, 2, v{V_OLW}")
    p.e(f"s_lshl_b32 s{t + 3}, s{t + 1}, 3")
    p.e(f"s_add_u32 s{t + 3}, s{t + 3}, {A_OL}")
    p.e(f"v_add_u32 v{V_OLW}, s{t + 3}, v{V_OLW}")
    p.e(f"v_add_u32 v{V_QFR}, {A_QF}, v{V_L16}")
    p.e(f"v_lshlrev_b32 v{V_QL}, 2, v{V_LANE}")
    p.e(f"v_add_u32 v{V_QL}, {A_QL}, v{V_QL}")
    p.e(f"s_lshl_b32 s{t}, s{S_W}, 14")
    p.e(f"s_add_u32 s{t}, s{t}, 4096")
    p.e(f"v_add_u32 v{V_KA}, s{t}, v{V_L16}")
    p.e(f"s_lshl_b32 s{t}, s{S_W}, 12")
    p.e(f"s_add_u32 s{t}, s{t}, {hx(L.KV_KL)}")
    p.e(f"v_lshlrev_b32 v{V_KL}, 3, v{V_LANE}")
    p.e(f"v_add_u32 v{V_KL}, s{t}, v{V_KL}")
    p.e(f"v_and_b32 v{V_T0}, 31, v{V_LANE}")
    p.e(f"v_min_u32 v{V_T0}, 19, v{V_T0}")
    p.e(f"v_and_b32 v{V_T0 + 1}, 32, v{V_LANE}")
    p.e(f"v_add_lshl_u32 v{V_VA}, v{V_T0}, v{V_T0 + 1}, 4")
    p.e(f"s_lshl_b32 s{t}, s{S_W}, 15")
    p.e(f"s_add_u32 s{t}, s{t}, {hx(L.KV_VF + 4096)}")
    p.e(f"v_add_u32 v{V_VA}, s{t}, v{V_VA}")


def weight_ptr_setup(p):
    t = S_T0
    p.e(f"s_mul_i32 s{t}, s{S_HH}, {L.WQF_HH}")
    p.e(f"s_mul_i32 s{t + 1}, s{S_W}, 18432")
    p.e(f"s_add_u32 s{t}, s{t}, s{t + 1}")
    p.e(f"s_add_u32 s{t}, s{t}, {hx(L.WQF + 4096)}")
    p.e(f"v_add_u32 v{V_WQ}, s{t}, v{V_L16}")
    p.e(f"s_mul_i32 s{t}, s{S_HH}, {L.WOF_HH}")
    p.e(f"s_mul_i32 s{t + 1}, s{S_W}, 9216")
    p.e(f"s_add_u32 s{t}, s{t}, s{t + 1}")
    p.e(f"s_add_u32 s{t}, s{t}, {hx(L.WOF + 4096)}")
    p.e(f"v_add_u32 v{V_WO}, s{t}, v{V_L16}")


def kv_tile_loads(tau):
    out = []
    if tau == 8:
        out.append(f"v_add_u32 v{V_KA}, 8192, v{V_KA}")
    out.append(f"global_load_dwordx4 {ar(A_K0 + 4 * tau, 4)}, v{V_KA}, {sr(S_KV, 2)} offset:{(tau % 8) * 1024 - 4096} PLD")
    if tau % 2 == 0:
        out.append(f"global_load_dwordx2 {ar(A_KL + tau, 2)}, v{V_KL}, {sr(S_KV, 2)} offset:{256 * tau} PLD")
    if tau and tau % 4 == 0:
        out.append(f"v_add_u32 v{V_VA}, 8192, v{V_VA}")
    for t in range(2):
        out.append(f"global_load_dwordx4 {ar(A_VT + 8 * tau + 4 * t, 4)}, v{V_VA}, {sr(S_KV, 2)} offset:{(tau % 4) * 2048 + 1024 * t - 4096} PLD")
    return out


def qk_mfmas(kt, Y):
    k0 = ar(A_K0 + 4 * kt, 4)
    kl = ar(A_KL + 2 * (kt // 2), 2)
    m2 = f"v_mfma_f32_32x32x16_bf16 {vr(Y, 16)}, {k0}, {vr(QC, 4)}, 0"
    m3 = f"v_mfma_f32_32x32x16_bf16 {vr(Y + 16, 16)}, {k0}, {vr(QC + 4, 4)}, 0"
    m1 = f"v_mfma_f32_32x32x4_2b_bf16 {vr(Y, 32)}, {kl}, {vr(QLR, 2)}, {vr(Y, 32)} cbsz:1 abid:{kt % 2}"
    return m2, m3, m1


def pv_mfma(kt, X, T, t):
    c = "0" if (kt == 0 and t == 0) else ar(A_O + 16 * T, 16)
    return f"v_mfma_f32_32x32x16_bf16 {ar(A_O + 16 * T, 16)}, {ar(A_VT + 8 * kt + 4 * t, 4)}, {vr(X + 16 * T + 8 * t, 4)}, {c}"


def q_wload(ks, r, agpr=False):
    out = []
    if ks in (8, 16):
        out.append(f"v_add_u32 v{V_WQ}, 8192, v{V_WQ}")
    dst = ar(r, 4) if agpr else vr(r, 4)
    out.append(f"global_load_dwordx4 {dst}, v{V_WQ}, s[{S_WS}:{S_WS + 1}] offset:{(ks % 8) * 1024 - 4096} PLD")
    if ks == 17:
        out.append(f"v_add_u32 v{V_WQ}, {4 * 18432 - 16384}, v{V_WQ}")
    return out


class OStream:
    def __init__(self):
        self.base = 0

    def load(self, j, r):
        T, t = j // 9, j % 9
        off = (T * 36 + t) * 1024
        o = []
        if not (0 <= off - self.base <= 7168):
            o.append(f"v_add_u32 v{V_WO}, {off - self.base}, v{V_WO}")
            self.base = off
        o.append(f"global_load_dwordx4 {vr(r, 4)}, v{V_WO}, s[{S_WS}:{S_WS + 1}] offset:{off - self.base - 4096} PLD")
        if j == 17:
            o.append(f"v_add_u32 v{V_WO}, {72 * 1024 - self.base}, v{V_WO}")
            self.base = 0
        return o


def reduce_ops():
    L2 = RT + 16
    red = []
    red.append(f"v_pk_add_f32 {vr(L2, 2)}, {vr(L2, 2)}, {vr(L2 + 4, 2)}")
    red.append(f"v_pk_add_f32 {vr(L2 + 8, 2)}, {vr(L2 + 8, 2)}, {vr(L2 + 12, 2)}")
    red.append(f"v_add_f32 v{L2 + 2}, v{L2 + 2}, v{L2 + 6}")
    red.append(f"v_add_f32 v{L2 + 10}, v{L2 + 10}, v{L2 + 14}")
    red.append(f"v_pk_add_f32 {vr(L2, 2)}, {vr(L2, 2)}, {vr(L2 + 8, 2)}")
    red.append(f"v_add_f32 v{L2 + 2}, v{L2 + 2}, v{L2 + 10}")
    red.append(f"v_rcp_f32 v{V_RC}, v{L2 + 2}")
    red.append(f"v_subrev_u32 v{V_RC + 1}, {hx(L_LO)}, v{L2 + 2}")
    red.append(f"v_cmp_le_u32 vcc, {hx(L_RANGE)}, v{V_RC + 1}")
    for h in range(2):
        red.append(f"v_pk_add_f32 {vr(RT + 2 * h, 2)}, {vr(RT + 2 * h, 2)}, {vr(RT + 4 + 2 * h, 2)}")
        red.append(f"v_pk_add_f32 {vr(RT + 8 + 2 * h, 2)}, {vr(RT + 8 + 2 * h, 2)}, {vr(RT + 12 + 2 * h, 2)}")
    red.append(f"s_or_b64 s[{S_FAIL}:{S_FAIL + 1}], s[{S_FAIL}:{S_FAIL + 1}], vcc")
    for h in range(2):
        red.append(f"v_pk_add_f32 {vr(RT + 2 * h, 2)}, {vr(RT + 2 * h, 2)}, {vr(RT + 8 + 2 * h, 2)}")
    red.append(f"v_pk_mul_f32 {vr(L2, 2)}, {vr(L2, 2)}, {vr(V_RC, 2)} op_sel_hi:[1,0]")
    for h in range(2):
        red.append(f"v_pk_mul_f32 {vr(RT + 2 * h, 2)}, {vr(RT + 2 * h, 2)}, {vr(V_RC, 2)} op_sel_hi:[1,0]")
    red.append(f"v_cvt_pk_bf16_f32 v{L2 + 4}, v{L2}, v{L2 + 1}")
    red.append(f"v_cvt_pk_bf16_f32 v{RT + 4}, v{RT}, v{RT + 1}")
    red.append(f"v_cvt_pk_bf16_f32 v{RT + 5}, v{RT + 2}, v{RT + 3}")
    return red


def phase_body(p, kind, hooks=None):
    first = kind == "first"
    last = kind == "last"
    X_ = os.environ.get("EXP", "")
    main = []
    for kt in range(16):
        X = SB[kt % 2]
        idx = 0
        for blk in range(4):
            b = X + 8 * blk
            for i in range(8):
                main.append((kt, idx, f"v_exp_f32 v{b + i}, v{b + i}"))
                idx += 1
            for i in range(4):
                main.append((kt, idx, f"v_cvt_pk_bf16_f32 v{b + i}, v{b + 2 * i}, v{b + 2 * i + 1}"))
                idx += 1
    mm = []
    for kt in range(16):
        X = SB[kt % 2]
        Y = SB[(kt + 1) % 2]
        nk = (kt + 1) % 16
        m2, m3, m1 = qk_mfmas(nk, Y)
        pk = (kt - 1) % 16
        has_prev = not (first and kt == 0)
        if has_prev:
            mm.append(dict(n=f"pv11_{pk}", t=pv_mfma(pk, Y, 1, 1), kt=kt, pos=1, req=[], pr=3))
        req2 = ["qread"] if kt == 15 else []
        if first and kt + 1 < 16:
            req2 = req2 + [f"kvn_{kt}"]
        if not (last and kt == 15):
            mm.append(dict(n=f"m2_{kt}", t=m2, kt=kt, pos=-1, req=req2, pr=0))
            mm.append(dict(n=f"m3_{kt}", t=m3, kt=kt, pos=-1, req=([f"pv11_{pk}"] if has_prev else []) + [f"m2_{kt}"], pr=1))
            mm.append(dict(n=f"m1_{kt}", t=m1, kt=kt, pos=-1, req=[], reqi=[(f"m3_{kt}", 10)], pr=2))
        mm.append(dict(n=f"pv00_{kt}", t=pv_mfma(kt, X, 0, 0), kt=kt, pos=13, req=(["wT0"] if (kt == 0 and not first) else []), pr=4))
        mm.append(dict(n=f"pv01_{kt}", t=pv_mfma(kt, X, 0, 1), kt=kt, pos=25, req=[f"pv00_{kt}"], pr=5))
        mm.append(dict(n=f"pv10_{kt}", t=pv_mfma(kt, X, 1, 0), kt=kt, pos=37, req=(["wT1"] if (kt == 0 and not first) else []), pr=6))
    side = []

    def S(t, **kw):
        side.append(dict(t=t, **kw))

    TILE = 445 if not first else 425
    ost = OStream()

    def ringload(i):
        r = WR + 4 * (i % NR)
        n = i + NR
        if first:
            return q_wload(n if n < 18 else n - 18, r)
        if last:
            if n < 18:
                return ost.load(n, r)
            return ost.load(n - 18, r)
        if n < 18:
            return q_wload(n, r)
        if n < 36:
            return ost.load(n - 18, r)
        return q_wload(n - 36, r)

    def ring(i):
        return vr(WR + 4 * (i % NR), 4)

    if last:
        TILE = 415
        for g in range(3):
            S(f"ds_write_b128 v{V_OPW}, {ar(A_O + 4 * g, 4)} offset:{g * 1024}", wtok="OP", ev=("wT0" if g == 2 else None))
        for g in range(3):
            S(f"ds_write_b128 v{V_OPW}, {ar(A_O + 16 + 4 * g, 4)} offset:{3072 + g * 1024}", wtok="OP",
              reqi=[("pv11_15", 13)] if g == 0 else [], ev=("wT1e" if g == 2 else None))
        side[-1]["ev"] = "wT1"
        for j in range(9):
            for t in ost.load(j, WR + 4 * j):
                S(t)
        S("WAIT OP", nb=TILE * 1.6)
        S("s_barrier", ev="B1")
        for w in range(4):
            S(f"ds_read_b128 {vr(RT + 16 + 4 * w, 4)}, v{V_R2} offset:{w * 6144}")
        for w in range(4):
            S(f"ds_read_b128 {vr(RT + 4 * w, 4)}, v{V_R1} offset:{w * 6144}", ev=("rread" if w == 3 else None))
        S("NEED " + vr(RT, 32), reqc=[("rread", 260)])
        for t in reduce_ops():
            S(t)
        S(f"ds_write_b32 v{V_OLW}, v{RT + 20}", wtok="OB")
        S(f"ds_write_b64 v{V_OBW}, {vr(RT + 4, 2)}", wtok="OB", ev="obw")
        S(f"v_add_u32 v{V_OLW}, 256, v{V_OLW}")
        if hooks and "preB2" in hooks:
            S("CALL preB2")
        S("WAIT OB", reqc=[("obw", 160)])
        S("s_barrier", ev="B2")
        for T in range(2):
            S(f"ds_read_b128 {vr(OF + 4 * T, 4)}, v{V_L16} offset:{A_OB + 1024 * T}", ev=("ofr" if T == 1 else None))
        o_t0 = TILE * 5
        o_dt = (16 * TILE - 400 - o_t0) / 18
        for j in range(18):
            T, t = j // 9, j % 9
            if j % 3 == 0:
                S("NEED " + ", ".join([ring(j + k) for k in range(3)] + ([vr(OF, 8)] if j == 0 else [])),
                  nb=o_t0 + o_dt * j - 8, reqc=[("ofr", 150)] if j == 0 else [])
            S(f"v_mfma_f32_16x16x32_bf16 {vr(XA + 4 * t, 4)}, {ring(j)}, {vr(OF + 4 * T, 4)}, {vr(XA + 4 * t, 4)}", nb=o_t0 + o_dt * j)
            for tt in ringload(j):
                S(tt)
            if hooks and "late" in hooks and j >= 9:
                for tt in hooks["late"][4 * (j - 9):4 * (j - 9) + 4]:
                    S(tt, req=["m2_9"])
    else:
        if not first:
            for g in range(3):
                S(f"ds_write_b128 v{V_OPW}, {ar(A_O + 4 * g, 4)} offset:{g * 1024}", wtok="OP", ev=("wT0" if g == 2 else None))
        for k in range(3):
            S(f"ds_read_b128 {vr(XR + 4 * k, 4)}, v{V_L16} offset:{LDS_XB + 1024 * k}")
        if not first:
            for g in range(3):
                S(f"ds_write_b128 v{V_OPW}, {ar(A_O + 16 + 4 * g, 4)} offset:{3072 + g * 1024}", wtok="OP",
                  reqi=[("pv11_15", 13)] if g == 0 else [], ev=("wT1" if g == 2 else None))

        def qstep(i, nb):
            if i % 3 == 0:
                S("NEED " + ", ".join([ring(i + k) for k in range(3)] + [vr(XR + 4 * k, 4) for k in range(3)]), nb=nb - 8)
            c = "0" if i == 0 else vr(QA, 4)
            S(f"v_mfma_f32_16x16x32_bf16 {vr(QA, 4)}, {ring(i)}, {vr(XR + 4 * (i % 3), 4)}, {c}", nb=nb, ev=f"q{i}")
            for t in ringload(i):
                S(t)
            if i + 3 < 18:
                S(f"ds_read_b128 {vr(XR + 4 * (i % 3), 4)}, v{V_L16} offset:{LDS_XB + 1024 * (i + 3)}")

        q_t0 = TILE * 1.1
        q_dt = 175
        if first:
            q_t0 = TILE * 1.5
            q_dt = 270
            for i in range(36):
                S(f"v_mov_b32 v{XA + i}, 0", nb=i * 120)
            side_x = side[-36:]
            del side[-36:]
            for i in range(18):
                qstep(i, q_t0 + q_dt * i)
                side.extend(side_x[2 * i:2 * i + 2])
            for d in side:
                if d["t"].startswith("v_mov_b32 v") and "nb" in d:
                    d["nb"] = None
        else:
            for i in range(0, 3):
                qstep(i, q_t0 + q_dt * i)
            S("WAIT OP")
            S("s_barrier", ev="B1")
            for w in range(4):
                S(f"ds_read_b128 {vr(RT + 16 + 4 * w, 4)}, v{V_R2} offset:{w * 6144}")
            for w in range(4):
                S(f"ds_read_b128 {vr(RT + 4 * w, 4)}, v{V_R1} offset:{w * 6144}", ev=("rread" if w == 3 else None))
            for i in range(3, 6):
                qstep(i, q_t0 + q_dt * i)
            S("NEED " + vr(RT, 32), reqc=[("rread", 260)])
            for t in reduce_ops():
                S(t)
            S(f"ds_write_b32 v{V_OLW}, v{RT + 20}", wtok="OB")
            S(f"ds_write_b64 v{V_OBW}, {vr(RT + 4, 2)}", wtok="OB")
            S(f"v_add_u32 v{V_OLW}, 256, v{V_OLW}")
            for i in range(6, 18):
                qstep(i, q_t0 + q_dt * i)
        S(f"v_cvt_pk_bf16_f32 v{QT}, v{QA}, v{QA + 1}", reqi=[("q17", 9)])
        S(f"v_cvt_pk_bf16_f32 v{QT + 1}, v{QA + 2}, v{QA + 3}")
        S(f"ds_write_b64 v{V_QFW}, {vr(QT, 2)}", wtok="OB", ev="qfw")
        S("WAIT OB", reqc=[("qfw", 140)])
        S("s_barrier", ev="B2")
        if not first:
            for T in range(2):
                S(f"ds_read_b128 {vr(OF + 4 * T, 4)}, v{V_L16} offset:{A_OB + 1024 * T}", ev=("ofr" if T == 1 else None))
            o_t0 = q_t0 + q_dt * 18 + 380
            o_dt = (16 * TILE - 300 - o_t0) / 18
            for j in range(18):
                i = 18 + j
                T, t = j // 9, j % 9
                if j % 3 == 0:
                    S("NEED " + ", ".join([ring(i + k) for k in range(3)] + ([vr(OF, 8)] if j == 0 else [])),
                      nb=o_t0 + o_dt * j - 8, reqc=[("ofr", 150)] if j == 0 else [])
                S(f"v_mfma_f32_16x16x32_bf16 {vr(XA + 4 * t, 4)}, {ring(i)}, {vr(OF + 4 * T, 4)}, {vr(XA + 4 * t, 4)}", nb=o_t0 + o_dt * j)
                for tt in ringload(i):
                    S(tt)
    kvs = []
    if first:
        for kt in range(16):
            tau = kt + KV_AHEAD
            if kt + 1 < 16:
                need = [ar(A_K0 + 4 * (kt + 1), 4), ar(A_KL + 2 * ((kt + 1) // 2), 2), ar(A_VT + 8 * kt, 8)]
                kvs.append(dict(t="NEED " + ", ".join(need), kt=kt, ev=f"kvn_{kt}"))
            else:
                kvs.append(dict(t="NEED " + ar(A_VT + 8 * kt, 8), kt=kt))
            if tau < 16:
                for t in kv_tile_loads(tau):
                    kvs.append(dict(t=t, kt=kt))
    qread = [] if last else [f"ds_read_b128 {vr(QC, 4)}, v{V_QFR}",
             f"ds_read_b128 {vr(QC + 4, 4)}, v{V_QFR} offset:1024",
             f"v_add_u32 v{V_QL}, 256, v{V_QL}",
             f"ds_read_b32 v{QLR}, v{V_QL}"]
    if X_:
        raise RuntimeError("experiments not supported in this version")

    now = 0
    pipe_free = 0
    nins = 0
    ev_i, ev_t = {}, {}
    mi = si = qi = ki = 0
    done = set()
    out = []

    def emit(t, wtok=None, ev=None):
        nonlocal now, pipe_free, nins
        if t.startswith("WAIT"):
            out.append(("wait", t.split()[1]))
            now += 4
            nins += 1
        elif t.startswith("CALL"):
            out.append(("call", t.split()[1]))
            now += 12
            nins += 3
        elif t.startswith("NEED"):
            out.append(("need", t[5:]))
            now += 4
            nins += 1
        else:
            pd = pipe(t)
            if pd:
                if pipe_free > now:
                    now = pipe_free
                pipe_free = now + pd
            now += cost(t)
            nins += 1
            out.append(("e", t, wtok))
        if ev:
            ev_i[ev] = nins
            ev_t[ev] = now
            done.add(ev)

    def ready(d):
        for r in d.get("req", []):
            if r not in done:
                return False
        for r, n in d.get("reqi", []) or []:
            if r not in done or nins - ev_i[r] < n:
                return False
        for r, c in d.get("reqc", []) or []:
            if r not in done or now - ev_t[r] < c:
                return False
        if d.get("nb") is not None and now < d["nb"]:
            return False
        return True

    pend = list(mm)
    side_since = 0
    while mi < len(main) or pend or si < len(side) or qi < len(qread) or ki < len(kvs):
        kt = main[mi][0] if mi < len(main) else 16
        pos = main[mi][1] - 1 if mi < len(main) else 99
        if ki < len(kvs) and kvs[ki]["kt"] <= kt and side_since < 2:
            d = kvs[ki]
            emit(d["t"], ev=d.get("ev"))
            ki += 1
            side_since += 1 if not d["t"].startswith("NEED") else 0
            continue
        cand = [d for d in pend if (d["kt"] < kt or (d["kt"] == kt and pos >= d["pos"])) and ready(d)]
        cand.sort(key=lambda d: (d["kt"], d["pr"]))
        if cand and (pipe_free <= now or mi >= len(main)):
            d = cand[0]
            emit(d["t"], ev=d["n"])
            pend.remove(d)
            continue
        if qi < len(qread) and "m1_14" in done and "B2" in done:
            emit(qread[qi], ev=("qread" if qi == len(qread) - 1 else None))
            qi += 1
            continue
        if si < len(side) and side_since < 2:
            d = side[si]
            ok = ready(d)
            if ok and pipe(d["t"]):
                if pipe_free > now or cand:
                    ok = False
            if ok or mi >= len(main):
                emit(d["t"], d.get("wtok"), d.get("ev"))
                si += 1
                side_since += 1
                continue
        if mi < len(main):
            emit(main[mi][2])
            mi += 1
            side_since = 0
            continue
        if pend:
            d = sorted(pend, key=lambda d: (d["kt"], d["pr"]))[0]
            emit(d["t"], ev=d["n"])
            pend.remove(d)
            continue
        raise RuntimeError("scheduler stuck")
    for o in out:
        if o[0] == "wait":
            p.wait_tok(o[1])
        elif o[0] == "need":
            p.need(o[1])
        elif o[0] == "call":
            hooks[o[1]]()
        else:
            p.e(o[1], wtok=o[2])
    return now


QW = 148


def q_main_loads(p, W=QW):
    for ks in range(18):
        for t in q_wload(ks, W + 4 * ks):
            p.e(t)


def _proj_chain(p, W, agpr=False):
    R_ = ar if agpr else vr
    wreg = W if callable(W) else (lambda ks: W + 4 * ks)
    for ks in range(18):
        if ks == 0:
            for k in range(2):
                p.e(f"ds_read_b128 {vr(XR2 + 4 * (k % 3), 4)}, v{V_L16} offset:{LDS_XB + 1024 * k}")
        if ks + 2 < 18:
            p.e(f"ds_read_b128 {vr(XR2 + 4 * ((ks + 2) % 3), 4)}, v{V_L16} offset:{LDS_XB + 1024 * (ks + 2)}")
        c = "0" if ks == 0 else vr(QA2, 4)
        p.e(f"v_mfma_f32_16x16x32_bf16 {vr(QA2, 4)}, {R_(wreg(ks), 4)}, {vr(XR2 + 4 * (ks % 3), 4)}, {c}")


XR2, QA2, QT2 = 220, 88, 92


def q_left(p, name, both_on=None, W2=16):
    a = V_T0
    t = S_T0

    def one(qexpr_const, tag):
        p.e(f"s_mul_i32 s{t}, s{S_HH}, {L.WQF_HH}")
        if qexpr_const is None:
            p.e(f"s_sub_u32 s{t + 1}, s{S_W}, 2")
        else:
            p.e(f"s_mov_b32 s{t + 1}, {qexpr_const}")
        p.e(f"s_mul_i32 s{t + 2}, s{t + 1}, 18432")
        p.e(f"s_add_u32 s{t}, s{t}, s{t + 2}")
        p.e(f"s_add_u32 s{t}, s{t}, {hx(L.WQF + 16 * 18432 + 4096)}")
        p.e(f"v_add_u32 v{a}, s{t}, v{V_L16}")
        for ks in range(18):
            if ks in (8, 16):
                p.e(f"v_add_u32 v{a}, 8192, v{a}")
            p.e(f"global_load_dwordx4 {vr(W2 + 4 * ks, 4)}, v{a}, s[{S_WS}:{S_WS + 1}] offset:{(ks % 8) * 1024 - 4096} PLD")
        _proj_chain(p, W2)
        p.e(f"v_cvt_pk_bf16_f32 v{QT2}, v{QA2}, v{QA2 + 1}")
        p.e(f"v_cvt_pk_bf16_f32 v{QT2 + 1}, v{QA2 + 2}, v{QA2 + 3}")
        p.e(f"s_lshl_b32 s{t + 1}, s{t + 1}, 9")
        p.e(f"s_add_u32 s{t + 1}, s{t + 1}, {A_QL}")
        p.e(f"v_lshlrev_b32 v{a}, 2, v{V_LANE}")
        p.e(f"v_add_u32 v{a}, s{t + 1}, v{a}")
        p.e(f"ds_write_b32 v{a}, v{QT2}")
        p.e(f"ds_write_b32 v{a}, v{QT2 + 1} offset:256")

    if both_on is not None:
        p.e(f"s_cmp_lg_u32 s{S_W}, {both_on}")
        p.e(f"s_cbranch_scc1 {name}_nol")
        p.if_begin()
        one(0, "a")
        one(1, "b")
    else:
        p.e(f"s_cmp_lt_u32 s{S_W}, 2")
        p.e(f"s_cbranch_scc1 {name}_nol")
        p.if_begin()
        one(None, "a")
    p.label(f"{name}_nol")
    p.if_end()


QWA = 112


def qwl(ks):
    return 16 + 4 * ks if ks < 12 else 184 + 4 * (ks - 12)


V_QLA = 249


def q_pref_list(left):
    out = []
    for ks in range(18):
        out += q_wload(ks, QWA + 4 * ks, agpr=True)
    if left:
        for ks in range(18):
            if ks in (8, 16):
                out.append(f"v_add_u32 v{V_QLA}, 8192, v{V_QLA}")
            out.append(f"global_load_dwordx4 {ar(qwl(ks), 4)}, v{V_QLA}, s[{S_WS}:{S_WS + 1}] offset:{(ks % 8) * 1024 - 4096} PLD")
    return out


def q_left_addr(p):
    t = S_T0
    p.e(f"s_mul_i32 s{t}, s{S_HH}, {L.WQF_HH}")
    p.e(f"s_and_b32 s{t + 1}, s{S_W}, 1")
    p.e(f"s_mul_i32 s{t + 2}, s{t + 1}, 18432")
    p.e(f"s_add_u32 s{t}, s{t}, s{t + 2}")
    p.e(f"s_add_u32 s{t}, s{t}, {hx(L.WQF + 16 * 18432 + 4096)}")
    p.e(f"v_add_u32 v{V_QLA}, s{t}, v{V_L16}")


def q_left_compute(p, name):
    a = V_T0
    t = S_T0
    _proj_chain(p, qwl, agpr=True)
    p.e(f"v_cvt_pk_bf16_f32 v{QT2}, v{QA2}, v{QA2 + 1}")
    p.e(f"v_cvt_pk_bf16_f32 v{QT2 + 1}, v{QA2 + 2}, v{QA2 + 3}")
    p.e(f"s_sub_u32 s{t + 1}, s{S_W}, 2")
    p.e(f"s_lshl_b32 s{t + 1}, s{t + 1}, 9")
    p.e(f"s_add_u32 s{t + 1}, s{t + 1}, {A_QL}")
    p.e(f"v_lshlrev_b32 v{a}, 2, v{V_LANE}")
    p.e(f"v_add_u32 v{a}, s{t + 1}, v{a}")
    p.e(f"ds_write_b32 v{a}, v{QT2}")
    p.e(f"ds_write_b32 v{a}, v{QT2 + 1} offset:256")


def q_main_compute(p, W=QW, agpr=False):
    _proj_chain(p, W, agpr)
    p.e(f"v_cvt_pk_bf16_f32 v{QT2}, v{QA2}, v{QA2 + 1}")
    p.e(f"v_cvt_pk_bf16_f32 v{QT2 + 1}, v{QA2 + 2}, v{QA2 + 3}")
    p.e(f"ds_write_b64 v{V_QFW}, {vr(QT2, 2)}")
    for i in range(NR):
        for t in q_wload(i, WR + 4 * i):
            p.e(t)
    p.e("s_waitcnt lgkmcnt(0)")
    p.e("s_barrier")
    p.e(f"ds_read_b128 {vr(QC, 4)}, v{V_QFR}")
    p.e(f"ds_read_b128 {vr(QC + 4, 4)}, v{V_QFR} offset:1024")
    p.e(f"ds_read_b32 v{QLR}, v{V_QL}")
    p.e(f"v_mov_b32 v{QLR + 1}, 0")


def kv_first_loads(p):
    for tau in range(KV_AHEAD):
        for t in kv_tile_loads(tau):
            p.e(t)


def attention_layer(p, name, stamp=lambda *a, **k: None, tail_hook=None, after_first=None, pre_last=None, hooks=None):
    p.e(f"s_mov_b64 s[{S_FAIL}:{S_FAIL + 1}], 0")
    m2, m3, m1 = qk_mfmas(0, SB[0])
    p.e(m2)
    p.e(m3)
    p.e(m1)
    p.e("s_nop 15")
    p.e("s_nop 4")
    stamp(p, 20)
    e0 = phase_body(p, "first")
    if after_first is not None:
        after_first()
    stamp(p, 21)
    p.e(f"s_mov_b32 s{S_PH}, 1")
    p.loop_begin(name + "_ph")
    e1 = phase_body(p, "mid")
    stamp(p, 21, S_PH)
    p.e(f"s_add_u32 s{S_PH}, s{S_PH}, 1")
    p.e(f"s_cmp_lt_u32 s{S_PH}, 3")
    p.e(f"s_cbranch_scc1 {name}_ph")
    p.loop_end()
    if pre_last is not None:
        pre_last()
    e2 = phase_body(p, "last", hooks)
    stamp(p, 24)
    if tail_hook is not None:
        tail_hook()
    p.e(pv_mfma(15, SB[1], 1, 1))
    W = 16
    base8 = 8 * 1024

    def wl(j):
        if j < 18:
            T, t = j // 9, j % 9
            off, reg = (T * 36 + t) * 1024, W + 4 * (j - 9)
        else:
            off, reg = (72 + j - 18) * 1024, W + 36 + 4 * (j - 18)
        p.e(f"v_add_u32 v{V_T0}, {off - base8}, v{V_WO}")
        p.e(f"global_load_dwordx4 {vr(reg, 4)}, v{V_T0}, s[{S_WS}:{S_WS + 1}] offset:-4096 PLD")

    for g in range(3):
        p.e(f"ds_write_b128 v{V_OPW}, {ar(A_O + 4 * g, 4)} offset:{g * 1024}")
    for j in range(9, 13):
        wl(j)
    for g in range(3):
        p.e(f"ds_write_b128 v{V_OPW}, {ar(A_O + 16 + 4 * g, 4)} offset:{3072 + g * 1024}")
    for j in range(13, 18):
        wl(j)
    p.e("s_waitcnt lgkmcnt(0)")
    p.e("s_barrier")
    for w in range(4):
        p.e(f"ds_read_b128 {vr(RT + 16 + 4 * w, 4)}, v{V_R2} offset:{w * 6144}")
    for w in range(4):
        p.e(f"ds_read_b128 {vr(RT + 4 * w, 4)}, v{V_R1} offset:{w * 6144}")
    for j in range(18, 27):
        wl(j)
    for t in reduce_ops():
        p.e(t)
    p.e(f"ds_write_b32 v{V_OLW}, v{RT + 20}")
    p.e(f"ds_write_b64 v{V_OBW}, {vr(RT + 4, 2)}")
    fail_publish(p)
    p.e("s_waitcnt lgkmcnt(0)")
    p.e("s_barrier")
    for T in range(2):
        p.e(f"ds_read_b128 {vr(OF + 4 * T, 4)}, v{V_L16} offset:{A_OB + 1024 * T}")
    p.e(f"ds_read_b128 {vr(OFL, 4)}, v{V_L16} offset:{A_OL}")
    fail_read(p)
    p.need(vr(WR, 36))
    for j in range(9):
        p.e(f"v_mfma_f32_16x16x32_bf16 {vr(XA + 4 * j, 4)}, {vr(WR + 4 * j, 4)}, {vr(OF, 4)}, {vr(XA + 4 * j, 4)}")
    p.need(vr(W, 36))
    for j in range(9, 18):
        p.e(f"v_mfma_f32_16x16x32_bf16 {vr(XA + 4 * (j - 9), 4)}, {vr(W + 4 * (j - 9), 4)}, {vr(OF + 4, 4)}, {vr(XA + 4 * (j - 9), 4)}")
    p.need(vr(W + 36, 36))
    for t in range(9):
        p.e(f"v_mfma_f32_16x16x32_bf16 {vr(XA + 4 * t, 4)}, {vr(W + 36 + 4 * t, 4)}, {vr(OFL, 4)}, {vr(XA + 4 * t, 4)}")
    fail_branch(p, name + "_slow")
    p.label(name + "_slow_back")
    return e0, e1


def fail_publish(p):
    p.e(f"s_cmp_lg_u64 s[{S_FAIL}:{S_FAIL + 1}], 0")
    p.e(f"s_cselect_b32 s{S_T0}, 1, 0")
    p.e(f"s_lshl_b32 s{S_T0 + 1}, s{S_W}, 2")
    p.e(f"s_add_u32 s{S_T0 + 1}, s{S_T0 + 1}, {A_FL}")
    p.e(f"v_mov_b32 v{V_T0 + 1}, s{S_T0}")
    p.e(f"v_mov_b32 v{V_T0 + 2}, s{S_T0 + 1}")
    p.e(f"ds_write_b32 v{V_T0 + 2}, v{V_T0 + 1}")


def fail_read(p):
    p.e(f"v_mov_b32 v{V_T0 + 2}, {A_FL}")
    p.e(f"ds_read_b128 {vr(RT, 4)}, v{V_T0 + 2}")


def fail_branch(p, slow):
    p.e(f"v_or3_b32 v{RT}, v{RT}, v{RT + 1}, v{RT + 2}")
    p.e(f"v_or_b32 v{RT}, v{RT}, v{RT + 3}")
    p.e(f"v_readfirstlane_b32 s{S_T0}, v{RT}")
    p.e(f"s_cmp_lg_u32 s{S_T0}, 0")
    p.e(f"s_cbranch_scc1 {slow}")


def slow_path(p, name, back):
    vK, vL, vV, mx0, mx1, tm = 8, 9, 10, 11, 12, 13
    KT, LT, VT0 = 148, 152, 156
    S0 = SB[0]
    p.e("s_waitcnt vmcnt(0) lgkmcnt(0)")
    p.e("s_barrier")
    addr_setup(p)
    weight_ptr_setup(p)
    for i in range(36):
        p.e(f"v_mov_b32 v{XA + i}, 0")
    p.e(f"s_mov_b32 s{S_PH}, 0")

    def kv_ptrs():
        p.e(f"v_subrev_u32 v{vK}, 4096, v{V_KA}")
        p.e(f"v_and_b32 v{vL}, 31, v{V_LANE}")
        p.e(f"v_lshlrev_b32 v{vL}, 3, v{vL}")
        p.e(f"s_lshl_b32 s{S_T0}, s{S_W}, 12")
        p.e(f"s_add_u32 s{S_T0}, s{S_T0}, {hx(L.KV_KL)}")
        p.e(f"v_add_u32 v{vL}, s{S_T0}, v{vL}")
        p.e(f"v_subrev_u32 v{vV}, 4096, v{V_VA}")

    def qk():
        p.e(f"v_mfma_f32_32x32x16_bf16 {vr(S0, 16)}, {vr(KT, 4)}, {vr(QC, 4)}, 0")
        p.e(f"v_mfma_f32_32x32x16_bf16 {vr(S0 + 16, 16)}, {vr(KT, 4)}, {vr(QC + 4, 4)}, 0")
        p.e(f"v_mfma_f32_32x32x4_2b_bf16 {vr(S0, 32)}, {vr(LT, 2)}, {vr(QLR, 2)}, {vr(S0, 32)} cbsz:1 abid:0")

    p.fence()
    p.label(name + "_ph")
    q_main_loads(p)
    _proj_chain(p, QW)
    p.e(f"v_cvt_pk_bf16_f32 v{QT2}, v{QA2}, v{QA2 + 1}")
    p.e(f"v_cvt_pk_bf16_f32 v{QT2 + 1}, v{QA2 + 2}, v{QA2 + 3}")
    p.e(f"ds_write_b64 v{V_QFW}, {vr(QT2, 2)}")
    p.e("s_waitcnt lgkmcnt(0)")
    p.e("s_barrier")
    p.e(f"ds_read_b128 {vr(QC, 4)}, v{V_QFR}")
    p.e(f"ds_read_b128 {vr(QC + 4, 4)}, v{V_QFR} offset:1024")
    p.e(f"ds_read_b32 v{QLR}, v{V_QL}")
    p.e(f"v_mov_b32 v{QLR + 1}, 0")
    kv_ptrs()
    p.e(f"v_mov_b32 v{mx0}, 0xff800000")
    p.e(f"v_mov_b32 v{mx1}, 0xff800000")
    p.e(f"s_mov_b32 s{S_T0 + 5}, 16")
    p.e("s_waitcnt vmcnt(0) lgkmcnt(0)")
    p.loop_begin(name + "_mx")
    p.e(f"global_load_dwordx4 {vr(KT, 4)}, v{vK}, {sr(S_KV, 2)} PLD")
    p.e(f"global_load_dwordx2 {vr(LT, 2)}, v{vL}, {sr(S_KV, 2)} PLD")
    p.e(f"v_add_u32 v{vK}, 1024, v{vK}")
    p.e(f"v_add_u32 v{vL}, 256, v{vL}")
    qk()
    for i in range(8):
        p.e(f"v_max3_f32 v{mx0}, v{mx0}, v{S0 + 2 * i}, v{S0 + 2 * i + 1}")
        p.e(f"v_max3_f32 v{mx1}, v{mx1}, v{S0 + 16 + 2 * i}, v{S0 + 16 + 2 * i + 1}")
    p.e(f"s_sub_u32 s{S_T0 + 5}, s{S_T0 + 5}, 1")
    p.e(f"s_cmp_lg_u32 s{S_T0 + 5}, 0")
    p.e(f"s_cbranch_scc1 {name}_mx")
    p.loop_end()
    for m in (mx0, mx1):
        p.e(f"v_mov_b32 v{tm}, v{m}")
        p.e(f"v_permlane32_swap_b32 v{m}, v{tm}")
        p.e(f"v_max_f32 v{m}, v{m}, v{tm}")
    p.e(f"v_cmp_gt_u32 vcc, 32, v{V_LANE}")
    p.e(f"v_cndmask_b32 v{mx0}, v{mx1}, v{mx0}, vcc")
    p.e(f"s_lshl_b32 s{S_T0}, s{S_W}, 8")
    p.e(f"s_add_u32 s{S_T0}, s{S_T0}, {A_OP}")
    p.e(f"v_lshlrev_b32 v{tm}, 2, v{V_LANE}")
    p.e(f"v_add_u32 v{mx1}, s{S_T0}, v{tm}")
    p.e(f"ds_write_b32 v{mx1}, v{mx0}")
    p.e("s_waitcnt lgkmcnt(0)")
    p.e("s_barrier")
    p.e(f"v_add_u32 v{tm}, {A_OP}, v{tm}")
    for w in range(4):
        p.e(f"ds_read_b32 v{RT + w}, v{tm} offset:{256 * w}")
    p.e(f"v_max3_f32 v{RT}, v{RT}, v{RT + 1}, v{RT + 2}")
    p.e(f"v_max_f32 v{RT}, v{RT}, v{RT + 3}")
    p.e(f"v_sub_f32 v{RT}, 0, v{RT}")
    p.e(f"v_cvt_pk_bf16_f32 v{RT + 1}, v{RT}, v{RT}")
    p.e(f"v_lshlrev_b32 v{RT + 1}, 16, v{RT + 1}")
    p.e(f"v_sub_f32 v{RT + 1}, v{RT}, v{RT + 1}")
    p.e(f"v_cvt_pk_bf16_f32 v{QLR + 1}, v{RT}, v{RT + 1}")
    p.e("s_waitcnt lgkmcnt(0)")
    p.e("s_barrier")
    kv_ptrs()
    for i in range(32):
        p.e(f"v_accvgpr_write_b32 a{A_O + i}, 0")
    p.e(f"s_mov_b32 s{S_T0 + 5}, 16")
    p.e("s_nop 4")
    p.loop_begin(name + "_pv")
    p.e(f"global_load_dwordx4 {vr(KT, 4)}, v{vK}, {sr(S_KV, 2)} PLD")
    p.e(f"global_load_dwordx2 {vr(LT, 2)}, v{vL}, {sr(S_KV, 2)} PLD")
    p.e(f"global_load_dwordx4 {vr(VT0, 4)}, v{vV}, {sr(S_KV, 2)} PLD")
    p.e(f"global_load_dwordx4 {vr(VT0 + 4, 4)}, v{vV}, {sr(S_KV, 2)} offset:1024 PLD")
    p.e(f"v_add_u32 v{vK}, 1024, v{vK}")
    p.e(f"v_add_u32 v{vL}, 256, v{vL}")
    p.e(f"v_add_u32 v{vV}, 2048, v{vV}")
    qk()
    for blk in range(4):
        b = S0 + 8 * blk
        for i in range(8):
            p.e(f"v_exp_f32 v{b + i}, v{b + i}")
        for i in range(4):
            p.e(f"v_cvt_pk_bf16_f32 v{b + i}, v{b + 2 * i}, v{b + 2 * i + 1}")
    for T in range(2):
        for t in range(2):
            p.e(f"v_mfma_f32_32x32x16_bf16 {ar(A_O + 16 * T, 16)}, {vr(VT0 + 4 * t, 4)}, {vr(S0 + 16 * T + 8 * t, 4)}, {ar(A_O + 16 * T, 16)}")
    p.e(f"s_sub_u32 s{S_T0 + 5}, s{S_T0 + 5}, 1")
    p.e(f"s_cmp_lg_u32 s{S_T0 + 5}, 0")
    p.e(f"s_cbranch_scc1 {name}_pv")
    p.loop_end()
    for T in range(2):
        for g in range(3):
            p.e(f"ds_write_b128 v{V_OPW}, {ar(A_O + 16 * T + 4 * g, 4)} offset:{3072 * T + g * 1024}")
    p.e("s_waitcnt lgkmcnt(0)")
    p.e("s_barrier")
    for w in range(4):
        p.e(f"ds_read_b128 {vr(RT + 16 + 4 * w, 4)}, v{V_R2} offset:{w * 6144}")
    for w in range(4):
        p.e(f"ds_read_b128 {vr(RT + 4 * w, 4)}, v{V_R1} offset:{w * 6144}")
    for t in reduce_ops():
        p.e(t)
    p.e(f"ds_write_b32 v{V_OLW}, v{RT + 20}")
    p.e(f"ds_write_b64 v{V_OBW}, {vr(RT + 4, 2)}")
    p.e(f"v_add_u32 v{V_OLW}, 256, v{V_OLW}")
    p.e("s_waitcnt lgkmcnt(0)")
    p.e("s_barrier")
    for T in range(2):
        p.e(f"ds_read_b128 {vr(OF + 4 * T, 4)}, v{V_L16} offset:{A_OB + 1024 * T}")
    W = 16
    for j in range(18):
        T, t = j // 9, j % 9
        p.e(f"v_add_u32 v{V_T0}, {(T * 36 + t) * 1024}, v{V_WO}")
        p.e(f"global_load_dwordx4 {vr(W + 4 * j, 4)}, v{V_T0}, s[{S_WS}:{S_WS + 1}] offset:-4096 PLD")
    for j in range(18):
        T, t = j // 9, j % 9
        p.e(f"v_mfma_f32_16x16x32_bf16 {vr(XA + 4 * t, 4)}, {vr(W + 4 * j, 4)}, {vr(OF + 4 * T, 4)}, {vr(XA + 4 * t, 4)}")
    p.e(f"v_add_u32 v{V_WO}, {72 * 1024}, v{V_WO}")
    p.e(f"v_add_u32 v{V_QL}, 256, v{V_QL}")
    p.e(f"s_add_u32 s{S_PH}, s{S_PH}, 1")
    p.e("s_waitcnt vmcnt(0) lgkmcnt(0)")
    p.e("s_nop 15")
    p.e("s_barrier")
    p.e(f"s_cmp_lt_u32 s{S_PH}, 4")
    p.e(f"s_cbranch_scc1 {name}_ph")
    p.fence()
    p.e(f"ds_read_b128 {vr(OFL, 4)}, v{V_L16} offset:{A_OL}")
    for t in range(9):
        p.e(f"v_add_u32 v{V_T0}, {t * 1024}, v{V_WO}")
        p.e(f"global_load_dwordx4 {vr(W + 4 * t, 4)}, v{V_T0}, s[{S_WS}:{S_WS + 1}] offset:-4096 PLD")
    for t in range(9):
        p.e(f"v_mfma_f32_16x16x32_bf16 {vr(XA + 4 * t, 4)}, {vr(W + 4 * t, 4)}, {vr(OFL, 4)}, {vr(XA + 4 * t, 4)}")
    p.e("s_waitcnt vmcnt(0) lgkmcnt(0)")
    p.e("s_nop 15")
    p.e(f"s_branch {back}")
```

```python
from asmgen import Prog, vr, ar, sr
import layout as L
import struct


def f2u(x):
    return struct.unpack("<I", struct.pack("<f", x))[0]


def hx(x):
    return hex(x & 0xffffffff)


S_W = 4
S_PAIR = 5
S_HH = 6
S_ROWOFF = 7
S_WS = 8
S_SLOT = 10
S_XCD = 11
SRD_A = 12
SRD_B = 16
SRD_C = 20
SRD_D = 24
S_T0 = 28
S_P0 = 40

V_TID = 0
V_LANE = 1
V_N = 2
V_G = 3
V_L16 = 4
V_T0 = 5


KREG = dict(x=48, wq=50, wk=52, wv=54, wo=56, bq=58, bk=60, bv=62, shk=64, ssmk=66, ssmd=68, out=70)


def load_all_ptrs(p):
    p.e("s_load_dwordx16 s[48:63], s[0:1], 0")
    p.e("s_load_dwordx8 s[64:71], s[0:1], 64")


def load_ptr(p, sd, name):
    p.e(f"s_load_dwordx2 {sr(sd, 2)}, s[0:1], {L.KA[name]}")


def make_srd(p, sd, sp, nbytes):
    p.e(f"s_mov_b32 s{sd}, s{sp}")
    p.e(f"s_and_b32 s{sd + 1}, s{sp + 1}, 0xffff")
    p.e(f"s_mov_b32 s{sd + 2}, {hx(nbytes)}")
    p.e(f"s_mov_b32 s{sd + 3}, 0x00020000")


def ws_base(p, sd, off_const, soff=None):
    if soff is None:
        p.e(f"s_add_u32 s{sd}, s{S_WS}, {hx(off_const)}")
        p.e(f"s_addc_u32 s{sd + 1}, s{S_WS + 1}, 0")
    else:
        p.e(f"s_add_u32 s{sd}, s{soff}, {hx(off_const)}")
        p.e(f"s_add_u32 s{sd}, s{S_WS}, s{sd}")
        p.e(f"s_addc_u32 s{sd + 1}, s{S_WS + 1}, 0")


def prologue(p, nwg=256, done="L_done", allptrs=False):
    p.e(f"s_cmp_ge_u32 s2, {nwg}")
    p.e(f"s_cbranch_scc1 {done}")
    load_ptr(p, S_WS, "ws")
    if allptrs:
        load_all_ptrs(p)
    p.e(f"v_and_b32 v{V_LANE}, 63, v{V_TID}")
    p.e(f"v_lshrrev_b32 v{V_T0}, 6, v{V_TID}")
    p.e(f"v_and_b32 v{V_N}, 15, v{V_TID}")
    p.e(f"v_readfirstlane_b32 s{S_W}, v{V_T0}")
    p.e(f"v_bfe_u32 v{V_G}, v{V_TID}, 4, 2")
    p.e(f"v_lshlrev_b32 v{V_L16}, 4, v{V_LANE}")
    p.e(f"s_and_b32 s{S_XCD}, s2, 7")
    p.e(f"s_lshr_b32 s{S_SLOT}, s2, 3")
    p.e(f"s_lshr_b32 s{S_PAIR}, s{S_SLOT}, 1")
    p.e(f"s_lshl_b32 s3, s{S_XCD}, 4")
    p.e(f"s_add_u32 s{S_PAIR}, s{S_PAIR}, s3")
    p.e(f"s_and_b32 s{S_HH}, s{S_SLOT}, 1")
    p.e(f"s_mul_i32 s{S_ROWOFF}, s{S_PAIR}, {16 * 1152}")


def unpack_bf16x4(p, dst, src):
    p.e(f"v_lshlrev_b32 v{dst}, 16, v{src}")
    p.e(f"v_and_b32 v{dst + 1}, 0xffff0000, v{src}")
    p.e(f"v_lshlrev_b32 v{dst + 2}, 16, v{src + 1}")
    p.e(f"v_and_b32 v{dst + 3}, 0xffff0000, v{src + 1}")


def row_stats(p, X, T, st_lds, v_st_w, v_st_r, mu, rs, pre_bar=None, post_bar=None):
    s1, s2 = T, T + 2
    p.e(f"v_pk_add_f32 {vr(s1, 2)}, {vr(X, 2)}, {vr(X + 2, 2)}")
    p.e(f"v_pk_mul_f32 {vr(s2, 2)}, {vr(X, 2)}, {vr(X, 2)}")
    p.e(f"v_pk_fma_f32 {vr(s2, 2)}, {vr(X + 2, 2)}, {vr(X + 2, 2)}, {vr(s2, 2)}")
    for i in range(2, 18):
        p.e(f"v_pk_add_f32 {vr(s1, 2)}, {vr(s1, 2)}, {vr(X + 2 * i, 2)}")
        p.e(f"v_pk_fma_f32 {vr(s2, 2)}, {vr(X + 2 * i, 2)}, {vr(X + 2 * i, 2)}, {vr(s2, 2)}")
    a, b, c, d = T + 4, T + 5, T + 6, T + 7
    p.e(f"v_add_f32 v{a}, v{s1}, v{s1 + 1}")
    p.e(f"v_add_f32 v{b}, v{s2}, v{s2 + 1}")
    p.e(f"v_mov_b32 v{c}, v{a}")
    p.e(f"v_mov_b32 v{d}, v{b}")
    p.e(f"v_permlane32_swap_b32 v{a}, v{c}")
    p.e(f"v_permlane32_swap_b32 v{b}, v{d}")
    p.e(f"v_add_f32 v{a}, v{a}, v{c}")
    p.e(f"v_add_f32 v{b}, v{b}, v{d}")
    p.e(f"v_mov_b32 v{c}, v{a}")
    p.e(f"v_mov_b32 v{d}, v{b}")
    p.e(f"v_permlane16_swap_b32 v{a}, v{c}")
    p.e(f"v_permlane16_swap_b32 v{b}, v{d}")
    p.e(f"v_add_f32 v{a}, v{a}, v{c}")
    p.e(f"v_add_f32 v{b}, v{b}, v{d}")
    assert a % 2 == 0
    p.e(f"ds_write_b64 v{v_st_w}, {vr(a, 2)} offset:{st_lds}")
    p.e("s_waitcnt lgkmcnt(0)")
    if pre_bar is not None:
        pre_bar()
    p.e("s_barrier")
    p.e(f"ds_read_b128 {vr(T, 4)}, v{v_st_r} offset:{st_lds}")
    p.e(f"ds_read_b128 {vr(T + 4, 4)}, v{v_st_r} offset:{st_lds + 16}")
    if post_bar is not None:
        post_bar()
    p.e(f"v_pk_add_f32 {vr(T, 2)}, {vr(T, 2)}, {vr(T + 2, 2)}")
    p.e(f"v_pk_add_f32 {vr(T + 4, 2)}, {vr(T + 4, 2)}, {vr(T + 6, 2)}")
    p.e(f"v_pk_add_f32 {vr(T, 2)}, {vr(T, 2)}, {vr(T + 4, 2)}")
    p.e(f"v_mul_f32 v{mu}, {hx(f2u(1.0 / 576))}, v{T}")
    p.e(f"v_mul_f32 v{T + 1}, {hx(f2u(1.0 / 576))}, v{T + 1}")
    p.e(f"v_fma_f32 v{T + 1}, -v{mu}, v{mu}, v{T + 1}")
    p.e(f"v_max_f32 v{T + 1}, 0, v{T + 1}")
    p.e(f"v_add_f32 v{T + 1}, {hx(f2u(1e-5))}, v{T + 1}")
    p.e(f"v_rsq_f32 v{rs}, v{T + 1}")


def xb_write_bases(p, vE, vO, xb_lds):
    p.e(f"s_mul_i32 s{S_T0}, s{S_W}, {9 * 512}")
    p.e(f"s_add_u32 s{S_T0}, s{S_T0}, {xb_lds}")
    p.e(f"s_and_b32 s{S_T0 + 1}, s{S_W}, 1")
    p.e(f"s_mul_i32 s{S_T0 + 1}, s{S_T0 + 1}, 504")
    p.e(f"s_sub_u32 s{S_T0 + 2}, s{S_T0}, s{S_T0 + 1}")
    p.e(f"s_sub_u32 s{S_T0}, s{S_T0}, 504")
    p.e(f"s_add_u32 s{S_T0}, s{S_T0}, s{S_T0 + 1}")
    p.e(f"v_add_u32 v{vE}, s{S_T0 + 2}, v{V_L16}")
    p.e(f"v_add_u32 v{vO}, s{S_T0}, v{V_L16}")


def normalize_to_xb(p, X, T, mu, rs, vE, vO):
    p.e(f"v_mov_b32 v{T}, v{rs}")
    p.e(f"v_mul_f32 v{T + 2}, v{mu}, v{rs}")
    p.e(f"v_sub_f32 v{T + 2}, 0, v{T + 2}")
    for t in range(9):
        a = T + 4
        p.e(f"v_pk_fma_f32 {vr(a, 2)}, {vr(X + 4 * t, 2)}, {vr(T, 2)}, {vr(T + 2, 2)} op_sel_hi:[1,0,0]")
        p.e(f"v_pk_fma_f32 {vr(a + 2, 2)}, {vr(X + 4 * t + 2, 2)}, {vr(T, 2)}, {vr(T + 2, 2)} op_sel_hi:[1,0,0]")
        o = a + 4 + 2 * (t % 2)
        p.e(f"v_cvt_pk_bf16_f32 v{o}, v{a}, v{a + 1}")
        p.e(f"v_cvt_pk_bf16_f32 v{o + 1}, v{a + 2}, v{a + 3}")
        p.e(f"ds_write_b64 v{vE if t % 2 == 0 else vO}, {vr(o, 2)} offset:{512 * t}")


def gather_wkv_frags(p, srd, dst, tmp, v_off, nks=18, ks0=0):
    for ks in range(ks0, ks0 + nks):
        i = ks - ks0
        if (ks % 3) == 0 or ks == ks0:
            p.e(f"s_mov_b32 s{S_T0 + 3}, {(ks // 3) * 3 * 1152}")
        base = (ks % 3) * 1152
        for j in range(8):
            off = base + (16 * (j // 4) + j % 4) * 36
            if j % 2 == 0:
                p.e(f"buffer_load_ushort v{dst + 4 * i + j // 2}, v{v_off}, {sr(srd, 4)}, s{S_T0 + 3} offen offset:{off}")
            else:
                p.e(f"buffer_load_short_d16_hi v{tmp + 4 * i + j // 2}, v{v_off}, {sr(srd, 4)}, s{S_T0 + 3} offen offset:{off}")


def combine_frags(p, dst, tmp, n):
    for i in range(n):
        p.e(f"v_or_b32 v{dst + i}, v{dst + i}, v{tmp + i}")
```

```python
from common import *

CV_BASE = 19456
CV_CH = 272 * 8 * 16
CV_BANK = [1, 6, 2, 11, 12, 9, 14, 6]
CV_BANKC = sum(b << (4 * i) for i, b in enumerate(CV_BANK))
CV_UB = CV_BASE + 3 * CV_CH
UBSTR = 96
UB_CH = 7680
CV_SC = CV_UB + 3 * UB_CH
CV_END = CV_SC + 128

CF_H = 68
CF_H0 = 92
CF_T = 236
CF_R = 172
S_CVD = 76
S_CVL = 79
CV_FIRST = 3


UT_R = [100, 124]
V_UTA = [58, 218]
UT_T = 148


def ut_issue(p):
    st = S_T0
    make_srd(p, SRD_C, KREG["bk"], L.S * L.D * 2)
    make_srd(p, SRD_D, KREG["bv"], L.S * L.D * 2)
    p.e(f"s_mov_b32 s{st + 8}, {4 * 1152}")
    p.e(f"v_mov_b32 v{V_UTA[1]}, 0")
    a = V_T0

    def rnd(k):
        R = UT_R[k]
        p.e(f"s_mul_i32 s{st + 6}, s{S_HH}, 144")
        p.e(f"v_add_u32 v{a}, s{st + 6}, v{a}")
        p.e(f"v_mul_u32_u24 v{a + 2}, {8 * 1152}, v{a + 1}")
        p.e(f"v_add_u32 v{a + 2}, s{S_ROWOFF}, v{a + 2}")
        p.e(f"v_lshl_add_u32 v{a + 2}, v{a}, 2, v{a + 2}")
        if k == 1:
            p.e(f"v_cmp_gt_u32 vcc, 32, v{V_LANE}")
            p.e(f"v_mov_b32 v{a + 4}, 0x40000000")
            p.e(f"v_cndmask_b32 v{a + 2}, v{a + 4}, v{a + 2}, vcc")
        p.e(f"v_subrev_u32 v{a + 3}, {3 * 1152}, v{a + 2}")
        p.e(f"v_cmp_gt_u32 vcc, {3 * 1152}, v{a + 2}")
        p.e(f"v_mov_b32 v{a + 4}, 0x40000000")
        p.e(f"v_cndmask_b32 v{a + 3}, v{a + 3}, v{a + 4}, vcc")
        p.e(f"v_lshlrev_b32 v{a + 4}, 4, v{a}")
        for i in range(3):
            p.e(f"buffer_load_dword v{R + i}, v{a + 3}, {sr(SRD_C, 4)}, 0 offen offset:{1152 * i}")
        for i in range(8):
            so = "0" if i < 4 else f"s{st + 8}"
            p.e(f"buffer_load_dword v{R + 3 + i}, v{a + 2}, {sr(SRD_C, 4)}, {so} offen offset:{1152 * (i % 4)}")
        for i in range(8):
            so = "0" if i < 4 else f"s{st + 8}"
            p.e(f"buffer_load_dword v{R + 11 + i}, v{a + 2}, {sr(SRD_D, 4)}, {so} offen offset:{1152 * (i % 4)}")
        p.e(f"global_load_dwordx4 {vr(R + 20, 4)}, v{a + 4}, {sr(KREG['shk'], 2)}")
        o = V_UTA[k]
        p.e(f"v_lshlrev_b32 v{o}, 13, v{a}")
        p.e(f"s_lshl_b32 s{st + 6}, s{S_PAIR}, 5")
        p.e(f"s_add_u32 s{st + 6}, s{st + 6}, {hx(L.UTG)}")
        p.e(f"v_lshl_add_u32 v{o}, v{a + 1}, 4, v{o}")
        p.e(f"v_add_u32 v{o}, s{st + 6}, v{o}")

    p.e(f"v_and_b32 v{a}, 31, v{V_LANE}")
    p.e(f"s_lshl_b32 s{st + 7}, s{S_W}, 5")
    p.e(f"v_add_u32 v{a}, s{st + 7}, v{a}")
    p.e(f"v_lshrrev_b32 v{a + 1}, 5, v{V_LANE}")
    rnd(0)
    p.e(f"s_cmp_lg_u32 s{S_W}, 3")
    p.e(f"s_cbranch_scc1 L_ut_no2")
    p.if_begin()
    p.e(f"v_and_b32 v{a}, 15, v{V_LANE}")
    p.e(f"v_add_u32 v{a}, 128, v{a}")
    p.e(f"v_bfe_u32 v{a + 1}, v{V_LANE}, 4, 1")
    rnd(1)
    p.label("L_ut_no2")
    p.if_end()


def ut_round(p, k):
    R = UT_R[k]
    KK, VV, SK, U, O = UT_T, UT_T + 22, UT_T + 38, UT_T + 46, UT_T + 62
    for c in range(2):
        p.e(f"v_lshlrev_b32 v{SK + c}, 16, v{R + 20 + 2 * c}")
        p.e(f"v_and_b32 v{SK + 2 + c}, 0xffff0000, v{R + 20 + 2 * c}")
        p.e(f"v_lshlrev_b32 v{SK + 4 + c}, 16, v{R + 21 + 2 * c}")
        p.e(f"v_and_b32 v{SK + 6 + c}, 0xffff0000, v{R + 21 + 2 * c}")
    for i in range(11):
        p.e(f"v_lshlrev_b32 v{KK + 2 * i}, 16, v{R + i}")
        p.e(f"v_and_b32 v{KK + 2 * i + 1}, 0xffff0000, v{R + i}")
    for t in range(8):
        p.e(f"v_pk_mul_f32 {vr(U + 2 * t, 2)}, {vr(SK + 6, 2)}, {vr(KK + 2 * t, 2)}")
    for i in range(8):
        p.e(f"v_lshlrev_b32 v{VV + 2 * i}, 16, v{R + 11 + i}")
        p.e(f"v_and_b32 v{VV + 2 * i + 1}, 0xffff0000, v{R + 11 + i}")
    for j in (2, 1, 0):
        for t in range(8):
            p.e(f"v_pk_fma_f32 {vr(U + 2 * t, 2)}, {vr(SK + 2 * j, 2)}, {vr(KK + 2 * (t + 3 - j), 2)}, {vr(U + 2 * t, 2)}")
    for t in range(8):
        p.e(f"v_pk_mul_f32 {vr(U + 2 * t, 2)}, {vr(U + 2 * t, 2)}, {vr(VV + 2 * t, 2)}")
    for c in range(2):
        for d in range(4):
            p.e(f"v_cvt_pk_bf16_f32 v{O + 4 * c + d}, v{U + 2 * (7 - 2 * d) + c}, v{U + 2 * (6 - 2 * d) + c}")
    if k == 1:
        p.e("s_mov_b64 exec, 0xffffffff")
    p.e(f"global_store_dwordx4 v{V_UTA[k]}, {vr(O, 4)}, s[{S_WS}:{S_WS + 1}] WSC")
    p.e(f"v_add_u32 v{V_UTA[k]}, 4096, v{V_UTA[k]}")
    p.e(f"global_store_dwordx4 v{V_UTA[k]}, {vr(O + 4, 4)}, s[{S_WS}:{S_WS + 1}] WSC")
    if k == 1:
        p.e("s_mov_b64 exec, -1")


def ut_extra(p):
    p.e(f"s_cmp_lg_u32 s{S_W}, 3")
    p.e(f"s_cbranch_scc1 L_ut_no2b")
    p.if_begin()
    ut_round(p, 1)
    p.label("L_ut_no2b")
    p.if_end()


def conv_filter_issue(p, s_ch0):
    st = S_T0
    make_srd(p, SRD_B, KREG["ssmk"], 576 * 4096)
    p.e(f"s_lshl_b32 s{st + 10}, s{s_ch0}, 1")
    p.e(f"s_and_b32 s{st + 11}, s{st + 10}, 0xfffffffc")
    p.e(f"s_add_u32 s{st + 8}, s{KREG['ssmd']}, s{st + 11}")
    p.e(f"s_addc_u32 s{st + 9}, s{KREG['ssmd'] + 1}, 0")
    p.e(f"s_load_dwordx2 s[72:73], s[{st + 8}:{st + 9}], 0")
    p.e(f"s_lshl_b32 s{st}, s{S_W}, 1")
    p.e(f"s_lshl_b32 s{st + 1}, s{st}, 2")
    p.e(f"s_lshr_b32 s{st + 1}, {hx(CV_BANKC)}, s{st + 1}")
    p.e(f"s_and_b32 s{st + 1}, s{st + 1}, 15")
    p.e(f"s_mul_i32 s{st + 2}, s{st}, 272")
    p.e(f"s_add_u32 s{st + 1}, s{st + 1}, s{st + 2}")
    p.e(f"s_lshl_b32 s{st + 1}, s{st + 1}, 4")
    p.e(f"s_add_u32 s{st + 1}, s{st + 1}, {CV_BASE + 64}")
    p.e(f"s_lshl_b32 s{st + 2}, s{s_ch0}, 12")
    p.e(f"s_lshl_b32 s{st + 3}, s{st}, 1")
    p.e(f"s_add_u32 s{st + 2}, s{st + 2}, s{st + 3}")
    for ch in range(3):
        p.e(f"s_add_u32 m0, s{st + 1}, {ch * CV_CH}")
        if ch:
            p.e(f"s_add_u32 s{st + 2}, s{st + 2}, 4096")
        for c in range(4):
            p.e(f"buffer_load_dwordx4 v{V_L16}, {sr(SRD_B, 4)}, s{st + 2} offen offset:{1024 * c} lds")
    p.e(f"v_lshlrev_b32 v{V_T0}, 4, v{V_TID}")
    p.e(f"s_lshl_b32 s{st + 2}, s{s_ch0}, 12")
    for ch in range(3):
        if ch:
            p.e(f"s_add_u32 s{st + 2}, s{st + 2}, 4096")
        p.e(f"buffer_load_dwordx4 {ar(CF_H + 8 * ch, 4)}, v{V_T0}, {sr(SRD_B, 4)}, s{st + 2} offen")
        p.e(f"buffer_load_dwordx4 {ar(CF_H + 8 * ch + 4, 4)}, v{V_T0}, {sr(SRD_B, 4)}, s{st + 2} offen offset:16")
    p.e(f"s_min_u32 s{st}, s{S_W}, 2")
    p.e(f"s_add_u32 s{st}, s{st}, s{s_ch0}")
    p.e(f"s_lshl_b32 s{st}, s{st}, 12")
    p.e(f"v_mov_b32 v{V_T0 + 1}, 0")
    p.e(f"buffer_load_dwordx4 {ar(CF_H0, 4)}, v{V_T0 + 1}, {sr(SRD_B, 4)}, s{st} offen")


def conv_filter_build(p, s_ch0):
    st = S_T0
    sK = 66
    a = V_T0
    A, B = CF_T, CF_T + 8
    for k, phi in enumerate((1, 3, 5, 7)):
        off = (272 * phi + CV_BANK[phi] + 4) * 16 + CV_BASE
        p.e(f"v_lshlrev_b32 v{a + k}, 4, v{V_TID}")
        p.e(f"v_add_u32 v{a + k}, {off}, v{a + k}")
    for ch in range(3):
        r = CF_R
        for j in range(8):
            p.e(f"v_accvgpr_read_b32 v{r + j}, a{CF_H + 8 * ch + j}")
        if ch == 1:
            for k in range(4):
                p.e(f"v_add_u32 v{a + k}, {CV_CH}, v{a + k}")
        off = CV_CH if ch == 2 else 0
        for j in range(6):
            p.e(f"v_alignbit_b32 v{A + j}, v{r + j + 1}, v{r + j}, 16")
        p.e(f"ds_write_b128 v{a}, {vr(A, 4)} offset:{off}")
        p.e(f"ds_write_b128 v{a + 2}, {vr(A + 2, 4)} offset:{off}")
        for j in range(6):
            p.e(f"v_alignbit_b32 v{B + j}, v{r + j + 2}, v{r + j + 1}, 16")
        p.e(f"ds_write_b128 v{a + 1}, {vr(B, 4)} offset:{off}")
        p.e(f"ds_write_b128 v{a + 3}, {vr(B + 2, 4)} offset:{off}")
    z = CF_T
    for i in range(4):
        p.e(f"v_mov_b32 v{z + i}, 0")
    p.e(f"s_min_u32 s{st}, s{S_W}, 2")
    p.e(f"s_mul_i32 s{st + 1}, s{st}, {CV_CH}")
    p.e(f"s_add_u32 s{st + 1}, s{st + 1}, {CV_BASE}")
    p.e(f"v_and_b32 v{a}, 31, v{V_LANE}")
    p.e(f"v_lshrrev_b32 v{a + 1}, 2, v{a}")
    p.e(f"v_lshlrev_b32 v{a + 2}, 2, v{a + 1}")
    p.e(f"v_mov_b32 v{a + 3}, {hx(CV_BANKC)}")
    p.e(f"v_lshrrev_b32 v{a + 2}, v{a + 2}, v{a + 3}")
    p.e(f"v_and_b32 v{a + 2}, 15, v{a + 2}")
    p.e(f"v_mul_u32_u24 v{a + 1}, 272, v{a + 1}")
    p.e(f"v_add_u32 v{a + 1}, v{a + 1}, v{a + 2}")
    p.e(f"v_and_b32 v{a + 2}, 3, v{a}")
    p.e(f"v_add_lshl_u32 v{a + 1}, v{a + 1}, v{a + 2}, 4")
    p.e(f"v_add_u32 v{a + 1}, s{st + 1}, v{a + 1}")
    p.e(f"ds_write_b128 v{a + 1}, {vr(z, 4)}")
    p.e(f"s_mul_i32 s{st + 2}, s{st}, {UB_CH}")
    p.e(f"s_add_u32 s{st + 2}, s{st + 2}, {CV_UB}")
    p.e(f"v_add_u32 v{a + 2}, s{st + 2}, v{V_L16}")
    p.e(f"ds_write_b128 v{a + 2}, {vr(z, 4)}")
    p.e(f"ds_write_b128 v{a + 2}, {vr(z, 4)} offset:{1440 - 1024}")
    p.e(f"s_lshl_b32 s{st + 3}, s{st}, 5")
    p.e(f"s_add_u32 s{st + 3}, s{st + 3}, {CV_SC}")
    p.e(f"v_mov_b32 v{a + 3}, s{st + 3}")
    p.e(f"ds_write_b128 v{a + 3}, {vr(z, 4)}")
    p.e(f"ds_write_b128 v{a + 3}, {ar(CF_H0, 4)} offset:16")
    p.e(f"v_and_b32 v{a}, 7, v{V_LANE}")
    p.e(f"v_lshl_add_u32 v{a + 3}, v{a}, 1, v{a + 3}")
    p.e("s_waitcnt lgkmcnt(0)")
    p.e(f"ds_read_b128 {vr(z + 4, 4)}, v{a + 3}")
    p.e(f"v_lshlrev_b32 v{a + 2}, 2, v{a}")
    p.e(f"v_mov_b32 v{a + 1}, {hx(CV_BANKC)}")
    p.e(f"v_lshrrev_b32 v{a + 2}, v{a + 2}, v{a + 1}")
    p.e(f"v_and_b32 v{a + 2}, 15, v{a + 2}")
    p.e(f"v_mul_u32_u24 v{a + 1}, 272, v{a}")
    p.e(f"v_add_lshl_u32 v{a + 1}, v{a + 1}, v{a + 2}, 4")
    p.e(f"v_add_u32 v{a + 1}, s{st + 1}, v{a + 1}")
    p.e(f"ds_write_b128 v{a + 1}, {vr(z + 4, 4)} offset:48")
    p.e("s_waitcnt lgkmcnt(0)")
    p.e(f"s_and_b32 s{st + 4}, s{s_ch0}, 1")
    p.e(f"s_lshl_b32 s{st + 4}, s{st + 4}, 4")
    p.e(f"s_lshr_b64 s[{sK + 6}:{sK + 7}], s[{sK + 6}:{sK + 7}], s{st + 4}")
    p.e(f"s_lshl_b32 s{S_CVD}, s{sK + 6}, 16")
    p.e(f"s_and_b32 s{S_CVD + 1}, s{sK + 6}, 0xffff0000")
    p.e(f"s_lshl_b32 s{S_CVD + 2}, s{sK + 7}, 16")


def conv_setup(p):
    st = S_T0
    a = V_T0
    vA, vB = 144, 145
    p.e(f"s_min_u32 s{st + 6}, s{S_W}, 2")
    p.e(f"v_add_u32 v{a + 2}, 1, v{V_N}")
    p.e(f"v_and_b32 v{a + 3}, 7, v{a + 2}")
    p.e(f"v_lshrrev_b32 v{a + 2}, 3, v{a + 2}")
    p.e(f"v_sub_u32 v{a + 2}, v{a + 2}, v{V_G}")
    p.e(f"v_add_u32 v{a + 2}, 3, v{a + 2}")
    p.e(f"v_lshlrev_b32 v{a + 4}, 2, v{a + 3}")
    p.e(f"v_mov_b32 v{a + 5}, {hx(CV_BANKC)}")
    p.e(f"v_lshrrev_b32 v{a + 4}, v{a + 4}, v{a + 5}")
    p.e(f"v_and_b32 v{a + 4}, 15, v{a + 4}")
    p.e(f"v_mul_u32_u24 v{a + 3}, 272, v{a + 3}")
    p.e(f"v_add3_u32 v{a + 2}, v{a + 2}, v{a + 3}, v{a + 4}")
    p.e(f"v_lshlrev_b32 v{a + 2}, 4, v{a + 2}")
    p.e(f"s_mul_i32 s{st + 1}, s{st + 6}, {CV_CH}")
    p.e(f"s_add_u32 s{st + 1}, s{st + 1}, {CV_BASE}")
    p.e(f"v_add_u32 v{vA}, s{st + 1}, v{a + 2}")
    p.e(f"v_mul_u32_u24 v{a + 2}, {UBSTR}, v{V_N}")
    p.e(f"v_lshl_add_u32 v{a + 2}, v{V_G}, 4, v{a + 2}")
    p.e(f"s_mul_i32 s{st + 2}, s{st + 6}, {UB_CH}")
    p.e(f"s_add_u32 s{st + 2}, s{st + 2}, {CV_UB}")
    p.e(f"v_add_u32 v{vB}, s{st + 2}, v{a + 2}")
    for i in range(32):
        p.e(f"v_mov_b32 v{16 + i}, 0")
    p.e(f"v_subrev_u32 v{vB}, {UBSTR}, v{vB}")


def conv_u_dma(p, s_ch0):
    st = S_T0
    a = V_T0
    p.e(f"s_add_u32 s{st}, s{S_WS}, {hx(L.UTG)}")
    p.e(f"s_addc_u32 s{st + 1}, s{S_WS + 1}, 0")
    make_srd(p, SRD_C, st, 576 * 4096)
    for k in range(2):
        p.e(f"s_lshl_b32 s{st + 2}, s{S_W}, 6")
        p.e(f"s_add_u32 s{st + 2}, s{st + 2}, {256 * k}")
        p.e(f"v_add_u32 v{a + k}, s{st + 2}, v{V_LANE}")
        p.e(f"v_mul_u32_u24 v{a + 2}, 43691, v{a + k}")
        p.e(f"v_lshrrev_b32 v{a + 2}, 18, v{a + 2}")
        p.e(f"v_mul_u32_u24 v{a + 3}, 6, v{a + 2}")
        p.e(f"v_sub_u32 v{a + 3}, v{a + k}, v{a + 3}")
        p.e(f"v_min_u32 v{a + 3}, 3, v{a + 3}")
        p.e(f"v_lshl_add_u32 v{a + 3}, v{a + 2}, 2, v{a + 3}")
        p.e(f"v_lshlrev_b32 v{a + k}, 4, v{a + 3}")
    p.e(f"s_lshl_b32 s{st + 3}, s{s_ch0}, 12")
    p.e(f"s_lshl_b32 s{st + 4}, s{S_W}, 10")
    p.e(f"s_add_u32 s{st + 4}, s{st + 4}, {CV_UB + 15 * UBSTR}")
    for ch in range(3):
        if ch:
            p.e(f"s_add_u32 s{st + 3}, s{st + 3}, 4096")
        p.e(f"s_add_u32 m0, s{st + 4}, {ch * UB_CH}")
        p.e(f"buffer_load_dwordx4 v{a}, {sr(SRD_C, 4)}, s{st + 3} offen PLD lds")
    p.e(f"s_cmp_ge_u32 s{S_W}, 2")
    p.e(f"s_cbranch_scc1 L_cvu_no2")
    p.if_begin()
    p.e(f"s_lshl_b32 s{st + 3}, s{s_ch0}, 12")
    for ch in range(3):
        if ch:
            p.e(f"s_add_u32 s{st + 3}, s{st + 3}, 4096")
        p.e(f"s_add_u32 m0, s{st + 4}, {ch * UB_CH + 4096}")
        p.e(f"buffer_load_dwordx4 v{a + 1}, {sr(SRD_C, 4)}, s{st + 3} offen PLD lds")
    p.label("L_cvu_no2")
    p.if_end()


def conv_main(p, s_ch0, name, s_yt, s_act, stamp=lambda *a, **k: None, mid=None, extra=None):
    st = S_T0
    a = V_T0
    vA, vB = 144, 145
    p.e(f"s_cmp_eq_u32 s{s_act}, 0")
    p.e(f"s_cbranch_scc1 {name}_h1")
    p.if_begin()
    ACC = 16
    FA = [48, 96]
    FB = [80, 128]

    def load_list(buf, noff):
        L_ = []
        for d in range(4):
            L_.append(f"ds_read_b128 {vr(FB[buf] + 4 * d, 4)}, v{vB} offset:{(16 * d + 16 - noff) * UBSTR}")
        for s in range(4):
            for ih in range(2):
                L_.append(f"ds_read_b128 {vr(FA[buf] + 8 * s + 4 * ih, 4)}, v{vA} offset:{64 * noff + 1024 * s + 32 * ih}")
        return L_

    def loads(buf, noff):
        for t in load_list(buf, noff):
            p.e(t)

    def mm_list(buf):
        L_ = []
        for s in range(4):
            for q in range(s, 4):
                for ih in range(2):
                    d = ACC + 8 * q + 4 * ih
                    L_.append(f"v_mfma_f32_16x16x32_bf16 {vr(d, 4)}, {vr(FA[buf] + 8 * s + 4 * ih, 4)}, {vr(FB[buf] + 4 * (q - s), 4)}, {vr(d, 4)}")
        return L_

    def step(cur, nxt, noff, pre=()):
        p.need(vr(FA[cur], 32) + ", " + vr(FB[cur], 16))
        for t in pre:
            p.e(t)
        rd = load_list(nxt, noff)
        for i, m in enumerate(mm_list(cur)):
            p.e(m)
            if i < len(rd):
                p.e(rd[i])

    loads(0, 0)

    def half(tag, n):
        p.e(f"s_mov_b32 s{S_CVL}, {n}")
        p.loop_begin(f"{name}_loop{tag}")
        step(0, 1, 1)
        step(1, 0, 0, pre=(f"v_add_u32 v{vA}, 128, v{vA}", f"v_subrev_u32 v{vB}, {2 * UBSTR}, v{vB}"))
        p.e(f"s_sub_u32 s{S_CVL}, s{S_CVL}, 1")
        p.e(f"s_cmp_lg_u32 s{S_CVL}, 0")
        p.e(f"s_cbranch_scc1 {name}_loop{tag}")
        p.loop_end()

    stamp(p, 27)
    half("a", CV_FIRST)
    stamp(p, 28)
    p.label(f"{name}_h1")
    p.if_end()
    if mid is not None:
        mid()
    p.e(f"s_cmp_eq_u32 s{s_act}, 0")
    p.e(f"s_cbranch_scc1 {name}_end")
    p.if_begin()
    stamp(p, 29)
    i0 = len(p.items)
    for _ in range(8 - CV_FIRST):
        step(0, 1, 1)
        step(1, 0, 0, pre=(f"v_add_u32 v{vA}, 128, v{vA}", f"v_subrev_u32 v{vB}, {2 * UBSTR}, v{vB}"))
    if extra:
        p.sprinkle(i0, extra, first=4)
    stamp(p, 13)
    p.e(f"s_cmp_eq_u32 s{S_W}, 0")
    p.e(f"s_cselect_b32 s{st + 4}, s{S_CVD}, s{S_CVD + 1}")
    p.e(f"s_cmp_eq_u32 s{S_W}, 2")
    p.e(f"s_cselect_b32 s{st + 4}, s{S_CVD + 2}, s{st + 4}")
    ue = a + 2
    p.e(f"s_mul_i32 s{st + 2}, s{S_W}, {UB_CH}")
    p.e(f"s_add_u32 s{st + 2}, s{st + 2}, {CV_UB}")
    p.e(f"v_mul_u32_u24 v{ue}, {UBSTR}, v{V_N}")
    p.e(f"v_lshrrev_b32 v{ue + 1}, 1, v{V_G}")
    p.e(f"v_lshl_add_u32 v{ue}, v{ue + 1}, 4, v{ue}")
    p.e(f"v_and_b32 v{ue + 1}, 1, v{V_G}")
    p.e(f"v_xor_b32 v{ue + 1}, 1, v{ue + 1}")
    p.e(f"v_lshl_add_u32 v{ue}, v{ue + 1}, 3, v{ue}")
    p.e(f"v_add_u32 v{ue}, s{st + 2}, v{ue}")
    p.e(f"s_add_u32 s{st + 3}, s{s_ch0}, s{S_W}")
    p.e(f"s_lshl_b32 s{st + 3}, s{st + 3}, 5")
    p.e(f"v_mul_u32_u24 v{ue + 1}, {2 * 18432}, v{V_N}")
    p.e(f"v_lshl_add_u32 v{ue + 1}, v{V_G}, 3, v{ue + 1}")
    p.e(f"v_add_u32 v{ue + 1}, s{st + 3}, v{ue + 1}")
    for q in range(4):
        for ih in range(2):
            k = 2 * q + ih
            U = 48 + 2 * k
            p.e(f"ds_read_b64 {vr(U, 2)}, v{ue} offset:{(16 * q + 15) * UBSTR + 32 * ih}")
    for q in range(4):
        for ih in range(2):
            k = 2 * q + ih
            U = 48 + 2 * k
            d = ACC + 8 * q + 4 * ih
            T = 72 + 4 * (k % 2)
            p.e(f"v_and_b32 v{T}, 0xffff0000, v{U + 1}")
            p.e(f"v_lshlrev_b32 v{T + 1}, 16, v{U + 1}")
            p.e(f"v_and_b32 v{T + 2}, 0xffff0000, v{U}")
            p.e(f"v_lshlrev_b32 v{T + 3}, 16, v{U}")
            for r in range(4):
                p.e(f"v_fmac_f32 v{d + r}, s{st + 4}, v{T + r}")
            o = 80 + 2 * (k % 4)
            p.e(f"v_cvt_pk_bf16_f32 v{o}, v{d}, v{d + 1}")
            p.e(f"v_cvt_pk_bf16_f32 v{o + 1}, v{d + 2}, v{d + 3}")
            p.e(f"v_add_u32 v{ue + 2}, {(32 * q + ih) * 18432}, v{ue + 1}")
            p.e(f"global_store_dwordx2 v{ue + 2}, {vr(o, 2)}, {sr(s_yt, 2)} YSC")
    p.label(f"{name}_end")
    p.if_end()
```

```python
from common import *

LDS_ST = 0
LDS_XB = 1024
LDS_XB_END = LDS_XB + 18 * 1024

V_X = 60
V_XR = 40
V_TMP = 16
V_MU = 32
V_RS = 33
V_STW = 34
V_STR = 35
V_XBE = 36
V_XBO = 37
V_XOFF = 38
V_WF = 100
V_WT = 172


def chain_addr_setup(p):
    p.e(f"v_lshlrev_b32 v{V_STR}, 5, v{V_N}")
    p.e(f"s_lshl_b32 s{S_T0}, s{S_W}, 3")
    p.e(f"v_add_u32 v{V_STW}, s{S_T0}, v{V_STR}")
    xb_write_bases(p, V_XBE, V_XBO, LDS_XB)
    p.e(f"v_mul_u32_u24 v{V_XOFF}, 1152, v{V_N}")
    p.e(f"s_mul_i32 s{S_T0}, s{S_W}, 288")
    p.e(f"v_lshl_add_u32 v{V_XOFF}, v{V_G}, 3, v{V_XOFF}")
    p.e(f"v_add_u32 v{V_XOFF}, s{S_T0}, v{V_XOFF}")


def load_x_rows(p, srd):
    for t in range(9):
        p.e(f"buffer_load_dwordx2 {vr(V_XR + 2 * t, 2)}, v{V_XOFF}, {sr(srd, 4)}, s{S_ROWOFF} offen offset:{32 * t}")


def unpack_x_rows(p):
    for t in range(9):
        unpack_bf16x4(p, V_X + 4 * t, V_XR + 2 * t)


def kv_weight_gather_issue(p, srd):
    vo = V_T0
    p.e(f"s_lshl_b32 s{S_T0}, s{S_W}, 4")
    p.e(f"v_add_u32 v{vo + 1}, s{S_T0}, v{V_N}")
    p.e(f"v_mul_u32_u24 v{vo}, 144, v{V_G}")
    p.e(f"v_lshl_add_u32 v{vo}, v{vo + 1}, 1, v{vo}")
    p.e(f"v_cmp_gt_u32 vcc, 18, v{vo + 1}")
    p.e(f"v_mov_b32 v{vo + 2}, 0x40000000")
    p.e(f"v_cndmask_b32 v{vo}, v{vo + 2}, v{vo}, vcc")
    gather_wkv_frags(p, srd, V_WF, 172, vo, nks=18, ks0=0)


def kv_weight_gather(p, srd):
    vo = V_T0
    p.e(f"s_lshl_b32 s{S_T0}, s{S_W}, 4")
    p.e(f"v_add_u32 v{vo + 1}, s{S_T0}, v{V_N}")
    p.e(f"v_mul_u32_u24 v{vo}, 144, v{V_G}")
    p.e(f"v_lshl_add_u32 v{vo}, v{vo + 1}, 1, v{vo}")
    p.e(f"v_cmp_gt_u32 vcc, 18, v{vo + 1}")
    p.e(f"v_mov_b32 v{vo + 2}, 0x40000000")
    p.e(f"v_cndmask_b32 v{vo}, v{vo + 2}, v{vo}, vcc")
    gather_wkv_frags(p, srd, V_WF, V_WT, vo, nks=16, ks0=0)
    combine_frags(p, V_WF, V_WT, 64)
    gather_wkv_frags(p, srd, V_WF + 64, V_WT, vo, nks=2, ks0=16)
    combine_frags(p, V_WF + 64, V_WT, 8)


def kv_project_store(p, s_kvbase, name):
    acc = V_TMP
    xb = V_TMP + 4
    va = V_T0
    p.e(f"; K/V projection")
    p.e(f"s_cmp_ge_u32 s{S_W}, 2")
    p.e(f"s_cbranch_scc1 {name}_end")
    p.if_begin()
    p.e(f"s_cmp_eq_u32 s{S_HH}, 0")
    p.e(f"s_cbranch_scc0 {name}_v")
    p.if_begin()
    for ks in range(18):
        if ks == 0:
            for k in range(2):
                p.e(f"ds_read_b128 {vr(xb + 4 * (k % 3), 4)}, v{V_L16} offset:{LDS_XB + 1024 * k}")
        if ks + 2 < 18:
            p.e(f"ds_read_b128 {vr(xb + 4 * ((ks + 2) % 3), 4)}, v{V_L16} offset:{LDS_XB + 1024 * (ks + 2)}")
        c = "0" if ks == 0 else vr(acc, 4)
        p.e(f"v_mfma_f32_16x16x32_bf16 {vr(acc, 4)}, {vr(V_WF + 4 * ks, 4)}, {vr(xb + 4 * (ks % 3), 4)}, {c}")
    p.e(f"s_lshr_b32 s{S_T0}, s{S_PAIR}, 1")
    p.e(f"s_and_b32 s{S_T0 + 1}, s{S_PAIR}, 1")
    p.e(f"s_lshl_b32 s{S_T0 + 1}, s{S_T0 + 1}, 4")
    p.e(f"v_add_u32 v{va}, s{S_T0 + 1}, v{V_N}")
    p.e(f"s_mov_b32 s{S_T0 + 2}, {hx(f2u(L.QSCALE))}")
    for r in range(4):
        p.e(f"v_mul_f32 v{acc + r}, s{S_T0 + 2}, v{acc + r}")
    p.e(f"v_cvt_pk_bf16_f32 v{xb}, v{acc}, v{acc + 1}")
    p.e(f"v_cvt_pk_bf16_f32 v{xb + 1}, v{acc + 2}, v{acc + 3}")
    p.e(f"s_cmp_eq_u32 s{S_W}, 0")
    p.e(f"s_cbranch_scc0 {name}_kl")
    p.if_begin()
    p.e(f"v_lshrrev_b32 v{va + 1}, 1, v{V_G}")
    p.e(f"v_lshl_add_u32 v{va + 1}, v{va + 1}, 5, v{va}")
    p.e(f"v_lshlrev_b32 v{va + 1}, 4, v{va + 1}")
    p.e(f"v_and_b32 v{va + 2}, 1, v{V_G}")
    p.e(f"v_lshl_add_u32 v{va + 1}, v{va + 2}, 3, v{va + 1}")
    p.e(f"s_lshl_b32 s{S_T0}, s{S_T0}, 10")
    p.e(f"v_add_u32 v{va + 1}, s{S_T0}, v{va + 1}")
    p.e(f"global_store_dwordx2 v{va + 1}, {vr(xb, 2)}, {sr(s_kvbase, 2)} offset:{L.KV_K0} KVSC")
    p.e(f"s_branch {name}_end")
    p.if_end()
    p.label(f"{name}_kl")
    p.e(f"v_mov_b32 v{xb + 1}, 0x3f803f80")
    p.e(f"s_lshl_b32 s{S_T0}, s{S_T0}, 5")
    p.e(f"v_add_u32 v{va + 1}, s{S_T0}, v{va}")
    p.e(f"v_lshlrev_b32 v{va + 1}, 3, v{va + 1}")
    p.e(f"v_add_u32 v{va + 1}, {hx(L.KV_KL)}, v{va + 1}")
    p.e(f"v_cmp_gt_u32 vcc, 16, v{V_LANE}")
    p.e(f"s_and_saveexec_b64 s[{S_T0 + 4}:{S_T0 + 5}], vcc")
    p.e(f"global_store_dwordx2 v{va + 1}, {vr(xb, 2)}, {sr(s_kvbase, 2)} KVSC")
    p.e(f"s_mov_b64 exec, s[{S_T0 + 4}:{S_T0 + 5}]")
    p.e(f"s_branch {name}_end")
    p.if_end()
    p.label(f"{name}_v")
    for ks in range(18):
        if ks == 0:
            for k in range(2):
                p.e(f"ds_read_b128 {vr(xb + 4 * (k % 3), 4)}, v{V_L16} offset:{LDS_XB + 1024 * k}")
        if ks + 2 < 18:
            p.e(f"ds_read_b128 {vr(xb + 4 * ((ks + 2) % 3), 4)}, v{V_L16} offset:{LDS_XB + 1024 * (ks + 2)}")
        c = "0" if ks == 0 else vr(acc, 4)
        p.e(f"v_mfma_f32_16x16x32_bf16 {vr(acc, 4)}, {vr(xb + 4 * (ks % 3), 4)}, {vr(V_WF + 4 * ks, 4)}, {c}")
    p.e(f"s_lshl_b32 s{S_T0 + 1}, s{S_W}, 4")
    p.e(f"v_add_u32 v{va}, s{S_T0 + 1}, v{V_N}")
    p.e(f"v_cmp_eq_u32 vcc, 18, v{va}")
    p.e(f"v_mov_b32 v{va + 2}, 1.0")
    for r in range(4):
        p.e(f"v_cndmask_b32 v{acc + r}, v{acc + r}, v{va + 2}, vcc")
    p.e(f"v_cvt_pk_bf16_f32 v{xb}, v{acc}, v{acc + 1}")
    p.e(f"v_cvt_pk_bf16_f32 v{xb + 1}, v{acc + 2}, v{acc + 3}")
    p.e(f"v_and_b32 v{va + 1}, 1, v{V_G}")
    p.e(f"v_lshl_add_u32 v{va + 1}, v{va + 1}, 5, v{va}")
    p.e(f"v_lshlrev_b32 v{va + 1}, 4, v{va + 1}")
    p.e(f"v_lshrrev_b32 v{va + 2}, 1, v{V_G}")
    p.e(f"v_lshl_add_u32 v{va + 1}, v{va + 2}, 3, v{va + 1}")
    p.e(f"s_lshl_b32 s{S_T0}, s{S_PAIR}, 10")
    p.e(f"s_add_u32 s{S_T0}, s{S_T0}, {hx(L.KV_VF)}")
    p.e(f"v_add_u32 v{va + 1}, s{S_T0}, v{va + 1}")
    p.e(f"global_store_dwordx2 v{va + 1}, {vr(xb, 2)}, {sr(s_kvbase, 2)} KVSC")
    p.label(f"{name}_end")
    p.if_end()


RL_LO, RL_HI = 100, 136
S_RLD, S_RLS, S_RLN = 94, 95, 96


def relayout_issue(p, s_job, name):
    vo, v2, v3 = V_T0, V_T0 + 1, V_T0 + 2
    dst, tmp = RL_LO, RL_HI
    st = S_T0
    p.e(f"s_mov_b32 s{S_RLN}, 0")
    p.e(f"s_cmp_ge_u32 s{s_job}, 58")
    p.e(f"s_cbranch_scc1 {name}_end")
    p.e(f"s_cmp_ge_u32 s{s_job}, 54")
    p.e(f"s_cbranch_scc1 {name}_kv")
    p.e(f"s_cmp_ge_u32 s{s_job}, 36")
    p.e(f"s_cbranch_scc1 {name}_wo")
    load_ptr(p, st + 6, "wq")
    p.e(f"s_cmp_ge_u32 s{s_job}, 18")
    p.e(f"s_cselect_b32 s{st}, 1, 0")
    p.e(f"s_mul_i32 s{st + 1}, s{st}, 18")
    p.e(f"s_sub_u32 s{st + 1}, s{s_job}, s{st + 1}")
    p.e(f"s_lshl_b32 s{st + 2}, s{st}, 4")
    p.e(f"v_lshrrev_b32 v{v2}, 2, v{V_N}")
    p.e(f"v_and_b32 v{v3}, 3, v{V_N}")
    p.e(f"s_cmp_ge_u32 s{st + 1}, 16")
    p.e(f"s_cbranch_scc1 {name}_ql")
    p.e(f"s_and_b32 s{st + 3}, s{st + 1}, 12")
    p.e(f"s_add_u32 s{st + 2}, s{st + 2}, s{st + 3}")
    p.e(f"s_and_b32 s{st + 3}, s{st + 1}, 2")
    p.e(f"s_add_u32 s{st + 2}, s{st + 2}, s{st + 3}")
    p.e(f"s_and_b32 s{st + 3}, s{st + 1}, 1")
    p.e(f"s_lshl_b32 s{st + 3}, s{st + 3}, 2")
    p.e(f"v_and_b32 v{vo}, 1, v{v2}")
    p.e(f"v_add_u32 v{vo}, s{st + 2}, v{vo}")
    p.e(f"v_mul_u32_u24 v{vo}, 18, v{vo}")
    p.e(f"v_lshrrev_b32 v{v2}, 1, v{v2}")
    p.e(f"v_lshl_add_u32 v{vo}, v{v2}, 3, v{vo}")
    p.e(f"v_add_u32 v{vo}, v{vo}, v{v3}")
    p.e(f"v_add_u32 v{vo}, s{st + 3}, v{vo}")
    p.e(f"s_branch {name}_qc")
    p.label(f"{name}_ql")
    p.e(f"s_sub_u32 s{st + 3}, s{st + 1}, 16")
    p.e(f"s_lshl_b32 s{st + 3}, s{st + 3}, 3")
    p.e(f"s_add_u32 s{st + 2}, s{st + 2}, s{st + 3}")
    p.e(f"v_lshrrev_b32 v{vo}, 1, v{v3}")
    p.e(f"v_lshl_add_u32 v{vo}, v{vo}, 2, v{v2}")
    p.e(f"v_add_u32 v{vo}, s{st + 2}, v{vo}")
    p.e(f"v_mul_u32_u24 v{vo}, 18, v{vo}")
    p.e(f"v_and_b32 v{v3}, 1, v{v3}")
    p.e(f"v_add_u32 v{vo}, v{vo}, v{v3}")
    p.e(f"v_add_u32 v{vo}, 16, v{vo}")
    p.label(f"{name}_qc")
    p.e(f"v_lshlrev_b32 v{vo}, 1, v{vo}")
    p.e(f"v_mul_u32_u24 v{v2}, {4 * 1152}, v{V_G}")
    p.e(f"v_add_u32 v{vo}, v{vo}, v{v2}")
    p.e(f"s_mul_i32 s{st + 3}, s{S_W}, {32 * 1152}")
    p.e(f"v_add_u32 v{vo}, s{st + 3}, v{vo}")
    p.e("s_waitcnt lgkmcnt(0)")
    make_srd(p, SRD_B, st + 6, 576 * 1152)
    p.e(f"s_mul_i32 s{st}, s{s_job}, {18 * 1024}")
    p.e(f"s_lshl_b32 s{st + 1}, s{S_W}, 10")
    p.e(f"s_add_u32 s{st}, s{st}, s{st + 1}")
    p.e(f"s_add_u32 s{S_RLD}, s{st}, {hx(L.WQF)}")
    for i in range(5):
        for j in range(8):
            row = 128 * i + 16 * (j // 4) + j % 4
            if j == 0 or j == 4:
                p.e(f"s_mov_b32 s{st + 4}, {(row // 4 * 4) * 1152}")
            op = "buffer_load_ushort" if j % 2 == 0 else "buffer_load_short_d16_hi"
            reg = (dst if j % 2 == 0 else tmp) + 4 * i + j // 2
            p.e(f"{op} a{reg}, v{vo}, {sr(SRD_B, 4)}, s{st + 4} offen offset:{(j % 4) * 1152}")
    p.e(f"s_branch {name}_n45")
    p.label(f"{name}_wo")
    load_ptr(p, st + 6, "wo")
    p.e(f"s_sub_u32 s{st + 5}, s{s_job}, 36")
    p.e(f"s_cmp_ge_u32 s{st + 5}, 9")
    p.e(f"s_cselect_b32 s{st}, 1, 0")
    p.e(f"s_mul_i32 s{st + 1}, s{st}, 9")
    p.e(f"s_sub_u32 s{st + 1}, s{st + 5}, s{st + 1}")
    p.e(f"s_lshl_b32 s{st + 2}, s{st}, 4")
    p.e(f"s_cmp_eq_u32 s{st + 1}, 8")
    p.e(f"s_cbranch_scc1 {name}_ol")
    p.e(f"s_lshl_b32 s{st + 3}, s{st + 1}, 1")
    p.e(f"s_add_u32 s{st + 2}, s{st + 2}, s{st + 3}")
    p.e(f"v_and_b32 v{vo}, 1, v{V_G}")
    p.e(f"v_add_u32 v{vo}, s{st + 2}, v{vo}")
    p.e(f"v_mul_u32_u24 v{vo}, 18, v{vo}")
    p.e(f"v_lshrrev_b32 v{v2}, 1, v{V_G}")
    p.e(f"v_lshl_add_u32 v{vo}, v{v2}, 2, v{vo}")
    p.e(f"s_mov_b32 s{st + 8}, 0")
    p.e(f"s_branch {name}_oc")
    p.label(f"{name}_ol")
    p.e(f"v_lshlrev_b32 v{vo}, 2, v{V_G}")
    p.e(f"v_add_u32 v{vo}, s{st + 2}, v{vo}")
    p.e(f"v_mul_u32_u24 v{vo}, 18, v{vo}")
    p.e(f"v_add_u32 v{vo}, 16, v{vo}")
    p.e(f"s_mov_b32 s{st + 8}, 1")
    p.label(f"{name}_oc")
    p.e(f"v_mul_u32_u24 v{vo}, 1152, v{vo}")
    p.e(f"v_lshl_add_u32 v{vo}, v{V_N}, 1, v{vo}")
    p.e(f"s_mul_i32 s{st + 3}, s{S_W}, 288")
    p.e(f"v_add_u32 v{vo}, s{st + 3}, v{vo}")
    p.e("s_waitcnt lgkmcnt(0)")
    make_srd(p, SRD_B, st + 6, 576 * 1152)
    p.e(f"s_mul_i32 s{st}, s{st + 5}, {36 * 1024}")
    p.e(f"s_mul_i32 s{st + 1}, s{S_W}, {9 * 1024}")
    p.e(f"s_add_u32 s{st}, s{st}, s{st + 1}")
    p.e(f"s_add_u32 s{S_RLD}, s{st}, {hx(L.WOF)}")
    R = 48
    main = [0, 1, 2, 3, 8, 9, 10, 11]
    left = [0, 1, 18, 19, 36, 37, 54, 55]
    p.e(f"s_cmp_eq_u32 s{st + 8}, 1")
    for j in range(8):
        p.e(f"s_mov_b32 s{R + j}, {left[j] * 1152}")
        p.e(f"s_cselect_b32 s{R + j}, s{R + j}, {main[j] * 1152}")
    for t in range(9):
        for j in range(8):
            op = "buffer_load_ushort" if j % 2 == 0 else "buffer_load_short_d16_hi"
            reg = (dst if j % 2 == 0 else tmp) + 4 * t + j // 2
            p.e(f"{op} a{reg}, v{vo}, {sr(SRD_B, 4)}, s{R + j} offen offset:{32 * t}")
    p.e(f"s_mov_b32 s{S_RLS}, 1024")
    p.e(f"s_mov_b32 s{S_RLN}, 9")
    p.e(f"s_branch {name}_end")
    p.label(f"{name}_kv")
    load_ptr(p, st + 6, "wk")
    load_ptr(p, st + 8, "wv")
    p.e(f"s_sub_u32 s{st + 5}, s{s_job}, 54")
    p.e(f"s_and_b32 s{st + 1}, s{st + 5}, 1")
    p.e(f"s_lshl_b32 s{st + 1}, s{st + 1}, 4")
    p.e(f"v_add_u32 v{v2}, s{st + 1}, v{V_N}")
    p.e(f"v_mul_u32_u24 v{vo}, 144, v{V_G}")
    p.e(f"v_lshl_add_u32 v{vo}, v{v2}, 1, v{vo}")
    p.e(f"s_mul_i32 s{st + 3}, s{S_W}, 1152")
    p.e(f"v_add_u32 v{vo}, s{st + 3}, v{vo}")
    p.e(f"v_cmp_gt_u32 vcc, 18, v{v2}")
    p.e(f"v_mov_b32 v{v3}, 0x40000000")
    p.e(f"v_cndmask_b32 v{vo}, v{v3}, v{vo}, vcc")
    p.e("s_waitcnt lgkmcnt(0)")
    p.e(f"s_cmp_ge_u32 s{st + 5}, 2")
    p.e(f"s_cselect_b32 s{st + 6}, s{st + 8}, s{st + 6}")
    p.e(f"s_cselect_b32 s{st + 7}, s{st + 9}, s{st + 7}")
    make_srd(p, SRD_B, st + 6, 576 * 36)
    p.e(f"s_mul_i32 s{st}, s{st + 5}, {18 * 1024}")
    p.e(f"s_lshl_b32 s{st + 1}, s{S_W}, 10")
    p.e(f"s_add_u32 s{st}, s{st}, s{st + 1}")
    p.e(f"s_add_u32 s{S_RLD}, s{st}, {hx(L.WKVF)}")
    for i in range(5):
        p.e(f"s_mov_b32 s{st + 4}, {i * 4 * 1152}")
        for j in range(8):
            op = "buffer_load_ushort" if j % 2 == 0 else "buffer_load_short_d16_hi"
            reg = (dst if j % 2 == 0 else tmp) + 4 * i + j // 2
            p.e(f"{op} a{reg}, v{vo}, {sr(SRD_B, 4)}, s{st + 4} offen offset:{(16 * (j // 4) + j % 4) * 36}")
    p.label(f"{name}_n45")
    p.e(f"s_mov_b32 s{S_RLS}, 4096")
    p.e(f"s_cmp_lt_u32 s{S_W}, 2")
    p.e(f"s_cselect_b32 s{S_RLN}, 5, 4")
    p.label(f"{name}_end")


def relayout_finish(p, name):
    out = 172
    a = V_T0
    p.e(f"v_add_u32 v{a}, s{S_RLD}, v{V_L16}")
    for i in range(9):
        p.e(f"s_cmp_le_u32 s{S_RLN}, {i}")
        p.e(f"s_cbranch_scc1 {name}_fin")
        o = out + 8 * (i % 2)
        for j in range(4):
            p.e(f"v_accvgpr_read_b32 v{o + j}, a{RL_LO + 4 * i + j}")
            p.e(f"v_accvgpr_read_b32 v{o + 4 + j}, a{RL_HI + 4 * i + j}")
        for j in range(4):
            p.e(f"v_or_b32 v{o + j}, v{o + j}, v{o + 4 + j}")
        p.e(f"global_store_dwordx4 v{a}, {vr(o, 4)}, s[{S_WS}:{S_WS + 1}] WSC")
        p.e(f"v_add_u32 v{a}, s{S_RLS}, v{a}")
    p.label(f"{name}_fin")


V_Y = 132
V_PB = 164
V_YOFF = 39
V_PA = 96 + 104


def y_addr(p, vdst):
    p.e(f"s_mul_i32 s{S_T0}, s{S_PAIR}, 18432")
    p.e(f"s_mul_i32 s{S_T0 + 1}, s{S_W}, {144 * 32}")
    p.e(f"s_add_u32 s{S_T0}, s{S_T0}, s{S_T0 + 1}")
    p.e(f"s_add_u32 s{S_T0}, s{S_T0}, {hx(L.YT + 2048)}")
    p.e(f"v_lshlrev_b32 v{vdst}, 7, v{V_G}")
    p.e(f"v_lshl_add_u32 v{vdst}, v{V_N}, 1, v{vdst}")
    p.e(f"v_add_u32 v{vdst}, s{S_T0}, v{vdst}")


def y_load_list(vaddr, yreg):
    out = []
    for t in range(9):
        for r in range(4):
            out.append(f"global_load_short_d16_hi v{yreg(4 * t + r)}, v{vaddr}, s[{S_WS}:{S_WS + 1}] offset:{(16 * t + r) * 32 - 2048} PLD")
    return out


def gate_chain(p, X, st_sel=0, yreg=None):
    if yreg is None:
        yreg = lambda i: V_Y + i
    row_stats(p, X, V_TMP, LDS_ST + 512 * st_sel, V_STW, V_STR, V_MU, V_RS)
    T = V_TMP
    p.e(f"v_mov_b32 v{T}, v{V_RS}")
    p.e(f"v_mul_f32 v{T + 2}, v{V_MU}, v{V_RS}")
    p.e(f"v_sub_f32 v{T + 2}, 0, v{T + 2}")
    for i in range(18):
        a = T + 4 + 2 * (i % 2)
        p.e(f"v_pk_fma_f32 {vr(a, 2)}, {vr(X + 2 * i, 2)}, {vr(T, 2)}, {vr(T + 2, 2)} op_sel_hi:[1,0,0]")
        p.e(f"v_pk_fma_f32 {vr(X + 2 * i, 2)}, {vr(a, 2)}, {vr(yreg(2 * i), 2)}, {vr(X + 2 * i, 2)}")


def store_out_rows(p, srd, X, half_by_hh=True):
    T = V_TMP
    for t in range(9):
        o = T + 2 * (t % 4)
        p.e(f"v_cvt_pk_bf16_f32 v{o}, v{X + 4 * t}, v{X + 4 * t + 1}")
        p.e(f"v_cvt_pk_bf16_f32 v{o + 1}, v{X + 4 * t + 2}, v{X + 4 * t + 3}")
        p.e(f"buffer_store_dwordx2 {vr(o, 2)}, v{V_XOFF}, {sr(srd, 4)}, s{S_ROWOFF} offen offset:{32 * t}")
```

```python
from common import *
from parts import LDS_XB, V_TMP
import parts as P
import conv as CV

WK_IMG = CV.CV_UB
WK_IMG_END = WK_IMG + 576 * 48 + 64
WK_IMG2 = 57344
RL_IMG = CV.CV_BASE
S_RLD, S_RLS, S_RLN, S_RLT = 94, 95, 96, 97

V_TRA = 59


def wkv_dma(p, srd, img=WK_IMG):
    a = V_T0
    for d in range(3):
        p.e(f"s_lshl_b32 s{S_T0}, s{S_W}, 6")
        p.e(f"s_add_u32 s{S_T0}, s{S_T0}, {d}")
        p.e(f"v_add_u32 v{a + 3}, s{S_T0}, v{V_LANE}")
        p.e(f"v_mul_u32_u24 v{a + 4}, 21846, v{a + 3}")
        p.e(f"v_lshrrev_b32 v{a + 4}, 16, v{a + 4}")
        p.e(f"v_mul_u32_u24 v{a + d}, 3, v{a + 4}")
        p.e(f"v_sub_u32 v{a + 3}, v{a + 3}, v{a + d}")
        p.e(f"v_mul_u32_u24 v{a + d}, 36, v{a + 4}")
        p.e(f"v_lshl_add_u32 v{a + d}, v{a + 3}, 4, v{a + d}")
    p.e(f"s_lshl_b32 s{S_T0}, s{S_W}, 10")
    p.e(f"s_add_u32 s{S_T0}, s{S_T0}, {img}")
    for k in range(7):
        if k == 6:
            p.e(f"s_cmp_eq_u32 s{S_W}, 3")
            p.e(f"s_cbranch_scc1 L_wkdma_end{id(p) % 1000}_{wkv_dma.n}")
            p.if_begin()
        p.e(f"s_add_u32 m0, s{S_T0}, {4096 * k}")
        p.e(f"s_mov_b32 s{S_T0 + 1}, {3060 * k + 36 * (k // 3)}")
        p.e(f"buffer_load_dwordx4 v{a + k % 3}, {sr(srd, 4)}, s{S_T0 + 1} offen lds")
        if k == 6:
            p.label(f"L_wkdma_end{id(p) % 1000}_{wkv_dma.n}")
            p.if_end()
    wkv_dma.n += 1


wkv_dma.n = 0


KVW = 96


def kv_weight_frags(p, name, img=WK_IMG):
    va = V_T0
    p.e(f"s_cmp_ge_u32 s{S_W}, 2")
    p.e(f"s_cbranch_scc1 {name}_end")
    p.if_begin()
    p.e(f"v_lshrrev_b32 v{va + 3}, 2, v{V_LANE}")
    p.e(f"v_mul_u32_u24 v{va + 3}, 48, v{va + 3}")
    p.e(f"v_and_b32 v{va + 4}, 3, v{V_LANE}")
    p.e(f"v_lshl_add_u32 v{va + 3}, v{va + 4}, 3, v{va + 3}")
    p.e(f"s_lshl_b32 s{S_T0}, s{S_W}, 5")
    p.e(f"s_add_u32 s{S_T0}, s{S_T0}, {img}")
    p.e(f"v_add_u32 v{va + 3}, s{S_T0}, v{va + 3}")
    for k in range(18):
        p.e(f"ds_read_b64_tr_b16 {vr(KVW + 4 * k, 2)}, v{va + 3} offset:{1536 * k}")
        p.e(f"ds_read_b64_tr_b16 {vr(KVW + 4 * k + 2, 2)}, v{va + 3} offset:{1536 * k + 768}")
    p.label(f"{name}_end")
    p.if_end()


def kv_project_store(p, s_kvbase, name, img=WK_IMG):
    acc = V_TMP
    xb = V_TMP + 4
    wf = 100
    va = V_T0
    p.e(f"s_cmp_ge_u32 s{S_W}, 2")
    p.e(f"s_cbranch_scc1 {name}_end")
    p.if_begin()
    XB4 = 168

    def rd(k):
        p.e(f"ds_read_b128 {vr(XB4 + 4 * (k % 4), 4)}, v{V_L16} offset:{LDS_XB + 1024 * k}")

    def chain(swap):
        for k in range(3):
            rd(k)
        for ks in range(18):
            if ks + 3 < 18:
                rd(ks + 3)
            c = "0" if ks == 0 else vr(acc, 4)
            A, B = vr(KVW + 4 * ks, 4), vr(XB4 + 4 * (ks % 4), 4)
            if swap:
                A, B = B, A
            p.e(f"v_mfma_f32_16x16x32_bf16 {vr(acc, 4)}, {A}, {B}, {c}")

    p.e(f"s_cmp_eq_u32 s{S_HH}, 0")
    p.e(f"s_cbranch_scc0 {name}_v")
    p.if_begin()
    chain(False)
    p.e(f"s_lshr_b32 s{S_T0}, s{S_PAIR}, 1")
    p.e(f"s_and_b32 s{S_T0 + 1}, s{S_PAIR}, 1")
    p.e(f"s_lshl_b32 s{S_T0 + 1}, s{S_T0 + 1}, 4")
    p.e(f"v_add_u32 v{va}, s{S_T0 + 1}, v{V_N}")
    p.e(f"s_mov_b32 s{S_T0 + 2}, {hx(f2u(L.QSCALE))}")
    for r in range(4):
        p.e(f"v_mul_f32 v{acc + r}, s{S_T0 + 2}, v{acc + r}")
    p.e(f"v_cvt_pk_bf16_f32 v{xb}, v{acc}, v{acc + 1}")
    p.e(f"v_cvt_pk_bf16_f32 v{xb + 1}, v{acc + 2}, v{acc + 3}")
    p.e(f"s_cmp_eq_u32 s{S_W}, 0")
    p.e(f"s_cbranch_scc0 {name}_kl")
    p.if_begin()
    p.e(f"v_lshrrev_b32 v{va + 1}, 1, v{V_G}")
    p.e(f"v_lshl_add_u32 v{va + 1}, v{va + 1}, 5, v{va}")
    p.e(f"v_lshlrev_b32 v{va + 1}, 4, v{va + 1}")
    p.e(f"v_and_b32 v{va + 2}, 1, v{V_G}")
    p.e(f"v_lshl_add_u32 v{va + 1}, v{va + 2}, 3, v{va + 1}")
    p.e(f"s_lshl_b32 s{S_T0}, s{S_T0}, 10")
    p.e(f"v_add_u32 v{va + 1}, s{S_T0}, v{va + 1}")
    p.e(f"global_store_dwordx2 v{va + 1}, {vr(xb, 2)}, {sr(s_kvbase, 2)} offset:{L.KV_K0} KVSC")
    p.e(f"s_branch {name}_end")
    p.if_end()
    p.label(f"{name}_kl")
    p.e(f"v_mov_b32 v{xb + 1}, 0x3f803f80")
    p.e(f"s_lshl_b32 s{S_T0}, s{S_T0}, 5")
    p.e(f"v_add_u32 v{va + 1}, s{S_T0}, v{va}")
    p.e(f"v_lshlrev_b32 v{va + 1}, 3, v{va + 1}")
    p.e(f"v_add_u32 v{va + 1}, {hx(L.KV_KL)}, v{va + 1}")
    p.e("s_mov_b64 exec, 0xffff")
    p.e(f"global_store_dwordx2 v{va + 1}, {vr(xb, 2)}, {sr(s_kvbase, 2)} KVSC")
    p.e("s_mov_b64 exec, -1")
    p.e(f"s_branch {name}_end")
    p.if_end()
    p.label(f"{name}_v")
    chain(True)
    p.e(f"s_lshl_b32 s{S_T0 + 1}, s{S_W}, 4")
    p.e(f"v_add_u32 v{va}, s{S_T0 + 1}, v{V_N}")
    p.e(f"v_cmp_eq_u32 vcc, 18, v{va}")
    p.e(f"v_cndmask_b32 v{va + 2}, 0, 1.0, vcc")
    p.e(f"v_cmp_gt_u32 vcc, 18, v{va}")
    for r in range(4):
        p.e(f"v_cndmask_b32 v{acc + r}, v{va + 2}, v{acc + r}, vcc")
    p.e(f"v_cvt_pk_bf16_f32 v{xb}, v{acc}, v{acc + 1}")
    p.e(f"v_cvt_pk_bf16_f32 v{xb + 1}, v{acc + 2}, v{acc + 3}")
    p.e(f"v_and_b32 v{va + 1}, 1, v{V_G}")
    p.e(f"v_lshl_add_u32 v{va + 1}, v{va + 1}, 5, v{va}")
    p.e(f"v_lshlrev_b32 v{va + 1}, 4, v{va + 1}")
    p.e(f"v_lshrrev_b32 v{va + 2}, 1, v{V_G}")
    p.e(f"v_lshl_add_u32 v{va + 1}, v{va + 2}, 3, v{va + 1}")
    p.e(f"s_lshl_b32 s{S_T0}, s{S_PAIR}, 10")
    p.e(f"s_add_u32 s{S_T0}, s{S_T0}, {hx(L.KV_VF)}")
    p.e(f"v_add_u32 v{va + 1}, s{S_T0}, v{va + 1}")
    p.e(f"global_store_dwordx2 v{va + 1}, {vr(xb, 2)}, {sr(s_kvbase, 2)} KVSC")
    p.label(f"{name}_end")
    p.if_end()


def relayout_issue(p, s_job, name):
    a = V_T0
    st = S_T0
    p.e(f"s_mov_b32 s{S_RLN}, 0")
    p.e(f"s_cmp_ge_u32 s{s_job}, 54")
    p.e(f"s_cbranch_scc1 {name}_end")
    p.e(f"s_cmp_ge_u32 s{s_job}, 36")
    p.e(f"s_cbranch_scc1 {name}_wo")
    p.e(f"s_cmp_ge_u32 s{s_job}, 32")
    p.e(f"s_cbranch_scc1 {name}_ql")
    p.e(f"s_lshr_b32 s{st}, s{s_job}, 4")
    p.e(f"s_and_b32 s{st + 1}, s{s_job}, 15")
    p.e(f"s_lshl_b32 s{st + 2}, s{st}, 4")
    p.e(f"s_and_b32 s{st + 3}, s{st + 1}, 14")
    p.e(f"s_add_u32 s{st + 2}, s{st + 2}, s{st + 3}")
    p.e(f"s_and_b32 s{st + 3}, s{st + 1}, 1")
    p.e(f"s_lshl_b32 s{st + 3}, s{st + 3}, 2")
    p.e(f"v_and_b32 v{a + 1}, 1, v{V_LANE}")
    p.e(f"v_add_u32 v{a + 1}, s{st + 2}, v{a + 1}")
    p.e(f"v_mul_u32_u24 v{a + 1}, 18, v{a + 1}")
    p.e(f"v_bfe_u32 v{a + 2}, v{V_LANE}, 1, 1")
    p.e(f"v_lshl_add_u32 v{a + 1}, v{a + 2}, 3, v{a + 1}")
    p.e(f"v_add_u32 v{a + 1}, s{st + 3}, v{a + 1}")
    p.e(f"v_lshrrev_b32 v{a}, 2, v{V_LANE}")
    p.e(f"v_mul_u32_u24 v{a}, 1152, v{a}")
    p.e(f"v_lshl_add_u32 v{a}, v{a + 1}, 1, v{a}")
    make_srd(p, SRD_B, KREG["wq"], 576 * 1152)
    p.e(f"s_mul_i32 s{st + 4}, s{S_W}, {9 * 16 * 1152}")
    p.e(f"s_mul_i32 s{st + 5}, s{S_W}, {9 * 1024}")
    p.e(f"s_add_u32 s{st + 5}, s{st + 5}, {RL_IMG}")
    for i in range(9):
        p.e(f"s_add_u32 m0, s{st + 5}, {1024 * i}")
        p.e(f"buffer_load_dwordx4 v{a}, {sr(SRD_B, 4)}, s{st + 4} offen lds")
        p.e(f"s_add_u32 s{st + 4}, s{st + 4}, {16 * 1152}")
    p.e(f"s_mul_i32 s{st}, s{st}, 18")
    p.e(f"s_add_u32 s{st}, s{st}, s{st + 1}")
    p.e(f"s_mov_b32 s{S_RLT}, 64")
    p.e(f"s_branch {name}_qc")
    p.label(f"{name}_ql")
    p.e(f"s_sub_u32 s{st + 1}, s{s_job}, 32")
    p.e(f"s_lshr_b32 s{st}, s{st + 1}, 1")
    p.e(f"s_and_b32 s{st + 1}, s{st + 1}, 1")
    p.e(f"s_lshl_b32 s{st + 2}, s{st}, 4")
    p.e(f"s_lshl_b32 s{st + 3}, s{st + 1}, 3")
    p.e(f"s_add_u32 s{st + 2}, s{st + 2}, s{st + 3}")
    p.e(f"v_and_b32 v{a + 1}, 1, v{V_LANE}")
    p.e(f"v_bfe_u32 v{a + 2}, v{V_LANE}, 1, 2")
    p.e(f"v_lshl_add_u32 v{a + 1}, v{a + 1}, 2, v{a + 2}")
    p.e(f"v_add_u32 v{a + 1}, s{st + 2}, v{a + 1}")
    p.e(f"v_mul_u32_u24 v{a + 1}, 36, v{a + 1}")
    p.e(f"v_add_u32 v{a + 1}, 32, v{a + 1}")
    p.e(f"v_lshrrev_b32 v{a}, 3, v{V_LANE}")
    p.e(f"v_mul_u32_u24 v{a}, 1152, v{a}")
    p.e(f"v_add_u32 v{a}, v{a}, v{a + 1}")
    make_srd(p, SRD_B, KREG["wq"], 576 * 1152)
    p.e(f"s_mul_i32 s{st + 4}, s{S_W}, {144 * 1152}")
    p.e(f"s_mul_i32 s{st + 5}, s{S_W}, {144 * 32}")
    p.e(f"s_add_u32 s{st + 5}, s{st + 5}, {RL_IMG}")
    for i in range(18):
        p.e(f"s_add_u32 m0, s{st + 5}, {256 * i}")
        p.e(f"buffer_load_dword v{a}, {sr(SRD_B, 4)}, s{st + 4} offen lds")
        p.e(f"s_add_u32 s{st + 4}, s{st + 4}, {8 * 1152}")
    p.e(f"s_mul_i32 s{st}, s{st}, 18")
    p.e(f"s_add_u32 s{st}, s{st}, s{st + 1}")
    p.e(f"s_add_u32 s{st}, s{st}, 16")
    p.e(f"s_mov_b32 s{S_RLT}, 32")
    p.label(f"{name}_qc")
    p.e(f"s_mul_i32 s{st}, s{st}, {18 * 1024}")
    p.e(f"s_lshl_b32 s{st + 1}, s{S_W}, 10")
    p.e(f"s_add_u32 s{st}, s{st}, s{st + 1}")
    p.e(f"s_add_u32 s{S_RLD}, s{st}, {hx(L.WQF)}")
    p.e(f"s_mov_b32 s{S_RLS}, 4096")
    p.e(f"s_cmp_lt_u32 s{S_W}, 2")
    p.e(f"s_cselect_b32 s{S_RLN}, 5, 4")
    p.e(f"s_lshl_b32 s{st + 1}, s{S_W}, 5")
    p.e(f"v_lshrrev_b32 v{V_TRA}, 2, v{V_LANE}")
    p.e(f"v_add_u32 v{V_TRA}, s{st + 1}, v{V_TRA}")
    p.e(f"v_mul_lo_u32 v{V_TRA}, s{S_RLT}, v{V_TRA}")
    p.e(f"s_lshr_b32 s{st + 2}, s{S_RLT}, 2")
    p.e(f"v_and_b32 v{a + 1}, 3, v{V_LANE}")
    p.e(f"v_mul_lo_u32 v{a + 1}, s{st + 2}, v{a + 1}")
    p.e(f"v_add_u32 v{V_TRA}, v{V_TRA}, v{a + 1}")
    p.e(f"v_add_u32 v{V_TRA}, {RL_IMG}, v{V_TRA}")
    p.e(f"s_lshl_b32 s98, s{S_RLT}, 7")
    p.e(f"s_lshl_b32 s99, s{S_RLT}, 4")
    p.e(f"s_branch {name}_end")
    p.label(f"{name}_wo")
    p.e(f"s_sub_u32 s{st + 5}, s{s_job}, 36")
    p.e(f"s_cmp_ge_u32 s{st + 5}, 9")
    p.e(f"s_cselect_b32 s{st}, 1, 0")
    p.e(f"s_mul_i32 s{st + 1}, s{st}, 9")
    p.e(f"s_sub_u32 s{st + 1}, s{st + 5}, s{st + 1}")
    p.e(f"s_lshl_b32 s{st + 2}, s{st}, 4")
    rho, kg, jh, r, row = a + 1, a + 2, a + 3, a + 4, a + 5
    p.e(f"s_cmp_eq_u32 s{st + 1}, 8")
    p.e(f"s_cselect_b32 s{st + 8}, 1, 0")
    p.e(f"s_lshl_b32 s{st + 3}, s{st + 1}, 1")
    p.e(f"s_add_u32 s{st + 3}, s{st + 3}, s{st + 2}")
    make_srd(p, SRD_B, KREG["wo"], 576 * 1152)

    def rows(dst, rho_reg):
        p.e(f"v_lshrrev_b32 v{kg}, 3, v{rho_reg}")
        p.e(f"v_bfe_u32 v{jh}, v{rho_reg}, 2, 1")
        p.e(f"v_and_b32 v{r}, 3, v{rho_reg}")
        p.e(f"v_and_b32 v{dst}, 1, v{kg}")
        p.e(f"v_add_u32 v{dst}, s{st + 3}, v{dst}")
        p.e(f"v_mul_u32_u24 v{dst}, 18, v{dst}")
        p.e(f"v_lshrrev_b32 v{row + 1}, 1, v{kg}")
        p.e(f"v_lshl_add_u32 v{dst}, v{row + 1}, 2, v{dst}")
        p.e(f"v_lshl_add_u32 v{dst}, v{jh}, 3, v{dst}")
        p.e(f"v_add_u32 v{dst}, v{dst}, v{r}")
        p.e(f"v_lshlrev_b32 v{row + 1}, 2, v{kg}")
        p.e(f"v_add_u32 v{row + 1}, s{st + 2}, v{row + 1}")
        p.e(f"v_mul_u32_u24 v{row + 1}, 18, v{row + 1}")
        p.e(f"v_mul_u32_u24 v{jh}, 36, v{jh}")
        p.e(f"v_add3_u32 v{row + 1}, v{row + 1}, v{jh}, 16")
        p.e(f"v_lshrrev_b32 v{jh}, 1, v{r}")
        p.e(f"v_mul_u32_u24 v{jh}, 18, v{jh}")
        p.e(f"v_and_b32 v{r}, 1, v{r}")
        p.e(f"v_add3_u32 v{row + 1}, v{row + 1}, v{jh}, v{r}")
        p.e(f"s_cmp_eq_u32 s{st + 8}, 1")
        p.e(f"s_cselect_b64 vcc, -1, 0")
        p.e(f"v_cndmask_b32 v{dst}, v{dst}, v{row + 1}, vcc")

    p.e(f"s_mul_i32 s{st + 4}, s{S_W}, 288")
    p.e(f"s_mul_i32 s{st + 9}, s{S_W}, {9 * 1024}")
    p.e(f"s_add_u32 s{st + 9}, s{st + 9}, {RL_IMG}")
    p.e(f"v_lshrrev_b32 v{rho}, 1, v{V_G}")
    p.e(f"v_mul_u32_u24 v{rho}, 18, v{rho}")
    p.e(f"v_and_b32 v{kg}, 1, v{V_G}")
    p.e(f"v_add_u32 v{rho}, v{rho}, v{kg}")
    p.e(f"s_cmp_eq_u32 s{st + 8}, 1")
    p.e(f"s_cselect_b64 vcc, -1, 0")
    p.e(f"v_cndmask_b32 v{rho}, v{V_G}, v{rho}, vcc")
    p.e(f"v_mul_u32_u24 v{a}, 1152, v{rho}")
    p.e(f"v_lshl_add_u32 v{a}, v{V_N}, 4, v{a}")
    p.e(f"s_mul_i32 s{st + 10}, s{st + 3}, 18")
    p.e(f"s_mul_i32 s{st + 11}, s{st + 2}, 18")
    p.e(f"s_add_u32 s{st + 11}, s{st + 11}, 16")
    for i in range(8):
        kgc, jhc = i >> 1, i & 1
        p.e(f"s_add_u32 s{st}, s{st + 10}, {18 * (kgc & 1) + 4 * (kgc >> 1) + 8 * jhc}")
        p.e(f"s_add_u32 s{st + 1}, s{st + 11}, {72 * kgc + 36 * jhc}")
        p.e(f"s_cmp_eq_u32 s{st + 8}, 1")
        p.e(f"s_cselect_b32 s{st}, s{st + 1}, s{st}")
        p.e(f"s_mul_i32 s{st}, s{st}, 1152")
        p.e(f"s_add_u32 s{st}, s{st}, s{st + 4}")
        p.e(f"s_add_u32 m0, s{st + 9}, {1024 * i}")
        p.e(f"buffer_load_dwordx4 v{a}, {sr(SRD_B, 4)}, s{st} offen lds")
    p.e(f"v_lshrrev_b32 v{rho}, 1, v{V_LANE}")
    rows(row, rho)
    p.e(f"v_mul_u32_u24 v{a}, 1152, v{row}")
    p.e(f"v_and_b32 v{rho}, 1, v{V_LANE}")
    p.e(f"v_lshl_add_u32 v{a}, v{rho}, 4, v{a}")
    p.e(f"v_add_u32 v{a}, 256, v{a}")
    p.e(f"s_add_u32 m0, s{st + 9}, 8192")
    p.e(f"buffer_load_dwordx4 v{a}, {sr(SRD_B, 4)}, s{st + 4} offen lds")
    p.e(f"s_mul_i32 s{st}, s{st + 5}, {36 * 1024}")
    p.e(f"s_mul_i32 s{st + 1}, s{S_W}, {9 * 1024}")
    p.e(f"s_add_u32 s{st}, s{st}, s{st + 1}")
    p.e(f"s_add_u32 s{S_RLD}, s{st}, {hx(L.WOF)}")
    p.e(f"s_mov_b32 s{S_RLS}, 1024")
    p.e(f"s_mov_b32 s{S_RLN}, 9")
    p.e(f"s_mov_b32 s{S_RLT}, 0")
    p.e(f"v_lshlrev_b32 v{rho}, 3, v{V_G}")
    p.e(f"v_bfe_u32 v{kg}, v{V_LANE}, 2, 2")
    p.e(f"v_add_u32 v{rho}, v{rho}, v{kg}")
    p.e(f"v_and_b32 v{jh}, 3, v{V_LANE}")
    p.e(f"v_lshlrev_b32 v{V_TRA}, 8, v{rho}")
    p.e(f"v_lshl_add_u32 v{V_TRA}, v{jh}, 3, v{V_TRA}")
    p.e(f"v_add_u32 v{V_TRA}, s{st + 9}, v{V_TRA}")
    p.e(f"v_lshlrev_b32 v13, 5, v{rho}")
    p.e(f"v_lshl_add_u32 v13, v{jh}, 3, v13")
    p.e(f"s_add_u32 s{st + 9}, s{st + 9}, 8192")
    p.e(f"v_add_u32 v13, s{st + 9}, v13")
    p.label(f"{name}_end")


def relayout_finish(p, name):
    a = V_T0
    out = 104
    p.e(f"s_cmp_eq_u32 s{S_RLN}, 0")
    p.e(f"s_cbranch_scc1 {name}_fin")
    p.e(f"v_add_u32 v{a}, s{S_RLD}, v{V_L16}")
    p.e(f"s_cmp_eq_u32 s{S_RLN}, 9")
    p.e(f"s_cbranch_scc1 {name}_fo")
    p.e(f"v_add_u32 v{a + 1}, s99, v{V_TRA}")
    for i in range(5):
        if i == 4:
            p.e(f"s_cmp_lt_u32 s{S_RLN}, 5")
            p.e(f"s_cbranch_scc1 {name}_fin")
        o = out + 4 * (i % 2)
        p.e(f"ds_read_b64_tr_b16 {vr(o, 2)}, v{V_TRA}")
        p.e(f"ds_read_b64_tr_b16 {vr(o + 2, 2)}, v{a + 1}")
        p.e(f"v_add_u32 v{V_TRA}, s98, v{V_TRA}")
        p.e(f"v_add_u32 v{a + 1}, s98, v{a + 1}")
        p.e("s_waitcnt lgkmcnt(0)")
        p.e(f"global_store_dwordx4 v{a}, {vr(o, 4)}, s[{S_WS}:{S_WS + 1}] WSC")
        p.e(f"v_add_u32 v{a}, s{S_RLS}, v{a}")
    p.e(f"s_branch {name}_fin")
    p.label(f"{name}_fo")
    for t in range(9):
        o = out + 4 * t
        if t < 8:
            p.e(f"ds_read_b64_tr_b16 {vr(o, 2)}, v{V_TRA} offset:{32 * t}")
            p.e(f"ds_read_b64_tr_b16 {vr(o + 2, 2)}, v{V_TRA} offset:{32 * t + 1024}")
        else:
            p.e(f"ds_read_b64_tr_b16 {vr(o, 2)}, v13")
            p.e(f"ds_read_b64_tr_b16 {vr(o + 2, 2)}, v13 offset:128")
    p.e("s_waitcnt lgkmcnt(0)")
    for t in range(9):
        p.e(f"global_store_dwordx4 v{a}, {vr(out + 4 * t, 4)}, s[{S_WS}:{S_WS + 1}] WSC")
        p.e(f"v_add_u32 v{a}, 1024, v{a}")
    p.label(f"{name}_fin")
```

```python
import sys
from common import *
import parts as P
from parts import *
import conv as CV
import attn as AT
import gen as G
import start as ST

S_NONCE = 86
S_ROLE = 81
S_CH0 = 80
S_LAYER = 83
ST_KV1, ST_Y, ST_P1, ST_KV2, ST_P2, ST_UT = 0, 1, 2, 3, 4, 5
S_CVACT = 87
S_NYOUNG = 74
SPIN_MAX = 400000
_lab = [0]


def uid(s):
    _lab[0] += 1
    return f"L_{s}{_lab[0]}"


def flag_set(p, stage):
    p.e("s_waitcnt vmcnt(0)")
    p.e("s_barrier")
    lab = uid("fs")
    p.e(f"s_cmp_lg_u32 s{S_W}, 0")
    p.e(f"s_cbranch_scc1 {lab}")
    p.e(f"s_lshl_b32 s{S_T0}, s{S_PAIR}, 1")
    p.e(f"s_add_u32 s{S_T0}, s{S_T0}, s{S_HH}")
    p.e(f"s_lshl_b32 s{S_T0}, s{S_T0}, 7")
    p.e(f"s_add_u32 s{S_T0}, s{S_T0}, {hx(L.FLAGS + stage * 32768)}")
    p.e(f"v_mov_b32 v{V_T0}, s{S_T0}")
    p.e(f"v_mov_b32 v{V_T0 + 1}, s{S_NONCE}")
    p.e("s_mov_b64 exec, 1")
    p.e(f"global_store_dword v{V_T0}, v{V_T0 + 1}, s[{S_WS}:{S_WS + 1}] sc1")
    p.e("s_mov_b64 exec, -1")
    p.label(lab)


def flag_store(p, stage, wave=0):
    lab = uid("ft")
    p.e(f"s_cmp_lg_u32 s{S_W}, {wave}")
    p.e(f"s_cbranch_scc1 {lab}")
    p.if_begin()
    p.e(f"s_lshl_b32 s{S_T0}, s{S_PAIR}, 1")
    p.e(f"s_add_u32 s{S_T0}, s{S_T0}, s{S_HH}")
    p.e(f"s_lshl_b32 s{S_T0}, s{S_T0}, 7")
    p.e(f"s_add_u32 s{S_T0}, s{S_T0}, {hx(L.FLAGS + stage * 32768)}")
    p.e(f"v_mov_b32 v{V_T0}, s{S_T0}")
    p.e(f"v_mov_b32 v{V_T0 + 1}, s{S_NONCE}")
    p.e("s_mov_b64 exec, 1")
    p.e(f"global_store_dword v{V_T0}, v{V_T0 + 1}, s[{S_WS}:{S_WS + 1}] sc1")
    p.e("s_mov_b64 exec, -1")
    p.label(lab)
    p.if_end()


def poll(p, vaddr):
    lab = uid("pl")
    p.e(f"s_mov_b32 s{S_T0 + 1}, 0")
    p.label(lab)
    p.e(f"global_load_dword v{V_T0 + 1}, v{vaddr}, s[{S_WS}:{S_WS + 1}] sc1")
    p.e(f"s_add_u32 s{S_T0 + 1}, s{S_T0 + 1}, 1")
    p.e("s_waitcnt vmcnt(0)")
    p.e(f"v_cmp_ne_u32 vcc, s{S_NONCE}, v{V_T0 + 1}")
    p.e(f"s_cmp_gt_u32 s{S_T0 + 1}, {SPIN_MAX}")
    p.e(f"s_cbranch_scc1 {lab}_x")
    p.e(f"s_cbranch_vccnz {lab}")
    p.label(lab + "_x")


def poll_all(p, stage, barrier=True):
    p.e(f"s_lshl_b32 s{S_T0}, s{S_W}, 13")
    p.e(f"s_add_u32 s{S_T0}, s{S_T0}, {hx(L.FLAGS + stage * 32768)}")
    p.e(f"v_lshlrev_b32 v{V_T0}, 7, v{V_LANE}")
    p.e(f"v_add_u32 v{V_T0}, s{S_T0}, v{V_T0}")
    poll(p, V_T0)
    if barrier:
        p.e("s_barrier")


def poll_partner(p, stage):
    p.e(f"s_lshl_b32 s{S_T0}, s{S_PAIR}, 1")
    p.e(f"s_add_u32 s{S_T0}, s{S_T0}, s{S_HH}")
    p.e(f"s_xor_b32 s{S_T0}, s{S_T0}, 1")
    p.e(f"s_lshl_b32 s{S_T0}, s{S_T0}, 7")
    p.e(f"s_add_u32 s{S_T0}, s{S_T0}, {hx(L.FLAGS + stage * 32768)}")
    p.e(f"v_mov_b32 v{V_T0}, s{S_T0}")
    poll(p, V_T0)


def save_x(p, X):
    pass


LDS_XS = 150784


def k_fused(name):
    p = Prog()
    for k in ("KVSC", "WSC", "YSC", "PSC", "PLD"):
        p.subst[k] = "sc1"
    done = name + "_done"
    stamp = G.stamp
    SPAN = "--span" in sys.argv
    if SPAN:
        p.e("s_memrealtime s[100:101]")
    prologue(p, done=done, allptrs=True)
    if G.STAMPS == 1:
        load_ptr(p, 88, "dbg")
    chain_addr_setup(p)
    p.e("s_waitcnt lgkmcnt(0)")
    stamp(p, 0)
    stamp(p, 14, real=True)
    if "--pf" in sys.argv:
        lab = uid("pf")
        p.e(f"s_cmp_eq_u32 s{S_SLOT}, 31")
        p.e(f"s_cbranch_scc0 {lab}")
        p.if_begin()
        p.e("s_getpc_b64 s[30:31]")
        p.e(f"v_lshlrev_b32 v16, 7, v{V_TID}")
        p.e("global_load_dword v17, v16, s[30:31]")
        p.e(f"v_add_u32 v16, 32768, v16")
        p.e(f"v_cmp_gt_u32 vcc, CODE_BYTES, v16")
        p.e("s_and_saveexec_b64 s[32:33], vcc")
        p.e(f"s_cbranch_execz {lab}_b")
        p.e("global_load_dword v18, v16, s[30:31]")
        p.label(lab + "_b")
        p.e("s_mov_b64 exec, s[32:33]")
        p.label(lab)
        p.if_end()
    make_srd(p, SRD_A, KREG["x"], L.S * L.D * 2)
    load_x_rows(p, SRD_A)
    p.e(f"s_cmp_eq_u32 s{S_HH}, 0")
    p.e(f"s_cselect_b32 s{S_T0 + 6}, s{KREG['wk']}, s{KREG['wv']}")
    p.e(f"s_cselect_b32 s{S_T0 + 7}, s{KREG['wk'] + 1}, s{KREG['wv'] + 1}")
    make_srd(p, SRD_B, S_T0 + 6, 576 * 36)
    CV.ut_issue(p)
    ST.wkv_dma(p, SRD_B)
    p.e(f"s_add_u32 s{S_T0 + 10}, s{S_WS}, {hx(L.EPOCH)}")
    p.e(f"s_addc_u32 s{S_T0 + 11}, s{S_WS + 1}, 0")
    p.e(f"s_load_dword s{S_NONCE}, s[{S_T0 + 10}:{S_T0 + 11}], 0")
    p.e(f"s_cmp_lt_u32 s{S_SLOT}, 24")
    p.e(f"s_cselect_b32 s{S_ROLE}, 1, 0")
    p.e(f"s_cbranch_scc0 {name}_r_rl")
    p.e(f"s_mul_i32 s{S_CH0}, s{S_XCD}, 72")
    p.e(f"s_mul_i32 s3, s{S_SLOT}, 3")
    p.e(f"s_add_u32 s{S_CH0}, s{S_CH0}, s3")
    p.e(f"s_branch {name}_r_end")
    p.label(f"{name}_r_rl")
    p.e(f"s_sub_u32 s{S_CH0}, s{S_SLOT}, 24")
    p.e(f"s_lshl_b32 s{S_CH0}, s{S_CH0}, 3")
    p.e(f"s_add_u32 s{S_CH0}, s{S_CH0}, s{S_XCD}")
    p.label(f"{name}_r_end")
    p.e(f"s_cmp_lt_u32 s{S_W}, 3")
    p.e(f"s_cselect_b32 s{S_CVACT}, s{S_ROLE}, 0")
    stamp(p, 1)
    p.e("s_waitcnt vmcnt(0)" if False else "s_nop 0")
    CV.ut_round(p, 0)
    CV.ut_extra(p)
    p.e(f"s_cmp_eq_u32 s{S_ROLE}, 1")
    p.e(f"s_cbranch_scc0 {name}_nofi")
    p.if_begin()
    CV.conv_filter_issue(p, S_CH0)
    p.e(f"s_mov_b32 s{S_NYOUNG}, 19")
    p.e(f"s_branch {name}_issued")
    p.if_end()
    p.label(f"{name}_nofi")
    p.if_begin()
    ST.relayout_issue(p, S_CH0, name + "_rl")
    p.e(f"s_mov_b32 s{S_NYOUNG}, 9")
    p.e(f"s_sub_u32 s3, s{S_CH0}, 32")
    p.e(f"s_cmp_lt_u32 s3, 4")
    p.e(f"s_cselect_b32 s{S_NYOUNG}, 18, s{S_NYOUNG}")
    p.e(f"s_cmp_ge_u32 s{S_CH0}, 54")
    p.e(f"s_cselect_b32 s{S_NYOUNG}, 0, s{S_NYOUNG}")
    p.if_end()
    p.label(f"{name}_issued")
    unpack_x_rows(p)
    def ut_drain():
        for n in (0, 9, 18):
            lab = uid("wy")
            p.e(f"s_cmp_eq_u32 s{S_NYOUNG}, {n}")
            p.e(f"s_cbranch_scc0 {lab}")
            p.if_begin()
            p.e(f"s_waitcnt vmcnt({n})")
            p.label(lab)
            p.if_end()
        p.e("s_waitcnt vmcnt(19)")
        p.e(f"s_add_u32 s{S_NONCE}, s{S_NONCE}, 1")

    row_stats(p, V_X, V_TMP, LDS_ST, V_STW, V_STR, V_MU, V_RS, pre_bar=ut_drain, post_bar=lambda: flag_store(p, ST_UT, wave=2))
    ST.kv_weight_frags(p, name + "_wf1")
    normalize_to_xb(p, V_X, V_TMP, V_MU, V_RS, V_XBE, V_XBO)
    p.e("s_waitcnt lgkmcnt(0)")
    p.e("s_barrier")
    stamp(p, 2)
    ws_base(p, S_P0, L.KVB)
    ST.kv_project_store(p, S_P0, name + "_kv1")
    p.e(f"s_cmp_eq_u32 s{S_ROLE}, 0")
    p.e(f"s_cbranch_scc0 {name}_norl")
    p.if_begin()
    p.e("s_waitcnt vmcnt(0)")
    p.e("s_barrier")
    ST.relayout_finish(p, name + "_rl")
    p.label(f"{name}_norl")
    p.if_end()
    for i in range(16):
        p.e(f"v_accvgpr_write_b32 a{240 + i}, v{V_XR + i}")
    p.e(f"v_mov_b32 v{V_XS16}, v{V_XR + 16}")
    p.e(f"v_mov_b32 v{V_XS16 + 1}, v{V_XR + 17}")
    p.e(f"v_mov_b32 v{V_T0 + 3}, {ST.WK_IMG_END}")
    p.e(f"s_not_b32 s3, s{S_NONCE}")
    p.e(f"v_mov_b32 v{V_T0 + 4}, s3")
    p.e(f"ds_write_b32 v{V_T0 + 3}, v{V_T0 + 4}")
    stamp(p, 3)
    flag_set(p, ST_KV1)
    if "--clearB" in sys.argv:
        clear_slots(p, 0)
        clear_slots(p, 1)
    p.e(f"s_cmp_eq_u32 s{S_ROLE}, 1")
    p.e(f"s_cbranch_scc0 {name}_nofb0")
    p.if_begin()
    CV.conv_filter_build(p, S_CH0)
    p.label(f"{name}_nofb0")
    p.if_end()
    AT.addr_setup(p)
    AT.weight_ptr_setup(p)
    p.e(f"s_cmp_eq_u32 s{S_ROLE}, 1")
    p.e(f"s_cbranch_scc0 {name}_nofb")
    p.if_begin()
    CV.conv_setup(p)
    stamp(p, 4)
    poll_all(p, ST_UT)
    CV.conv_u_dma(p, S_CH0)
    p.e("s_waitcnt vmcnt(0) lgkmcnt(0)")
    p.e("s_barrier")
    p.label(f"{name}_nofb")
    p.if_end()
    stamp(p, 5)

    V_LK = 250

    def look_issue(stage):
        p.e(f"s_lshl_b32 s{S_T0}, s{S_W}, 13")
        p.e(f"s_add_u32 s{S_T0}, s{S_T0}, {hx(L.FLAGS + stage * 32768)}")
        p.e(f"v_lshlrev_b32 v{V_LK + 1}, 7, v{V_LANE}")
        p.e(f"v_add_u32 v{V_LK + 1}, s{S_T0}, v{V_LK + 1}")
        p.e(f"global_load_dword v{V_LK}, v{V_LK + 1}, s[{S_WS}:{S_WS + 1}] sc1")

    def look_check():
        lab = uid("lk")
        p.e(f"v_cmp_ne_u32 vcc, s{S_NONCE}, v{V_LK}")
        p.e(f"s_cbranch_vccz {lab}")
        p.if_begin()
        poll(p, V_LK + 1)
        p.label(lab)
        p.if_end()
        p.e("s_barrier")

    def mid():
        look_check()
        stamp(p, 6)
        lab = uid("ep")
        p.e(f"s_or_b32 s{S_T0}, s2, s{S_W}")
        p.e(f"s_cmp_lg_u32 s{S_T0}, 0")
        p.e(f"s_cbranch_scc1 {lab}")
        p.if_begin()
        p.e(f"v_mov_b32 v{V_T0}, {hx(L.EPOCH)}")
        p.e(f"v_mov_b32 v{V_T0 + 1}, s{S_NONCE}")
        p.e("s_mov_b64 exec, 1")
        p.e(f"global_store_dword v{V_T0}, v{V_T0 + 1}, s[{S_WS}:{S_WS + 1}] sc1")
        p.e("s_mov_b64 exec, -1")
        p.label(lab)
        p.if_end()
        ws_base(p, AT.S_KV, L.KVB)
        lab2 = uid("nb")
        p.e(f"s_cmp_eq_u32 s{S_CVACT}, 0")
        p.e(f"s_cbranch_scc0 {lab2}")
        p.if_begin()
        for t in first_loads:
            p.e(t)
        p.label(lab2)
        p.if_end()
        AT.q_left(p, name + "_ql1", both_on=3)

    first_loads = []
    for tau in range(AT.KV_AHEAD):
        first_loads += AT.kv_tile_loads(tau)
    for ks in range(18):
        first_loads += AT.q_wload(ks, AT.QW + 4 * ks)

    look_issue(ST_KV1)
    ws_base(p, S_P0 + 2, L.YT)
    CV.conv_main(p, S_CH0, name + "_cv", S_P0 + 2, S_CVACT, stamp, mid, first_loads)
    stamp(p, 7)
    AT.q_main_compute(p)
    p.e(f"s_mov_b32 s{S_LAYER}, 0")
    p.loop_begin(name + "_layer")
    V_YF = 247
    V_YA = 254

    def pre_last():
        p.e(f"s_lshl_b32 s{S_T0}, s{S_W}, 13")
        p.e(f"s_add_u32 s{S_T0}, s{S_T0}, {hx(L.FLAGS + ST_Y * 32768)}")
        p.e(f"v_lshlrev_b32 v{V_YF + 1}, 7, v{V_LANE}")
        p.e(f"v_add_u32 v{V_YF + 1}, s{S_T0}, v{V_YF + 1}")
        p.e(f"global_load_dword v{V_YF}, v{V_YF + 1}, s[{S_WS}:{S_WS + 1}] sc1")
        y_addr(p, V_YA)

    def y_check():
        lab = uid("yf")
        p.e(f"v_cmp_ne_u32 vcc, s{S_NONCE}, v{V_YF}")
        p.e(f"s_cbranch_vccz {lab}")
        p.if_begin()
        poll(p, V_YF + 1)
        p.label(lab)
        p.if_end()

    def after_first():
        lab = uid("yfl")
        p.e(f"s_cmp_eq_u32 s{S_LAYER}, 0")
        p.e(f"s_cbranch_scc0 {lab}")
        p.if_begin()
        flag_store(p, ST_Y, wave=0)
        p.label(lab)
        p.if_end()
        if "--clearA" in sys.argv:
            clear_slots(p, None)

    ylist = [t.replace("global_load_short_d16_hi v", "global_load_short_d16_hi a") for t in y_load_list(V_YA, lambda i: i)]
    AT.attention_layer(p, name + "_at", stamp, None, after_first, pre_last, {"preB2": y_check, "late": ylist})
    p.e(f"s_lshl_b32 s3, s{S_LAYER}, 3")
    stamp(p, 8, 3)
    XP, XI = 168, 192
    part_bases(p)

    def greg(base, k):
        return base + 4 * (k // 3) + k % 3

    for t in range(9):
        p.e(f"v_cvt_pk_bf16_f32 v{greg(XP, 2 * t)}, v{AT.XA + 4 * t}, v{AT.XA + 4 * t + 1}")
        p.e(f"v_cvt_pk_bf16_f32 v{greg(XP, 2 * t + 1)}, v{AT.XA + 4 * t + 2}, v{AT.XA + 4 * t + 3}")
    for g in range(6):
        p.e(f"v_mov_b32 v{XP + 4 * g + 3}, s{S_NONCE}")
    p.e(f"v_add_u32 v{V_T0 + 2}, 4096, v{V_L16}")
    for g in range(6):
        p.e(f"global_store_dwordx4 v{V_T0 + 2}, {vr(XP + 4 * g, 4)}, {sr(S_P0 + 4, 2)} offset:{1024 * g - 4096} {'' if '--plain' in sys.argv else 'sc1'}")
    p.e(f"s_lshl_b32 s3, s{S_LAYER}, 3")
    stamp(p, 9, 3)
    chain_addr_setup(p)
    load_ptr(p, S_T0 + 6, "wk")
    load_ptr(p, S_T0 + 8, "wv")
    for i in range(16):
        p.e(f"v_accvgpr_read_b32 v{V_XR + i}, a{240 + i}")
    p.e(f"v_mov_b32 v{V_XR + 16}, v{V_XS16}")
    p.e(f"v_mov_b32 v{V_XR + 17}, v{V_XS16 + 1}")
    unpack_x_rows(p)
    for i in range(18):
        p.e(f"v_pk_add_f32 {vr(V_X + 2 * i, 2)}, {vr(V_X + 2 * i, 2)}, {vr(AT.XA + 2 * i, 2)}")
    for i in range(36):
        p.e(f"v_accvgpr_read_b32 v{V_Y + i}, a{i}")
    p.e("s_waitcnt lgkmcnt(0)")
    p.e(f"s_cmp_eq_u32 s{S_HH}, 0")
    p.e(f"s_cselect_b32 s{S_T0 + 6}, s{S_T0 + 6}, s{S_T0 + 8}")
    p.e(f"s_cselect_b32 s{S_T0 + 7}, s{S_T0 + 7}, s{S_T0 + 9}")
    make_srd(p, SRD_B, S_T0 + 6, 576 * 36)
    ST.wkv_dma(p, SRD_B, ST.WK_IMG2)
    AT.addr_setup(p)
    AT.weight_ptr_setup(p)
    AT.q_left_addr(p)
    lab = uid("px")
    p.e(f"v_add_u32 v{V_T0 + 2}, 4096, v{V_L16}")
    p.e(f"s_mov_b32 s{S_T0 + 1}, 0")
    for g in range(6):
        p.e(f"global_load_dwordx4 {vr(XI + 4 * g, 4)}, v{V_T0 + 2}, {sr(S_P0 + 6, 2)} offset:{1024 * g - 4096} sc1")
    p.e("s_waitcnt vmcnt(0)")
    p.label(lab)
    T1 = V_TMP
    for g in range(6):
        p.e(f"v_xor_b32 v{T1 + g}, s{S_NONCE}, v{XI + 4 * g + 3}")
    p.e(f"v_or3_b32 v{T1}, v{T1}, v{T1 + 1}, v{T1 + 2}")
    p.e(f"v_or3_b32 v{T1 + 3}, v{T1 + 3}, v{T1 + 4}, v{T1 + 5}")
    p.e(f"v_or_b32 v{T1}, v{T1}, v{T1 + 3}")
    p.e(f"v_cmp_ne_u32 vcc, 0, v{T1}")
    p.e(f"s_add_u32 s{S_T0 + 1}, s{S_T0 + 1}, 1")
    p.e(f"s_cbranch_vccz {lab}_ok")
    p.e(f"s_cmp_gt_u32 s{S_T0 + 1}, {SPIN_MAX}")
    p.e(f"s_cbranch_scc1 {lab}_ok")
    for g in range(6):
        p.e(f"global_load_dwordx4 {vr(XI + 4 * g, 4)}, v{V_T0 + 2}, {sr(S_P0 + 6, 2)} offset:{1024 * g - 4096} sc1")
    p.e("s_waitcnt vmcnt(0)")
    p.e(f"s_branch {lab}")
    p.label(lab + "_ok")
    PB = AT.XA
    for t in range(9):
        for h in range(2):
            src = greg(XI, 2 * t + h)
            p.e(f"v_lshlrev_b32 v{PB + 4 * t + 2 * h}, 16, v{src}")
            p.e(f"v_and_b32 v{PB + 4 * t + 2 * h + 1}, 0xffff0000, v{src}")
    for i in range(18):
        p.e(f"v_pk_add_f32 {vr(V_X + 2 * i, 2)}, {vr(V_X + 2 * i, 2)}, {vr(PB + 2 * i, 2)}")
    p.e(f"s_lshl_b32 s3, s{S_LAYER}, 3")
    stamp(p, 10, 3)
    gate_chain(p, V_X, 0)
    stamp(p, 30)
    p.e(f"s_cmp_eq_u32 s{S_LAYER}, 1")
    p.e(f"s_cbranch_scc1 {name}_final")
    def ln_xb():
        row_stats(p, V_X, V_TMP, LDS_ST + 512, V_STW, V_STR, V_MU, V_RS)
        normalize_to_xb(p, V_X, V_TMP, V_MU, V_RS, V_XBE, V_XBO)
        p.e("s_waitcnt lgkmcnt(0)")
        p.e("s_barrier")

    def park():
        for t in range(9):
            p.e(f"v_cvt_pk_bf16_f32 v{V_XR + 2 * t}, v{V_X + 4 * t}, v{V_X + 4 * t + 1}")
            p.e(f"v_cvt_pk_bf16_f32 v{V_XR + 2 * t + 1}, v{V_X + 4 * t + 2}, v{V_X + 4 * t + 3}")
        for i in range(16):
            p.e(f"v_accvgpr_write_b32 a{240 + i}, v{V_XR + i}")
        p.e(f"v_mov_b32 v{V_XS16}, v{V_XR + 16}")
        p.e(f"v_mov_b32 v{V_XS16 + 1}, v{V_XR + 17}")

    p.e(f"s_cmp_lt_u32 s{S_W}, 2")
    p.e(f"s_cbranch_scc1 {name}_b01")
    p.if_begin()
    ln_xb()
    i0 = len(p.items)
    park()
    pl = AT.q_pref_list(True)
    p.sprinkle(i0, pl[:10], first=1)
    for t in pl[10:]:
        p.e(t)
    AT.q_left_compute(p, name + "_ql2")
    p.e(f"s_branch {name}_bj")
    p.if_end()
    p.label(f"{name}_b01")
    p.if_begin()
    stamp(p, 31)
    ST.kv_weight_frags(p, name + "_wf2", ST.WK_IMG2)
    ln_xb()
    stamp(p, 32)
    ws_base(p, S_P0, L.KVB + L.KV_LAYER)
    ST.kv_project_store(p, S_P0, name + "_kv2", ST.WK_IMG2)
    stamp(p, 33)
    p.e(f"v_mov_b32 v{V_T0 + 3}, {ST.WK_IMG_END}")
    p.e(f"v_mov_b32 v{V_T0 + 4}, s{S_NONCE}")
    p.e("s_waitcnt vmcnt(0)")
    lab = uid("k2")
    p.e(f"s_cmp_eq_u32 s{S_W}, 0")
    p.e(f"s_cbranch_scc1 {lab}_w0")
    p.e(f"ds_write_b32 v{V_T0 + 3}, v{V_T0 + 4}")
    p.e(f"s_branch {lab}_d")
    p.label(lab + "_w0")
    p.label(lab + "_sp")
    p.e(f"ds_read_b32 v{V_T0 + 5}, v{V_T0 + 3}")
    p.e("s_waitcnt lgkmcnt(0)")
    p.e(f"v_cmp_ne_u32 vcc, s{S_NONCE}, v{V_T0 + 5}")
    p.e(f"s_cbranch_vccnz {lab}_sp")
    flag_store(p, ST_KV2, wave=0)
    p.label(lab + "_d")
    stamp(p, 11)
    for t in AT.q_pref_list(False):
        p.e(t)
    park()
    p.if_end()
    p.label(f"{name}_bj")
    AT.q_main_compute(p, AT.QWA, agpr=True)
    poll_all(p, ST_KV2)
    stamp(p, 12)
    ws_base(p, AT.S_KV, L.KVB + L.KV_LAYER)
    AT.kv_first_loads(p)
    p.e(f"s_mov_b32 s{S_LAYER}, 1")
    p.e(f"s_branch {name}_layer")
    p.loop_end()
    p.fence()
    p.label(name + "_final")
    p.e("s_nop 7")
    load_ptr(p, S_T0 + 4, "out")
    p.e("s_waitcnt lgkmcnt(0)")
    make_srd(p, SRD_A, S_T0 + 4, L.S * L.D * 2)
    p.e(f"s_lshr_b32 s{S_T0}, s{S_W}, 1")
    p.e(f"s_cmp_eq_u32 s{S_T0}, s{S_HH}")
    p.e(f"s_cbranch_scc0 {name + '_span' if SPAN else done}")
    store_out_rows(p, SRD_A, V_X)
    stamp(p, 26)
    stamp(p, 15, real=True)
    p.e(f"s_branch {name}_exit")
    p.fence()
    p.label(name + "_at_slow")
    AT.slow_path(p, name + "_sp", name + "_at_slow_back")
    p.fence()
    p.label(name + "_exit")
    if SPAN:
        p.label(name + "_span")
        p.e("s_waitcnt vmcnt(0)")
        p.e("s_memrealtime s[90:91]")
        p.e("s_waitcnt lgkmcnt(0)")
        p.e("v_mov_b32 v16, s100")
        p.e("v_mov_b32 v17, s90")
        p.e("s_lshl_b32 s3, s2, 5")
        p.e(f"s_lshl_b32 s28, s{S_W}, 3")
        p.e("s_add_u32 s3, s3, s28")
        p.e(f"s_add_u32 s3, s3, {hx(0x2900000)}")
        p.e("v_mov_b32 v18, s3")
        p.e(f"global_store_dwordx2 v18, v[16:17], s[{S_WS}:{S_WS + 1}]")
    p.label(done)
    p.e("s_endpgm")
    txt = G.kernel_text(name, p)
    print(name, "counts", p.count, "auto nops", p.nauto_nop, file=sys.stderr)
    return txt, G.descriptor(name, 256, 256, sgpr=102), max(AT.A_END, ST.WK_IMG_END + 64)


V_XS16 = 252


PSZ = 24576


def part_bases(p, layer=None):
    p.e(f"s_lshl_b32 s{S_T0}, s{S_PAIR}, 1")
    p.e(f"s_add_u32 s{S_T0}, s{S_T0}, s{S_HH}")
    p.e(f"s_mul_i32 s{S_T0 + 2}, s{S_T0}, {PSZ}")
    p.e(f"s_xor_b32 s{S_T0}, s{S_T0}, 1")
    p.e(f"s_mul_i32 s{S_T0 + 3}, s{S_T0}, {PSZ}")
    p.e(f"s_mul_i32 s{S_T0 + 1}, s{S_W}, 6144")
    if layer is None:
        p.e(f"s_mul_i32 s{S_T0 + 4}, s{S_LAYER}, {hx(L.PART_LAYER)}")
    else:
        p.e(f"s_mov_b32 s{S_T0 + 4}, {hx(layer * L.PART_LAYER)}")
    p.e(f"s_add_u32 s{S_T0 + 1}, s{S_T0 + 1}, s{S_T0 + 4}")
    p.e(f"s_add_u32 s{S_T0 + 2}, s{S_T0 + 2}, s{S_T0 + 1}")
    p.e(f"s_add_u32 s{S_T0 + 3}, s{S_T0 + 3}, s{S_T0 + 1}")
    ws_base(p, S_P0 + 4, L.PART, S_T0 + 2)
    ws_base(p, S_P0 + 6, L.PART, S_T0 + 3)


def clear_slots(p, layer):
    R = 16
    part_bases(p, layer)
    p.e(f"s_not_b32 s{S_T0}, s{S_NONCE}")
    for k in range(4):
        p.e(f"v_mov_b32 v{CLR + k}, s{S_T0}")
    p.e(f"v_add_u32 v{V_T0 + 2}, 4096, v{V_L16}")
    for g in range(6):
        p.e(f"global_store_dwordx4 v{V_T0 + 2}, {vr(CLR, 4)}, {sr(S_P0 + 4, 2)} offset:{1024 * g - 4096} sc1")


CLR = 200


def dbg_dump(p, X, which):
    if "--dump" not in sys.argv:
        return
    lab = uid("dd")
    p.e(f"s_or_b32 s{S_T0}, s{S_HH}, s{S_LAYER}")
    p.e(f"s_cmp_lg_u32 s{S_T0}, 0")
    p.e(f"s_cbranch_scc1 {lab}")
    p.e(f"s_mul_i32 s{S_T0}, s{S_PAIR}, 36864")
    p.e(f"s_mul_i32 s{S_T0 + 1}, s{S_W}, 9216")
    p.e(f"s_add_u32 s{S_T0}, s{S_T0}, s{S_T0 + 1}")
    ws_base(p, S_P0 + 10, L.X2G + which * 0x500000, S_T0)
    for t in range(9):
        p.e(f"v_add_u32 v{V_T0 + 1}, {1024 * t}, v{V_L16}")
        p.e(f"global_store_dwordx4 v{V_T0 + 1}, {vr(X + 4 * t, 4)}, {sr(S_P0 + 10, 2)}")
    p.label(lab)


def flag_set_dyn(p, stage, dstage):
    p.e("s_waitcnt vmcnt(0)")
    p.e("s_barrier")
    lab = uid("fs")
    p.e(f"s_cmp_lg_u32 s{S_W}, 0")
    p.e(f"s_cbranch_scc1 {lab}")
    p.e(f"s_lshl_b32 s{S_T0}, s{S_PAIR}, 1")
    p.e(f"s_add_u32 s{S_T0}, s{S_T0}, s{S_HH}")
    p.e(f"s_lshl_b32 s{S_T0}, s{S_T0}, 7")
    p.e(f"s_mul_i32 s{S_T0 + 1}, s{S_LAYER}, {dstage * 32768}")
    p.e(f"s_add_u32 s{S_T0}, s{S_T0}, s{S_T0 + 1}")
    p.e(f"s_add_u32 s{S_T0}, s{S_T0}, {hx(L.FLAGS + stage * 32768)}")
    p.e(f"v_mov_b32 v{V_T0}, s{S_T0}")
    p.e(f"v_mov_b32 v{V_T0 + 1}, s{S_NONCE}")
    p.e("s_mov_b64 exec, 1")
    p.e(f"global_store_dword v{V_T0}, v{V_T0 + 1}, s[{S_WS}:{S_WS + 1}] sc1")
    p.e("s_mov_b64 exec, -1")
    p.label(lab)


def flag_store_dyn(p, stage, dstage):
    lab = uid("fs")
    p.e(f"s_cmp_lg_u32 s{S_W}, 0")
    p.e(f"s_cbranch_scc1 {lab}")
    p.if_begin()
    p.e(f"s_lshl_b32 s{S_T0}, s{S_PAIR}, 1")
    p.e(f"s_add_u32 s{S_T0}, s{S_T0}, s{S_HH}")
    p.e(f"s_lshl_b32 s{S_T0}, s{S_T0}, 7")
    p.e(f"s_mul_i32 s{S_T0 + 1}, s{S_LAYER}, {dstage * 32768}")
    p.e(f"s_add_u32 s{S_T0}, s{S_T0}, s{S_T0 + 1}")
    p.e(f"s_add_u32 s{S_T0}, s{S_T0}, {hx(L.FLAGS + stage * 32768)}")
    p.e(f"v_mov_b32 v{V_T0}, s{S_T0}")
    p.e(f"v_mov_b32 v{V_T0 + 1}, s{S_NONCE}")
    p.e("s_mov_b64 exec, 1")
    p.e(f"global_store_dword v{V_T0}, v{V_T0 + 1}, s[{S_WS}:{S_WS + 1}] sc1")
    p.e("s_mov_b64 exec, -1")
    p.label(lab)
    p.if_end()


def poll_partner_dyn(p, stage, dstage):
    p.e(f"s_lshl_b32 s{S_T0}, s{S_PAIR}, 1")
    p.e(f"s_add_u32 s{S_T0}, s{S_T0}, s{S_HH}")
    p.e(f"s_xor_b32 s{S_T0}, s{S_T0}, 1")
    p.e(f"s_lshl_b32 s{S_T0}, s{S_T0}, 7")
    p.e(f"s_mul_i32 s{S_T0 + 2}, s{S_LAYER}, {dstage * 32768}")
    p.e(f"s_add_u32 s{S_T0}, s{S_T0}, s{S_T0 + 2}")
    p.e(f"s_add_u32 s{S_T0}, s{S_T0}, {hx(L.FLAGS + stage * 32768)}")
    p.e(f"v_mov_b32 v{V_T0}, s{S_T0}")
    poll(p, V_T0)


def build_single(name, text, desc, lds):
    s = G.HEADER
    s += f"; @launch grid=(256,1,1) block=(256,1,1) lds={lds}\n"
    s += '.amdgcn_target "amdgcn-amd-amdhsa--gfx950"\n.text\n' + text
    s += '.section .rodata,"a"\n' + desc
    return s


if __name__ == "__main__":
    G.STAMPS = 2 if "--stamps2" in sys.argv else (1 if "--stamps" in sys.argv else 0)
    name = G.NAME + "_kernel"
    t, d, l = k_fused(name)
    import subprocess, re
    tmp = build_single(name, t.replace("CODE_BYTES", "0x10000"), d, l)
    open("_sz.s", "w").write(tmp)
    subprocess.run(["clang", "-x", "assembler", "-target", "amdgcn-amd-amdhsa", "-mcpu=gfx950", "-c", "_sz.s", "-o", "_sz.o"], check=True)
    o = subprocess.run(["llvm-size", "-A", "_sz.o"], capture_output=True, text=True).stdout
    nbytes = int(re.search(r"\.text\s+(\d+)", o).group(1))
    print("code bytes", nbytes, file=sys.stderr)
    t = t.replace("CODE_BYTES", hex(nbytes - 512))
    open(sys.argv[1], "w").write(build_single(name, t, d, l))
```

```python
import os
from common import *
from parts import LDS_XB, LDS_XB_END

A_QF = 147200
A_QL = A_QF + 2048
A_OP = LDS_XB_END
A_OB = A_OP + 24576
A_OL = A_OB + 2048
A_FL = A_OL + 1024
A_END = A_QL + 1024 + 512

A_K0 = 0
A_KL = 64
A_VT = 80
A_O = 208

SB = [16, 48]
QC = 80
QLR = 88
XA = 96
WR = 132
NR = 9
XR = 168
QA = 180
QT = 184
OF = 188
OFL = 196
RT = 200
V_WQ, V_WO = 232, 233
V_OPW, V_R1, V_R2, V_OBW, V_OLW, V_QFW, V_QL = 234, 235, 236, 237, 238, 239, 240
V_QFR = 241
V_RC = 242
V_KA, V_KL, V_VA = 244, 245, 246
S_PH = 82
S_FAIL = 84
S_KV = S_P0
L_LO = 0x1f800000
L_RANGE = 0x5f800000 - L_LO
KV_AHEAD = 4


def cost(text):
    mn = text.split()[0]
    if mn.startswith("v_exp") or mn.startswith("v_rcp"):
        return 8
    if mn.startswith("v_mfma"):
        return 4 if "x4_2b" in mn else 8
    if mn.startswith("ds_write_b128"):
        return 18
    if mn.startswith("ds_") or mn.startswith("global_load"):
        return 9
    return 4


def pipe(text):
    mn = text.split()[0]
    if "32x32x16" in mn:
        return 32
    if "16x16x32" in mn:
        return 16
    if "x4_2b" in mn:
        return 64
    return 0


def addr_setup(p):
    t = S_T0
    p.e(f"s_mul_i32 s{t}, s{S_W}, 6144")
    p.e(f"s_add_u32 s{t}, s{t}, {A_OP}")
    p.e(f"v_add_u32 v{V_OPW}, s{t}, v{V_L16}")
    p.e(f"s_lshr_b32 s{t + 1}, s{S_W}, 1")
    p.e(f"s_and_b32 s{t + 2}, s{S_W}, 1")
    p.e(f"s_mul_i32 s{t + 3}, s{t + 1}, 3072")
    p.e(f"s_add_u32 s{t + 3}, s{t + 3}, {A_OP}")
    p.e(f"s_lshl_b32 s{t + 4}, s{t + 2}, 10")
    p.e(f"s_add_u32 s{t + 4}, s{t + 4}, s{t + 3}")
    p.e(f"v_add_u32 v{V_R1}, s{t + 4}, v{V_L16}")
    p.e(f"v_and_b32 v{V_T0}, 31, v{V_LANE}")
    p.e(f"v_lshlrev_b32 v{V_T0 + 1}, 4, v{V_T0}")
    p.e(f"s_add_u32 s{t + 3}, s{t + 3}, 2048")
    p.e(f"v_add_u32 v{V_R2}, s{t + 3}, v{V_T0 + 1}")
    p.e(f"s_lshl_b32 s{t + 3}, s{t + 1}, 10")
    p.e(f"s_lshl_b32 s{t + 4}, s{t + 2}, 3")
    p.e(f"s_add_u32 s{t + 3}, s{t + 3}, s{t + 4}")
    p.e(f"s_add_u32 s{t + 4}, s{t + 3}, {A_OB}")
    p.e(f"v_add_u32 v{V_OBW}, s{t + 4}, v{V_L16}")
    p.e(f"s_add_u32 s{t + 4}, s{t + 3}, {A_QF}")
    p.e(f"v_add_u32 v{V_QFW}, s{t + 4}, v{V_L16}")
    p.e(f"v_lshlrev_b32 v{V_OLW}, 4, v{V_N}")
    p.e(f"v_lshrrev_b32 v{V_T0}, 4, v{V_T0}")
    p.e(f"v_lshl_add_u32 v{V_OLW}, v{V_T0}, 2, v{V_OLW}")
    p.e(f"s_lshl_b32 s{t + 3}, s{t + 1}, 3")
    p.e(f"s_add_u32 s{t + 3}, s{t + 3}, {A_OL}")
    p.e(f"v_add_u32 v{V_OLW}, s{t + 3}, v{V_OLW}")
    p.e(f"v_add_u32 v{V_QFR}, {A_QF}, v{V_L16}")
    p.e(f"v_lshlrev_b32 v{V_QL}, 2, v{V_LANE}")
    p.e(f"v_add_u32 v{V_QL}, {A_QL}, v{V_QL}")
    p.e(f"s_lshl_b32 s{t}, s{S_W}, 14")
    p.e(f"s_add_u32 s{t}, s{t}, 4096")
    p.e(f"v_add_u32 v{V_KA}, s{t}, v{V_L16}")
    p.e(f"s_lshl_b32 s{t}, s{S_W}, 12")
    p.e(f"s_add_u32 s{t}, s{t}, {hx(L.KV_KL)}")
    p.e(f"v_lshlrev_b32 v{V_KL}, 3, v{V_LANE}")
    p.e(f"v_add_u32 v{V_KL}, s{t}, v{V_KL}")
    p.e(f"v_and_b32 v{V_T0}, 31, v{V_LANE}")
    p.e(f"v_min_u32 v{V_T0}, 19, v{V_T0}")
    p.e(f"v_and_b32 v{V_T0 + 1}, 32, v{V_LANE}")
    p.e(f"v_add_lshl_u32 v{V_VA}, v{V_T0}, v{V_T0 + 1}, 4")
    p.e(f"s_lshl_b32 s{t}, s{S_W}, 15")
    p.e(f"s_add_u32 s{t}, s{t}, {hx(L.KV_VF + 4096)}")
    p.e(f"v_add_u32 v{V_VA}, s{t}, v{V_VA}")


def weight_ptr_setup(p):
    t = S_T0
    p.e(f"s_mul_i32 s{t}, s{S_HH}, {L.WQF_HH}")
    p.e(f"s_mul_i32 s{t + 1}, s{S_W}, 18432")
    p.e(f"s_add_u32 s{t}, s{t}, s{t + 1}")
    p.e(f"s_add_u32 s{t}, s{t}, {hx(L.WQF + 4096)}")
    p.e(f"v_add_u32 v{V_WQ}, s{t}, v{V_L16}")
    p.e(f"s_mul_i32 s{t}, s{S_HH}, {L.WOF_HH}")
    p.e(f"s_mul_i32 s{t + 1}, s{S_W}, 9216")
    p.e(f"s_add_u32 s{t}, s{t}, s{t + 1}")
    p.e(f"s_add_u32 s{t}, s{t}, {hx(L.WOF + 4096)}")
    p.e(f"v_add_u32 v{V_WO}, s{t}, v{V_L16}")


def kv_tile_loads(tau):
    out = []
    if tau == 8:
        out.append(f"v_add_u32 v{V_KA}, 8192, v{V_KA}")
    out.append(f"global_load_dwordx4 {ar(A_K0 + 4 * tau, 4)}, v{V_KA}, {sr(S_KV, 2)} offset:{(tau % 8) * 1024 - 4096} PLD")
    if tau % 2 == 0:
        out.append(f"global_load_dwordx2 {ar(A_KL + tau, 2)}, v{V_KL}, {sr(S_KV, 2)} offset:{256 * tau} PLD")
    if tau and tau % 4 == 0:
        out.append(f"v_add_u32 v{V_VA}, 8192, v{V_VA}")
    for t in range(2):
        out.append(f"global_load_dwordx4 {ar(A_VT + 8 * tau + 4 * t, 4)}, v{V_VA}, {sr(S_KV, 2)} offset:{(tau % 4) * 2048 + 1024 * t - 4096} PLD")
    return out


def qk_mfmas(kt, Y):
    k0 = ar(A_K0 + 4 * kt, 4)
    kl = ar(A_KL + 2 * (kt // 2), 2)
    m2 = f"v_mfma_f32_32x32x16_bf16 {vr(Y, 16)}, {k0}, {vr(QC, 4)}, 0"
    m3 = f"v_mfma_f32_32x32x16_bf16 {vr(Y + 16, 16)}, {k0}, {vr(QC + 4, 4)}, 0"
    m1 = f"v_mfma_f32_32x32x4_2b_bf16 {vr(Y, 32)}, {kl}, {vr(QLR, 2)}, {vr(Y, 32)} cbsz:1 abid:{kt % 2}"
    return m2, m3, m1


def pv_mfma(kt, X, T, t):
    c = "0" if (kt == 0 and t == 0) else ar(A_O + 16 * T, 16)
    return f"v_mfma_f32_32x32x16_bf16 {ar(A_O + 16 * T, 16)}, {ar(A_VT + 8 * kt + 4 * t, 4)}, {vr(X + 16 * T + 8 * t, 4)}, {c}"


def q_wload(ks, r, agpr=False):
    out = []
    if ks in (8, 16):
        out.append(f"v_add_u32 v{V_WQ}, 8192, v{V_WQ}")
    dst = ar(r, 4) if agpr else vr(r, 4)
    out.append(f"global_load_dwordx4 {dst}, v{V_WQ}, s[{S_WS}:{S_WS + 1}] offset:{(ks % 8) * 1024 - 4096} PLD")
    if ks == 17:
        out.append(f"v_add_u32 v{V_WQ}, {4 * 18432 - 16384}, v{V_WQ}")
    return out


class OStream:
    def __init__(self):
        self.base = 0

    def load(self, j, r):
        T, t = j // 9, j % 9
        off = (T * 36 + t) * 1024
        o = []
        if not (0 <= off - self.base <= 7168):
            o.append(f"v_add_u32 v{V_WO}, {off - self.base}, v{V_WO}")
            self.base = off
        o.append(f"global_load_dwordx4 {vr(r, 4)}, v{V_WO}, s[{S_WS}:{S_WS + 1}] offset:{off - self.base - 4096} PLD")
        if j == 17:
            o.append(f"v_add_u32 v{V_WO}, {72 * 1024 - self.base}, v{V_WO}")
            self.base = 0
        return o


def reduce_reads_g2():
    return [f"ds_read_b128 {vr(RT + 4 * w, 4)}, v{V_R2} offset:{w * 6144}" for w in range(4)]


def reduce_ops_g2():
    G = RT
    red = []
    red.append(f"v_pk_add_f32 {vr(G, 2)}, {vr(G, 2)}, {vr(G + 4, 2)}")
    red.append(f"v_pk_add_f32 {vr(G + 8, 2)}, {vr(G + 8, 2)}, {vr(G + 12, 2)}")
    red.append(f"v_add_f32 v{G + 2}, v{G + 2}, v{G + 6}")
    red.append(f"v_add_f32 v{G + 10}, v{G + 10}, v{G + 14}")
    red.append(f"v_pk_add_f32 {vr(G, 2)}, {vr(G, 2)}, {vr(G + 8, 2)}")
    red.append(f"v_add_f32 v{G + 2}, v{G + 2}, v{G + 10}")
    red.append(f"v_rcp_f32 v{V_RC}, v{G + 2}")
    red.append(f"v_subrev_u32 v{V_RC + 1}, {hx(L_LO)}, v{G + 2}")
    red.append(f"v_cmp_le_u32 vcc, {hx(L_RANGE)}, v{V_RC + 1}")
    red.append(f"v_pk_mul_f32 {vr(G, 2)}, {vr(G, 2)}, {vr(V_RC, 2)} op_sel_hi:[1,0]")
    red.append(f"v_cvt_pk_bf16_f32 v{V_RC + 1}, v{G}, v{G + 1}")
    red.append(f"s_or_b64 s[{S_FAIL}:{S_FAIL + 1}], s[{S_FAIL}:{S_FAIL + 1}], vcc")
    return red


def reduce_reads_main():
    return [f"ds_read_b128 {vr(RT + 4 * w, 4)}, v{V_R1} offset:{w * 6144}" for w in range(4)]


def reduce_ops_main():
    red = []
    for h in range(2):
        red.append(f"v_pk_add_f32 {vr(RT + 2 * h, 2)}, {vr(RT + 2 * h, 2)}, {vr(RT + 4 + 2 * h, 2)}")
        red.append(f"v_pk_add_f32 {vr(RT + 8 + 2 * h, 2)}, {vr(RT + 8 + 2 * h, 2)}, {vr(RT + 12 + 2 * h, 2)}")
    for h in range(2):
        red.append(f"v_pk_add_f32 {vr(RT + 2 * h, 2)}, {vr(RT + 2 * h, 2)}, {vr(RT + 8 + 2 * h, 2)}")
    for h in range(2):
        red.append(f"v_pk_mul_f32 {vr(RT + 2 * h, 2)}, {vr(RT + 2 * h, 2)}, {vr(V_RC, 2)} op_sel_hi:[1,0]")
    red.append(f"v_cvt_pk_bf16_f32 v{RT + 4}, v{RT}, v{RT + 1}")
    red.append(f"v_cvt_pk_bf16_f32 v{RT + 5}, v{RT + 2}, v{RT + 3}")
    return red


OL_WRITE = f"ds_write_b32 v{V_OLW}, v{V_RC + 1}"
OB_WRITE = f"ds_write_b64 v{V_OBW}, {vr(RT + 4, 2)}"


def reduce_plain(p):
    for t in reduce_reads_g2():
        p.e(t)
    for t in reduce_ops_g2():
        p.e(t)
    p.e(OL_WRITE)
    for t in reduce_reads_main():
        p.e(t)
    for t in reduce_ops_main():
        p.e(t)
    p.e(OB_WRITE)


XBLOC = [("v", 168), ("v", 172), ("v", 176), ("v", 92), ("v", 196), ("v", 248), ("v", 184),
         ("v", 216), ("v", 220), ("v", 224), ("v", 228), ("a", 240), ("a", 244), ("a", 248), ("a", 252),
         ("v", 200), ("v", 204), ("v", 208)]
NRES = 15


def xbreg(ks):
    k, r = XBLOC[ks]
    return (vr if k == "v" else ar)(r, 4)


def xb_resident_loads(p):
    for ks in range(NRES):
        p.e(f"ds_read_b128 {xbreg(ks)}, v{V_L16} offset:{LDS_XB + 1024 * ks}")


def phase_body(p, kind, hooks=None):
    first = kind == "first"
    last = kind == "last"
    X_ = os.environ.get("EXP", "")
    main = []
    for kt in range(16):
        X = SB[kt % 2]
        idx = 0
        for blk in range(4):
            b = X + 8 * blk
            for i in range(8):
                main.append((kt, idx, f"v_exp_f32 v{b + i}, v{b + i}"))
                idx += 1
            for i in range(4):
                main.append((kt, idx, f"v_cvt_pk_bf16_f32 v{b + i}, v{b + 2 * i}, v{b + 2 * i + 1}"))
                idx += 1
    mm = []
    for kt in range(16):
        X = SB[kt % 2]
        Y = SB[(kt + 1) % 2]
        nk = (kt + 1) % 16
        m2, m3, m1 = qk_mfmas(nk, Y)
        pk = (kt - 1) % 16
        has_prev = not (first and kt == 0)
        if has_prev:
            mm.append(dict(n=f"pv11_{pk}", t=pv_mfma(pk, Y, 1, 1), kt=kt, pos=1, req=[], pr=3))
        req2 = ["qread"] if kt == 15 else []
        if first and kt + 1 < 16:
            req2 = req2 + [f"kvn_{kt}"]
        if not (last and kt == 15):
            mm.append(dict(n=f"m2_{kt}", t=m2, kt=kt, pos=-1, req=req2, pr=0))
            mm.append(dict(n=f"m3_{kt}", t=m3, kt=kt, pos=-1, req=([f"pv11_{pk}"] if has_prev else []) + [f"m2_{kt}"], pr=1))
            mm.append(dict(n=f"m1_{kt}", t=m1, kt=kt, pos=-1, req=[], reqi=[(f"m3_{kt}", 10)], pr=2))
        mm.append(dict(n=f"pv00_{kt}", t=pv_mfma(kt, X, 0, 0), kt=kt, pos=13, req=(["wT0"] if (kt == 0 and not first) else []), pr=4))
        mm.append(dict(n=f"pv01_{kt}", t=pv_mfma(kt, X, 0, 1), kt=kt, pos=25, req=[f"pv00_{kt}"], pr=5))
        mm.append(dict(n=f"pv10_{kt}", t=pv_mfma(kt, X, 1, 0), kt=kt, pos=37, req=(["wT1"] if (kt == 0 and not first) else []), pr=6))
    side = []
    side2 = []

    def S(t, **kw):
        side.append(dict(t=t, **kw))

    TILE = 445 if not first else 425
    ost = OStream()

    def ringload(i):
        r = WR + 4 * (i % NR)
        n = i + NR
        if first:
            return q_wload(n if n < 18 else n - 18, r)
        if last:
            if n < 18:
                return ost.load(n, r)
            return ost.load(n - 18, r)
        if n < 18:
            return q_wload(n, r)
        if n < 36:
            return ost.load(n - 18, r)
        return q_wload(n - 36, r)

    def ring(i):
        return vr(WR + 4 * (i % NR), 4)

    def red_stream(S_):
        rr = reduce_reads_g2()
        for i, t in enumerate(rr):
            S_(t, ev=("rread" if i == 3 else None))
        S_("NEED " + vr(RT, 16), reqc=[("rread", 280)])
        for t in reduce_ops_g2():
            S_(t)
        S_(OL_WRITE, wtok="OB")
        rr = reduce_reads_main()
        for i, t in enumerate(rr):
            S_(t, ev=("rread2" if i == 3 else None))
        S_("NEED " + vr(RT, 16), reqc=[("rread2", 280)])
        for t in reduce_ops_main():
            S_(t)
        S_(OB_WRITE, wtok="OB", ev="obw")
        S_(f"v_add_u32 v{V_OLW}, 256, v{V_OLW}")

    if last:
        TILE = 415
        for g in range(3):
            S(f"ds_write_b128 v{V_OPW}, {ar(A_O + 4 * g, 4)} offset:{g * 1024}", wtok="OP", ev=("wT0" if g == 2 else None))
        for g in range(3):
            S(f"ds_write_b128 v{V_OPW}, {ar(A_O + 16 + 4 * g, 4)} offset:{3072 + g * 1024}", wtok="OP",
              reqi=[("pv11_15", 13)] if g == 0 else [], ev=("wT1e" if g == 2 else None))
        side[-1]["ev"] = "wT1"
        for j in range(9):
            for t in ost.load(j, WR + 4 * j):
                S(t)
        S("WAIT OP", nb=TILE * 1.6)
        S("s_barrier", ev="B1")
        red_stream(S)
        if hooks and "preB2" in hooks:
            S("CALL preB2")
        S("WAIT OB", reqc=[("obw", 160)])
        S("s_barrier", ev="B2")
        for T in range(2):
            S(f"ds_read_b128 {vr(OF + 4 * T, 4)}, v{V_L16} offset:{A_OB + 1024 * T}", ev=("ofr" if T == 1 else None))
        o_t0 = TILE * 5.5
        o_dt = (16 * TILE - 400 - o_t0) / 18
        for j in range(18):
            T, t = j // 9, j % 9
            if j % 3 == 0:
                S("NEED " + ", ".join([ring(j + k) for k in range(3)] + ([vr(OF, 8)] if j == 0 else [])),
                  nb=o_t0 + o_dt * j - 8, reqc=[("ofr", 150)] if j == 0 else [])
            S(f"v_mfma_f32_16x16x32_bf16 {vr(XA + 4 * t, 4)}, {ring(j)}, {vr(OF + 4 * T, 4)}, {vr(XA + 4 * t, 4)}", nb=o_t0 + o_dt * j)
            for tt in ringload(j):
                S(tt)
            if hooks and "late" in hooks and j >= 9:
                nl = (len(hooks["late"]) + 8) // 9
                for tt in hooks["late"][nl * (j - 9):nl * (j - 9) + nl]:
                    S(tt, req=["m2_9"])
    else:
        if not first:
            for g in range(3):
                S(f"ds_write_b128 v{V_OPW}, {ar(A_O + 4 * g, 4)} offset:{g * 1024}", wtok="OP", ev=("wT0" if g == 2 else None))
        if not first:
            for g in range(3):
                S(f"ds_write_b128 v{V_OPW}, {ar(A_O + 16 + 4 * g, 4)} offset:{3072 + g * 1024}", wtok="OP",
                  reqi=[("pv11_15", 13)] if g == 0 else [], ev=("wT1" if g == 2 else None))

        def qstep(i, nb):
            if i % 3 == 0:
                need = [ring(i + k) for k in range(3)]
                if i == 15:
                    need += [xbreg(k) for k in range(NRES, 18)]
                S("NEED " + ", ".join(need), nb=nb - 8)
            c = "0" if i == 0 else vr(QA, 4)
            S(f"v_mfma_f32_16x16x32_bf16 {vr(QA, 4)}, {ring(i)}, {xbreg(i)}, {c}", nb=nb, ev=f"q{i}")
            for t in ringload(i):
                S(t)
            if i == 12:
                for k in range(NRES, 18):
                    S(f"ds_read_b128 {xbreg(k)}, v{V_L16} offset:{LDS_XB + 1024 * k}", req=([] if first else ["obw"]))

        q_t0 = TILE * 1.1
        q_dt = 175
        if first:
            q_t0 = TILE * 1.5
            q_dt = 270
            for i in range(18):
                qstep(i, q_t0 + q_dt * i)
        else:
            for i in range(0, 3):
                qstep(i, q_t0 + q_dt * i)
            S("WAIT OP")
            S("s_barrier", ev="B1")
            red_stream(lambda t, **kw: side2.append(dict(t=t, **kw)))
            side2[0]["req"] = ["B1"]
            for i in range(3, 18):
                qstep(i, q_t0 + q_dt * i)
        S(f"v_cvt_pk_bf16_f32 v{QA}, v{QA}, v{QA + 1}", reqi=[("q17", 9)])
        S(f"v_cvt_pk_bf16_f32 v{QA + 1}, v{QA + 2}, v{QA + 3}")
        S(f"ds_write_b64 v{V_QFW}, {vr(QA, 2)}", wtok="OB", ev="qfw")
        S("WAIT OB", reqc=[("qfw", 140)], req=([] if first else ["obw"]))
        S("s_barrier", ev="B2")
        if not first:
            for T in range(2):
                S(f"ds_read_b128 {vr(OF + 4 * T, 4)}, v{V_L16} offset:{A_OB + 1024 * T}", ev=("ofr" if T == 1 else None))
            o_t0 = q_t0 + q_dt * 18 + 380
            o_dt = (16 * TILE - 300 - o_t0) / 18
            for j in range(18):
                i = 18 + j
                T, t = j // 9, j % 9
                if j % 3 == 0:
                    S("NEED " + ", ".join([ring(i + k) for k in range(3)] + ([vr(OF, 8)] if j == 0 else [])),
                      nb=o_t0 + o_dt * j - 8, reqc=[("ofr", 150)] if j == 0 else [])
                S(f"v_mfma_f32_16x16x32_bf16 {vr(XA + 4 * t, 4)}, {ring(i)}, {vr(OF + 4 * T, 4)}, {vr(XA + 4 * t, 4)}", nb=o_t0 + o_dt * j)
                for tt in ringload(i):
                    S(tt)
    kvs = []
    if first:
        for kt in range(16):
            tau = kt + KV_AHEAD
            if kt + 1 < 16:
                need = [ar(A_K0 + 4 * (kt + 1), 4), ar(A_KL + 2 * ((kt + 1) // 2), 2), ar(A_VT + 8 * kt, 8)]
                kvs.append(dict(t="NEED " + ", ".join(need), kt=kt, ev=f"kvn_{kt}"))
            else:
                kvs.append(dict(t="NEED " + ar(A_VT + 8 * kt, 8), kt=kt))
            if tau < 16:
                for t in kv_tile_loads(tau):
                    kvs.append(dict(t=t, kt=kt))
    qread = [] if last else [f"ds_read_b128 {vr(QC, 4)}, v{V_QFR}",
             f"ds_read_b128 {vr(QC + 4, 4)}, v{V_QFR} offset:1024",
             f"v_add_u32 v{V_QL}, 256, v{V_QL}",
             f"ds_read_b32 v{QLR}, v{V_QL}"]
    if X_:
        raise RuntimeError("experiments not supported in this version")

    XP_ = os.environ.get("PEXP", "")
    if XP_:
        for d in side:
            t = d["t"]
            if "nowl" in XP_ and t.startswith("global_load_dwordx4 v"):
                d["t"] = "s_nop 0"
            if "noxb" in XP_ and t.startswith("ds_read_b128") and f"v{V_L16} offset" in t:
                d["t"] = "s_nop 0"
            if "nobar" in XP_ and t.startswith("s_barrier"):
                d["t"] = "s_nop 0"
            if "nowr" in XP_ and t.startswith("ds_write_b128"):
                d["t"] = "s_nop 0"
                d["wtok"] = None
            if "nosm" in XP_ and "16x16x32" in t:
                d["t"] = "s_nop 0"
        if "pad" in XP_:
            nm_ = []
            for (kt_, idx_, t_) in main:
                nm_.append((kt_, idx_, t_))
                if idx_ in (7, 19, 31, 43):
                    nm_.append((kt_, idx_, "s_nop 7" if "pad7" in XP_ else "s_nop 15"))
            main[:] = nm_
        for i, (kt_, idx_, t_) in enumerate(main):
            if "nocvt" in XP_ and t_.startswith("v_cvt"):
                main[i] = (kt_, idx_, "s_nop 0")
            if "noexp" in XP_ and t_.startswith("v_exp"):
                r_ = t_.split()[1]
                main[i] = (kt_, idx_, f"v_mov_b32 {r_} {r_[:-1]}")
        for d in mm:
            if "nom1" in XP_ and d["n"].startswith("m1_"):
                d["t"] = "s_nop 0"
            if "nopv" in XP_ and d["n"].startswith("pv"):
                d["t"] = "s_nop 0"
            if "noqk" in XP_ and d["n"].startswith(("m2_", "m3_")):
                d["t"] = "s_nop 0"
    now = 0
    pipe_free = 0
    nins = 0
    ev_i, ev_t = {}, {}
    mi = si = qi = ki = s2i = 0
    done = set()
    out = []

    def emit(t, wtok=None, ev=None):
        nonlocal now, pipe_free, nins
        if t.startswith("WAIT"):
            out.append(("wait", t.split()[1]))
            now += 4
            nins += 1
        elif t.startswith("CALL"):
            out.append(("call", t.split()[1]))
            now += 12
            nins += 3
        elif t.startswith("NEED"):
            out.append(("need", t[5:]))
            now += 4
            nins += 1
        else:
            pd = pipe(t)
            if pd:
                if pipe_free > now:
                    now = pipe_free
                pipe_free = now + pd
            now += cost(t)
            nins += 1
            out.append(("e", t, wtok))
        if ev:
            ev_i[ev] = nins
            ev_t[ev] = now
            done.add(ev)

    def ready(d):
        for r in d.get("req", []):
            if r not in done:
                return False
        for r, n in d.get("reqi", []) or []:
            if r not in done or nins - ev_i[r] < n:
                return False
        for r, c in d.get("reqc", []) or []:
            if r not in done or now - ev_t[r] < c:
                return False
        if d.get("nb") is not None and now < d["nb"]:
            return False
        return True

    pend = list(mm)
    side_since = 0
    while mi < len(main) or pend or si < len(side) or qi < len(qread) or ki < len(kvs) or s2i < len(side2):
        kt = main[mi][0] if mi < len(main) else 16
        pos = main[mi][1] - 1 if mi < len(main) else 99
        if ki < len(kvs) and kvs[ki]["kt"] <= kt and side_since < 2:
            d = kvs[ki]
            emit(d["t"], ev=d.get("ev"))
            ki += 1
            side_since += 1 if not d["t"].startswith("NEED") else 0
            continue
        cand = [d for d in pend if (d["kt"] < kt or (d["kt"] == kt and pos >= d["pos"])) and ready(d)]
        cand.sort(key=lambda d: (d["kt"], d["pr"]))
        if cand and (pipe_free <= now or mi >= len(main)):
            d = cand[0]
            emit(d["t"], ev=d["n"])
            pend.remove(d)
            continue
        if qi < len(qread) and "m1_14" in done and "B2" in done:
            emit(qread[qi], ev=("qread" if qi == len(qread) - 1 else None))
            qi += 1
            continue
        if s2i < len(side2) and side_since < 1 and (ready(side2[s2i]) or mi >= len(main)):
            d = side2[s2i]
            emit(d["t"], d.get("wtok"), d.get("ev"))
            s2i += 1
            side_since += 1
            continue
        if si < len(side) and side_since < 2:
            d = side[si]
            ok = ready(d)
            if ok and pipe(d["t"]):
                if pipe_free > now or cand:
                    ok = False
            if ok or mi >= len(main):
                emit(d["t"], d.get("wtok"), d.get("ev"))
                si += 1
                side_since += 1
                continue
        if mi < len(main):
            emit(main[mi][2])
            mi += 1
            side_since = 0
            continue
        if pend:
            d = sorted(pend, key=lambda d: (d["kt"], d["pr"]))[0]
            emit(d["t"], ev=d["n"])
            pend.remove(d)
            continue
        raise RuntimeError("scheduler stuck")
    for o in out:
        if o[0] == "wait":
            p.wait_tok(o[1])
        elif o[0] == "need":
            p.need(o[1])
        elif o[0] == "call":
            hooks[o[1]]()
        else:
            p.e(o[1], wtok=o[2])
    return now


QW = 148


def q_main_loads(p, W=QW):
    for ks in range(18):
        for t in q_wload(ks, W + 4 * ks):
            p.e(t)


def _proj_chain(p, W, agpr=False):
    R_ = ar if agpr else vr
    wreg = W if callable(W) else (lambda ks: W + 4 * ks)
    for ks in range(18):
        if ks == 0:
            for k in range(2):
                p.e(f"ds_read_b128 {vr(XR2 + 4 * (k % 3), 4)}, v{V_L16} offset:{LDS_XB + 1024 * k}")
        if ks + 2 < 18:
            p.e(f"ds_read_b128 {vr(XR2 + 4 * ((ks + 2) % 3), 4)}, v{V_L16} offset:{LDS_XB + 1024 * (ks + 2)}")
        c = "0" if ks == 0 else vr(QA2, 4)
        p.e(f"v_mfma_f32_16x16x32_bf16 {vr(QA2, 4)}, {R_(wreg(ks), 4)}, {vr(XR2 + 4 * (ks % 3), 4)}, {c}")


XR2, QA2, QT2 = 220, 88, 92


def q_left(p, name, both_on=None, W2=16):
    a = V_T0
    t = S_T0

    def one(qexpr_const, tag):
        p.e(f"s_mul_i32 s{t}, s{S_HH}, {L.WQF_HH}")
        if qexpr_const is None:
            p.e(f"s_sub_u32 s{t + 1}, s{S_W}, 2")
        else:
            p.e(f"s_mov_b32 s{t + 1}, {qexpr_const}")
        p.e(f"s_mul_i32 s{t + 2}, s{t + 1}, 18432")
        p.e(f"s_add_u32 s{t}, s{t}, s{t + 2}")
        p.e(f"s_add_u32 s{t}, s{t}, {hx(L.WQF + 16 * 18432 + 4096)}")
        p.e(f"v_add_u32 v{a}, s{t}, v{V_L16}")
        for ks in range(18):
            if ks in (8, 16):
                p.e(f"v_add_u32 v{a}, 8192, v{a}")
            p.e(f"global_load_dwordx4 {vr(W2 + 4 * ks, 4)}, v{a}, s[{S_WS}:{S_WS + 1}] offset:{(ks % 8) * 1024 - 4096} PLD")
        _proj_chain(p, W2)
        p.e(f"v_cvt_pk_bf16_f32 v{QT2}, v{QA2}, v{QA2 + 1}")
        p.e(f"v_cvt_pk_bf16_f32 v{QT2 + 1}, v{QA2 + 2}, v{QA2 + 3}")
        p.e(f"s_lshl_b32 s{t + 1}, s{t + 1}, 9")
        p.e(f"s_add_u32 s{t + 1}, s{t + 1}, {A_QL}")
        p.e(f"v_lshlrev_b32 v{a}, 2, v{V_LANE}")
        p.e(f"v_add_u32 v{a}, s{t + 1}, v{a}")
        p.e(f"ds_write_b32 v{a}, v{QT2}")
        p.e(f"ds_write_b32 v{a}, v{QT2 + 1} offset:256")

    if both_on is not None:
        p.e(f"s_cmp_lg_u32 s{S_W}, {both_on}")
        p.e(f"s_cbranch_scc1 {name}_nol")
        p.if_begin()
        one(0, "a")
        one(1, "b")
    else:
        p.e(f"s_cmp_lt_u32 s{S_W}, 2")
        p.e(f"s_cbranch_scc1 {name}_nol")
        p.if_begin()
        one(None, "a")
    p.label(f"{name}_nol")
    p.if_end()


QWA = 112


def qwl(ks):
    return 16 + 4 * ks if ks < 12 else 184 + 4 * (ks - 12)


V_QLA = 249


def q_pref_list(left):
    out = []
    for ks in range(18):
        out += q_wload(ks, QWA + 4 * ks, agpr=True)
    if left:
        for ks in range(18):
            if ks in (8, 16):
                out.append(f"v_add_u32 v{V_QLA}, 8192, v{V_QLA}")
            out.append(f"global_load_dwordx4 {ar(qwl(ks), 4)}, v{V_QLA}, s[{S_WS}:{S_WS + 1}] offset:{(ks % 8) * 1024 - 4096} PLD")
    return out


def q_left_addr(p):
    t = S_T0
    p.e(f"s_mul_i32 s{t}, s{S_HH}, {L.WQF_HH}")
    p.e(f"s_and_b32 s{t + 1}, s{S_W}, 1")
    p.e(f"s_mul_i32 s{t + 2}, s{t + 1}, 18432")
    p.e(f"s_add_u32 s{t}, s{t}, s{t + 2}")
    p.e(f"s_add_u32 s{t}, s{t}, {hx(L.WQF + 16 * 18432 + 4096)}")
    p.e(f"v_add_u32 v{V_QLA}, s{t}, v{V_L16}")


def q_left_compute(p, name):
    a = V_T0
    t = S_T0
    _proj_chain(p, qwl, agpr=True)
    p.e(f"v_cvt_pk_bf16_f32 v{QT2}, v{QA2}, v{QA2 + 1}")
    p.e(f"v_cvt_pk_bf16_f32 v{QT2 + 1}, v{QA2 + 2}, v{QA2 + 3}")
    p.e(f"s_sub_u32 s{t + 1}, s{S_W}, 2")
    p.e(f"s_lshl_b32 s{t + 1}, s{t + 1}, 9")
    p.e(f"s_add_u32 s{t + 1}, s{t + 1}, {A_QL}")
    p.e(f"v_lshlrev_b32 v{a}, 2, v{V_LANE}")
    p.e(f"v_add_u32 v{a}, s{t + 1}, v{a}")
    p.e(f"ds_write_b32 v{a}, v{QT2}")
    p.e(f"ds_write_b32 v{a}, v{QT2 + 1} offset:256")


def q_main_compute(p, W=QW, agpr=False):
    _proj_chain(p, W, agpr)
    p.e(f"v_cvt_pk_bf16_f32 v{QT2}, v{QA2}, v{QA2 + 1}")
    p.e(f"v_cvt_pk_bf16_f32 v{QT2 + 1}, v{QA2 + 2}, v{QA2 + 3}")
    p.e(f"ds_write_b64 v{V_QFW}, {vr(QT2, 2)}")
    for i in range(NR):
        for t in q_wload(i, WR + 4 * i):
            p.e(t)
    p.e("s_waitcnt lgkmcnt(0)")
    p.e("s_barrier")
    p.e(f"ds_read_b128 {vr(QC, 4)}, v{V_QFR}")
    p.e(f"ds_read_b128 {vr(QC + 4, 4)}, v{V_QFR} offset:1024")
    p.e(f"ds_read_b32 v{QLR}, v{V_QL}")
    p.e(f"v_mov_b32 v{QLR + 1}, 0")
    xb_resident_loads(p)


def zero_xa(p):
    for i in range(36):
        p.e(f"v_mov_b32 v{XA + i}, 0")


def kv_first_loads(p):
    for tau in range(KV_AHEAD):
        for t in kv_tile_loads(tau):
            p.e(t)


def attention_layer(p, name, stamp=lambda *a, **k: None, tail_hook=None, after_first=None, pre_last=None, hooks=None):
    def lstamp(k):
        if os.environ.get("LSTAMP"):
            p.e("s_lshl_b32 s3, s83, 2")
            stamp(p, 40 + k, 3)

    p.e(f"s_mov_b64 s[{S_FAIL}:{S_FAIL + 1}], 0")
    m2, m3, m1 = qk_mfmas(0, SB[0])
    p.e(m2)
    p.e(m3)
    p.e(m1)
    p.e("s_nop 15")
    p.e("s_nop 4")
    stamp(p, 20)
    lstamp(0)
    e0 = phase_body(p, "first")
    lstamp(1)
    if after_first is not None:
        after_first()
    stamp(p, 21)
    p.e(f"s_mov_b32 s{S_PH}, 1")
    p.loop_begin(name + "_ph")
    e1 = phase_body(p, "mid")
    stamp(p, 21, S_PH)
    p.e(f"s_add_u32 s{S_PH}, s{S_PH}, 1")
    p.e(f"s_cmp_lt_u32 s{S_PH}, 3")
    p.e(f"s_cbranch_scc1 {name}_ph")
    p.loop_end()
    if pre_last is not None:
        pre_last()
    lstamp(2)
    e2 = phase_body(p, "last", hooks)
    lstamp(3)
    stamp(p, 24)
    if tail_hook is not None:
        tail_hook()
    p.e(pv_mfma(15, SB[1], 1, 1))
    W = 16
    base8 = 8 * 1024

    def wl(j):
        if j < 18:
            T, t = j // 9, j % 9
            off, reg = (T * 36 + t) * 1024, W + 4 * (j - 9)
        else:
            off, reg = (72 + j - 18) * 1024, W + 36 + 4 * (j - 18)
        p.e(f"v_add_u32 v{V_T0}, {off - base8}, v{V_WO}")
        p.e(f"global_load_dwordx4 {vr(reg, 4)}, v{V_T0}, s[{S_WS}:{S_WS + 1}] offset:-4096 PLD")

    for g in range(3):
        p.e(f"ds_write_b128 v{V_OPW}, {ar(A_O + 4 * g, 4)} offset:{g * 1024}")
    for j in range(9, 13):
        wl(j)
    for g in range(3):
        p.e(f"ds_write_b128 v{V_OPW}, {ar(A_O + 16 + 4 * g, 4)} offset:{3072 + g * 1024}")
    for j in range(13, 18):
        wl(j)
    p.e("s_waitcnt lgkmcnt(0)")
    p.e("s_barrier")
    for t in reduce_reads_g2():
        p.e(t)
    for w in range(4):
        p.e(f"ds_read_b128 {vr(216 + 4 * w, 4)}, v{V_R1} offset:{w * 6144}")
    for j in range(18, 27):
        wl(j)
    for t in reduce_ops_g2():
        p.e(t)
    p.e(OL_WRITE)
    for t in reduce_ops_main():
        import re as _re
        def sh(m):
            a_, b_ = m.group(1), m.group(2)
            return f"v[{int(a_) + 16}:{int(b_) + 16}]" if RT <= int(a_) < RT + 16 else m.group(0)
        t2 = _re.sub(r"v\[(\d+):(\d+)\]", sh, t)
        t2 = _re.sub(r"(?<![\w\[:])v(\d+)(?![\w:])", lambda m: f"v{int(m.group(1)) + 16}" if RT <= int(m.group(1)) < RT + 16 else m.group(0), t2)
        p.e(t2)
    p.e(f"ds_write_b64 v{V_OBW}, {vr(RT + 16 + 4, 2)}")
    fail_publish(p)
    p.e("s_waitcnt lgkmcnt(0)")
    p.e("s_barrier")
    for T in range(2):
        p.e(f"ds_read_b128 {vr(OF + 4 * T, 4)}, v{V_L16} offset:{A_OB + 1024 * T}")
    p.e(f"ds_read_b128 {vr(OFL, 4)}, v{V_L16} offset:{A_OL}")
    fail_read(p)
    p.need(vr(WR, 36))
    for j in range(9):
        p.e(f"v_mfma_f32_16x16x32_bf16 {vr(XA + 4 * j, 4)}, {vr(WR + 4 * j, 4)}, {vr(OF, 4)}, {vr(XA + 4 * j, 4)}")
    p.need(vr(W, 36))
    for j in range(9, 18):
        p.e(f"v_mfma_f32_16x16x32_bf16 {vr(XA + 4 * (j - 9), 4)}, {vr(W + 4 * (j - 9), 4)}, {vr(OF + 4, 4)}, {vr(XA + 4 * (j - 9), 4)}")
    p.need(vr(W + 36, 36))
    for t in range(9):
        p.e(f"v_mfma_f32_16x16x32_bf16 {vr(XA + 4 * t, 4)}, {vr(W + 36 + 4 * t, 4)}, {vr(OFL, 4)}, {vr(XA + 4 * t, 4)}")
    fail_branch(p, name + "_slow")
    p.label(name + "_slow_back")
    return e0, e1


def fail_publish(p):
    p.e(f"s_cmp_lg_u64 s[{S_FAIL}:{S_FAIL + 1}], 0")
    p.e(f"s_cselect_b32 s{S_T0}, 1, 0")
    p.e(f"s_lshl_b32 s{S_T0 + 1}, s{S_W}, 2")
    p.e(f"s_add_u32 s{S_T0 + 1}, s{S_T0 + 1}, {A_FL}")
    p.e(f"v_mov_b32 v{V_T0 + 1}, s{S_T0}")
    p.e(f"v_mov_b32 v{V_T0 + 2}, s{S_T0 + 1}")
    p.e(f"ds_write_b32 v{V_T0 + 2}, v{V_T0 + 1}")


def fail_read(p):
    p.e(f"v_mov_b32 v{V_T0 + 2}, {A_FL}")
    p.e(f"ds_read_b128 {vr(RT, 4)}, v{V_T0 + 2}")


def fail_branch(p, slow):
    p.e(f"v_or3_b32 v{RT}, v{RT}, v{RT + 1}, v{RT + 2}")
    p.e(f"v_or_b32 v{RT}, v{RT}, v{RT + 3}")
    p.e(f"v_readfirstlane_b32 s{S_T0}, v{RT}")
    p.e(f"s_cmp_lg_u32 s{S_T0}, 0")
    p.e(f"s_cbranch_scc1 {slow}")


def slow_path(p, name, back):
    vK, vL, vV, mx0, mx1, tm = 8, 9, 10, 11, 12, 13
    KT, LT, VT0 = 148, 152, 156
    S0 = SB[0]
    p.e("s_waitcnt vmcnt(0) lgkmcnt(0)")
    p.e("s_barrier")
    addr_setup(p)
    weight_ptr_setup(p)
    for i in range(36):
        p.e(f"v_mov_b32 v{XA + i}, 0")
    p.e(f"s_mov_b32 s{S_PH}, 0")

    def kv_ptrs():
        p.e(f"v_subrev_u32 v{vK}, 4096, v{V_KA}")
        p.e(f"v_and_b32 v{vL}, 31, v{V_LANE}")
        p.e(f"v_lshlrev_b32 v{vL}, 3, v{vL}")
        p.e(f"s_lshl_b32 s{S_T0}, s{S_W}, 12")
        p.e(f"s_add_u32 s{S_T0}, s{S_T0}, {hx(L.KV_KL)}")
        p.e(f"v_add_u32 v{vL}, s{S_T0}, v{vL}")
        p.e(f"v_subrev_u32 v{vV}, 4096, v{V_VA}")

    def qk():
        p.e(f"v_mfma_f32_32x32x16_bf16 {vr(S0, 16)}, {vr(KT, 4)}, {vr(QC, 4)}, 0")
        p.e(f"v_mfma_f32_32x32x16_bf16 {vr(S0 + 16, 16)}, {vr(KT, 4)}, {vr(QC + 4, 4)}, 0")
        p.e(f"v_mfma_f32_32x32x4_2b_bf16 {vr(S0, 32)}, {vr(LT, 2)}, {vr(QLR, 2)}, {vr(S0, 32)} cbsz:1 abid:0")

    p.fence()
    p.label(name + "_ph")
    q_main_loads(p)
    _proj_chain(p, QW)
    p.e(f"v_cvt_pk_bf16_f32 v{QT2}, v{QA2}, v{QA2 + 1}")
    p.e(f"v_cvt_pk_bf16_f32 v{QT2 + 1}, v{QA2 + 2}, v{QA2 + 3}")
    p.e(f"ds_write_b64 v{V_QFW}, {vr(QT2, 2)}")
    p.e("s_waitcnt lgkmcnt(0)")
    p.e("s_barrier")
    p.e(f"ds_read_b128 {vr(QC, 4)}, v{V_QFR}")
    p.e(f"ds_read_b128 {vr(QC + 4, 4)}, v{V_QFR} offset:1024")
    p.e(f"ds_read_b32 v{QLR}, v{V_QL}")
    p.e(f"v_mov_b32 v{QLR + 1}, 0")
    kv_ptrs()
    p.e(f"v_mov_b32 v{mx0}, 0xff800000")
    p.e(f"v_mov_b32 v{mx1}, 0xff800000")
    p.e(f"s_mov_b32 s{S_T0 + 5}, 16")
    p.e("s_waitcnt vmcnt(0) lgkmcnt(0)")
    p.loop_begin(name + "_mx")
    p.e(f"global_load_dwordx4 {vr(KT, 4)}, v{vK}, {sr(S_KV, 2)} PLD")
    p.e(f"global_load_dwordx2 {vr(LT, 2)}, v{vL}, {sr(S_KV, 2)} PLD")
    p.e(f"v_add_u32 v{vK}, 1024, v{vK}")
    p.e(f"v_add_u32 v{vL}, 256, v{vL}")
    qk()
    for i in range(8):
        p.e(f"v_max3_f32 v{mx0}, v{mx0}, v{S0 + 2 * i}, v{S0 + 2 * i + 1}")
        p.e(f"v_max3_f32 v{mx1}, v{mx1}, v{S0 + 16 + 2 * i}, v{S0 + 16 + 2 * i + 1}")
    p.e(f"s_sub_u32 s{S_T0 + 5}, s{S_T0 + 5}, 1")
    p.e(f"s_cmp_lg_u32 s{S_T0 + 5}, 0")
    p.e(f"s_cbranch_scc1 {name}_mx")
    p.loop_end()
    for m in (mx0, mx1):
        p.e(f"v_mov_b32 v{tm}, v{m}")
        p.e(f"v_permlane32_swap_b32 v{m}, v{tm}")
        p.e(f"v_max_f32 v{m}, v{m}, v{tm}")
    p.e(f"v_cmp_gt_u32 vcc, 32, v{V_LANE}")
    p.e(f"v_cndmask_b32 v{mx0}, v{mx1}, v{mx0}, vcc")
    p.e(f"s_lshl_b32 s{S_T0}, s{S_W}, 8")
    p.e(f"s_add_u32 s{S_T0}, s{S_T0}, {A_OP}")
    p.e(f"v_lshlrev_b32 v{tm}, 2, v{V_LANE}")
    p.e(f"v_add_u32 v{mx1}, s{S_T0}, v{tm}")
    p.e(f"ds_write_b32 v{mx1}, v{mx0}")
    p.e("s_waitcnt lgkmcnt(0)")
    p.e("s_barrier")
    p.e(f"v_add_u32 v{tm}, {A_OP}, v{tm}")
    for w in range(4):
        p.e(f"ds_read_b32 v{RT + w}, v{tm} offset:{256 * w}")
    p.e(f"v_max3_f32 v{RT}, v{RT}, v{RT + 1}, v{RT + 2}")
    p.e(f"v_max_f32 v{RT}, v{RT}, v{RT + 3}")
    p.e(f"v_sub_f32 v{RT}, 0, v{RT}")
    p.e(f"v_cvt_pk_bf16_f32 v{RT + 1}, v{RT}, v{RT}")
    p.e(f"v_lshlrev_b32 v{RT + 1}, 16, v{RT + 1}")
    p.e(f"v_sub_f32 v{RT + 1}, v{RT}, v{RT + 1}")
    p.e(f"v_cvt_pk_bf16_f32 v{QLR + 1}, v{RT}, v{RT + 1}")
    p.e("s_waitcnt lgkmcnt(0)")
    p.e("s_barrier")
    kv_ptrs()
    for i in range(32):
        p.e(f"v_accvgpr_write_b32 a{A_O + i}, 0")
    p.e(f"s_mov_b32 s{S_T0 + 5}, 16")
    p.e("s_nop 4")
    p.loop_begin(name + "_pv")
    p.e(f"global_load_dwordx4 {vr(KT, 4)}, v{vK}, {sr(S_KV, 2)} PLD")
    p.e(f"global_load_dwordx2 {vr(LT, 2)}, v{vL}, {sr(S_KV, 2)} PLD")
    p.e(f"global_load_dwordx4 {vr(VT0, 4)}, v{vV}, {sr(S_KV, 2)} PLD")
    p.e(f"global_load_dwordx4 {vr(VT0 + 4, 4)}, v{vV}, {sr(S_KV, 2)} offset:1024 PLD")
    p.e(f"v_add_u32 v{vK}, 1024, v{vK}")
    p.e(f"v_add_u32 v{vL}, 256, v{vL}")
    p.e(f"v_add_u32 v{vV}, 2048, v{vV}")
    qk()
    for blk in range(4):
        b = S0 + 8 * blk
        for i in range(8):
            p.e(f"v_exp_f32 v{b + i}, v{b + i}")
        for i in range(4):
            p.e(f"v_cvt_pk_bf16_f32 v{b + i}, v{b + 2 * i}, v{b + 2 * i + 1}")
    for T in range(2):
        for t in range(2):
            p.e(f"v_mfma_f32_32x32x16_bf16 {ar(A_O + 16 * T, 16)}, {vr(VT0 + 4 * t, 4)}, {vr(S0 + 16 * T + 8 * t, 4)}, {ar(A_O + 16 * T, 16)}")
    p.e(f"s_sub_u32 s{S_T0 + 5}, s{S_T0 + 5}, 1")
    p.e(f"s_cmp_lg_u32 s{S_T0 + 5}, 0")
    p.e(f"s_cbranch_scc1 {name}_pv")
    p.loop_end()
    for T in range(2):
        for g in range(3):
            p.e(f"ds_write_b128 v{V_OPW}, {ar(A_O + 16 * T + 4 * g, 4)} offset:{3072 * T + g * 1024}")
    p.e("s_waitcnt lgkmcnt(0)")
    p.e("s_barrier")
    reduce_plain(p)
    p.e(f"v_add_u32 v{V_OLW}, 256, v{V_OLW}")
    p.e("s_waitcnt lgkmcnt(0)")
    p.e("s_barrier")
    for T in range(2):
        p.e(f"ds_read_b128 {vr(OF + 4 * T, 4)}, v{V_L16} offset:{A_OB + 1024 * T}")
    W = 16
    for j in range(18):
        T, t = j // 9, j % 9
        p.e(f"v_add_u32 v{V_T0}, {(T * 36 + t) * 1024}, v{V_WO}")
        p.e(f"global_load_dwordx4 {vr(W + 4 * j, 4)}, v{V_T0}, s[{S_WS}:{S_WS + 1}] offset:-4096 PLD")
    for j in range(18):
        T, t = j // 9, j % 9
        p.e(f"v_mfma_f32_16x16x32_bf16 {vr(XA + 4 * t, 4)}, {vr(W + 4 * j, 4)}, {vr(OF + 4 * T, 4)}, {vr(XA + 4 * t, 4)}")
    p.e(f"v_add_u32 v{V_WO}, {72 * 1024}, v{V_WO}")
    p.e(f"v_add_u32 v{V_QL}, 256, v{V_QL}")
    p.e(f"s_add_u32 s{S_PH}, s{S_PH}, 1")
    p.e("s_waitcnt vmcnt(0) lgkmcnt(0)")
    p.e("s_nop 15")
    p.e("s_barrier")
    p.e(f"s_cmp_lt_u32 s{S_PH}, 4")
    p.e(f"s_cbranch_scc1 {name}_ph")
    p.fence()
    p.e(f"ds_read_b128 {vr(OFL, 4)}, v{V_L16} offset:{A_OL}")
    for t in range(9):
        p.e(f"v_add_u32 v{V_T0}, {t * 1024}, v{V_WO}")
        p.e(f"global_load_dwordx4 {vr(W + 4 * t, 4)}, v{V_T0}, s[{S_WS}:{S_WS + 1}] offset:-4096 PLD")
    for t in range(9):
        p.e(f"v_mfma_f32_16x16x32_bf16 {vr(XA + 4 * t, 4)}, {vr(W + 4 * t, 4)}, {vr(OFL, 4)}, {vr(XA + 4 * t, 4)}")
    p.e("s_waitcnt vmcnt(0) lgkmcnt(0)")
    p.e("s_nop 15")
    p.e(f"s_branch {back}")
```

```python
from common import *
import sys
YBLOCK = '--yblock' in sys.argv

CV_BASE = 19456
CV_CH = 272 * 8 * 16
CV_BANK = [1, 6, 2, 11, 12, 9, 14, 6]
CV_BANKC = sum(b << (4 * i) for i, b in enumerate(CV_BANK))
CV_UB = CV_BASE + 3 * CV_CH
UBSTR = 96
UB_CH = 7680
CV_SC = CV_UB + 3 * UB_CH
CV_END = CV_SC + 128

CF_H = 68
CF_H0 = 92
CF_T = 236
CF_R = 172
S_CVD = 76
S_CVL = 79
CV_FIRST = int(__import__("os").environ.get("CVF", "3"))


UT_R = [100, 124]
V_UTA = [58, 218]
UT_T = 148


def ut_issue(p):
    st = S_T0
    make_srd(p, SRD_C, KREG["bk"], L.S * L.D * 2)
    make_srd(p, SRD_D, KREG["bv"], L.S * L.D * 2)
    p.e(f"s_mov_b32 s{st + 8}, {4 * 1152}")
    p.e(f"v_mov_b32 v{V_UTA[1]}, 0")
    a = V_T0

    def rnd(k):
        R = UT_R[k]
        p.e(f"s_mul_i32 s{st + 6}, s{S_HH}, 144")
        p.e(f"v_add_u32 v{a}, s{st + 6}, v{a}")
        p.e(f"v_mul_u32_u24 v{a + 2}, {8 * 1152}, v{a + 1}")
        p.e(f"v_add_u32 v{a + 2}, s{S_ROWOFF}, v{a + 2}")
        p.e(f"v_lshl_add_u32 v{a + 2}, v{a}, 2, v{a + 2}")
        if k == 1:
            p.e(f"v_cmp_gt_u32 vcc, 32, v{V_LANE}")
            p.e(f"v_mov_b32 v{a + 4}, 0x40000000")
            p.e(f"v_cndmask_b32 v{a + 2}, v{a + 4}, v{a + 2}, vcc")
        p.e(f"v_subrev_u32 v{a + 3}, {3 * 1152}, v{a + 2}")
        p.e(f"v_cmp_gt_u32 vcc, {3 * 1152}, v{a + 2}")
        p.e(f"v_mov_b32 v{a + 4}, 0x40000000")
        p.e(f"v_cndmask_b32 v{a + 3}, v{a + 3}, v{a + 4}, vcc")
        p.e(f"v_lshlrev_b32 v{a + 4}, 4, v{a}")
        for i in range(3):
            p.e(f"buffer_load_dword v{R + i}, v{a + 3}, {sr(SRD_C, 4)}, 0 offen offset:{1152 * i}")
        for i in range(8):
            so = "0" if i < 4 else f"s{st + 8}"
            p.e(f"buffer_load_dword v{R + 3 + i}, v{a + 2}, {sr(SRD_C, 4)}, {so} offen offset:{1152 * (i % 4)}")
        for i in range(8):
            so = "0" if i < 4 else f"s{st + 8}"
            p.e(f"buffer_load_dword v{R + 11 + i}, v{a + 2}, {sr(SRD_D, 4)}, {so} offen offset:{1152 * (i % 4)}")
        p.e(f"global_load_dwordx4 {vr(R + 20, 4)}, v{a + 4}, {sr(KREG['shk'], 2)}")
        o = V_UTA[k]
        p.e(f"v_lshlrev_b32 v{o}, 13, v{a}")
        p.e(f"s_lshl_b32 s{st + 6}, s{S_PAIR}, 5")
        p.e(f"s_add_u32 s{st + 6}, s{st + 6}, {hx(L.UTG)}")
        p.e(f"v_lshl_add_u32 v{o}, v{a + 1}, 4, v{o}")
        p.e(f"v_add_u32 v{o}, s{st + 6}, v{o}")

    p.e(f"v_and_b32 v{a}, 31, v{V_LANE}")
    p.e(f"s_lshl_b32 s{st + 7}, s{S_W}, 5")
    p.e(f"v_add_u32 v{a}, s{st + 7}, v{a}")
    p.e(f"v_lshrrev_b32 v{a + 1}, 5, v{V_LANE}")
    rnd(0)
    p.e(f"s_cmp_lg_u32 s{S_W}, 3")
    p.e(f"s_cbranch_scc1 L_ut_no2")
    p.if_begin()
    p.e(f"v_and_b32 v{a}, 15, v{V_LANE}")
    p.e(f"v_add_u32 v{a}, 128, v{a}")
    p.e(f"v_bfe_u32 v{a + 1}, v{V_LANE}, 4, 1")
    rnd(1)
    p.label("L_ut_no2")
    p.if_end()


def ut_round(p, k):
    R = UT_R[k]
    KK, VV, SK, U, O = UT_T, UT_T + 22, UT_T + 38, UT_T + 46, UT_T + 62
    for c in range(2):
        p.e(f"v_lshlrev_b32 v{SK + c}, 16, v{R + 20 + 2 * c}")
        p.e(f"v_and_b32 v{SK + 2 + c}, 0xffff0000, v{R + 20 + 2 * c}")
        p.e(f"v_lshlrev_b32 v{SK + 4 + c}, 16, v{R + 21 + 2 * c}")
        p.e(f"v_and_b32 v{SK + 6 + c}, 0xffff0000, v{R + 21 + 2 * c}")
    for i in range(11):
        p.e(f"v_lshlrev_b32 v{KK + 2 * i}, 16, v{R + i}")
        p.e(f"v_and_b32 v{KK + 2 * i + 1}, 0xffff0000, v{R + i}")
    for t in range(8):
        p.e(f"v_pk_mul_f32 {vr(U + 2 * t, 2)}, {vr(SK + 6, 2)}, {vr(KK + 2 * t, 2)}")
    for i in range(8):
        p.e(f"v_lshlrev_b32 v{VV + 2 * i}, 16, v{R + 11 + i}")
        p.e(f"v_and_b32 v{VV + 2 * i + 1}, 0xffff0000, v{R + 11 + i}")
    for j in (2, 1, 0):
        for t in range(8):
            p.e(f"v_pk_fma_f32 {vr(U + 2 * t, 2)}, {vr(SK + 2 * j, 2)}, {vr(KK + 2 * (t + 3 - j), 2)}, {vr(U + 2 * t, 2)}")
    for t in range(8):
        p.e(f"v_pk_mul_f32 {vr(U + 2 * t, 2)}, {vr(U + 2 * t, 2)}, {vr(VV + 2 * t, 2)}")
    for c in range(2):
        for d in range(4):
            p.e(f"v_cvt_pk_bf16_f32 v{O + 4 * c + d}, v{U + 2 * (7 - 2 * d) + c}, v{U + 2 * (6 - 2 * d) + c}")
    if k == 1:
        p.e("s_mov_b64 exec, 0xffffffff")
    p.e(f"global_store_dwordx4 v{V_UTA[k]}, {vr(O, 4)}, s[{S_WS}:{S_WS + 1}] WSC")
    p.e(f"v_add_u32 v{V_UTA[k]}, 4096, v{V_UTA[k]}")
    p.e(f"global_store_dwordx4 v{V_UTA[k]}, {vr(O + 4, 4)}, s[{S_WS}:{S_WS + 1}] WSC")
    if k == 1:
        p.e("s_mov_b64 exec, -1")


def ut_extra(p):
    p.e(f"s_cmp_lg_u32 s{S_W}, 3")
    p.e(f"s_cbranch_scc1 L_ut_no2b")
    p.if_begin()
    ut_round(p, 1)
    p.label("L_ut_no2b")
    p.if_end()


def conv_filter_issue(p, s_ch0):
    st = S_T0
    make_srd(p, SRD_B, KREG["ssmk"], 576 * 4096)
    p.e(f"s_lshl_b32 s{st + 10}, s{s_ch0}, 1")
    p.e(f"s_and_b32 s{st + 11}, s{st + 10}, 0xfffffffc")
    p.e(f"s_add_u32 s{st + 8}, s{KREG['ssmd']}, s{st + 11}")
    p.e(f"s_addc_u32 s{st + 9}, s{KREG['ssmd'] + 1}, 0")
    p.e(f"s_load_dwordx2 s[72:73], s[{st + 8}:{st + 9}], 0")
    p.e(f"s_lshl_b32 s{st}, s{S_W}, 1")
    p.e(f"s_lshl_b32 s{st + 1}, s{st}, 2")
    p.e(f"s_lshr_b32 s{st + 1}, {hx(CV_BANKC)}, s{st + 1}")
    p.e(f"s_and_b32 s{st + 1}, s{st + 1}, 15")
    p.e(f"s_mul_i32 s{st + 2}, s{st}, 272")
    p.e(f"s_add_u32 s{st + 1}, s{st + 1}, s{st + 2}")
    p.e(f"s_lshl_b32 s{st + 1}, s{st + 1}, 4")
    p.e(f"s_add_u32 s{st + 1}, s{st + 1}, {CV_BASE + 64}")
    p.e(f"s_lshl_b32 s{st + 2}, s{s_ch0}, 12")
    p.e(f"s_lshl_b32 s{st + 3}, s{st}, 1")
    p.e(f"s_add_u32 s{st + 2}, s{st + 2}, s{st + 3}")
    for ch in range(3):
        p.e(f"s_add_u32 m0, s{st + 1}, {ch * CV_CH}")
        if ch:
            p.e(f"s_add_u32 s{st + 2}, s{st + 2}, 4096")
        for c in range(4):
            p.e(f"buffer_load_dwordx4 v{V_L16}, {sr(SRD_B, 4)}, s{st + 2} offen offset:{1024 * c} lds")
    p.e(f"v_lshlrev_b32 v{V_T0}, 4, v{V_TID}")
    p.e(f"s_lshl_b32 s{st + 2}, s{s_ch0}, 12")
    for ch in range(3):
        if ch:
            p.e(f"s_add_u32 s{st + 2}, s{st + 2}, 4096")
        p.e(f"buffer_load_dwordx4 {ar(CF_H + 8 * ch, 4)}, v{V_T0}, {sr(SRD_B, 4)}, s{st + 2} offen")
        p.e(f"buffer_load_dwordx4 {ar(CF_H + 8 * ch + 4, 4)}, v{V_T0}, {sr(SRD_B, 4)}, s{st + 2} offen offset:16")
    p.e(f"s_min_u32 s{st}, s{S_W}, 2")
    p.e(f"s_add_u32 s{st}, s{st}, s{s_ch0}")
    p.e(f"s_lshl_b32 s{st}, s{st}, 12")
    p.e(f"v_mov_b32 v{V_T0 + 1}, 0")
    p.e(f"buffer_load_dwordx4 {ar(CF_H0, 4)}, v{V_T0 + 1}, {sr(SRD_B, 4)}, s{st} offen")


def conv_filter_build(p, s_ch0):
    st = S_T0
    sK = 66
    a = V_T0
    A, B = CF_T, CF_T + 8
    for k, phi in enumerate((1, 3, 5, 7)):
        off = (272 * phi + CV_BANK[phi] + 4) * 16 + CV_BASE
        p.e(f"v_lshlrev_b32 v{a + k}, 4, v{V_TID}")
        p.e(f"v_add_u32 v{a + k}, {off}, v{a + k}")
    for ch in range(3):
        r = CF_R
        for j in range(8):
            p.e(f"v_accvgpr_read_b32 v{r + j}, a{CF_H + 8 * ch + j}")
        if ch == 1:
            for k in range(4):
                p.e(f"v_add_u32 v{a + k}, {CV_CH}, v{a + k}")
        off = CV_CH if ch == 2 else 0
        for j in range(6):
            p.e(f"v_alignbit_b32 v{A + j}, v{r + j + 1}, v{r + j}, 16")
        p.e(f"ds_write_b128 v{a}, {vr(A, 4)} offset:{off}")
        p.e(f"ds_write_b128 v{a + 2}, {vr(A + 2, 4)} offset:{off}")
        for j in range(6):
            p.e(f"v_alignbit_b32 v{B + j}, v{r + j + 2}, v{r + j + 1}, 16")
        p.e(f"ds_write_b128 v{a + 1}, {vr(B, 4)} offset:{off}")
        p.e(f"ds_write_b128 v{a + 3}, {vr(B + 2, 4)} offset:{off}")
    z = CF_T
    for i in range(4):
        p.e(f"v_mov_b32 v{z + i}, 0")
    p.e(f"s_min_u32 s{st}, s{S_W}, 2")
    p.e(f"s_mul_i32 s{st + 1}, s{st}, {CV_CH}")
    p.e(f"s_add_u32 s{st + 1}, s{st + 1}, {CV_BASE}")
    p.e(f"v_and_b32 v{a}, 31, v{V_LANE}")
    p.e(f"v_lshrrev_b32 v{a + 1}, 2, v{a}")
    p.e(f"v_lshlrev_b32 v{a + 2}, 2, v{a + 1}")
    p.e(f"v_mov_b32 v{a + 3}, {hx(CV_BANKC)}")
    p.e(f"v_lshrrev_b32 v{a + 2}, v{a + 2}, v{a + 3}")
    p.e(f"v_and_b32 v{a + 2}, 15, v{a + 2}")
    p.e(f"v_mul_u32_u24 v{a + 1}, 272, v{a + 1}")
    p.e(f"v_add_u32 v{a + 1}, v{a + 1}, v{a + 2}")
    p.e(f"v_and_b32 v{a + 2}, 3, v{a}")
    p.e(f"v_add_lshl_u32 v{a + 1}, v{a + 1}, v{a + 2}, 4")
    p.e(f"v_add_u32 v{a + 1}, s{st + 1}, v{a + 1}")
    p.e(f"ds_write_b128 v{a + 1}, {vr(z, 4)}")
    p.e(f"s_mul_i32 s{st + 2}, s{st}, {UB_CH}")
    p.e(f"s_add_u32 s{st + 2}, s{st + 2}, {CV_UB}")
    p.e(f"v_add_u32 v{a + 2}, s{st + 2}, v{V_L16}")
    p.e(f"ds_write_b128 v{a + 2}, {vr(z, 4)}")
    p.e(f"ds_write_b128 v{a + 2}, {vr(z, 4)} offset:{1440 - 1024}")
    p.e(f"s_lshl_b32 s{st + 3}, s{st}, 5")
    p.e(f"s_add_u32 s{st + 3}, s{st + 3}, {CV_SC}")
    p.e(f"v_mov_b32 v{a + 3}, s{st + 3}")
    p.e(f"ds_write_b128 v{a + 3}, {vr(z, 4)}")
    p.e(f"ds_write_b128 v{a + 3}, {ar(CF_H0, 4)} offset:16")
    p.e(f"v_and_b32 v{a}, 7, v{V_LANE}")
    p.e(f"v_lshl_add_u32 v{a + 3}, v{a}, 1, v{a + 3}")
    p.e("s_waitcnt lgkmcnt(0)")
    p.e(f"ds_read_b128 {vr(z + 4, 4)}, v{a + 3}")
    p.e(f"v_lshlrev_b32 v{a + 2}, 2, v{a}")
    p.e(f"v_mov_b32 v{a + 1}, {hx(CV_BANKC)}")
    p.e(f"v_lshrrev_b32 v{a + 2}, v{a + 2}, v{a + 1}")
    p.e(f"v_and_b32 v{a + 2}, 15, v{a + 2}")
    p.e(f"v_mul_u32_u24 v{a + 1}, 272, v{a}")
    p.e(f"v_add_lshl_u32 v{a + 1}, v{a + 1}, v{a + 2}, 4")
    p.e(f"v_add_u32 v{a + 1}, s{st + 1}, v{a + 1}")
    p.e(f"ds_write_b128 v{a + 1}, {vr(z + 4, 4)} offset:48")
    p.e("s_waitcnt lgkmcnt(0)")
    p.e(f"s_and_b32 s{st + 4}, s{s_ch0}, 1")
    p.e(f"s_lshl_b32 s{st + 4}, s{st + 4}, 4")
    p.e(f"s_lshr_b64 s[{sK + 6}:{sK + 7}], s[{sK + 6}:{sK + 7}], s{st + 4}")
    p.e(f"s_lshl_b32 s{S_CVD}, s{sK + 6}, 16")
    p.e(f"s_and_b32 s{S_CVD + 1}, s{sK + 6}, 0xffff0000")
    p.e(f"s_lshl_b32 s{S_CVD + 2}, s{sK + 7}, 16")


def conv_setup(p):
    st = S_T0
    a = V_T0
    vA, vB = 144, 145
    p.e(f"s_min_u32 s{st + 6}, s{S_W}, 2")
    p.e(f"v_add_u32 v{a + 2}, 1, v{V_N}")
    p.e(f"v_and_b32 v{a + 3}, 7, v{a + 2}")
    p.e(f"v_lshrrev_b32 v{a + 2}, 3, v{a + 2}")
    p.e(f"v_sub_u32 v{a + 2}, v{a + 2}, v{V_G}")
    p.e(f"v_add_u32 v{a + 2}, 3, v{a + 2}")
    p.e(f"v_lshlrev_b32 v{a + 4}, 2, v{a + 3}")
    p.e(f"v_mov_b32 v{a + 5}, {hx(CV_BANKC)}")
    p.e(f"v_lshrrev_b32 v{a + 4}, v{a + 4}, v{a + 5}")
    p.e(f"v_and_b32 v{a + 4}, 15, v{a + 4}")
    p.e(f"v_mul_u32_u24 v{a + 3}, 272, v{a + 3}")
    p.e(f"v_add3_u32 v{a + 2}, v{a + 2}, v{a + 3}, v{a + 4}")
    p.e(f"v_lshlrev_b32 v{a + 2}, 4, v{a + 2}")
    p.e(f"s_mul_i32 s{st + 1}, s{st + 6}, {CV_CH}")
    p.e(f"s_add_u32 s{st + 1}, s{st + 1}, {CV_BASE}")
    p.e(f"v_add_u32 v{vA}, s{st + 1}, v{a + 2}")
    p.e(f"v_mul_u32_u24 v{a + 2}, {UBSTR}, v{V_N}")
    p.e(f"v_lshl_add_u32 v{a + 2}, v{V_G}, 4, v{a + 2}")
    p.e(f"s_mul_i32 s{st + 2}, s{st + 6}, {UB_CH}")
    p.e(f"s_add_u32 s{st + 2}, s{st + 2}, {CV_UB}")
    p.e(f"v_add_u32 v{vB}, s{st + 2}, v{a + 2}")
    for i in range(32):
        p.e(f"v_mov_b32 v{16 + i}, 0")
    p.e(f"v_subrev_u32 v{vB}, {UBSTR}, v{vB}")


def conv_u_dma(p, s_ch0):
    st = S_T0
    a = V_T0
    p.e(f"s_add_u32 s{st}, s{S_WS}, {hx(L.UTG)}")
    p.e(f"s_addc_u32 s{st + 1}, s{S_WS + 1}, 0")
    make_srd(p, SRD_C, st, 576 * 4096)
    for k in range(2):
        p.e(f"s_lshl_b32 s{st + 2}, s{S_W}, 6")
        p.e(f"s_add_u32 s{st + 2}, s{st + 2}, {256 * k}")
        p.e(f"v_add_u32 v{a + k}, s{st + 2}, v{V_LANE}")
        p.e(f"v_mul_u32_u24 v{a + 2}, 43691, v{a + k}")
        p.e(f"v_lshrrev_b32 v{a + 2}, 18, v{a + 2}")
        p.e(f"v_mul_u32_u24 v{a + 3}, 6, v{a + 2}")
        p.e(f"v_sub_u32 v{a + 3}, v{a + k}, v{a + 3}")
        p.e(f"v_min_u32 v{a + 3}, 3, v{a + 3}")
        p.e(f"v_lshl_add_u32 v{a + 3}, v{a + 2}, 2, v{a + 3}")
        p.e(f"v_lshlrev_b32 v{a + k}, 4, v{a + 3}")
    p.e(f"s_lshl_b32 s{st + 3}, s{s_ch0}, 12")
    p.e(f"s_lshl_b32 s{st + 4}, s{S_W}, 10")
    p.e(f"s_add_u32 s{st + 4}, s{st + 4}, {CV_UB + 15 * UBSTR}")
    for ch in range(3):
        if ch:
            p.e(f"s_add_u32 s{st + 3}, s{st + 3}, 4096")
        p.e(f"s_add_u32 m0, s{st + 4}, {ch * UB_CH}")
        p.e(f"buffer_load_dwordx4 v{a}, {sr(SRD_C, 4)}, s{st + 3} offen PLD lds")
    p.e(f"s_cmp_ge_u32 s{S_W}, 2")
    p.e(f"s_cbranch_scc1 L_cvu_no2")
    p.if_begin()
    p.e(f"s_lshl_b32 s{st + 3}, s{s_ch0}, 12")
    for ch in range(3):
        if ch:
            p.e(f"s_add_u32 s{st + 3}, s{st + 3}, 4096")
        p.e(f"s_add_u32 m0, s{st + 4}, {ch * UB_CH + 4096}")
        p.e(f"buffer_load_dwordx4 v{a + 1}, {sr(SRD_C, 4)}, s{st + 3} offen PLD lds")
    p.label("L_cvu_no2")
    p.if_end()


def conv_main(p, s_ch0, name, s_yt, s_act, stamp=lambda *a, **k: None, mid=None, extra=None):
    st = S_T0
    a = V_T0
    vA, vB = 144, 145
    p.e(f"s_cmp_eq_u32 s{s_act}, 0")
    p.e(f"s_cbranch_scc1 {name}_h1")
    p.if_begin()
    ACC = 16
    FA = [48, 96]
    FB = [80, 128]

    def load_list(buf, noff):
        L_ = []
        for d in range(4):
            L_.append(f"ds_read_b128 {vr(FB[buf] + 4 * d, 4)}, v{vB} offset:{(16 * d + 16 - noff) * UBSTR}")
        for s in range(4):
            for ih in range(2):
                L_.append(f"ds_read_b128 {vr(FA[buf] + 8 * s + 4 * ih, 4)}, v{vA} offset:{64 * noff + 1024 * s + 32 * ih}")
        return L_

    def loads(buf, noff):
        for t in load_list(buf, noff):
            p.e(t)

    def mm_list(buf):
        L_ = []
        for s in range(4):
            for q in range(s, 4):
                for ih in range(2):
                    d = ACC + 8 * q + 4 * ih
                    L_.append(f"v_mfma_f32_16x16x32_bf16 {vr(d, 4)}, {vr(FA[buf] + 8 * s + 4 * ih, 4)}, {vr(FB[buf] + 4 * (q - s), 4)}, {vr(d, 4)}")
        return L_

    def step(cur, nxt, noff, pre=()):
        p.need(vr(FA[cur], 32) + ", " + vr(FB[cur], 16))
        for t in pre:
            p.e(t)
        rd = load_list(nxt, noff)
        for i, m in enumerate(mm_list(cur)):
            p.e(m)
            if i < len(rd):
                p.e(rd[i])

    loads(0, 0)

    def half(tag, n):
        p.e(f"s_mov_b32 s{S_CVL}, {n}")
        p.loop_begin(f"{name}_loop{tag}")
        step(0, 1, 1)
        step(1, 0, 0, pre=(f"v_add_u32 v{vA}, 128, v{vA}", f"v_subrev_u32 v{vB}, {2 * UBSTR}, v{vB}"))
        p.e(f"s_sub_u32 s{S_CVL}, s{S_CVL}, 1")
        p.e(f"s_cmp_lg_u32 s{S_CVL}, 0")
        p.e(f"s_cbranch_scc1 {name}_loop{tag}")
        p.loop_end()

    stamp(p, 27)
    half("a", CV_FIRST)
    stamp(p, 28)
    p.label(f"{name}_h1")
    p.if_end()
    if mid is not None:
        mid()
    p.e(f"s_cmp_eq_u32 s{s_act}, 0")
    p.e(f"s_cbranch_scc1 {name}_end")
    p.if_begin()
    stamp(p, 29)
    i0 = len(p.items)
    for _ in range(8 - CV_FIRST):
        step(0, 1, 1)
        step(1, 0, 0, pre=(f"v_add_u32 v{vA}, 128, v{vA}", f"v_subrev_u32 v{vB}, {2 * UBSTR}, v{vB}"))
    if extra:
        p.sprinkle(i0, extra, first=4)
    stamp(p, 13)
    p.e(f"s_cmp_eq_u32 s{S_W}, 0")
    p.e(f"s_cselect_b32 s{st + 4}, s{S_CVD}, s{S_CVD + 1}")
    p.e(f"s_cmp_eq_u32 s{S_W}, 2")
    p.e(f"s_cselect_b32 s{st + 4}, s{S_CVD + 2}, s{st + 4}")
    ue = a + 2
    p.e(f"s_mul_i32 s{st + 2}, s{S_W}, {UB_CH}")
    p.e(f"s_add_u32 s{st + 2}, s{st + 2}, {CV_UB}")
    p.e(f"v_mul_u32_u24 v{ue}, {UBSTR}, v{V_N}")
    p.e(f"v_lshrrev_b32 v{ue + 1}, 1, v{V_G}")
    p.e(f"v_lshl_add_u32 v{ue}, v{ue + 1}, 4, v{ue}")
    p.e(f"v_and_b32 v{ue + 1}, 1, v{V_G}")
    p.e(f"v_xor_b32 v{ue + 1}, 1, v{ue + 1}")
    p.e(f"v_lshl_add_u32 v{ue}, v{ue + 1}, 3, v{ue}")
    p.e(f"v_add_u32 v{ue}, s{st + 2}, v{ue}")
    if YBLOCK:
        p.e(f"s_add_u32 s{st + 3}, s{s_ch0}, s{S_W}")
        p.e(f"s_lshl_b32 s{st + 3}, s{st + 3}, 5")
        p.e(f"v_mul_u32_u24 v{ue + 1}, {2 * 18432}, v{V_N}")
        p.e(f"v_lshl_add_u32 v{ue + 1}, v{V_G}, 3, v{ue + 1}")
        p.e(f"v_add_u32 v{ue + 1}, s{st + 3}, v{ue + 1}")
    else:
        p.e(f"s_add_u32 s{st + 3}, s{s_ch0}, s{S_W}")
        p.e(f"s_lshl_b32 s{st + 3}, s{st + 3}, 12")
        p.e(f"v_lshlrev_b32 v{ue + 1}, 6, v{V_N}")
        p.e(f"v_lshl_add_u32 v{ue + 1}, v{V_G}, 3, v{ue + 1}")
        p.e(f"v_add_u32 v{ue + 1}, s{st + 3}, v{ue + 1}")
    for q in range(4):
        for ih in range(2):
            k = 2 * q + ih
            U = 48 + 2 * k
            p.e(f"ds_read_b64 {vr(U, 2)}, v{ue} offset:{(16 * q + 15) * UBSTR + 32 * ih}")
    for q in range(4):
        for ih in range(2):
            k = 2 * q + ih
            U = 48 + 2 * k
            d = ACC + 8 * q + 4 * ih
            T = 72 + 4 * (k % 2)
            p.e(f"v_and_b32 v{T}, 0xffff0000, v{U + 1}")
            p.e(f"v_lshlrev_b32 v{T + 1}, 16, v{U + 1}")
            p.e(f"v_and_b32 v{T + 2}, 0xffff0000, v{U}")
            p.e(f"v_lshlrev_b32 v{T + 3}, 16, v{U}")
            for r in range(4):
                p.e(f"v_fmac_f32 v{d + r}, s{st + 4}, v{T + r}")
            o = 80 + 2 * (k % 4)
            p.e(f"v_cvt_pk_bf16_f32 v{o}, v{d}, v{d + 1}")
            p.e(f"v_cvt_pk_bf16_f32 v{o + 1}, v{d + 2}, v{d + 3}")
            if YBLOCK:
                p.e(f"v_add_u32 v{ue + 2}, {(32 * q + ih) * 18432}, v{ue + 1}")
                p.e(f"global_store_dwordx2 v{ue + 2}, {vr(o, 2)}, {sr(s_yt, 2)} YSC")
            else:
                p.e(f"global_store_dwordx2 v{ue + 1}, {vr(o, 2)}, {sr(s_yt, 2)} offset:{1024 * q + 32 * ih} YSC")
    p.label(f"{name}_end")
    p.if_end()
```

```python
import sys
from common import *
import parts as P
from parts import *
import conv as CV
import attn as AT

NAME = "interleave_layers__grouped_kv_mqa__ssm_conv_h3__prompt"

HEADER = open("cdna_kernels/" + NAME + ".s.ref").read().split("; Override launch geometry")[0]


def descriptor(name, vgpr, agpr=0, sgpr=96):
    acc = (vgpr + 3) // 4 * 4
    return f""".p2align 6
.amdhsa_kernel {name}
  .amdhsa_next_free_vgpr {acc + agpr}
  .amdhsa_next_free_sgpr {sgpr}
  .amdhsa_accum_offset {acc}
  .amdhsa_group_segment_fixed_size 0
  .amdhsa_kernarg_size 112
  .amdhsa_user_sgpr_count 2
  .amdhsa_user_sgpr_kernarg_segment_ptr 1
  .amdhsa_system_sgpr_workgroup_id_x 1
  .amdhsa_float_denorm_mode_32 3
.end_amdhsa_kernel
"""


def kernel_text(name, prog):
    body = prog.finalize()
    return f""".globl {name}
.p2align 8
.type {name},@function
{name}:
{body}"""


def k_p1(name="p1_kernel"):
    p = Prog()
    done = name + "_done"
    prologue(p, done=done)
    load_ptr(p, S_T0 + 4, "x")
    load_ptr(p, S_T0 + 6, "wk")
    load_ptr(p, S_T0 + 8, "wv")
    chain_addr_setup(p)
    p.e("s_waitcnt lgkmcnt(0)")
    make_srd(p, SRD_A, S_T0 + 4, L.S * L.D * 2)
    p.e(f"s_cmp_eq_u32 s{S_HH}, 0")
    p.e(f"s_cselect_b32 s{S_T0 + 6}, s{S_T0 + 6}, s{S_T0 + 8}")
    p.e(f"s_cselect_b32 s{S_T0 + 7}, s{S_T0 + 7}, s{S_T0 + 9}")
    make_srd(p, SRD_B, S_T0 + 6, 576 * 36)
    load_x_rows(p, SRD_A)
    p.e(f"s_cmp_ge_u32 s{S_W}, 2")
    p.e(f"s_cbranch_scc1 {name}_nog")
    p.if_begin()
    kv_weight_gather(p, SRD_B)
    p.label(f"{name}_nog")
    p.if_end()
    unpack_x_rows(p)
    row_stats(p, V_X, V_TMP, LDS_ST, V_STW, V_STR, V_MU, V_RS)
    normalize_to_xb(p, V_X, V_TMP, V_MU, V_RS, V_XBE, V_XBO)
    p.e("s_waitcnt lgkmcnt(0)")
    p.e("s_barrier")
    ws_base(p, S_P0, L.KVB)
    kv_project_store(p, S_P0, name + "_kv")
    p.e(f"s_cmp_eq_u32 s{S_HH}, 0")
    p.e(f"s_cbranch_scc0 {done}")
    p.e(f"s_mul_i32 s{S_T0}, s{S_PAIR}, {18 * 1024}")
    ws_base(p, S_P0 + 2, L.XBG, S_T0)
    p.e(f"s_lshl_b32 s{S_T0}, s{S_W}, 10")
    p.e(f"v_add_u32 v{V_T0}, s{S_T0}, v{V_L16}")
    for i in range(5):
        if i == 4:
            p.e(f"s_cmp_ge_u32 s{S_W}, 2")
            p.e(f"s_cbranch_scc1 {name}_x2")
        p.e(f"ds_read_b128 {vr(V_TMP + 4 * (i % 4), 4)}, v{V_T0} offset:{LDS_XB + 4096 * i}")
        p.e(f"v_add_u32 v{V_T0 + 1}, {4096 * i}, v{V_T0}")
        p.e(f"global_store_dwordx4 v{V_T0 + 1}, {vr(V_TMP + 4 * (i % 4), 4)}, {sr(S_P0 + 2, 2)}")
    p.label(f"{name}_x2")
    p.e(f"s_mul_i32 s{S_T0}, s{S_PAIR}, 36864")
    p.e(f"s_mul_i32 s{S_T0 + 1}, s{S_W}, 9216")
    p.e(f"s_add_u32 s{S_T0}, s{S_T0}, s{S_T0 + 1}")
    ws_base(p, S_P0 + 4, L.X2G, S_T0)
    for t in range(9):
        p.e(f"v_add_u32 v{V_T0 + 1}, {1024 * t}, v{V_L16}")
        p.e(f"global_store_dwordx4 v{V_T0 + 1}, {vr(V_X + 4 * t, 4)}, {sr(S_P0 + 4, 2)}")
    p.label(done)
    p.e("s_endpgm")
    return kernel_text(name, p), descriptor(name, 256), LDS_XB_END


def k_relayout(name="rl_kernel"):
    p = Prog()
    done = name + "_done"
    prologue(p, nwg=64, done=done)
    p.e("s_waitcnt lgkmcnt(0)")
    p.e(f"s_mov_b32 s{S_T0 + 12}, s2")
    relayout(p, S_T0 + 12, name + "_rl")
    p.label(done)
    p.e("s_endpgm")
    return kernel_text(name, p), descriptor(name, 256), 0


def k_conv(name="cv_kernel"):
    p = Prog()
    done = name + "_done"
    prologue(p, nwg=256, done=done)
    p.e(f"s_cmp_ge_u32 s{S_SLOT}, 24")
    p.e(f"s_cbranch_scc1 {done}")
    p.e(f"s_mul_i32 s80, s{S_XCD}, 72")
    p.e(f"s_mul_i32 s81, s{S_SLOT}, 3")
    p.e(f"s_add_u32 s80, s80, s81")
    if STAMPS:
        load_ptr(p, 88, "dbg")
        p.e("s_waitcnt lgkmcnt(0)")
    stamp(p, 0)
    stamp(p, 10, real=True)
    CV.conv_issue_loads(p, 80)
    stamp(p, 1)
    ws_base(p, S_P0, L.YT)
    CV.conv_compute(p, 80, name + "_cv", S_P0, stamp)
    stamp(p, 5)
    stamp(p, 11, real=True)
    p.label(done)
    p.e("s_endpgm")
    return kernel_text(name, p), descriptor(name, 256), CV.CV_END


def stamp(p, idx, sdyn=None, real=False):
    if not STAMPS:
        return
    global _stn
    _stn += 1
    lab = f"L_st{_stn}"
    if STAMPS == 3:
        if real:
            return
        p.e("s_memrealtime s[90:91]")
        p.e("s_memtime s[92:93]")
        p.e("s_waitcnt lgkmcnt(0)")
        p.e("v_mov_b32 v14, s90")
        p.e("v_mov_b32 v15, s92")
        p.e("s_lshl_b32 s92, s2, 9")
        p.e(f"s_add_u32 s92, s92, {0x2A00000 + 8 * idx}")
        if sdyn is not None:
            p.e(f"s_lshl_b32 s93, s{sdyn}, 3")
            p.e(f"s_add_u32 s92, s92, s93")
        p.e("v_mov_b32 v13, s92")
        p.e("s_cmp_lg_u32 s4, 0")
        p.e(f"s_cbranch_scc1 {lab}")
        p.if_begin()
        p.e("global_store_dwordx2 v13, v[14:15], s[8:9]")
        p.label(lab)
        p.if_end()
        return
    if STAMPS == 2:
        if real:
            return
        p.e("s_memrealtime s[90:91]")
        p.e("s_waitcnt lgkmcnt(0)")
        p.e("v_mov_b32 v14, s90")
        p.e("s_lshl_b32 s92, s2, 8")
        p.e(f"s_add_u32 s92, s92, {0x2A00000 + 4 * idx}")
        if sdyn is not None:
            p.e(f"s_lshl_b32 s93, s{sdyn}, 2")
            p.e(f"s_add_u32 s92, s92, s93")
        p.e("v_mov_b32 v15, s92")
        p.e("s_cmp_lg_u32 s4, 0")
        p.e(f"s_cbranch_scc1 {lab}")
        p.if_begin()
        p.e("global_store_dword v15, v14, s[8:9]")
        p.label(lab)
        p.if_end()
        return
    p.e("s_memrealtime s[90:91]" if real else "s_memtime s[90:91]")
    p.e("s_waitcnt lgkmcnt(0)")
    p.e("v_mov_b32 v14, s90")
    p.e(f"v_mov_b32 v15, {4 * idx}")
    if sdyn is not None:
        p.e(f"s_lshl_b32 s92, s{sdyn}, 2")
        p.e(f"v_add_u32 v15, s92, v15")
    p.e("s_or_b32 s93, s2, s4")
    p.e("s_cmp_lg_u32 s93, 0")
    p.e(f"s_cbranch_scc1 {lab}")
    p.if_begin()
    p.e("global_store_dword v15, v14, s[88:89]")
    p.label(lab)
    p.if_end()


STAMPS = False
_stn = 0


def k_attn(layer, name):
    p = Prog()
    done = name + "_done"
    prologue(p, done=done)
    if STAMPS:
        load_ptr(p, 88, "dbg")
    p.e("s_waitcnt lgkmcnt(0)")
    stamp(p, 0)
    stamp(p, 10, real=True)
    ws_base(p, S_P0, L.KVB + layer * L.KV_LAYER)
    AT.load_kv(p, S_P0)
    p.e(f"s_mul_i32 s{S_T0}, s{S_PAIR}, {18 * 1024}")
    ws_base(p, S_P0 + 2, L.XBG, S_T0)
    p.e(f"s_lshl_b32 s{S_T0}, s{S_W}, 10")
    p.e(f"v_add_u32 v{V_T0}, s{S_T0}, v{V_L16}")
    for i in range(5):
        p.e(f"v_add_u32 v{V_T0 + 1}, {4096 * i}, v{V_T0}")
        p.e(f"global_load_dwordx4 {vr(16 + 4 * i, 4)}, v{V_T0 + 1}, {sr(S_P0 + 2, 2)}")
    for i in range(5):
        if i == 4:
            p.e(f"s_cmp_ge_u32 s{S_W}, 2")
            p.e(f"s_cbranch_scc1 {name}_x4")
            p.if_begin()
        p.e(f"ds_write_b128 v{V_T0}, {vr(16 + 4 * i, 4)} offset:{LDS_XB + 4096 * i}")
    p.label(f"{name}_x4")
    p.if_end()
    AT.addr_setup(p)
    AT.weight_ptr_setup(p)
    p.e("s_waitcnt lgkmcnt(0)")
    p.e("s_barrier")
    stamp(p, 1)
    est = AT.attention_layer(p, name, stamp)
    stamp(p, 2)
    p.e(f"s_lshl_b32 s{S_T0}, s{S_PAIR}, 1")
    p.e(f"s_add_u32 s{S_T0}, s{S_T0}, s{S_HH}")
    p.e(f"s_mul_i32 s{S_T0}, s{S_T0}, 36864")
    p.e(f"s_mul_i32 s{S_T0 + 1}, s{S_W}, 9216")
    p.e(f"s_add_u32 s{S_T0}, s{S_T0}, s{S_T0 + 1}")
    ws_base(p, S_P0 + 4, L.PART + layer * L.PART_LAYER, S_T0)
    for t in range(9):
        p.e(f"v_add_u32 v{V_T0 + 1}, {1024 * t}, v{V_L16}")
        p.e(f"global_store_dwordx4 v{V_T0 + 1}, {vr(AT.XA + 4 * t, 4)}, {sr(S_P0 + 4, 2)} PSC")
    stamp(p, 3)
    stamp(p, 11, real=True)
    p.label(done)
    p.e("s_endpgm")
    txt = kernel_text(name, p)
    print(name, "estimated phase cycles", est, "counts", p.count, "auto nops", p.nauto_nop, file=sys.stderr)
    return txt, descriptor(name, 256, 256), AT.A_END


def k_bound(layer, name):
    p = Prog()
    done = name + "_done"
    prologue(p, done=done)
    load_ptr(p, S_T0 + 4, "out")
    chain_addr_setup(p)
    p.e("s_waitcnt lgkmcnt(0)")
    make_srd(p, SRD_A, S_T0 + 4, L.S * L.D * 2)
    p.e(f"s_mul_i32 s{S_T0}, s{S_PAIR}, 36864")
    p.e(f"s_mul_i32 s{S_T0 + 1}, s{S_W}, 9216")
    p.e(f"s_add_u32 s{S_T0}, s{S_T0}, s{S_T0 + 1}")
    ws_base(p, S_P0 + 4, L.X2G + layer * 0x500000, S_T0)
    ws_base(p, S_P0 + 10, L.X2G + 0x500000, S_T0)
    p.e(f"s_mul_i32 s{S_T0}, s{S_PAIR}, {2 * 36864}")
    p.e(f"s_add_u32 s{S_T0}, s{S_T0}, s{S_T0 + 1}")
    ws_base(p, S_P0 + 6, L.PART + layer * L.PART_LAYER, S_T0)
    PA, PB = 200, 164
    for t in range(9):
        p.e(f"v_add_u32 v{V_T0 + 1}, {1024 * t}, v{V_L16}")
        p.e(f"global_load_dwordx4 {vr(V_X + 4 * t, 4)}, v{V_T0 + 1}, {sr(S_P0 + 4, 2)}")
        p.e(f"global_load_dwordx4 {vr(PA + 4 * t, 4)}, v{V_T0 + 1}, {sr(S_P0 + 6, 2)}")
        p.e(f"v_add_u32 v{V_T0 + 1}, {1024 * t + 36864}, v{V_L16}")
        p.e(f"global_load_dwordx4 {vr(PB + 4 * t, 4)}, v{V_T0 + 1}, {sr(S_P0 + 6, 2)}")
    ws_base(p, S_P0 + 2, L.YT)
    y_loads(p, S_P0 + 2)
    if layer == 0:
        p.e(f"s_lshl_b32 s{S_T0}, s{S_HH}, 1")
        p.e(f"s_add_u32 s{S_T0}, s{S_T0}, s{S_W}")
        p.e(f"s_mul_i32 s{S_T0}, s{S_T0}, {18 * 1024}")
    for i in range(18):
        p.e(f"v_pk_add_f32 {vr(PA + 2 * i, 2)}, {vr(PA + 2 * i, 2)}, {vr(PB + 2 * i, 2)}")
        p.e(f"v_pk_add_f32 {vr(V_X + 2 * i, 2)}, {vr(V_X + 2 * i, 2)}, {vr(PA + 2 * i, 2)}")
    if layer == 0:
        ws_base(p, S_P0 + 8, L.WKVF, S_T0)
        p.e(f"s_cmp_ge_u32 s{S_W}, 2")
        p.e(f"s_cbranch_scc1 {name}_nw")
        p.if_begin()
        WF2 = 184
        for ks in range(18):
            p.e(f"v_add_u32 v{V_T0 + 1}, {1024 * ks}, v{V_L16}")
            p.e(f"global_load_dwordx4 {vr(WF2 + 4 * ks, 4)}, v{V_T0 + 1}, {sr(S_P0 + 8, 2)}")
        p.label(f"{name}_nw")
        p.if_end()
    gate_chain(p, V_X, 0)
    if layer == 0:
        row_stats(p, V_X, V_TMP, LDS_ST + 512, V_STW, V_STR, V_MU, V_RS)
        normalize_to_xb(p, V_X, V_TMP, V_MU, V_RS, V_XBE, V_XBO)
        p.e("s_waitcnt lgkmcnt(0)")
        p.e("s_barrier")
        ws_base(p, S_P0, L.KVB + L.KV_LAYER)
        import parts
        old = parts.V_WF
        parts.V_WF = 184
        kv_project_store(p, S_P0, name + "_kv")
        parts.V_WF = old
        p.e(f"s_cmp_eq_u32 s{S_HH}, 0")
        p.e(f"s_cbranch_scc0 {done}")
        p.e(f"s_mul_i32 s{S_T0}, s{S_PAIR}, {18 * 1024}")
        ws_base(p, S_P0 + 2, L.XBG, S_T0)
        p.e(f"s_lshl_b32 s{S_T0}, s{S_W}, 10")
        p.e(f"v_add_u32 v{V_T0}, s{S_T0}, v{V_L16}")
        for i in range(5):
            if i == 4:
                p.e(f"s_cmp_ge_u32 s{S_W}, 2")
                p.e(f"s_cbranch_scc1 {name}_x2")
            p.e(f"ds_read_b128 {vr(V_TMP + 4 * (i % 4), 4)}, v{V_T0} offset:{LDS_XB + 4096 * i}")
            p.e(f"v_add_u32 v{V_T0 + 1}, {4096 * i}, v{V_T0}")
            p.e(f"global_store_dwordx4 v{V_T0 + 1}, {vr(V_TMP + 4 * (i % 4), 4)}, {sr(S_P0 + 2, 2)}")
        p.label(f"{name}_x2")
        for t in range(9):
            p.e(f"v_add_u32 v{V_T0 + 1}, {1024 * t}, v{V_L16}")
            p.e(f"global_store_dwordx4 v{V_T0 + 1}, {vr(V_X + 4 * t, 4)}, {sr(S_P0 + 10, 2)}")
    else:
        p.e(f"s_lshr_b32 s{S_T0}, s{S_W}, 1")
        p.e(f"s_cmp_eq_u32 s{S_T0}, s{S_HH}")
        p.e(f"s_cbranch_scc0 {done}")
        store_out_rows(p, SRD_A, V_X)
    p.label(done)
    p.e("s_endpgm")
    return kernel_text(name, p), descriptor(name, 256), LDS_XB_END


def build(kernels):
    s = HEADER
    for name, grid, text, desc, lds in kernels:
        s += f"; @launch kernel={name} grid=({grid},1,1) block=(256,1,1) lds={lds}\n"
    s += '.amdgcn_target "amdgcn-amd-amdhsa--gfx950"\n.text\n'
    seen = set()
    for name, grid, text, desc, lds in kernels:
        if name in seen:
            continue
        seen.add(name)
        s += text
    s += '.section .rodata,"a"\n'
    seen = set()
    for name, grid, text, desc, lds in kernels:
        if name in seen:
            continue
        seen.add(name)
        s += desc
    return s


if __name__ == "__main__":
    ks = []
    STAMPS = "--stamps" in sys.argv
    t, d, l = k_p1()
    ks.append(("p1_kernel", 256, t, d, l))
    t, d, l = k_relayout()
    ks.append(("rl_kernel", 64, t, d, l))
    t, d, l = k_conv()
    ks.append(("cv_kernel", 256, t, d, l))
    STAMPS = "--stamps" in sys.argv
    t, d, l = k_attn(0, "a0_kernel")
    ks.append(("a0_kernel", 256, t, d, l))
    t, d, l = k_bound(0, "b0_kernel")
    ks.append(("b0_kernel", 256, t, d, l))
    t, d, l = k_attn(1, "a1_kernel")
    ks.append(("a1_kernel", 256, t, d, l))
    t, d, l = k_bound(1, "b1_kernel")
    ks.append(("b1_kernel", 256, t, d, l))
    open(sys.argv[1] if len(sys.argv) > 1 else "out.s", "w").write(build(ks))
```

```python
from common import *

LDS_ST = 0
LDS_XB = 1024
LDS_XB_END = LDS_XB + 18 * 1024

V_X = 60
V_XR = 40
V_TMP = 16
V_MU = 32
V_RS = 33
V_STW = 34
V_STR = 35
V_XBE = 36
V_XBO = 37
V_XOFF = 38
V_WF = 100
V_WT = 172


def chain_addr_setup(p):
    p.e(f"v_lshlrev_b32 v{V_STR}, 5, v{V_N}")
    p.e(f"s_lshl_b32 s{S_T0}, s{S_W}, 3")
    p.e(f"v_add_u32 v{V_STW}, s{S_T0}, v{V_STR}")
    xb_write_bases(p, V_XBE, V_XBO, LDS_XB)
    p.e(f"v_mul_u32_u24 v{V_XOFF}, 1152, v{V_N}")
    p.e(f"s_mul_i32 s{S_T0}, s{S_W}, 288")
    p.e(f"v_lshl_add_u32 v{V_XOFF}, v{V_G}, 3, v{V_XOFF}")
    p.e(f"v_add_u32 v{V_XOFF}, s{S_T0}, v{V_XOFF}")


def load_x_rows(p, srd):
    for t in range(9):
        p.e(f"buffer_load_dwordx2 {vr(V_XR + 2 * t, 2)}, v{V_XOFF}, {sr(srd, 4)}, s{S_ROWOFF} offen offset:{32 * t}")


def unpack_x_rows(p):
    for t in range(9):
        unpack_bf16x4(p, V_X + 4 * t, V_XR + 2 * t)


def kv_weight_gather_issue(p, srd):
    vo = V_T0
    p.e(f"s_lshl_b32 s{S_T0}, s{S_W}, 4")
    p.e(f"v_add_u32 v{vo + 1}, s{S_T0}, v{V_N}")
    p.e(f"v_mul_u32_u24 v{vo}, 144, v{V_G}")
    p.e(f"v_lshl_add_u32 v{vo}, v{vo + 1}, 1, v{vo}")
    p.e(f"v_cmp_gt_u32 vcc, 18, v{vo + 1}")
    p.e(f"v_mov_b32 v{vo + 2}, 0x40000000")
    p.e(f"v_cndmask_b32 v{vo}, v{vo + 2}, v{vo}, vcc")
    gather_wkv_frags(p, srd, V_WF, 172, vo, nks=18, ks0=0)


def kv_weight_gather(p, srd):
    vo = V_T0
    p.e(f"s_lshl_b32 s{S_T0}, s{S_W}, 4")
    p.e(f"v_add_u32 v{vo + 1}, s{S_T0}, v{V_N}")
    p.e(f"v_mul_u32_u24 v{vo}, 144, v{V_G}")
    p.e(f"v_lshl_add_u32 v{vo}, v{vo + 1}, 1, v{vo}")
    p.e(f"v_cmp_gt_u32 vcc, 18, v{vo + 1}")
    p.e(f"v_mov_b32 v{vo + 2}, 0x40000000")
    p.e(f"v_cndmask_b32 v{vo}, v{vo + 2}, v{vo}, vcc")
    gather_wkv_frags(p, srd, V_WF, V_WT, vo, nks=16, ks0=0)
    combine_frags(p, V_WF, V_WT, 64)
    gather_wkv_frags(p, srd, V_WF + 64, V_WT, vo, nks=2, ks0=16)
    combine_frags(p, V_WF + 64, V_WT, 8)


def kv_project_store(p, s_kvbase, name):
    acc = V_TMP
    xb = V_TMP + 4
    va = V_T0
    p.e(f"; K/V projection")
    p.e(f"s_cmp_ge_u32 s{S_W}, 2")
    p.e(f"s_cbranch_scc1 {name}_end")
    p.if_begin()
    p.e(f"s_cmp_eq_u32 s{S_HH}, 0")
    p.e(f"s_cbranch_scc0 {name}_v")
    p.if_begin()
    for ks in range(18):
        if ks == 0:
            for k in range(2):
                p.e(f"ds_read_b128 {vr(xb + 4 * (k % 3), 4)}, v{V_L16} offset:{LDS_XB + 1024 * k}")
        if ks + 2 < 18:
            p.e(f"ds_read_b128 {vr(xb + 4 * ((ks + 2) % 3), 4)}, v{V_L16} offset:{LDS_XB + 1024 * (ks + 2)}")
        c = "0" if ks == 0 else vr(acc, 4)
        p.e(f"v_mfma_f32_16x16x32_bf16 {vr(acc, 4)}, {vr(V_WF + 4 * ks, 4)}, {vr(xb + 4 * (ks % 3), 4)}, {c}")
    p.e(f"s_lshr_b32 s{S_T0}, s{S_PAIR}, 1")
    p.e(f"s_and_b32 s{S_T0 + 1}, s{S_PAIR}, 1")
    p.e(f"s_lshl_b32 s{S_T0 + 1}, s{S_T0 + 1}, 4")
    p.e(f"v_add_u32 v{va}, s{S_T0 + 1}, v{V_N}")
    p.e(f"s_mov_b32 s{S_T0 + 2}, {hx(f2u(L.QSCALE))}")
    for r in range(4):
        p.e(f"v_mul_f32 v{acc + r}, s{S_T0 + 2}, v{acc + r}")
    p.e(f"v_cvt_pk_bf16_f32 v{xb}, v{acc}, v{acc + 1}")
    p.e(f"v_cvt_pk_bf16_f32 v{xb + 1}, v{acc + 2}, v{acc + 3}")
    p.e(f"s_cmp_eq_u32 s{S_W}, 0")
    p.e(f"s_cbranch_scc0 {name}_kl")
    p.if_begin()
    p.e(f"v_lshrrev_b32 v{va + 1}, 1, v{V_G}")
    p.e(f"v_lshl_add_u32 v{va + 1}, v{va + 1}, 5, v{va}")
    p.e(f"v_lshlrev_b32 v{va + 1}, 4, v{va + 1}")
    p.e(f"v_and_b32 v{va + 2}, 1, v{V_G}")
    p.e(f"v_lshl_add_u32 v{va + 1}, v{va + 2}, 3, v{va + 1}")
    p.e(f"s_lshl_b32 s{S_T0}, s{S_T0}, 10")
    p.e(f"v_add_u32 v{va + 1}, s{S_T0}, v{va + 1}")
    p.e(f"global_store_dwordx2 v{va + 1}, {vr(xb, 2)}, {sr(s_kvbase, 2)} offset:{L.KV_K0} KVSC")
    p.e(f"s_branch {name}_end")
    p.if_end()
    p.label(f"{name}_kl")
    p.e(f"v_mov_b32 v{xb + 1}, 0x3f803f80")
    p.e(f"s_lshl_b32 s{S_T0}, s{S_T0}, 5")
    p.e(f"v_add_u32 v{va + 1}, s{S_T0}, v{va}")
    p.e(f"v_lshlrev_b32 v{va + 1}, 3, v{va + 1}")
    p.e(f"v_add_u32 v{va + 1}, {hx(L.KV_KL)}, v{va + 1}")
    p.e(f"v_cmp_gt_u32 vcc, 16, v{V_LANE}")
    p.e(f"s_and_saveexec_b64 s[{S_T0 + 4}:{S_T0 + 5}], vcc")
    p.e(f"global_store_dwordx2 v{va + 1}, {vr(xb, 2)}, {sr(s_kvbase, 2)} KVSC")
    p.e(f"s_mov_b64 exec, s[{S_T0 + 4}:{S_T0 + 5}]")
    p.e(f"s_branch {name}_end")
    p.if_end()
    p.label(f"{name}_v")
    for ks in range(18):
        if ks == 0:
            for k in range(2):
                p.e(f"ds_read_b128 {vr(xb + 4 * (k % 3), 4)}, v{V_L16} offset:{LDS_XB + 1024 * k}")
        if ks + 2 < 18:
            p.e(f"ds_read_b128 {vr(xb + 4 * ((ks + 2) % 3), 4)}, v{V_L16} offset:{LDS_XB + 1024 * (ks + 2)}")
        c = "0" if ks == 0 else vr(acc, 4)
        p.e(f"v_mfma_f32_16x16x32_bf16 {vr(acc, 4)}, {vr(xb + 4 * (ks % 3), 4)}, {vr(V_WF + 4 * ks, 4)}, {c}")
    p.e(f"s_lshl_b32 s{S_T0 + 1}, s{S_W}, 4")
    p.e(f"v_add_u32 v{va}, s{S_T0 + 1}, v{V_N}")
    p.e(f"v_cmp_eq_u32 vcc, 18, v{va}")
    p.e(f"v_mov_b32 v{va + 2}, 1.0")
    for r in range(4):
        p.e(f"v_cndmask_b32 v{acc + r}, v{acc + r}, v{va + 2}, vcc")
    p.e(f"v_cvt_pk_bf16_f32 v{xb}, v{acc}, v{acc + 1}")
    p.e(f"v_cvt_pk_bf16_f32 v{xb + 1}, v{acc + 2}, v{acc + 3}")
    p.e(f"v_and_b32 v{va + 1}, 1, v{V_G}")
    p.e(f"v_lshl_add_u32 v{va + 1}, v{va + 1}, 5, v{va}")
    p.e(f"v_lshlrev_b32 v{va + 1}, 4, v{va + 1}")
    p.e(f"v_lshrrev_b32 v{va + 2}, 1, v{V_G}")
    p.e(f"v_lshl_add_u32 v{va + 1}, v{va + 2}, 3, v{va + 1}")
    p.e(f"s_lshl_b32 s{S_T0}, s{S_PAIR}, 10")
    p.e(f"s_add_u32 s{S_T0}, s{S_T0}, {hx(L.KV_VF)}")
    p.e(f"v_add_u32 v{va + 1}, s{S_T0}, v{va + 1}")
    p.e(f"global_store_dwordx2 v{va + 1}, {vr(xb, 2)}, {sr(s_kvbase, 2)} KVSC")
    p.label(f"{name}_end")
    p.if_end()


RL_LO, RL_HI = 100, 136
S_RLD, S_RLS, S_RLN = 94, 95, 96


def relayout_issue(p, s_job, name):
    vo, v2, v3 = V_T0, V_T0 + 1, V_T0 + 2
    dst, tmp = RL_LO, RL_HI
    st = S_T0
    p.e(f"s_mov_b32 s{S_RLN}, 0")
    p.e(f"s_cmp_ge_u32 s{s_job}, 58")
    p.e(f"s_cbranch_scc1 {name}_end")
    p.e(f"s_cmp_ge_u32 s{s_job}, 54")
    p.e(f"s_cbranch_scc1 {name}_kv")
    p.e(f"s_cmp_ge_u32 s{s_job}, 36")
    p.e(f"s_cbranch_scc1 {name}_wo")
    load_ptr(p, st + 6, "wq")
    p.e(f"s_cmp_ge_u32 s{s_job}, 18")
    p.e(f"s_cselect_b32 s{st}, 1, 0")
    p.e(f"s_mul_i32 s{st + 1}, s{st}, 18")
    p.e(f"s_sub_u32 s{st + 1}, s{s_job}, s{st + 1}")
    p.e(f"s_lshl_b32 s{st + 2}, s{st}, 4")
    p.e(f"v_lshrrev_b32 v{v2}, 2, v{V_N}")
    p.e(f"v_and_b32 v{v3}, 3, v{V_N}")
    p.e(f"s_cmp_ge_u32 s{st + 1}, 16")
    p.e(f"s_cbranch_scc1 {name}_ql")
    p.e(f"s_and_b32 s{st + 3}, s{st + 1}, 12")
    p.e(f"s_add_u32 s{st + 2}, s{st + 2}, s{st + 3}")
    p.e(f"s_and_b32 s{st + 3}, s{st + 1}, 2")
    p.e(f"s_add_u32 s{st + 2}, s{st + 2}, s{st + 3}")
    p.e(f"s_and_b32 s{st + 3}, s{st + 1}, 1")
    p.e(f"s_lshl_b32 s{st + 3}, s{st + 3}, 2")
    p.e(f"v_and_b32 v{vo}, 1, v{v2}")
    p.e(f"v_add_u32 v{vo}, s{st + 2}, v{vo}")
    p.e(f"v_mul_u32_u24 v{vo}, 18, v{vo}")
    p.e(f"v_lshrrev_b32 v{v2}, 1, v{v2}")
    p.e(f"v_lshl_add_u32 v{vo}, v{v2}, 3, v{vo}")
    p.e(f"v_add_u32 v{vo}, v{vo}, v{v3}")
    p.e(f"v_add_u32 v{vo}, s{st + 3}, v{vo}")
    p.e(f"s_branch {name}_qc")
    p.label(f"{name}_ql")
    p.e(f"s_sub_u32 s{st + 3}, s{st + 1}, 16")
    p.e(f"s_lshl_b32 s{st + 3}, s{st + 3}, 3")
    p.e(f"s_add_u32 s{st + 2}, s{st + 2}, s{st + 3}")
    p.e(f"v_lshrrev_b32 v{vo}, 1, v{v3}")
    p.e(f"v_lshl_add_u32 v{vo}, v{vo}, 2, v{v2}")
    p.e(f"v_add_u32 v{vo}, s{st + 2}, v{vo}")
    p.e(f"v_mul_u32_u24 v{vo}, 18, v{vo}")
    p.e(f"v_and_b32 v{v3}, 1, v{v3}")
    p.e(f"v_add_u32 v{vo}, v{vo}, v{v3}")
    p.e(f"v_add_u32 v{vo}, 16, v{vo}")
    p.label(f"{name}_qc")
    p.e(f"v_lshlrev_b32 v{vo}, 1, v{vo}")
    p.e(f"v_mul_u32_u24 v{v2}, {4 * 1152}, v{V_G}")
    p.e(f"v_add_u32 v{vo}, v{vo}, v{v2}")
    p.e(f"s_mul_i32 s{st + 3}, s{S_W}, {32 * 1152}")
    p.e(f"v_add_u32 v{vo}, s{st + 3}, v{vo}")
    p.e("s_waitcnt lgkmcnt(0)")
    make_srd(p, SRD_B, st + 6, 576 * 1152)
    p.e(f"s_mul_i32 s{st}, s{s_job}, {18 * 1024}")
    p.e(f"s_lshl_b32 s{st + 1}, s{S_W}, 10")
    p.e(f"s_add_u32 s{st}, s{st}, s{st + 1}")
    p.e(f"s_add_u32 s{S_RLD}, s{st}, {hx(L.WQF)}")
    for i in range(5):
        for j in range(8):
            row = 128 * i + 16 * (j // 4) + j % 4
            if j == 0 or j == 4:
                p.e(f"s_mov_b32 s{st + 4}, {(row // 4 * 4) * 1152}")
            op = "buffer_load_ushort" if j % 2 == 0 else "buffer_load_short_d16_hi"
            reg = (dst if j % 2 == 0 else tmp) + 4 * i + j // 2
            p.e(f"{op} a{reg}, v{vo}, {sr(SRD_B, 4)}, s{st + 4} offen offset:{(j % 4) * 1152}")
    p.e(f"s_branch {name}_n45")
    p.label(f"{name}_wo")
    load_ptr(p, st + 6, "wo")
    p.e(f"s_sub_u32 s{st + 5}, s{s_job}, 36")
    p.e(f"s_cmp_ge_u32 s{st + 5}, 9")
    p.e(f"s_cselect_b32 s{st}, 1, 0")
    p.e(f"s_mul_i32 s{st + 1}, s{st}, 9")
    p.e(f"s_sub_u32 s{st + 1}, s{st + 5}, s{st + 1}")
    p.e(f"s_lshl_b32 s{st + 2}, s{st}, 4")
    p.e(f"s_cmp_eq_u32 s{st + 1}, 8")
    p.e(f"s_cbranch_scc1 {name}_ol")
    p.e(f"s_lshl_b32 s{st + 3}, s{st + 1}, 1")
    p.e(f"s_add_u32 s{st + 2}, s{st + 2}, s{st + 3}")
    p.e(f"v_and_b32 v{vo}, 1, v{V_G}")
    p.e(f"v_add_u32 v{vo}, s{st + 2}, v{vo}")
    p.e(f"v_mul_u32_u24 v{vo}, 18, v{vo}")
    p.e(f"v_lshrrev_b32 v{v2}, 1, v{V_G}")
    p.e(f"v_lshl_add_u32 v{vo}, v{v2}, 2, v{vo}")
    p.e(f"s_mov_b32 s{st + 8}, 0")
    p.e(f"s_branch {name}_oc")
    p.label(f"{name}_ol")
    p.e(f"v_lshlrev_b32 v{vo}, 2, v{V_G}")
    p.e(f"v_add_u32 v{vo}, s{st + 2}, v{vo}")
    p.e(f"v_mul_u32_u24 v{vo}, 18, v{vo}")
    p.e(f"v_add_u32 v{vo}, 16, v{vo}")
    p.e(f"s_mov_b32 s{st + 8}, 1")
    p.label(f"{name}_oc")
    p.e(f"v_mul_u32_u24 v{vo}, 1152, v{vo}")
    p.e(f"v_lshl_add_u32 v{vo}, v{V_N}, 1, v{vo}")
    p.e(f"s_mul_i32 s{st + 3}, s{S_W}, 288")
    p.e(f"v_add_u32 v{vo}, s{st + 3}, v{vo}")
    p.e("s_waitcnt lgkmcnt(0)")
    make_srd(p, SRD_B, st + 6, 576 * 1152)
    p.e(f"s_mul_i32 s{st}, s{st + 5}, {36 * 1024}")
    p.e(f"s_mul_i32 s{st + 1}, s{S_W}, {9 * 1024}")
    p.e(f"s_add_u32 s{st}, s{st}, s{st + 1}")
    p.e(f"s_add_u32 s{S_RLD}, s{st}, {hx(L.WOF)}")
    R = 48
    main = [0, 1, 2, 3, 8, 9, 10, 11]
    left = [0, 1, 18, 19, 36, 37, 54, 55]
    p.e(f"s_cmp_eq_u32 s{st + 8}, 1")
    for j in range(8):
        p.e(f"s_mov_b32 s{R + j}, {left[j] * 1152}")
        p.e(f"s_cselect_b32 s{R + j}, s{R + j}, {main[j] * 1152}")
    for t in range(9):
        for j in range(8):
            op = "buffer_load_ushort" if j % 2 == 0 else "buffer_load_short_d16_hi"
            reg = (dst if j % 2 == 0 else tmp) + 4 * t + j // 2
            p.e(f"{op} a{reg}, v{vo}, {sr(SRD_B, 4)}, s{R + j} offen offset:{32 * t}")
    p.e(f"s_mov_b32 s{S_RLS}, 1024")
    p.e(f"s_mov_b32 s{S_RLN}, 9")
    p.e(f"s_branch {name}_end")
    p.label(f"{name}_kv")
    load_ptr(p, st + 6, "wk")
    load_ptr(p, st + 8, "wv")
    p.e(f"s_sub_u32 s{st + 5}, s{s_job}, 54")
    p.e(f"s_and_b32 s{st + 1}, s{st + 5}, 1")
    p.e(f"s_lshl_b32 s{st + 1}, s{st + 1}, 4")
    p.e(f"v_add_u32 v{v2}, s{st + 1}, v{V_N}")
    p.e(f"v_mul_u32_u24 v{vo}, 144, v{V_G}")
    p.e(f"v_lshl_add_u32 v{vo}, v{v2}, 1, v{vo}")
    p.e(f"s_mul_i32 s{st + 3}, s{S_W}, 1152")
    p.e(f"v_add_u32 v{vo}, s{st + 3}, v{vo}")
    p.e(f"v_cmp_gt_u32 vcc, 18, v{v2}")
    p.e(f"v_mov_b32 v{v3}, 0x40000000")
    p.e(f"v_cndmask_b32 v{vo}, v{v3}, v{vo}, vcc")
    p.e("s_waitcnt lgkmcnt(0)")
    p.e(f"s_cmp_ge_u32 s{st + 5}, 2")
    p.e(f"s_cselect_b32 s{st + 6}, s{st + 8}, s{st + 6}")
    p.e(f"s_cselect_b32 s{st + 7}, s{st + 9}, s{st + 7}")
    make_srd(p, SRD_B, st + 6, 576 * 36)
    p.e(f"s_mul_i32 s{st}, s{st + 5}, {18 * 1024}")
    p.e(f"s_lshl_b32 s{st + 1}, s{S_W}, 10")
    p.e(f"s_add_u32 s{st}, s{st}, s{st + 1}")
    p.e(f"s_add_u32 s{S_RLD}, s{st}, {hx(L.WKVF)}")
    for i in range(5):
        p.e(f"s_mov_b32 s{st + 4}, {i * 4 * 1152}")
        for j in range(8):
            op = "buffer_load_ushort" if j % 2 == 0 else "buffer_load_short_d16_hi"
            reg = (dst if j % 2 == 0 else tmp) + 4 * i + j // 2
            p.e(f"{op} a{reg}, v{vo}, {sr(SRD_B, 4)}, s{st + 4} offen offset:{(16 * (j // 4) + j % 4) * 36}")
    p.label(f"{name}_n45")
    p.e(f"s_mov_b32 s{S_RLS}, 4096")
    p.e(f"s_cmp_lt_u32 s{S_W}, 2")
    p.e(f"s_cselect_b32 s{S_RLN}, 5, 4")
    p.label(f"{name}_end")


def relayout_finish(p, name):
    out = 172
    a = V_T0
    p.e(f"v_add_u32 v{a}, s{S_RLD}, v{V_L16}")
    for i in range(9):
        p.e(f"s_cmp_le_u32 s{S_RLN}, {i}")
        p.e(f"s_cbranch_scc1 {name}_fin")
        o = out + 8 * (i % 2)
        for j in range(4):
            p.e(f"v_accvgpr_read_b32 v{o + j}, a{RL_LO + 4 * i + j}")
            p.e(f"v_accvgpr_read_b32 v{o + 4 + j}, a{RL_HI + 4 * i + j}")
        for j in range(4):
            p.e(f"v_or_b32 v{o + j}, v{o + j}, v{o + 4 + j}")
        p.e(f"global_store_dwordx4 v{a}, {vr(o, 4)}, s[{S_WS}:{S_WS + 1}] WSC")
        p.e(f"v_add_u32 v{a}, s{S_RLS}, v{a}")
    p.label(f"{name}_fin")


V_Y = 132
V_PB = 164
V_YOFF = 39
V_PA = 96 + 104


import sys
OUTMOD = 'sc1' if '--outsc1' in sys.argv else ('nt' if '--outnt' in sys.argv else '')
YBLOCK = '--yblock' in sys.argv


def y_addr(p, vdst):
    if not YBLOCK:
        p.e(f"s_mul_i32 s{S_T0}, s{S_W}, {144 * 4096}")
        p.e(f"s_lshl_b32 s{S_T0 + 1}, s{S_PAIR}, 5")
        p.e(f"s_add_u32 s{S_T0}, s{S_T0}, s{S_T0 + 1}")
        p.e(f"s_add_u32 s{S_T0}, s{S_T0}, {hx(L.YT)}")
        p.e(f"v_lshlrev_b32 v{vdst}, 14, v{V_G}")
        p.e(f"v_lshl_add_u32 v{vdst}, v{V_N}, 1, v{vdst}")
        p.e(f"v_add_u32 v{vdst}, s{S_T0}, v{vdst}")
        return
    _y_addr_block(p, vdst)


def _y_addr_block(p, vdst):
    p.e(f"s_mul_i32 s{S_T0}, s{S_PAIR}, 18432")
    p.e(f"s_mul_i32 s{S_T0 + 1}, s{S_W}, {144 * 32}")
    p.e(f"s_add_u32 s{S_T0}, s{S_T0}, s{S_T0 + 1}")
    p.e(f"s_add_u32 s{S_T0}, s{S_T0}, {hx(L.YT + 2048)}")
    p.e(f"v_lshlrev_b32 v{vdst}, 7, v{V_G}")
    p.e(f"v_lshl_add_u32 v{vdst}, v{V_N}, 1, v{vdst}")
    p.e(f"v_add_u32 v{vdst}, s{S_T0}, v{vdst}")


def y_load_list(vaddr, yreg):
    out = []
    if not YBLOCK:
        for t in range(9):
            for r in range(4):
                step = 4096 if r else (13 * 4096 if t else 0)
                if step:
                    out.append(f"v_add_u32 v{vaddr}, {step}, v{vaddr}")
                out.append(f"global_load_short_d16_hi v{yreg(4 * t + r)}, v{vaddr}, s[{S_WS}:{S_WS + 1}] PLD")
        return out
    for t in range(9):
        for r in range(4):
            out.append(f"global_load_short_d16_hi v{yreg(4 * t + r)}, v{vaddr}, s[{S_WS}:{S_WS + 1}] offset:{(16 * t + r) * 32 - 2048} PLD")
    return out


def gate_chain(p, X, st_sel=0, yreg=None):
    if yreg is None:
        yreg = lambda i: V_Y + i
    row_stats(p, X, V_TMP, LDS_ST + 512 * st_sel, V_STW, V_STR, V_MU, V_RS)
    T = V_TMP
    p.e(f"v_mov_b32 v{T}, v{V_RS}")
    p.e(f"v_mul_f32 v{T + 2}, v{V_MU}, v{V_RS}")
    p.e(f"v_sub_f32 v{T + 2}, 0, v{T + 2}")
    for i in range(18):
        a = T + 4 + 2 * (i % 2)
        p.e(f"v_pk_fma_f32 {vr(a, 2)}, {vr(X + 2 * i, 2)}, {vr(T, 2)}, {vr(T + 2, 2)} op_sel_hi:[1,0,0]")
        p.e(f"v_pk_fma_f32 {vr(X + 2 * i, 2)}, {vr(a, 2)}, {vr(yreg(2 * i), 2)}, {vr(X + 2 * i, 2)}")


def store_out_rows(p, srd, X, half_by_hh=True):
    T = V_TMP
    for t in range(9):
        o = T + 2 * (t % 4)
        p.e(f"v_cvt_pk_bf16_f32 v{o}, v{X + 4 * t}, v{X + 4 * t + 1}")
        p.e(f"v_cvt_pk_bf16_f32 v{o + 1}, v{X + 4 * t + 2}, v{X + 4 * t + 3}")
        p.e(f"buffer_store_dwordx2 {vr(o, 2)}, v{V_XOFF}, {sr(srd, 4)}, s{S_ROWOFF} offen offset:{32 * t} {OUTMOD}")
```

```python
import sys
from common import *
import parts as P
from parts import *
import conv as CV
import attn as AT
import gen as G
import start as ST

S_NONCE = 86
S_ROLE = 81
S_CH0 = 80
S_LAYER = 83
ST_KV1, ST_Y, ST_P1, ST_KV2, ST_P2, ST_UT = 0, 1, 2, 3, 4, 5
S_CVACT = 87
S_NYOUNG = 74
SPIN_MAX = 400000
_lab = [0]


def uid(s):
    _lab[0] += 1
    return f"L_{s}{_lab[0]}"


def flag_set(p, stage):
    p.e("s_waitcnt vmcnt(0)")
    p.e("s_barrier")
    lab = uid("fs")
    p.e(f"s_cmp_lg_u32 s{S_W}, 0")
    p.e(f"s_cbranch_scc1 {lab}")
    p.e(f"s_lshl_b32 s{S_T0}, s{S_PAIR}, 1")
    p.e(f"s_add_u32 s{S_T0}, s{S_T0}, s{S_HH}")
    p.e(f"s_lshl_b32 s{S_T0}, s{S_T0}, 7")
    p.e(f"s_add_u32 s{S_T0}, s{S_T0}, {hx(L.FLAGS + stage * 32768)}")
    p.e(f"v_mov_b32 v{V_T0}, s{S_T0}")
    p.e(f"v_mov_b32 v{V_T0 + 1}, s{S_NONCE}")
    p.e("s_mov_b64 exec, 1")
    p.e(f"global_store_dword v{V_T0}, v{V_T0 + 1}, s[{S_WS}:{S_WS + 1}] sc1")
    p.e("s_mov_b64 exec, -1")
    p.label(lab)


def flag_store(p, stage, wave=0):
    lab = uid("ft")
    p.e(f"s_cmp_lg_u32 s{S_W}, {wave}")
    p.e(f"s_cbranch_scc1 {lab}")
    p.if_begin()
    p.e(f"s_lshl_b32 s{S_T0}, s{S_PAIR}, 1")
    p.e(f"s_add_u32 s{S_T0}, s{S_T0}, s{S_HH}")
    p.e(f"s_lshl_b32 s{S_T0}, s{S_T0}, 7")
    p.e(f"s_add_u32 s{S_T0}, s{S_T0}, {hx(L.FLAGS + stage * 32768)}")
    p.e(f"v_mov_b32 v{V_T0}, s{S_T0}")
    p.e(f"v_mov_b32 v{V_T0 + 1}, s{S_NONCE}")
    p.e("s_mov_b64 exec, 1")
    p.e(f"global_store_dword v{V_T0}, v{V_T0 + 1}, s[{S_WS}:{S_WS + 1}] sc1")
    p.e("s_mov_b64 exec, -1")
    p.label(lab)
    p.if_end()


def poll(p, vaddr):
    lab = uid("pl")
    p.e(f"s_mov_b32 s{S_T0 + 1}, 0")
    p.label(lab)
    p.e(f"global_load_dword v{V_T0 + 1}, v{vaddr}, s[{S_WS}:{S_WS + 1}] sc1")
    p.e(f"s_add_u32 s{S_T0 + 1}, s{S_T0 + 1}, 1")
    p.e("s_waitcnt vmcnt(0)")
    p.e(f"v_cmp_ne_u32 vcc, s{S_NONCE}, v{V_T0 + 1}")
    p.e(f"s_cmp_gt_u32 s{S_T0 + 1}, {SPIN_MAX}")
    p.e(f"s_cbranch_scc1 {lab}_x")
    p.e(f"s_cbranch_vccnz {lab}")
    p.label(lab + "_x")


def poll_all(p, stage, barrier=True):
    p.e(f"s_lshl_b32 s{S_T0}, s{S_W}, 13")
    p.e(f"s_add_u32 s{S_T0}, s{S_T0}, {hx(L.FLAGS + stage * 32768)}")
    p.e(f"v_lshlrev_b32 v{V_T0}, 7, v{V_LANE}")
    p.e(f"v_add_u32 v{V_T0}, s{S_T0}, v{V_T0}")
    poll(p, V_T0)
    if barrier:
        p.e("s_barrier")


def poll_partner(p, stage):
    p.e(f"s_lshl_b32 s{S_T0}, s{S_PAIR}, 1")
    p.e(f"s_add_u32 s{S_T0}, s{S_T0}, s{S_HH}")
    p.e(f"s_xor_b32 s{S_T0}, s{S_T0}, 1")
    p.e(f"s_lshl_b32 s{S_T0}, s{S_T0}, 7")
    p.e(f"s_add_u32 s{S_T0}, s{S_T0}, {hx(L.FLAGS + stage * 32768)}")
    p.e(f"v_mov_b32 v{V_T0}, s{S_T0}")
    poll(p, V_T0)


def save_x(p, X):
    pass


def k_fused(name):
    p = Prog()
    for k in ("KVSC", "WSC", "YSC", "PSC", "PLD"):
        p.subst[k] = "sc1"
    done = name + "_done"
    stamp = G.stamp
    SPAN = "--span" in sys.argv
    if SPAN:
        p.e("s_memrealtime s[100:101]")
    prologue(p, done=done, allptrs=True)
    if G.STAMPS == 1:
        load_ptr(p, 88, "dbg")
    p.e(f"v_mul_u32_u24 v{V_XOFF}, 1152, v{V_N}")
    p.e(f"s_mul_i32 s{S_T0}, s{S_W}, 288")
    p.e(f"v_lshl_add_u32 v{V_XOFF}, v{V_G}, 3, v{V_XOFF}")
    p.e(f"v_add_u32 v{V_XOFF}, s{S_T0}, v{V_XOFF}")
    p.e("s_waitcnt lgkmcnt(0)")
    stamp(p, 0)
    stamp(p, 14, real=True)
    if "--pf" in sys.argv:
        lab = uid("pf")
        p.e(f"s_cmp_eq_u32 s{S_SLOT}, 31")
        p.e(f"s_cbranch_scc0 {lab}")
        p.if_begin()
        p.e("s_getpc_b64 s[30:31]")
        p.e(f"v_lshlrev_b32 v16, 7, v{V_TID}")
        p.e("global_load_dword v17, v16, s[30:31]")
        p.e(f"v_add_u32 v16, 32768, v16")
        p.e(f"v_cmp_gt_u32 vcc, CODE_BYTES, v16")
        p.e("s_and_saveexec_b64 s[32:33], vcc")
        p.e(f"s_cbranch_execz {lab}_b")
        p.e("global_load_dword v18, v16, s[30:31]")
        p.label(lab + "_b")
        p.e("s_mov_b64 exec, s[32:33]")
        p.label(lab)
        p.if_end()
    if "--utfirst" not in sys.argv:
        make_srd(p, SRD_A, KREG["x"], L.S * L.D * 2)
        load_x_rows(p, SRD_A)
        CV.ut_issue(p)
    else:
        CV.ut_issue(p)
        make_srd(p, SRD_A, KREG["x"], L.S * L.D * 2)
        load_x_rows(p, SRD_A)
    p.e(f"s_cmp_eq_u32 s{S_HH}, 0")
    p.e(f"s_cselect_b32 s{S_T0 + 6}, s{KREG['wk']}, s{KREG['wv']}")
    p.e(f"s_cselect_b32 s{S_T0 + 7}, s{KREG['wk'] + 1}, s{KREG['wv'] + 1}")
    make_srd(p, SRD_B, S_T0 + 6, 576 * 36)
    ST.wkv_dma(p, SRD_B)
    chain_addr_setup(p)
    p.e(f"s_add_u32 s{S_T0 + 10}, s{S_WS}, {hx(L.EPOCH)}")
    p.e(f"s_addc_u32 s{S_T0 + 11}, s{S_WS + 1}, 0")
    p.e(f"s_load_dword s{S_NONCE}, s[{S_T0 + 10}:{S_T0 + 11}], 0")
    p.e(f"s_cmp_lt_u32 s{S_SLOT}, 24")
    p.e(f"s_cselect_b32 s{S_ROLE}, 1, 0")
    p.e(f"s_cbranch_scc0 {name}_r_rl")
    p.e(f"s_mul_i32 s{S_CH0}, s{S_XCD}, 72")
    p.e(f"s_mul_i32 s3, s{S_SLOT}, 3")
    p.e(f"s_add_u32 s{S_CH0}, s{S_CH0}, s3")
    p.e(f"s_branch {name}_r_end")
    p.label(f"{name}_r_rl")
    p.e(f"s_sub_u32 s{S_CH0}, s{S_SLOT}, 24")
    p.e(f"s_lshl_b32 s{S_CH0}, s{S_CH0}, 3")
    p.e(f"s_add_u32 s{S_CH0}, s{S_CH0}, s{S_XCD}")
    p.label(f"{name}_r_end")
    p.e(f"s_cmp_lt_u32 s{S_W}, 3")
    p.e(f"s_cselect_b32 s{S_CVACT}, s{S_ROLE}, 0")
    stamp(p, 1)
    p.e("s_waitcnt vmcnt(0)" if False else "s_nop 0")
    CV.ut_round(p, 0)
    CV.ut_extra(p)
    p.e(f"s_cmp_eq_u32 s{S_ROLE}, 1")
    p.e(f"s_cbranch_scc0 {name}_nofi")
    p.if_begin()
    CV.conv_filter_issue(p, S_CH0)
    p.e(f"s_mov_b32 s{S_NYOUNG}, 19")
    p.e(f"s_branch {name}_issued")
    p.if_end()
    p.label(f"{name}_nofi")
    p.if_begin()
    ST.relayout_issue(p, S_CH0, name + "_rl")
    p.e(f"s_mov_b32 s{S_NYOUNG}, 9")
    p.e(f"s_sub_u32 s3, s{S_CH0}, 32")
    p.e(f"s_cmp_lt_u32 s3, 4")
    p.e(f"s_cselect_b32 s{S_NYOUNG}, 18, s{S_NYOUNG}")
    p.e(f"s_cmp_ge_u32 s{S_CH0}, 54")
    p.e(f"s_cselect_b32 s{S_NYOUNG}, 0, s{S_NYOUNG}")
    p.if_end()
    p.label(f"{name}_issued")
    unpack_x_rows(p)
    def ut_drain():
        for n in (0, 9, 18):
            lab = uid("wy")
            p.e(f"s_cmp_eq_u32 s{S_NYOUNG}, {n}")
            p.e(f"s_cbranch_scc0 {lab}")
            p.if_begin()
            p.e(f"s_waitcnt vmcnt({n})")
            p.label(lab)
            p.if_end()
        p.e("s_waitcnt vmcnt(19)")
        p.e(f"s_add_u32 s{S_NONCE}, s{S_NONCE}, 1")

    row_stats(p, V_X, V_TMP, LDS_ST, V_STW, V_STR, V_MU, V_RS, pre_bar=ut_drain, post_bar=lambda: flag_store(p, ST_UT, wave=2))
    ST.kv_weight_frags(p, name + "_wf1")
    normalize_to_xb(p, V_X, V_TMP, V_MU, V_RS, V_XBE, V_XBO)
    p.e("s_waitcnt lgkmcnt(0)")
    p.e("s_barrier")
    stamp(p, 2)
    ws_base(p, S_P0, L.KVB)
    ST.kv_project_store(p, S_P0, name + "_kv1")
    p.e(f"s_cmp_eq_u32 s{S_ROLE}, 0")
    p.e(f"s_cbranch_scc0 {name}_norl")
    p.if_begin()
    p.e("s_waitcnt vmcnt(0)")
    p.e("s_barrier")
    ST.relayout_finish(p, name + "_rl")
    p.label(f"{name}_norl")
    p.if_end()
    p.e(f"v_mov_b32 v{V_T0 + 3}, {ST.WK_IMG_END}")
    p.e(f"s_not_b32 s3, s{S_NONCE}")
    p.e(f"v_mov_b32 v{V_T0 + 4}, s3")
    p.e(f"ds_write_b32 v{V_T0 + 3}, v{V_T0 + 4}")
    stamp(p, 3)
    flag_set(p, ST_KV1)
    if "--clearB" in sys.argv:
        clear_slots(p, 0)
        clear_slots(p, 1)
    p.e(f"s_cmp_eq_u32 s{S_ROLE}, 1")
    p.e(f"s_cbranch_scc0 {name}_nofb0")
    p.if_begin()
    CV.conv_filter_build(p, S_CH0)
    p.label(f"{name}_nofb0")
    p.if_end()
    AT.addr_setup(p)
    AT.weight_ptr_setup(p)
    p.e(f"s_cmp_eq_u32 s{S_ROLE}, 1")
    p.e(f"s_cbranch_scc0 {name}_nofb")
    p.if_begin()
    CV.conv_setup(p)
    stamp(p, 4)
    poll_all(p, ST_UT)
    CV.conv_u_dma(p, S_CH0)
    p.e("s_waitcnt vmcnt(0) lgkmcnt(0)")
    p.e("s_barrier")
    p.label(f"{name}_nofb")
    p.if_end()
    stamp(p, 5)

    V_LK = 250

    def look_issue(stage):
        p.e(f"s_lshl_b32 s{S_T0}, s{S_W}, 13")
        p.e(f"s_add_u32 s{S_T0}, s{S_T0}, {hx(L.FLAGS + stage * 32768)}")
        p.e(f"v_lshlrev_b32 v{V_LK + 1}, 7, v{V_LANE}")
        p.e(f"v_add_u32 v{V_LK + 1}, s{S_T0}, v{V_LK + 1}")
        p.e(f"global_load_dword v{V_LK}, v{V_LK + 1}, s[{S_WS}:{S_WS + 1}] sc1")

    def look_check():
        lab = uid("lk")
        p.e(f"v_cmp_ne_u32 vcc, s{S_NONCE}, v{V_LK}")
        p.e(f"s_cbranch_vccz {lab}")
        p.if_begin()
        poll(p, V_LK + 1)
        p.label(lab)
        p.if_end()
        p.e("s_barrier")

    def mid():
        look_check()
        stamp(p, 6)
        lab = uid("ep")
        p.e(f"s_or_b32 s{S_T0}, s2, s{S_W}")
        p.e(f"s_cmp_lg_u32 s{S_T0}, 0")
        p.e(f"s_cbranch_scc1 {lab}")
        p.if_begin()
        p.e(f"v_mov_b32 v{V_T0}, {hx(L.EPOCH)}")
        p.e(f"v_mov_b32 v{V_T0 + 1}, s{S_NONCE}")
        p.e("s_mov_b64 exec, 1")
        p.e(f"global_store_dword v{V_T0}, v{V_T0 + 1}, s[{S_WS}:{S_WS + 1}] sc1")
        p.e("s_mov_b64 exec, -1")
        p.label(lab)
        p.if_end()
        ws_base(p, AT.S_KV, L.KVB)
        lab2 = uid("nb")
        p.e(f"s_cmp_eq_u32 s{S_CVACT}, 0")
        p.e(f"s_cbranch_scc0 {lab2}")
        p.if_begin()
        for t in first_loads:
            p.e(t)
        p.label(lab2)
        p.if_end()
        AT.q_left(p, name + "_ql1", both_on=3)

    first_loads = []
    for tau in range(AT.KV_AHEAD):
        first_loads += AT.kv_tile_loads(tau)
    for ks in range(18):
        first_loads += AT.q_wload(ks, AT.QW + 4 * ks)

    look_issue(ST_KV1)
    ws_base(p, S_P0 + 2, L.YT)
    CV.conv_main(p, S_CH0, name + "_cv", S_P0 + 2, S_CVACT, stamp, mid, first_loads)
    stamp(p, 7)
    AT.zero_xa(p)
    AT.q_main_compute(p)
    p.e(f"s_mov_b32 s{S_LAYER}, 0")
    p.loop_begin(name + "_layer")
    V_YF = 247
    V_YA = 254

    def pre_last():
        p.e(f"s_lshl_b32 s{S_T0}, s{S_W}, 13")
        p.e(f"s_add_u32 s{S_T0}, s{S_T0}, {hx(L.FLAGS + ST_Y * 32768)}")
        p.e(f"v_lshlrev_b32 v{V_YF + 1}, 7, v{V_LANE}")
        p.e(f"v_add_u32 v{V_YF + 1}, s{S_T0}, v{V_YF + 1}")
        p.e(f"global_load_dword v{V_YF}, v{V_YF + 1}, s[{S_WS}:{S_WS + 1}] sc1")
        y_addr(p, V_YA)
        labx = uid("xl")
        p.e(f"s_cmp_eq_u32 s{S_LAYER}, 0")
        p.e(f"s_cbranch_scc0 {labx}")
        p.if_begin()
        load_ptr(p, S_T0 + 4, "x")
        p.e(f"v_mul_u32_u24 v{V_T0}, 1152, v{V_N}")
        p.e(f"s_mul_i32 s{S_T0}, s{S_W}, 288")
        p.e(f"v_lshl_add_u32 v{V_T0}, v{V_G}, 3, v{V_T0}")
        p.e(f"v_add_u32 v{V_T0}, s{S_T0}, v{V_T0}")
        p.e("s_waitcnt lgkmcnt(0)")
        make_srd(p, SRD_A, S_T0 + 4, L.S * L.D * 2)
        for t in range(9):
            dst = ar(240 + 2 * t, 2) if t < 8 else vr(92, 2)
            p.e(f"buffer_load_dwordx2 {dst}, v{V_T0}, {sr(SRD_A, 4)}, s{S_ROWOFF} offen offset:{32 * t}")
        p.label(labx)
        p.if_end()

    def y_check():
        lab = uid("yf")
        p.e(f"v_cmp_ne_u32 vcc, s{S_NONCE}, v{V_YF}")
        p.e(f"s_cbranch_vccz {lab}")
        p.if_begin()
        poll(p, V_YF + 1)
        p.label(lab)
        p.if_end()

    def after_first():
        lab = uid("yfl")
        p.e(f"s_cmp_eq_u32 s{S_LAYER}, 0")
        p.e(f"s_cbranch_scc0 {lab}")
        p.if_begin()
        flag_store(p, ST_Y, wave=0)
        p.label(lab)
        p.if_end()
        if "--clearA" in sys.argv:
            clear_slots(p, None)

    YLATE = "--yearly" not in sys.argv
    FLAGX = "--flagx" in sys.argv
    ylist = [t.replace("global_load_short_d16_hi v", "global_load_short_d16_hi a") for t in y_load_list(V_YA, lambda i: i)]
    hooks = {"preB2": y_check} if YLATE else {"preB2": y_check, "late": ylist}
    AT.attention_layer(p, name + "_at", stamp, None, after_first, pre_last, hooks)
    p.e(f"s_lshl_b32 s3, s{S_LAYER}, 3")
    stamp(p, 8, 3)
    XP, XI = 168, 192
    part_bases(p)
    V_PX = 59

    def greg(base, k):
        return base + k if FLAGX else base + 4 * (k // 3) + k % 3

    for t in range(9):
        p.e(f"v_cvt_pk_bf16_f32 v{greg(XP, 2 * t)}, v{AT.XA + 4 * t}, v{AT.XA + 4 * t + 1}")
        p.e(f"v_cvt_pk_bf16_f32 v{greg(XP, 2 * t + 1)}, v{AT.XA + 4 * t + 2}, v{AT.XA + 4 * t + 3}")
    p.e(f"v_add_u32 v{V_PX}, 4096, v{V_L16}")
    if FLAGX:
        p.e(f"v_lshlrev_b32 v{V_PX - 1}, 3, v{V_LANE}")
        p.e(f"v_add_u32 v{V_PX - 1}, 4096, v{V_PX - 1}")
        for c in range(4):
            p.e(f"global_store_dwordx4 v{V_L16}, {vr(XP + 4 * c, 4)}, {sr(S_P0 + 4, 2)} offset:{1024 * c} sc1")
        p.e(f"global_store_dwordx2 v{V_PX - 1}, {vr(XP + 16, 2)}, {sr(S_P0 + 4, 2)} sc1", wtok="PS")
    else:
        for g in range(6):
            p.e(f"v_mov_b32 v{XP + 4 * g + 3}, s{S_NONCE}")
        for g in range(6):
            p.e(f"global_store_dwordx4 v{V_PX}, {vr(XP + 4 * g, 4)}, {sr(S_P0 + 4, 2)} offset:{1024 * g - 4096} sc1")
    chain_addr_setup(p)
    labr = uid("rs")
    p.e(f"s_cmp_eq_u32 s{S_LAYER}, 0")
    p.e(f"s_cbranch_scc0 {labr}_l")
    p.if_begin()
    for i in range(16):
        p.e(f"v_accvgpr_read_b32 v{V_XR + i}, a{240 + i}")
    p.e(f"v_mov_b32 v{V_XR + 16}, v92")
    p.e(f"v_mov_b32 v{V_XR + 17}, v93")
    p.e(f"s_branch {labr}_d")
    p.if_end()
    p.label(labr + "_l")
    p.if_begin()
    xs_addr(p)
    for t in range(9):
        p.e(f"ds_read_b64 {vr(V_XR + 2 * t, 2)}, v{V_T0 + 3} offset:{512 * t}")
    p.if_end()
    p.label(labr + "_d")
    load_ptr(p, S_T0 + 6, "wk")
    load_ptr(p, S_T0 + 8, "wv")
    for i in range(36):
        p.e(f"v_mov_b32 v{V_X + i}, v{AT.XA + i}")
    if FLAGX:
        p.wait_tok("PS")
        p.e("s_barrier")
        flag_store_dyn(p, ST_P1, ST_P2 - ST_P1)
    p.e(f"s_lshl_b32 s3, s{S_LAYER}, 3")
    stamp(p, 9, 3)
    if YLATE:
        for t in y_load_list(V_YA, lambda i: V_Y + i):
            p.e(t)
    else:
        for i in range(36):
            p.e(f"v_accvgpr_read_b32 v{V_Y + i}, a{i}")
    p.e("s_waitcnt lgkmcnt(0)")
    p.e(f"s_cmp_eq_u32 s{S_HH}, 0")
    p.e(f"s_cselect_b32 s{S_T0 + 6}, s{S_T0 + 6}, s{S_T0 + 8}")
    p.e(f"s_cselect_b32 s{S_T0 + 7}, s{S_T0 + 7}, s{S_T0 + 9}")
    make_srd(p, SRD_B, S_T0 + 6, 576 * 36)
    ST.wkv_dma(p, SRD_B, ST.WK_IMG2)
    AT.addr_setup(p)
    AT.weight_ptr_setup(p)
    AT.q_left_addr(p)
    PB = AT.XA
    for t in range(9):
        unpack_bf16x4(p, PB + 4 * t, V_XR + 2 * t)
    for i in range(18):
        p.e(f"v_pk_add_f32 {vr(V_X + 2 * i, 2)}, {vr(V_X + 2 * i, 2)}, {vr(PB + 2 * i, 2)}")
    if FLAGX:
        poll_partner_dyn(p, ST_P1, ST_P2 - ST_P1)
        for c in range(4):
            p.e(f"global_load_dwordx4 {vr(XI + 4 * c, 4)}, v{V_L16}, {sr(S_P0 + 6, 2)} offset:{1024 * c} sc1")
        p.e(f"global_load_dwordx2 {vr(XI + 16, 2)}, v{V_PX - 1}, {sr(S_P0 + 6, 2)} sc1")
    else:
        lab = uid("px")
        p.e(f"s_mov_b32 s{S_T0 + 1}, 0")
        p.label(lab)
        for g in range(6):
            p.e(f"global_load_dwordx4 {vr(XI + 4 * g, 4)}, v{V_PX}, {sr(S_P0 + 6, 2)} offset:{1024 * g - 4096} sc1")
        p.e("s_waitcnt vmcnt(0)")
        T1 = V_TMP
        for g in range(6):
            p.e(f"v_xor_b32 v{T1 + g}, s{S_NONCE}, v{XI + 4 * g + 3}")
        p.e(f"v_or3_b32 v{T1}, v{T1}, v{T1 + 1}, v{T1 + 2}")
        p.e(f"v_or3_b32 v{T1 + 3}, v{T1 + 3}, v{T1 + 4}, v{T1 + 5}")
        p.e(f"v_or_b32 v{T1}, v{T1}, v{T1 + 3}")
        p.e(f"v_cmp_ne_u32 vcc, 0, v{T1}")
        p.e(f"s_add_u32 s{S_T0 + 1}, s{S_T0 + 1}, 1")
        p.e(f"s_cmp_gt_u32 s{S_T0 + 1}, {SPIN_MAX}")
        p.e(f"s_cbranch_scc1 {lab}_ok")
        p.e(f"s_cbranch_vccnz {lab}")
        p.label(lab + "_ok")
    for t in range(9):
        for h in range(2):
            src = greg(XI, 2 * t + h)
            p.e(f"v_lshlrev_b32 v{PB + 4 * t + 2 * h}, 16, v{src}")
            p.e(f"v_and_b32 v{PB + 4 * t + 2 * h + 1}, 0xffff0000, v{src}")
    for i in range(18):
        p.e(f"v_pk_add_f32 {vr(V_X + 2 * i, 2)}, {vr(V_X + 2 * i, 2)}, {vr(PB + 2 * i, 2)}")
    p.e(f"s_lshl_b32 s3, s{S_LAYER}, 3")
    stamp(p, 10, 3)
    gate_chain(p, V_X, 0)
    p.e(f"s_cmp_eq_u32 s{S_LAYER}, 1")
    p.e(f"s_cbranch_scc1 {name}_final")
    def ln_xb():
        row_stats(p, V_X, V_TMP, LDS_ST + 512, V_STW, V_STR, V_MU, V_RS)
        normalize_to_xb(p, V_X, V_TMP, V_MU, V_RS, V_XBE, V_XBO)
        p.e("s_waitcnt lgkmcnt(0)")
        p.e("s_barrier")

    def park():
        xs_addr(p)
        for t in range(9):
            p.e(f"v_cvt_pk_bf16_f32 v{V_XR + 2 * t}, v{V_X + 4 * t}, v{V_X + 4 * t + 1}")
            p.e(f"v_cvt_pk_bf16_f32 v{V_XR + 2 * t + 1}, v{V_X + 4 * t + 2}, v{V_X + 4 * t + 3}")
            p.e(f"ds_write_b64 v{V_T0 + 3}, {vr(V_XR + 2 * t, 2)} offset:{512 * t}")

    p.e(f"s_cmp_lt_u32 s{S_W}, 2")
    p.e(f"s_cbranch_scc1 {name}_b01")
    p.if_begin()
    ln_xb()
    i0 = len(p.items)
    park()
    pl = AT.q_pref_list(True)
    p.sprinkle(i0, pl[:10], first=1)
    for t in pl[10:]:
        p.e(t)
    AT.q_left_compute(p, name + "_ql2")
    p.e(f"s_branch {name}_bj")
    p.if_end()
    p.label(f"{name}_b01")
    p.if_begin()
    ST.kv_weight_frags(p, name + "_wf2", ST.WK_IMG2)
    ln_xb()
    ws_base(p, S_P0, L.KVB + L.KV_LAYER)
    ST.kv_project_store(p, S_P0, name + "_kv2", ST.WK_IMG2)
    p.e(f"v_mov_b32 v{V_T0 + 3}, {ST.WK_IMG_END}")
    p.e(f"v_mov_b32 v{V_T0 + 4}, s{S_NONCE}")
    p.e("s_waitcnt vmcnt(0)")
    lab = uid("k2")
    p.e(f"s_cmp_eq_u32 s{S_W}, 0")
    p.e(f"s_cbranch_scc1 {lab}_w0")
    p.e(f"ds_write_b32 v{V_T0 + 3}, v{V_T0 + 4}")
    p.e(f"s_branch {lab}_d")
    p.label(lab + "_w0")
    p.label(lab + "_sp")
    p.e(f"ds_read_b32 v{V_T0 + 5}, v{V_T0 + 3}")
    p.e("s_waitcnt lgkmcnt(0)")
    p.e(f"v_cmp_ne_u32 vcc, s{S_NONCE}, v{V_T0 + 5}")
    p.e(f"s_cbranch_vccnz {lab}_sp")
    flag_store(p, ST_KV2, wave=0)
    p.label(lab + "_d")
    stamp(p, 11)
    for t in AT.q_pref_list(False):
        p.e(t)
    park()
    p.if_end()
    p.label(f"{name}_bj")
    AT.q_main_compute(p, AT.QWA, agpr=True)
    AT.zero_xa(p)
    poll_all(p, ST_KV2)
    stamp(p, 12)
    ws_base(p, AT.S_KV, L.KVB + L.KV_LAYER)
    AT.kv_first_loads(p)
    p.e(f"s_mov_b32 s{S_LAYER}, 1")
    p.e(f"s_branch {name}_layer")
    p.loop_end()
    p.fence()
    p.label(name + "_final")
    p.e("s_nop 7")
    load_ptr(p, S_T0 + 4, "out")
    p.e("s_waitcnt lgkmcnt(0)")
    make_srd(p, SRD_A, S_T0 + 4, L.S * L.D * 2)
    p.e(f"s_lshr_b32 s{S_T0}, s{S_W}, 1")
    p.e(f"s_cmp_eq_u32 s{S_T0}, s{S_HH}")
    p.e(f"s_cbranch_scc0 {name + '_span' if SPAN else done}")
    store_out_rows(p, SRD_A, V_X)
    stamp(p, 26)
    stamp(p, 15, real=True)
    p.e(f"s_branch {name}_exit")
    p.fence()
    p.label(name + "_at_slow")
    AT.slow_path(p, name + "_sp", name + "_at_slow_back")
    p.fence()
    p.label(name + "_exit")
    if SPAN:
        p.label(name + "_span")
        p.e("s_waitcnt vmcnt(0)")
        p.e("s_memrealtime s[90:91]")
        p.e("s_waitcnt lgkmcnt(0)")
        p.e("v_mov_b32 v16, s100")
        p.e("v_mov_b32 v17, s90")
        p.e("s_lshl_b32 s3, s2, 5")
        p.e(f"s_lshl_b32 s28, s{S_W}, 3")
        p.e("s_add_u32 s3, s3, s28")
        p.e(f"s_add_u32 s3, s3, {hx(0x2900000)}")
        p.e("v_mov_b32 v18, s3")
        p.e(f"global_store_dwordx2 v18, v[16:17], s[{S_WS}:{S_WS + 1}]")
    p.label(done)
    p.e("s_endpgm")
    txt = G.kernel_text(name, p)
    print(name, "counts", p.count, "auto nops", p.nauto_nop, file=sys.stderr)
    return txt, G.descriptor(name, 256, 256, sgpr=102), max(AT.A_END, ST.WK_IMG_END + 64)


V_XS16 = 252


PSZ = 24576


def part_bases(p, layer=None):
    p.e(f"s_lshl_b32 s{S_T0}, s{S_PAIR}, 1")
    p.e(f"s_add_u32 s{S_T0}, s{S_T0}, s{S_HH}")
    p.e(f"s_mul_i32 s{S_T0 + 2}, s{S_T0}, {PSZ}")
    p.e(f"s_xor_b32 s{S_T0}, s{S_T0}, 1")
    p.e(f"s_mul_i32 s{S_T0 + 3}, s{S_T0}, {PSZ}")
    p.e(f"s_mul_i32 s{S_T0 + 1}, s{S_W}, 6144")
    if layer is None:
        p.e(f"s_mul_i32 s{S_T0 + 4}, s{S_LAYER}, {hx(L.PART_LAYER)}")
    else:
        p.e(f"s_mov_b32 s{S_T0 + 4}, {hx(layer * L.PART_LAYER)}")
    p.e(f"s_add_u32 s{S_T0 + 1}, s{S_T0 + 1}, s{S_T0 + 4}")
    p.e(f"s_add_u32 s{S_T0 + 2}, s{S_T0 + 2}, s{S_T0 + 1}")
    p.e(f"s_add_u32 s{S_T0 + 3}, s{S_T0 + 3}, s{S_T0 + 1}")
    ws_base(p, S_P0 + 4, L.PART, S_T0 + 2)
    ws_base(p, S_P0 + 6, L.PART, S_T0 + 3)


LDS_XS = 86016


def xs_addr(p):
    p.e(f"s_mul_i32 s{S_T0}, s{S_W}, 4608")
    p.e(f"s_add_u32 s{S_T0}, s{S_T0}, {LDS_XS}")
    p.e(f"v_lshlrev_b32 v{V_T0 + 3}, 3, v{V_LANE}")
    p.e(f"v_add_u32 v{V_T0 + 3}, s{S_T0}, v{V_T0 + 3}")


def clear_slots(p, layer):
    R = 16
    part_bases(p, layer)
    p.e(f"s_not_b32 s{S_T0}, s{S_NONCE}")
    for k in range(4):
        p.e(f"v_mov_b32 v{CLR + k}, s{S_T0}")
    p.e(f"v_add_u32 v{V_T0 + 2}, 4096, v{V_L16}")
    for g in range(6):
        p.e(f"global_store_dwordx4 v{V_T0 + 2}, {vr(CLR, 4)}, {sr(S_P0 + 4, 2)} offset:{1024 * g - 4096} sc1")


CLR = 200


def dbg_dump(p, X, which):
    if "--dump" not in sys.argv:
        return
    lab = uid("dd")
    p.e(f"s_or_b32 s{S_T0}, s{S_HH}, s{S_LAYER}")
    p.e(f"s_cmp_lg_u32 s{S_T0}, 0")
    p.e(f"s_cbranch_scc1 {lab}")
    p.e(f"s_mul_i32 s{S_T0}, s{S_PAIR}, 36864")
    p.e(f"s_mul_i32 s{S_T0 + 1}, s{S_W}, 9216")
    p.e(f"s_add_u32 s{S_T0}, s{S_T0}, s{S_T0 + 1}")
    ws_base(p, S_P0 + 10, L.X2G + which * 0x500000, S_T0)
    for t in range(9):
        p.e(f"v_add_u32 v{V_T0 + 1}, {1024 * t}, v{V_L16}")
        p.e(f"global_store_dwordx4 v{V_T0 + 1}, {vr(X + 4 * t, 4)}, {sr(S_P0 + 10, 2)}")
    p.label(lab)


def flag_set_dyn(p, stage, dstage):
    p.e("s_waitcnt vmcnt(0)")
    p.e("s_barrier")
    lab = uid("fs")
    p.e(f"s_cmp_lg_u32 s{S_W}, 0")
    p.e(f"s_cbranch_scc1 {lab}")
    p.e(f"s_lshl_b32 s{S_T0}, s{S_PAIR}, 1")
    p.e(f"s_add_u32 s{S_T0}, s{S_T0}, s{S_HH}")
    p.e(f"s_lshl_b32 s{S_T0}, s{S_T0}, 7")
    p.e(f"s_mul_i32 s{S_T0 + 1}, s{S_LAYER}, {dstage * 32768}")
    p.e(f"s_add_u32 s{S_T0}, s{S_T0}, s{S_T0 + 1}")
    p.e(f"s_add_u32 s{S_T0}, s{S_T0}, {hx(L.FLAGS + stage * 32768)}")
    p.e(f"v_mov_b32 v{V_T0}, s{S_T0}")
    p.e(f"v_mov_b32 v{V_T0 + 1}, s{S_NONCE}")
    p.e("s_mov_b64 exec, 1")
    p.e(f"global_store_dword v{V_T0}, v{V_T0 + 1}, s[{S_WS}:{S_WS + 1}] sc1")
    p.e("s_mov_b64 exec, -1")
    p.label(lab)


def flag_store_dyn(p, stage, dstage):
    lab = uid("fs")
    p.e(f"s_cmp_lg_u32 s{S_W}, 0")
    p.e(f"s_cbranch_scc1 {lab}")
    p.if_begin()
    p.e(f"s_lshl_b32 s{S_T0}, s{S_PAIR}, 1")
    p.e(f"s_add_u32 s{S_T0}, s{S_T0}, s{S_HH}")
    p.e(f"s_lshl_b32 s{S_T0}, s{S_T0}, 7")
    p.e(f"s_mul_i32 s{S_T0 + 1}, s{S_LAYER}, {dstage * 32768}")
    p.e(f"s_add_u32 s{S_T0}, s{S_T0}, s{S_T0 + 1}")
    p.e(f"s_add_u32 s{S_T0}, s{S_T0}, {hx(L.FLAGS + stage * 32768)}")
    p.e(f"v_mov_b32 v{V_T0}, s{S_T0}")
    p.e(f"v_mov_b32 v{V_T0 + 1}, s{S_NONCE}")
    p.e("s_mov_b64 exec, 1")
    p.e(f"global_store_dword v{V_T0}, v{V_T0 + 1}, s[{S_WS}:{S_WS + 1}] sc1")
    p.e("s_mov_b64 exec, -1")
    p.label(lab)
    p.if_end()


def poll_partner_dyn(p, stage, dstage):
    p.e(f"s_lshl_b32 s{S_T0}, s{S_PAIR}, 1")
    p.e(f"s_add_u32 s{S_T0}, s{S_T0}, s{S_HH}")
    p.e(f"s_xor_b32 s{S_T0}, s{S_T0}, 1")
    p.e(f"s_lshl_b32 s{S_T0}, s{S_T0}, 7")
    p.e(f"s_mul_i32 s{S_T0 + 2}, s{S_LAYER}, {dstage * 32768}")
    p.e(f"s_add_u32 s{S_T0}, s{S_T0}, s{S_T0 + 2}")
    p.e(f"s_add_u32 s{S_T0}, s{S_T0}, {hx(L.FLAGS + stage * 32768)}")
    p.e(f"v_mov_b32 v{V_T0}, s{S_T0}")
    poll(p, V_T0)


def build_single(name, text, desc, lds):
    s = G.HEADER
    s += f"; @launch grid=(256,1,1) block=(256,1,1) lds={lds}\n"
    s += '.amdgcn_target "amdgcn-amd-amdhsa--gfx950"\n.text\n' + text
    s += '.section .rodata,"a"\n' + desc
    return s


if __name__ == "__main__":
    G.STAMPS = 3 if "--stamps3" in sys.argv else 2 if "--stamps2" in sys.argv else (1 if "--stamps" in sys.argv else 0)
    name = G.NAME + "_kernel"
    t, d, l = k_fused(name)
    import subprocess, re
    tmp = build_single(name, t.replace("CODE_BYTES", "0x10000"), d, l)
    open("_sz.s", "w").write(tmp)
    subprocess.run(["clang", "-x", "assembler", "-target", "amdgcn-amd-amdhsa", "-mcpu=gfx950", "-c", "_sz.s", "-o", "_sz.o"], check=True)
    o = subprocess.run(["llvm-size", "-A", "_sz.o"], capture_output=True, text=True).stdout
    nbytes = int(re.search(r"\.text\s+(\d+)", o).group(1))
    print("code bytes", nbytes, file=sys.stderr)
    t = t.replace("CODE_BYTES", hex(nbytes - 512))
    open(sys.argv[1], "w").write(build_single(name, t, d, l))
```

```python
import os
from common import *
from parts import LDS_XB, LDS_XB_END

A_QF = 147200
A_QL = A_QF + 2048
A_OP = LDS_XB_END
A_OB = A_OP + 24576
A_OL = A_OB + 2048
A_FL = A_OL + 1024
A_END = A_QL + 1024 + 512

A_K0 = 0
A_KL = 64
A_VT = 80
A_O = 208

SB = [16, 48]
QC = 80
QLR = 88
XA = 96
WR = 132
NR = 9
XR = 168
QA = 180
QT = 184
OF = 188
OFL = 196
RT = 200
V_WQ, V_WO = 232, 233
V_OPW, V_R1, V_R2, V_OBW, V_OLW, V_QFW, V_QL = 234, 235, 236, 237, 238, 239, 240
V_QFR = 241
V_RC = 242
V_KA, V_KL, V_VA = 244, 245, 246
S_PH = 82
S_FAIL = 84
S_KV = S_P0
L_LO = 0x1f800000
L_RANGE = 0x5f800000 - L_LO
SIDE_MAX = int(os.environ.get('SIDEMAX', '2'))
KV_AHEAD = int(os.environ.get("KVA", "4"))


def cost(text):
    mn = text.split()[0]
    if mn.startswith("v_exp") or mn.startswith("v_rcp"):
        return 8
    if mn.startswith("v_mfma"):
        return 4 if "x4_2b" in mn else 8
    if mn.startswith("ds_write_b128"):
        return 18
    if mn.startswith("ds_") or mn.startswith("global_load"):
        return 9
    return 4


def pipe(text):
    mn = text.split()[0]
    if "32x32x16" in mn:
        return 32
    if "16x16x32" in mn:
        return 16
    if "x4_2b" in mn:
        return 64
    return 0


def addr_setup(p):
    t = S_T0
    p.e(f"s_mul_i32 s{t}, s{S_W}, 6144")
    p.e(f"s_add_u32 s{t}, s{t}, {A_OP}")
    p.e(f"v_add_u32 v{V_OPW}, s{t}, v{V_L16}")
    p.e(f"s_lshr_b32 s{t + 1}, s{S_W}, 1")
    p.e(f"s_and_b32 s{t + 2}, s{S_W}, 1")
    p.e(f"s_mul_i32 s{t + 3}, s{t + 1}, 3072")
    p.e(f"s_add_u32 s{t + 3}, s{t + 3}, {A_OP}")
    p.e(f"s_lshl_b32 s{t + 4}, s{t + 2}, 10")
    p.e(f"s_add_u32 s{t + 4}, s{t + 4}, s{t + 3}")
    p.e(f"v_add_u32 v{V_R1}, s{t + 4}, v{V_L16}")
    p.e(f"v_and_b32 v{V_T0}, 31, v{V_LANE}")
    p.e(f"v_lshlrev_b32 v{V_T0 + 1}, 4, v{V_T0}")
    p.e(f"s_add_u32 s{t + 3}, s{t + 3}, 2048")
    p.e(f"v_add_u32 v{V_R2}, s{t + 3}, v{V_T0 + 1}")
    p.e(f"s_lshl_b32 s{t + 3}, s{t + 1}, 10")
    p.e(f"s_lshl_b32 s{t + 4}, s{t + 2}, 3")
    p.e(f"s_add_u32 s{t + 3}, s{t + 3}, s{t + 4}")
    p.e(f"s_add_u32 s{t + 4}, s{t + 3}, {A_OB}")
    p.e(f"v_add_u32 v{V_OBW}, s{t + 4}, v{V_L16}")
    p.e(f"s_add_u32 s{t + 4}, s{t + 3}, {A_QF}")
    p.e(f"v_add_u32 v{V_QFW}, s{t + 4}, v{V_L16}")
    p.e(f"v_lshlrev_b32 v{V_OLW}, 4, v{V_N}")
    p.e(f"v_lshrrev_b32 v{V_T0}, 4, v{V_T0}")
    p.e(f"v_lshl_add_u32 v{V_OLW}, v{V_T0}, 2, v{V_OLW}")
    p.e(f"s_lshl_b32 s{t + 3}, s{t + 1}, 3")
    p.e(f"s_add_u32 s{t + 3}, s{t + 3}, {A_OL}")
    p.e(f"v_add_u32 v{V_OLW}, s{t + 3}, v{V_OLW}")
    p.e(f"v_add_u32 v{V_QFR}, {A_QF}, v{V_L16}")
    p.e(f"v_lshlrev_b32 v{V_QL}, 2, v{V_LANE}")
    p.e(f"v_add_u32 v{V_QL}, {A_QL}, v{V_QL}")
    p.e(f"s_lshl_b32 s{t}, s{S_W}, 14")
    p.e(f"s_add_u32 s{t}, s{t}, 4096")
    p.e(f"v_add_u32 v{V_KA}, s{t}, v{V_L16}")
    p.e(f"s_lshl_b32 s{t}, s{S_W}, 12")
    p.e(f"s_add_u32 s{t}, s{t}, {hx(L.KV_KL)}")
    p.e(f"v_lshlrev_b32 v{V_KL}, 3, v{V_LANE}")
    p.e(f"v_add_u32 v{V_KL}, s{t}, v{V_KL}")
    p.e(f"v_and_b32 v{V_T0}, 31, v{V_LANE}")
    p.e(f"v_min_u32 v{V_T0}, 19, v{V_T0}")
    p.e(f"v_and_b32 v{V_T0 + 1}, 32, v{V_LANE}")
    p.e(f"v_add_lshl_u32 v{V_VA}, v{V_T0}, v{V_T0 + 1}, 4")
    p.e(f"s_lshl_b32 s{t}, s{S_W}, 15")
    p.e(f"s_add_u32 s{t}, s{t}, {hx(L.KV_VF + 4096)}")
    p.e(f"v_add_u32 v{V_VA}, s{t}, v{V_VA}")


def weight_ptr_setup(p):
    t = S_T0
    p.e(f"s_mul_i32 s{t}, s{S_HH}, {L.WQF_HH}")
    p.e(f"s_mul_i32 s{t + 1}, s{S_W}, 18432")
    p.e(f"s_add_u32 s{t}, s{t}, s{t + 1}")
    p.e(f"s_add_u32 s{t}, s{t}, {hx(L.WQF + 4096)}")
    p.e(f"v_add_u32 v{V_WQ}, s{t}, v{V_L16}")
    p.e(f"s_mul_i32 s{t}, s{S_HH}, {L.WOF_HH}")
    p.e(f"s_mul_i32 s{t + 1}, s{S_W}, 9216")
    p.e(f"s_add_u32 s{t}, s{t}, s{t + 1}")
    p.e(f"s_add_u32 s{t}, s{t}, {hx(L.WOF + 4096)}")
    p.e(f"v_add_u32 v{V_WO}, s{t}, v{V_L16}")


def kv_tile_loads(tau):
    out = []
    if tau == 8:
        out.append(f"v_add_u32 v{V_KA}, 8192, v{V_KA}")
    out.append(f"global_load_dwordx4 {ar(A_K0 + 4 * tau, 4)}, v{V_KA}, {sr(S_KV, 2)} offset:{(tau % 8) * 1024 - 4096} PLD")
    if tau % 2 == 0:
        out.append(f"global_load_dwordx2 {ar(A_KL + tau, 2)}, v{V_KL}, {sr(S_KV, 2)} offset:{256 * tau} PLD")
    if tau and tau % 4 == 0:
        out.append(f"v_add_u32 v{V_VA}, 8192, v{V_VA}")
    for t in range(2):
        out.append(f"global_load_dwordx4 {ar(A_VT + 8 * tau + 4 * t, 4)}, v{V_VA}, {sr(S_KV, 2)} offset:{(tau % 4) * 2048 + 1024 * t - 4096} PLD")
    return out


def qk_mfmas(kt, Y):
    k0 = ar(A_K0 + 4 * kt, 4)
    kl = ar(A_KL + 2 * (kt // 2), 2)
    m2 = f"v_mfma_f32_32x32x16_bf16 {vr(Y, 16)}, {k0}, {vr(QC, 4)}, 0"
    m3 = f"v_mfma_f32_32x32x16_bf16 {vr(Y + 16, 16)}, {k0}, {vr(QC + 4, 4)}, 0"
    m1 = f"v_mfma_f32_32x32x4_2b_bf16 {vr(Y, 32)}, {kl}, {vr(QLR, 2)}, {vr(Y, 32)} cbsz:1 abid:{kt % 2}"
    return m2, m3, m1


def pv_mfma(kt, X, T, t):
    c = "0" if (kt == 0 and t == 0) else ar(A_O + 16 * T, 16)
    return f"v_mfma_f32_32x32x16_bf16 {ar(A_O + 16 * T, 16)}, {ar(A_VT + 8 * kt + 4 * t, 4)}, {vr(X + 16 * T + 8 * t, 4)}, {c}"


def q_wload(ks, r, agpr=False):
    out = []
    if ks in (8, 16):
        out.append(f"v_add_u32 v{V_WQ}, 8192, v{V_WQ}")
    dst = ar(r, 4) if agpr else vr(r, 4)
    out.append(f"global_load_dwordx4 {dst}, v{V_WQ}, s[{S_WS}:{S_WS + 1}] offset:{(ks % 8) * 1024 - 4096} PLD")
    if ks == 17:
        out.append(f"v_add_u32 v{V_WQ}, {4 * 18432 - 16384}, v{V_WQ}")
    return out


class OStream:
    def __init__(self):
        self.base = 0

    def load(self, j, r):
        T, t = j // 9, j % 9
        off = (T * 36 + t) * 1024
        o = []
        if not (0 <= off - self.base <= 7168):
            o.append(f"v_add_u32 v{V_WO}, {off - self.base}, v{V_WO}")
            self.base = off
        o.append(f"global_load_dwordx4 {vr(r, 4)}, v{V_WO}, s[{S_WS}:{S_WS + 1}] offset:{off - self.base - 4096} PLD")
        if j == 17:
            o.append(f"v_add_u32 v{V_WO}, {72 * 1024 - self.base}, v{V_WO}")
            self.base = 0
        return o


def reduce_reads_g2():
    return [f"ds_read_b128 {vr(RT + 4 * w, 4)}, v{V_R2} offset:{w * 6144}" for w in range(4)]


def reduce_ops_g2():
    G = RT
    red = []
    red.append(f"v_pk_add_f32 {vr(G, 2)}, {vr(G, 2)}, {vr(G + 4, 2)}")
    red.append(f"v_pk_add_f32 {vr(G + 8, 2)}, {vr(G + 8, 2)}, {vr(G + 12, 2)}")
    red.append(f"v_add_f32 v{G + 2}, v{G + 2}, v{G + 6}")
    red.append(f"v_add_f32 v{G + 10}, v{G + 10}, v{G + 14}")
    red.append(f"v_pk_add_f32 {vr(G, 2)}, {vr(G, 2)}, {vr(G + 8, 2)}")
    red.append(f"v_add_f32 v{G + 2}, v{G + 2}, v{G + 10}")
    red.append(f"v_rcp_f32 v{V_RC}, v{G + 2}")
    red.append(f"v_subrev_u32 v{V_RC + 1}, {hx(L_LO)}, v{G + 2}")
    red.append(f"v_cmp_le_u32 vcc, {hx(L_RANGE)}, v{V_RC + 1}")
    red.append(f"v_pk_mul_f32 {vr(G, 2)}, {vr(G, 2)}, {vr(V_RC, 2)} op_sel_hi:[1,0]")
    red.append(f"v_cvt_pk_bf16_f32 v{V_RC + 1}, v{G}, v{G + 1}")
    red.append(f"s_or_b64 s[{S_FAIL}:{S_FAIL + 1}], s[{S_FAIL}:{S_FAIL + 1}], vcc")
    return red


def reduce_reads_main():
    return [f"ds_read_b128 {vr(RT + 4 * w, 4)}, v{V_R1} offset:{w * 6144}" for w in range(4)]


def reduce_ops_main():
    red = []
    for h in range(2):
        red.append(f"v_pk_add_f32 {vr(RT + 2 * h, 2)}, {vr(RT + 2 * h, 2)}, {vr(RT + 4 + 2 * h, 2)}")
        red.append(f"v_pk_add_f32 {vr(RT + 8 + 2 * h, 2)}, {vr(RT + 8 + 2 * h, 2)}, {vr(RT + 12 + 2 * h, 2)}")
    for h in range(2):
        red.append(f"v_pk_add_f32 {vr(RT + 2 * h, 2)}, {vr(RT + 2 * h, 2)}, {vr(RT + 8 + 2 * h, 2)}")
    for h in range(2):
        red.append(f"v_pk_mul_f32 {vr(RT + 2 * h, 2)}, {vr(RT + 2 * h, 2)}, {vr(V_RC, 2)} op_sel_hi:[1,0]")
    red.append(f"v_cvt_pk_bf16_f32 v{RT + 4}, v{RT}, v{RT + 1}")
    red.append(f"v_cvt_pk_bf16_f32 v{RT + 5}, v{RT + 2}, v{RT + 3}")
    return red


OL_WRITE = f"ds_write_b32 v{V_OLW}, v{V_RC + 1}"
OB_WRITE = f"ds_write_b64 v{V_OBW}, {vr(RT + 4, 2)}"


def reduce_plain(p):
    for t in reduce_reads_g2():
        p.e(t)
    for t in reduce_ops_g2():
        p.e(t)
    p.e(OL_WRITE)
    for t in reduce_reads_main():
        p.e(t)
    for t in reduce_ops_main():
        p.e(t)
    p.e(OB_WRITE)


XBLOC = [("v", 168), ("v", 172), ("v", 176), ("v", 92), ("v", 196), ("v", 248), ("v", 184),
         ("v", 216), ("v", 220), ("v", 224), ("v", 228), ("a", 240), ("a", 244), ("a", 248), ("a", 252),
         ("v", 200), ("v", 204), ("v", 208)]
NRES = 15


def xbreg(ks):
    k, r = XBLOC[ks]
    return (vr if k == "v" else ar)(r, 4)


def xb_resident_loads(p):
    for ks in range(NRES):
        p.e(f"ds_read_b128 {xbreg(ks)}, v{V_L16} offset:{LDS_XB + 1024 * ks}")


def phase_body(p, kind, hooks=None):
    first = kind == "first"
    last = kind == "last"
    X_ = os.environ.get("EXP", "")
    main = []
    for kt in range(16):
        X = SB[kt % 2]
        idx = 0
        for blk in range(4):
            b = X + 8 * blk
            for i in range(8):
                main.append((kt, idx, f"v_exp_f32 v{b + i}, v{b + i}"))
                idx += 1
            for i in range(4):
                main.append((kt, idx, f"v_cvt_pk_bf16_f32 v{b + i}, v{b + 2 * i}, v{b + 2 * i + 1}"))
                idx += 1
    mm = []
    for kt in range(16):
        X = SB[kt % 2]
        Y = SB[(kt + 1) % 2]
        nk = (kt + 1) % 16
        m2, m3, m1 = qk_mfmas(nk, Y)
        pk = (kt - 1) % 16
        has_prev = not (first and kt == 0)
        if has_prev:
            mm.append(dict(n=f"pv11_{pk}", t=pv_mfma(pk, Y, 1, 1), kt=kt, pos=1, req=[], pr=3))
        req2 = ["qread"] if kt == 15 else []
        if first and kt + 1 < 16:
            req2 = req2 + [f"kvn_{kt}"]
        if not (last and kt == 15):
            mm.append(dict(n=f"m2_{kt}", t=m2, kt=kt, pos=-1, req=req2, pr=0))
            mm.append(dict(n=f"m3_{kt}", t=m3, kt=kt, pos=-1, req=([f"pv11_{pk}"] if has_prev else []) + [f"m2_{kt}"], pr=1))
            mm.append(dict(n=f"m1_{kt}", t=m1, kt=kt, pos=-1, req=[], reqi=[(f"m3_{kt}", 10)], pr=2))
        mm.append(dict(n=f"pv00_{kt}", t=pv_mfma(kt, X, 0, 0), kt=kt, pos=13, req=(["wT0"] if (kt == 0 and not first) else []), pr=4))
        mm.append(dict(n=f"pv01_{kt}", t=pv_mfma(kt, X, 0, 1), kt=kt, pos=25, req=[f"pv00_{kt}"], pr=5))
        mm.append(dict(n=f"pv10_{kt}", t=pv_mfma(kt, X, 1, 0), kt=kt, pos=37, req=(["wT1"] if (kt == 0 and not first) else []), pr=6))
    side = []
    side2 = []

    def S(t, **kw):
        side.append(dict(t=t, **kw))

    TILE = int(os.environ.get('TILEM', '445')) if not first else 425
    ost = OStream()

    def ringload(i):
        r = WR + 4 * (i % NR)
        n = i + NR
        if first:
            return q_wload(n if n < 18 else n - 18, r)
        if last:
            if n < 18:
                return ost.load(n, r)
            return ost.load(n - 18, r)
        if n < 18:
            return q_wload(n, r)
        if n < 36:
            return ost.load(n - 18, r)
        return q_wload(n - 36, r)

    def ring(i):
        return vr(WR + 4 * (i % NR), 4)

    def red_stream(S_):
        rr = reduce_reads_g2()
        for i, t in enumerate(rr):
            S_(t, ev=("rread" if i == 3 else None))
        S_("NEED " + vr(RT, 16), reqc=[("rread", 280)])
        for t in reduce_ops_g2():
            S_(t)
        S_(OL_WRITE, wtok="OB")
        rr = reduce_reads_main()
        for i, t in enumerate(rr):
            S_(t, ev=("rread2" if i == 3 else None))
        S_("NEED " + vr(RT, 16), reqc=[("rread2", 280)])
        for t in reduce_ops_main():
            S_(t)
        S_(OB_WRITE, wtok="OB", ev="obw")
        S_(f"v_add_u32 v{V_OLW}, 256, v{V_OLW}")

    if last:
        TILE = 415
        for g in range(3):
            S(f"ds_write_b128 v{V_OPW}, {ar(A_O + 4 * g, 4)} offset:{g * 1024}", wtok="OP", ev=("wT0" if g == 2 else None))
        for g in range(3):
            S(f"ds_write_b128 v{V_OPW}, {ar(A_O + 16 + 4 * g, 4)} offset:{3072 + g * 1024}", wtok="OP",
              reqi=[("pv11_15", 13)] if g == 0 else [], ev=("wT1e" if g == 2 else None))
        side[-1]["ev"] = "wT1"
        for j in range(9):
            for t in ost.load(j, WR + 4 * j):
                S(t)
        S("WAIT OP", nb=TILE * 1.6)
        S("s_barrier", ev="B1")
        red_stream(S)
        if hooks and "preB2" in hooks:
            S("CALL preB2")
        S("WAIT OB", reqc=[("obw", 160)])
        S("s_barrier", ev="B2")
        for T in range(2):
            S(f"ds_read_b128 {vr(OF + 4 * T, 4)}, v{V_L16} offset:{A_OB + 1024 * T}", ev=("ofr" if T == 1 else None))
        o_t0 = TILE * 5.5
        o_dt = (16 * TILE - 400 - o_t0) / 18
        for j in range(18):
            T, t = j // 9, j % 9
            if j % 3 == 0:
                S("NEED " + ", ".join([ring(j + k) for k in range(3)] + ([vr(OF, 8)] if j == 0 else [])),
                  nb=o_t0 + o_dt * j - 8, reqc=[("ofr", 150)] if j == 0 else [])
            S(f"v_mfma_f32_16x16x32_bf16 {vr(XA + 4 * t, 4)}, {ring(j)}, {vr(OF + 4 * T, 4)}, {vr(XA + 4 * t, 4)}", nb=o_t0 + o_dt * j)
            for tt in ringload(j):
                S(tt)
            if hooks and "late" in hooks and j >= 9:
                nl = (len(hooks["late"]) + 8) // 9
                for tt in hooks["late"][nl * (j - 9):nl * (j - 9) + nl]:
                    S(tt, req=["m2_9"])
    else:
        if not first:
            for g in range(3):
                S(f"ds_write_b128 v{V_OPW}, {ar(A_O + 4 * g, 4)} offset:{g * 1024}", wtok="OP", ev=("wT0" if g == 2 else None))
        if not first:
            for g in range(3):
                S(f"ds_write_b128 v{V_OPW}, {ar(A_O + 16 + 4 * g, 4)} offset:{3072 + g * 1024}", wtok="OP",
                  reqi=[("pv11_15", 13)] if g == 0 else [], ev=("wT1" if g == 2 else None))

        def qstep(i, nb):
            if i % 3 == 0:
                need = [ring(i + k) for k in range(3)]
                if i == 15:
                    need += [xbreg(k) for k in range(NRES, 18)]
                S("NEED " + ", ".join(need), nb=nb - 8)
            c = "0" if i == 0 else vr(QA, 4)
            S(f"v_mfma_f32_16x16x32_bf16 {vr(QA, 4)}, {ring(i)}, {xbreg(i)}, {c}", nb=nb, ev=f"q{i}")
            for t in ringload(i):
                S(t)
            if i == 12:
                for k in range(NRES, 18):
                    S(f"ds_read_b128 {xbreg(k)}, v{V_L16} offset:{LDS_XB + 1024 * k}", req=([] if first else ["obw"]))

        q_t0 = TILE * float(os.environ.get('QT0', '1.1'))
        q_dt = int(os.environ.get('QDT', '175'))
        if first:
            q_t0 = TILE * 1.5
            q_dt = 270
            for i in range(18):
                qstep(i, q_t0 + q_dt * i)
        else:
            for i in range(0, 3):
                qstep(i, q_t0 + q_dt * i)
            S("WAIT OP")
            S("s_barrier", ev="B1")
            red_stream(lambda t, **kw: side2.append(dict(t=t, **kw)))
            side2[0]["req"] = ["B1"]
            for i in range(3, 18):
                qstep(i, q_t0 + q_dt * i)
        S(f"v_cvt_pk_bf16_f32 v{QA}, v{QA}, v{QA + 1}", reqi=[("q17", 9)])
        S(f"v_cvt_pk_bf16_f32 v{QA + 1}, v{QA + 2}, v{QA + 3}")
        S(f"ds_write_b64 v{V_QFW}, {vr(QA, 2)}", wtok="OB", ev="qfw")
        S("WAIT OB", reqc=[("qfw", 140)], req=([] if first else ["obw"]))
        S("s_barrier", ev="B2")
        if not first:
            for T in range(2):
                S(f"ds_read_b128 {vr(OF + 4 * T, 4)}, v{V_L16} offset:{A_OB + 1024 * T}", ev=("ofr" if T == 1 else None))
            o_t0 = q_t0 + q_dt * 18 + 380
            o_dt = (16 * TILE - 300 - o_t0) / 18
            for j in range(18):
                i = 18 + j
                T, t = j // 9, j % 9
                if j % 3 == 0:
                    S("NEED " + ", ".join([ring(i + k) for k in range(3)] + ([vr(OF, 8)] if j == 0 else [])),
                      nb=o_t0 + o_dt * j - 8, reqc=[("ofr", 150)] if j == 0 else [])
                S(f"v_mfma_f32_16x16x32_bf16 {vr(XA + 4 * t, 4)}, {ring(i)}, {vr(OF + 4 * T, 4)}, {vr(XA + 4 * t, 4)}", nb=o_t0 + o_dt * j)
                for tt in ringload(i):
                    S(tt)
    kvs = []
    if first:
        for kt in range(16):
            tau = kt + KV_AHEAD
            if kt + 1 < 16:
                need = [ar(A_K0 + 4 * (kt + 1), 4), ar(A_KL + 2 * ((kt + 1) // 2), 2), ar(A_VT + 8 * kt, 8)]
                kvs.append(dict(t="NEED " + ", ".join(need), kt=kt, ev=f"kvn_{kt}"))
            else:
                kvs.append(dict(t="NEED " + ar(A_VT + 8 * kt, 8), kt=kt))
            if tau < 16:
                for t in kv_tile_loads(tau):
                    kvs.append(dict(t=t, kt=kt))
    qread = [] if last else [f"ds_read_b128 {vr(QC, 4)}, v{V_QFR}",
             f"ds_read_b128 {vr(QC + 4, 4)}, v{V_QFR} offset:1024",
             f"v_add_u32 v{V_QL}, 256, v{V_QL}",
             f"ds_read_b32 v{QLR}, v{V_QL}"]
    if X_:
        raise RuntimeError("experiments not supported in this version")

    XP_ = os.environ.get("PEXP", "")
    if XP_:
        for d in side:
            t = d["t"]
            if "nowl" in XP_ and t.startswith("global_load_dwordx4 v"):
                d["t"] = "s_nop 0"
            if "noxb" in XP_ and t.startswith("ds_read_b128") and f"v{V_L16} offset" in t:
                d["t"] = "s_nop 0"
            if "nobar" in XP_ and t.startswith("s_barrier"):
                d["t"] = "s_nop 0"
            if "nowr" in XP_ and t.startswith("ds_write_b128"):
                d["t"] = "s_nop 0"
                d["wtok"] = None
            if "nosm" in XP_ and "16x16x32" in t:
                d["t"] = "s_nop 0"
        if "pad" in XP_:
            nm_ = []
            for (kt_, idx_, t_) in main:
                nm_.append((kt_, idx_, t_))
                if idx_ in (7, 19, 31, 43):
                    nm_.append((kt_, idx_, "s_nop 7" if "pad7" in XP_ else "s_nop 15"))
            main[:] = nm_
        for i, (kt_, idx_, t_) in enumerate(main):
            if "nocvt" in XP_ and t_.startswith("v_cvt"):
                main[i] = (kt_, idx_, "s_nop 0")
            if "noexp" in XP_ and t_.startswith("v_exp"):
                r_ = t_.split()[1]
                main[i] = (kt_, idx_, f"v_mov_b32 {r_} {r_[:-1]}")
        for d in mm:
            if "nom1" in XP_ and d["n"].startswith("m1_"):
                d["t"] = "s_nop 0"
            if "nopv" in XP_ and d["n"].startswith("pv"):
                d["t"] = "s_nop 0"
            if "noqk" in XP_ and d["n"].startswith(("m2_", "m3_")):
                d["t"] = "s_nop 0"
    now = 0
    pipe_free = 0
    nins = 0
    ev_i, ev_t = {}, {}
    mi = si = qi = ki = s2i = 0
    done = set()
    out = []

    def emit(t, wtok=None, ev=None):
        nonlocal now, pipe_free, nins
        if t.startswith("WAIT"):
            out.append(("wait", t.split()[1]))
            now += 4
            nins += 1
        elif t.startswith("CALL"):
            out.append(("call", t.split()[1]))
            now += 12
            nins += 3
        elif t.startswith("NEED"):
            out.append(("need", t[5:]))
            now += 4
            nins += 1
        else:
            pd = pipe(t)
            if pd:
                if pipe_free > now:
                    now = pipe_free
                pipe_free = now + pd
            now += cost(t)
            nins += 1
            out.append(("e", t, wtok))
        if ev:
            ev_i[ev] = nins
            ev_t[ev] = now
            done.add(ev)

    def ready(d):
        for r in d.get("req", []):
            if r not in done:
                return False
        for r, n in d.get("reqi", []) or []:
            if r not in done or nins - ev_i[r] < n:
                return False
        for r, c in d.get("reqc", []) or []:
            if r not in done or now - ev_t[r] < c:
                return False
        if d.get("nb") is not None and now < d["nb"]:
            return False
        return True

    pend = list(mm)
    side_since = 0
    while mi < len(main) or pend or si < len(side) or qi < len(qread) or ki < len(kvs) or s2i < len(side2):
        kt = main[mi][0] if mi < len(main) else 16
        pos = main[mi][1] - 1 if mi < len(main) else 99
        if ki < len(kvs) and kvs[ki]["kt"] <= kt and side_since < 2:
            d = kvs[ki]
            emit(d["t"], ev=d.get("ev"))
            ki += 1
            side_since += 1 if not d["t"].startswith("NEED") else 0
            continue
        cand = [d for d in pend if (d["kt"] < kt or (d["kt"] == kt and pos >= d["pos"])) and ready(d)]
        cand.sort(key=lambda d: (d["kt"], d["pr"]))
        if cand and (pipe_free <= now or mi >= len(main)):
            d = cand[0]
            emit(d["t"], ev=d["n"])
            pend.remove(d)
            continue
        if qi < len(qread) and "m1_14" in done and "B2" in done:
            emit(qread[qi], ev=("qread" if qi == len(qread) - 1 else None))
            qi += 1
            continue
        if s2i < len(side2) and side_since < 1 and (ready(side2[s2i]) or mi >= len(main)):
            d = side2[s2i]
            emit(d["t"], d.get("wtok"), d.get("ev"))
            s2i += 1
            side_since += 1
            continue
        if si < len(side) and side_since < SIDE_MAX:
            d = side[si]
            ok = ready(d)
            if ok and pipe(d["t"]):
                if pipe_free > now or cand:
                    ok = False
            if ok or mi >= len(main):
                emit(d["t"], d.get("wtok"), d.get("ev"))
                si += 1
                side_since += 1
                continue
        if mi < len(main):
            emit(main[mi][2])
            mi += 1
            side_since = 0
            continue
        if pend:
            d = sorted(pend, key=lambda d: (d["kt"], d["pr"]))[0]
            emit(d["t"], ev=d["n"])
            pend.remove(d)
            continue
        raise RuntimeError("scheduler stuck")
    for o in out:
        if o[0] == "wait":
            p.wait_tok(o[1])
        elif o[0] == "need":
            p.need(o[1])
        elif o[0] == "call":
            hooks[o[1]]()
        else:
            p.e(o[1], wtok=o[2])
    return now


QW = 148


def q_main_loads(p, W=QW):
    for ks in range(18):
        for t in q_wload(ks, W + 4 * ks):
            p.e(t)


def _proj_chain(p, W, agpr=False):
    R_ = ar if agpr else vr
    wreg = W if callable(W) else (lambda ks: W + 4 * ks)
    for ks in range(18):
        if ks == 0:
            for k in range(2):
                p.e(f"ds_read_b128 {vr(XR2 + 4 * (k % 3), 4)}, v{V_L16} offset:{LDS_XB + 1024 * k}")
        if ks + 2 < 18:
            p.e(f"ds_read_b128 {vr(XR2 + 4 * ((ks + 2) % 3), 4)}, v{V_L16} offset:{LDS_XB + 1024 * (ks + 2)}")
        c = "0" if ks == 0 else vr(QA2, 4)
        p.e(f"v_mfma_f32_16x16x32_bf16 {vr(QA2, 4)}, {R_(wreg(ks), 4)}, {vr(XR2 + 4 * (ks % 3), 4)}, {c}")


XR2, QA2, QT2 = 220, 88, 92


def q_left(p, name, both_on=None, W2=16):
    a = V_T0
    t = S_T0

    def one(qexpr_const, tag):
        p.e(f"s_mul_i32 s{t}, s{S_HH}, {L.WQF_HH}")
        if qexpr_const is None:
            p.e(f"s_sub_u32 s{t + 1}, s{S_W}, 2")
        else:
            p.e(f"s_mov_b32 s{t + 1}, {qexpr_const}")
        p.e(f"s_mul_i32 s{t + 2}, s{t + 1}, 18432")
        p.e(f"s_add_u32 s{t}, s{t}, s{t + 2}")
        p.e(f"s_add_u32 s{t}, s{t}, {hx(L.WQF + 16 * 18432 + 4096)}")
        p.e(f"v_add_u32 v{a}, s{t}, v{V_L16}")
        for ks in range(18):
            if ks in (8, 16):
                p.e(f"v_add_u32 v{a}, 8192, v{a}")
            p.e(f"global_load_dwordx4 {vr(W2 + 4 * ks, 4)}, v{a}, s[{S_WS}:{S_WS + 1}] offset:{(ks % 8) * 1024 - 4096} PLD")
        _proj_chain(p, W2)
        p.e(f"v_cvt_pk_bf16_f32 v{QT2}, v{QA2}, v{QA2 + 1}")
        p.e(f"v_cvt_pk_bf16_f32 v{QT2 + 1}, v{QA2 + 2}, v{QA2 + 3}")
        p.e(f"s_lshl_b32 s{t + 1}, s{t + 1}, 9")
        p.e(f"s_add_u32 s{t + 1}, s{t + 1}, {A_QL}")
        p.e(f"v_lshlrev_b32 v{a}, 2, v{V_LANE}")
        p.e(f"v_add_u32 v{a}, s{t + 1}, v{a}")
        p.e(f"ds_write_b32 v{a}, v{QT2}")
        p.e(f"ds_write_b32 v{a}, v{QT2 + 1} offset:256")

    if both_on is not None:
        p.e(f"s_cmp_lg_u32 s{S_W}, {both_on}")
        p.e(f"s_cbranch_scc1 {name}_nol")
        p.if_begin()
        one(0, "a")
        one(1, "b")
    else:
        p.e(f"s_cmp_lt_u32 s{S_W}, 2")
        p.e(f"s_cbranch_scc1 {name}_nol")
        p.if_begin()
        one(None, "a")
    p.label(f"{name}_nol")
    p.if_end()


QWA = 112


def qwl(ks):
    return 16 + 4 * ks if ks < 12 else 184 + 4 * (ks - 12)


V_QLA = 249


def q_pref_list(left):
    out = []
    for ks in range(18):
        out += q_wload(ks, QWA + 4 * ks, agpr=True)
    if left:
        for ks in range(18):
            if ks in (8, 16):
                out.append(f"v_add_u32 v{V_QLA}, 8192, v{V_QLA}")
            out.append(f"global_load_dwordx4 {ar(qwl(ks), 4)}, v{V_QLA}, s[{S_WS}:{S_WS + 1}] offset:{(ks % 8) * 1024 - 4096} PLD")
    return out


def q_left_addr(p):
    t = S_T0
    p.e(f"s_mul_i32 s{t}, s{S_HH}, {L.WQF_HH}")
    p.e(f"s_and_b32 s{t + 1}, s{S_W}, 1")
    p.e(f"s_mul_i32 s{t + 2}, s{t + 1}, 18432")
    p.e(f"s_add_u32 s{t}, s{t}, s{t + 2}")
    p.e(f"s_add_u32 s{t}, s{t}, {hx(L.WQF + 16 * 18432 + 4096)}")
    p.e(f"v_add_u32 v{V_QLA}, s{t}, v{V_L16}")


def q_left_compute(p, name):
    a = V_T0
    t = S_T0
    _proj_chain(p, qwl, agpr=True)
    p.e(f"v_cvt_pk_bf16_f32 v{QT2}, v{QA2}, v{QA2 + 1}")
    p.e(f"v_cvt_pk_bf16_f32 v{QT2 + 1}, v{QA2 + 2}, v{QA2 + 3}")
    p.e(f"s_sub_u32 s{t + 1}, s{S_W}, 2")
    p.e(f"s_lshl_b32 s{t + 1}, s{t + 1}, 9")
    p.e(f"s_add_u32 s{t + 1}, s{t + 1}, {A_QL}")
    p.e(f"v_lshlrev_b32 v{a}, 2, v{V_LANE}")
    p.e(f"v_add_u32 v{a}, s{t + 1}, v{a}")
    p.e(f"ds_write_b32 v{a}, v{QT2}")
    p.e(f"ds_write_b32 v{a}, v{QT2 + 1} offset:256")


def q_main_compute(p, W=QW, agpr=False):
    _proj_chain(p, W, agpr)
    p.e(f"v_cvt_pk_bf16_f32 v{QT2}, v{QA2}, v{QA2 + 1}")
    p.e(f"v_cvt_pk_bf16_f32 v{QT2 + 1}, v{QA2 + 2}, v{QA2 + 3}")
    p.e(f"ds_write_b64 v{V_QFW}, {vr(QT2, 2)}")
    for i in range(NR):
        for t in q_wload(i, WR + 4 * i):
            p.e(t)
    p.e("s_waitcnt lgkmcnt(0)")
    p.e("s_barrier")
    p.e(f"ds_read_b128 {vr(QC, 4)}, v{V_QFR}")
    p.e(f"ds_read_b128 {vr(QC + 4, 4)}, v{V_QFR} offset:1024")
    p.e(f"ds_read_b32 v{QLR}, v{V_QL}")
    p.e(f"v_mov_b32 v{QLR + 1}, 0")
    xb_resident_loads(p)


def zero_xa(p):
    for i in range(36):
        p.e(f"v_mov_b32 v{XA + i}, 0")


def kv_first_loads(p):
    for tau in range(KV_AHEAD):
        for t in kv_tile_loads(tau):
            p.e(t)


def attention_layer(p, name, stamp=lambda *a, **k: None, tail_hook=None, after_first=None, pre_last=None, hooks=None):
    def lstamp(k):
        if os.environ.get("LSTAMP"):
            p.e("s_lshl_b32 s3, s83, 2")
            stamp(p, 40 + k, 3)

    p.e(f"s_mov_b64 s[{S_FAIL}:{S_FAIL + 1}], 0")
    m2, m3, m1 = qk_mfmas(0, SB[0])
    p.e(m2)
    p.e(m3)
    p.e(m1)
    p.e("s_nop 15")
    p.e("s_nop 4")
    stamp(p, 20)
    lstamp(0)
    e0 = phase_body(p, "first")
    lstamp(1)
    if after_first is not None:
        after_first()
    stamp(p, 21)
    p.e(f"s_mov_b32 s{S_PH}, 1")
    p.loop_begin(name + "_ph")
    e1 = phase_body(p, "mid")
    stamp(p, 21, S_PH)
    p.e(f"s_add_u32 s{S_PH}, s{S_PH}, 1")
    p.e(f"s_cmp_lt_u32 s{S_PH}, 3")
    p.e(f"s_cbranch_scc1 {name}_ph")
    p.loop_end()
    if pre_last is not None:
        pre_last()
    lstamp(2)
    e2 = phase_body(p, "last", hooks)
    lstamp(3)
    stamp(p, 24)
    if tail_hook is not None:
        tail_hook()
    p.e(pv_mfma(15, SB[1], 1, 1))
    W = 16
    base8 = 8 * 1024

    def wl(j):
        if j < 18:
            T, t = j // 9, j % 9
            off, reg = (T * 36 + t) * 1024, W + 4 * (j - 9)
        else:
            off, reg = (72 + j - 18) * 1024, W + 36 + 4 * (j - 18)
        p.e(f"v_add_u32 v{V_T0}, {off - base8}, v{V_WO}")
        p.e(f"global_load_dwordx4 {vr(reg, 4)}, v{V_T0}, s[{S_WS}:{S_WS + 1}] offset:-4096 PLD")

    for g in range(3):
        p.e(f"ds_write_b128 v{V_OPW}, {ar(A_O + 4 * g, 4)} offset:{g * 1024}")
    for j in range(9, 13):
        wl(j)
    for g in range(3):
        p.e(f"ds_write_b128 v{V_OPW}, {ar(A_O + 16 + 4 * g, 4)} offset:{3072 + g * 1024}")
    for j in range(13, 18):
        wl(j)
    p.e("s_waitcnt lgkmcnt(0)")
    p.e("s_barrier")
    for t in reduce_reads_g2():
        p.e(t)
    for w in range(4):
        p.e(f"ds_read_b128 {vr(216 + 4 * w, 4)}, v{V_R1} offset:{w * 6144}")
    for j in range(18, 27):
        wl(j)
    for t in reduce_ops_g2():
        p.e(t)
    p.e(OL_WRITE)
    for t in reduce_ops_main():
        import re as _re
        def sh(m):
            a_, b_ = m.group(1), m.group(2)
            return f"v[{int(a_) + 16}:{int(b_) + 16}]" if RT <= int(a_) < RT + 16 else m.group(0)
        t2 = _re.sub(r"v\[(\d+):(\d+)\]", sh, t)
        t2 = _re.sub(r"(?<![\w\[:])v(\d+)(?![\w:])", lambda m: f"v{int(m.group(1)) + 16}" if RT <= int(m.group(1)) < RT + 16 else m.group(0), t2)
        p.e(t2)
    p.e(f"ds_write_b64 v{V_OBW}, {vr(RT + 16 + 4, 2)}")
    fail_publish(p)
    p.e("s_waitcnt lgkmcnt(0)")
    p.e("s_barrier")
    for T in range(2):
        p.e(f"ds_read_b128 {vr(OF + 4 * T, 4)}, v{V_L16} offset:{A_OB + 1024 * T}")
    p.e(f"ds_read_b128 {vr(OFL, 4)}, v{V_L16} offset:{A_OL}")
    fail_read(p)
    p.need(vr(WR, 36))
    for j in range(9):
        p.e(f"v_mfma_f32_16x16x32_bf16 {vr(XA + 4 * j, 4)}, {vr(WR + 4 * j, 4)}, {vr(OF, 4)}, {vr(XA + 4 * j, 4)}")
    p.need(vr(W, 36))
    for j in range(9, 18):
        p.e(f"v_mfma_f32_16x16x32_bf16 {vr(XA + 4 * (j - 9), 4)}, {vr(W + 4 * (j - 9), 4)}, {vr(OF + 4, 4)}, {vr(XA + 4 * (j - 9), 4)}")
    p.need(vr(W + 36, 36))
    for t in range(9):
        p.e(f"v_mfma_f32_16x16x32_bf16 {vr(XA + 4 * t, 4)}, {vr(W + 36 + 4 * t, 4)}, {vr(OFL, 4)}, {vr(XA + 4 * t, 4)}")
    fail_branch(p, name + "_slow")
    p.label(name + "_slow_back")
    return e0, e1


def fail_publish(p):
    p.e(f"s_cmp_lg_u64 s[{S_FAIL}:{S_FAIL + 1}], 0")
    p.e(f"s_cselect_b32 s{S_T0}, 1, 0")
    p.e(f"s_lshl_b32 s{S_T0 + 1}, s{S_W}, 2")
    p.e(f"s_add_u32 s{S_T0 + 1}, s{S_T0 + 1}, {A_FL}")
    p.e(f"v_mov_b32 v{V_T0 + 1}, s{S_T0}")
    p.e(f"v_mov_b32 v{V_T0 + 2}, s{S_T0 + 1}")
    p.e(f"ds_write_b32 v{V_T0 + 2}, v{V_T0 + 1}")


def fail_read(p):
    p.e(f"v_mov_b32 v{V_T0 + 2}, {A_FL}")
    p.e(f"ds_read_b128 {vr(RT, 4)}, v{V_T0 + 2}")


def fail_branch(p, slow):
    p.e(f"v_or3_b32 v{RT}, v{RT}, v{RT + 1}, v{RT + 2}")
    p.e(f"v_or_b32 v{RT}, v{RT}, v{RT + 3}")
    p.e(f"v_readfirstlane_b32 s{S_T0}, v{RT}")
    p.e(f"s_cmp_lg_u32 s{S_T0}, 0")
    p.e(f"s_cbranch_scc1 {slow}")


def slow_path(p, name, back):
    vK, vL, vV, mx0, mx1, tm = 8, 9, 10, 11, 12, 13
    KT, LT, VT0 = 148, 152, 156
    S0 = SB[0]
    p.e("s_waitcnt vmcnt(0) lgkmcnt(0)")
    p.e("s_barrier")
    addr_setup(p)
    weight_ptr_setup(p)
    for i in range(36):
        p.e(f"v_mov_b32 v{XA + i}, 0")
    p.e(f"s_mov_b32 s{S_PH}, 0")

    def kv_ptrs():
        p.e(f"v_subrev_u32 v{vK}, 4096, v{V_KA}")
        p.e(f"v_and_b32 v{vL}, 31, v{V_LANE}")
        p.e(f"v_lshlrev_b32 v{vL}, 3, v{vL}")
        p.e(f"s_lshl_b32 s{S_T0}, s{S_W}, 12")
        p.e(f"s_add_u32 s{S_T0}, s{S_T0}, {hx(L.KV_KL)}")
        p.e(f"v_add_u32 v{vL}, s{S_T0}, v{vL}")
        p.e(f"v_subrev_u32 v{vV}, 4096, v{V_VA}")

    def qk():
        p.e(f"v_mfma_f32_32x32x16_bf16 {vr(S0, 16)}, {vr(KT, 4)}, {vr(QC, 4)}, 0")
        p.e(f"v_mfma_f32_32x32x16_bf16 {vr(S0 + 16, 16)}, {vr(KT, 4)}, {vr(QC + 4, 4)}, 0")
        p.e(f"v_mfma_f32_32x32x4_2b_bf16 {vr(S0, 32)}, {vr(LT, 2)}, {vr(QLR, 2)}, {vr(S0, 32)} cbsz:1 abid:0")

    p.fence()
    p.label(name + "_ph")
    q_main_loads(p)
    _proj_chain(p, QW)
    p.e(f"v_cvt_pk_bf16_f32 v{QT2}, v{QA2}, v{QA2 + 1}")
    p.e(f"v_cvt_pk_bf16_f32 v{QT2 + 1}, v{QA2 + 2}, v{QA2 + 3}")
    p.e(f"ds_write_b64 v{V_QFW}, {vr(QT2, 2)}")
    p.e("s_waitcnt lgkmcnt(0)")
    p.e("s_barrier")
    p.e(f"ds_read_b128 {vr(QC, 4)}, v{V_QFR}")
    p.e(f"ds_read_b128 {vr(QC + 4, 4)}, v{V_QFR} offset:1024")
    p.e(f"ds_read_b32 v{QLR}, v{V_QL}")
    p.e(f"v_mov_b32 v{QLR + 1}, 0")
    kv_ptrs()
    p.e(f"v_mov_b32 v{mx0}, 0xff800000")
    p.e(f"v_mov_b32 v{mx1}, 0xff800000")
    p.e(f"s_mov_b32 s{S_T0 + 5}, 16")
    p.e("s_waitcnt vmcnt(0) lgkmcnt(0)")
    p.loop_begin(name + "_mx")
    p.e(f"global_load_dwordx4 {vr(KT, 4)}, v{vK}, {sr(S_KV, 2)} PLD")
    p.e(f"global_load_dwordx2 {vr(LT, 2)}, v{vL}, {sr(S_KV, 2)} PLD")
    p.e(f"v_add_u32 v{vK}, 1024, v{vK}")
    p.e(f"v_add_u32 v{vL}, 256, v{vL}")
    qk()
    for i in range(8):
        p.e(f"v_max3_f32 v{mx0}, v{mx0}, v{S0 + 2 * i}, v{S0 + 2 * i + 1}")
        p.e(f"v_max3_f32 v{mx1}, v{mx1}, v{S0 + 16 + 2 * i}, v{S0 + 16 + 2 * i + 1}")
    p.e(f"s_sub_u32 s{S_T0 + 5}, s{S_T0 + 5}, 1")
    p.e(f"s_cmp_lg_u32 s{S_T0 + 5}, 0")
    p.e(f"s_cbranch_scc1 {name}_mx")
    p.loop_end()
    for m in (mx0, mx1):
        p.e(f"v_mov_b32 v{tm}, v{m}")
        p.e(f"v_permlane32_swap_b32 v{m}, v{tm}")
        p.e(f"v_max_f32 v{m}, v{m}, v{tm}")
    p.e(f"v_cmp_gt_u32 vcc, 32, v{V_LANE}")
    p.e(f"v_cndmask_b32 v{mx0}, v{mx1}, v{mx0}, vcc")
    p.e(f"s_lshl_b32 s{S_T0}, s{S_W}, 8")
    p.e(f"s_add_u32 s{S_T0}, s{S_T0}, {A_OP}")
    p.e(f"v_lshlrev_b32 v{tm}, 2, v{V_LANE}")
    p.e(f"v_add_u32 v{mx1}, s{S_T0}, v{tm}")
    p.e(f"ds_write_b32 v{mx1}, v{mx0}")
    p.e("s_waitcnt lgkmcnt(0)")
    p.e("s_barrier")
    p.e(f"v_add_u32 v{tm}, {A_OP}, v{tm}")
    for w in range(4):
        p.e(f"ds_read_b32 v{RT + w}, v{tm} offset:{256 * w}")
    p.e(f"v_max3_f32 v{RT}, v{RT}, v{RT + 1}, v{RT + 2}")
    p.e(f"v_max_f32 v{RT}, v{RT}, v{RT + 3}")
    p.e(f"v_sub_f32 v{RT}, 0, v{RT}")
    p.e(f"v_cvt_pk_bf16_f32 v{RT + 1}, v{RT}, v{RT}")
    p.e(f"v_lshlrev_b32 v{RT + 1}, 16, v{RT + 1}")
    p.e(f"v_sub_f32 v{RT + 1}, v{RT}, v{RT + 1}")
    p.e(f"v_cvt_pk_bf16_f32 v{QLR + 1}, v{RT}, v{RT + 1}")
    p.e("s_waitcnt lgkmcnt(0)")
    p.e("s_barrier")
    kv_ptrs()
    for i in range(32):
        p.e(f"v_accvgpr_write_b32 a{A_O + i}, 0")
    p.e(f"s_mov_b32 s{S_T0 + 5}, 16")
    p.e("s_nop 4")
    p.loop_begin(name + "_pv")
    p.e(f"global_load_dwordx4 {vr(KT, 4)}, v{vK}, {sr(S_KV, 2)} PLD")
    p.e(f"global_load_dwordx2 {vr(LT, 2)}, v{vL}, {sr(S_KV, 2)} PLD")
    p.e(f"global_load_dwordx4 {vr(VT0, 4)}, v{vV}, {sr(S_KV, 2)} PLD")
    p.e(f"global_load_dwordx4 {vr(VT0 + 4, 4)}, v{vV}, {sr(S_KV, 2)} offset:1024 PLD")
    p.e(f"v_add_u32 v{vK}, 1024, v{vK}")
    p.e(f"v_add_u32 v{vL}, 256, v{vL}")
    p.e(f"v_add_u32 v{vV}, 2048, v{vV}")
    qk()
    for blk in range(4):
        b = S0 + 8 * blk
        for i in range(8):
            p.e(f"v_exp_f32 v{b + i}, v{b + i}")
        for i in range(4):
            p.e(f"v_cvt_pk_bf16_f32 v{b + i}, v{b + 2 * i}, v{b + 2 * i + 1}")
    for T in range(2):
        for t in range(2):
            p.e(f"v_mfma_f32_32x32x16_bf16 {ar(A_O + 16 * T, 16)}, {vr(VT0 + 4 * t, 4)}, {vr(S0 + 16 * T + 8 * t, 4)}, {ar(A_O + 16 * T, 16)}")
    p.e(f"s_sub_u32 s{S_T0 + 5}, s{S_T0 + 5}, 1")
    p.e(f"s_cmp_lg_u32 s{S_T0 + 5}, 0")
    p.e(f"s_cbranch_scc1 {name}_pv")
    p.loop_end()
    for T in range(2):
        for g in range(3):
            p.e(f"ds_write_b128 v{V_OPW}, {ar(A_O + 16 * T + 4 * g, 4)} offset:{3072 * T + g * 1024}")
    p.e("s_waitcnt lgkmcnt(0)")
    p.e("s_barrier")
    reduce_plain(p)
    p.e(f"v_add_u32 v{V_OLW}, 256, v{V_OLW}")
    p.e("s_waitcnt lgkmcnt(0)")
    p.e("s_barrier")
    for T in range(2):
        p.e(f"ds_read_b128 {vr(OF + 4 * T, 4)}, v{V_L16} offset:{A_OB + 1024 * T}")
    W = 16
    for j in range(18):
        T, t = j // 9, j % 9
        p.e(f"v_add_u32 v{V_T0}, {(T * 36 + t) * 1024}, v{V_WO}")
        p.e(f"global_load_dwordx4 {vr(W + 4 * j, 4)}, v{V_T0}, s[{S_WS}:{S_WS + 1}] offset:-4096 PLD")
    for j in range(18):
        T, t = j // 9, j % 9
        p.e(f"v_mfma_f32_16x16x32_bf16 {vr(XA + 4 * t, 4)}, {vr(W + 4 * j, 4)}, {vr(OF + 4 * T, 4)}, {vr(XA + 4 * t, 4)}")
    p.e(f"v_add_u32 v{V_WO}, {72 * 1024}, v{V_WO}")
    p.e(f"v_add_u32 v{V_QL}, 256, v{V_QL}")
    p.e(f"s_add_u32 s{S_PH}, s{S_PH}, 1")
    p.e("s_waitcnt vmcnt(0) lgkmcnt(0)")
    p.e("s_nop 15")
    p.e("s_barrier")
    p.e(f"s_cmp_lt_u32 s{S_PH}, 4")
    p.e(f"s_cbranch_scc1 {name}_ph")
    p.fence()
    p.e(f"ds_read_b128 {vr(OFL, 4)}, v{V_L16} offset:{A_OL}")
    for t in range(9):
        p.e(f"v_add_u32 v{V_T0}, {t * 1024}, v{V_WO}")
        p.e(f"global_load_dwordx4 {vr(W + 4 * t, 4)}, v{V_T0}, s[{S_WS}:{S_WS + 1}] offset:-4096 PLD")
    for t in range(9):
        p.e(f"v_mfma_f32_16x16x32_bf16 {vr(XA + 4 * t, 4)}, {vr(W + 4 * t, 4)}, {vr(OFL, 4)}, {vr(XA + 4 * t, 4)}")
    p.e("s_waitcnt vmcnt(0) lgkmcnt(0)")
    p.e("s_nop 15")
    p.e(f"s_branch {back}")
```
